```python
import torch

def _softmax(x, axis=-1):
    return torch.softmax(x, dim=axis)

def _gelu(x):
    return torch.nn.functional.gelu(x, approximate='tanh')

def _silu(x):
    return torch.nn.functional.silu(x)

def _sigmoid(x):
    return torch.sigmoid(x)

def _layernorm(x, axis=-1, eps=1e-05):
    m = x.mean(dim=axis, keepdim=True)
    v = x.var(dim=axis, keepdim=True, unbiased=False)
    return (x - m) / torch.sqrt(v + eps)

def _scatter_add(tgt, idx, src, axis=0):
    return tgt.clone().index_add_(axis, idx, src)

def _segment_sum(src, seg, n):
    out = torch.zeros((n,) + src.shape[1:], dtype=src.dtype)
    return out.index_add_(0, seg, src)

def _pad(x, pw):
    flat = tuple((v for pair in reversed(pw) for v in pair))
    return torch.nn.functional.pad(x, flat)
kernel_name = 'adaLN_cond__gqa_block_cached__mixer_token_mlp__decode'

def setup_inputs():

    _w = lambda a: (lambda t: t.to(torch.bfloat16) if t.is_floating_point() else t)(torch.as_tensor(a))

    def _A_setup():
        B, Sq, D = (1, 1, 1024)
        Hq, Hkv, Sk, Dh = (32, 4, 65536, 128)
        assert Hq % Hkv == 0, (Hq, Hkv)
        return {'x': _w((lambda *s: torch.randn(*s, dtype=torch.bfloat16) * 0.1)(B, Sq, D)), 'k_cache': _w((lambda *s: torch.randn(*s, dtype=torch.bfloat16) * 3.2)(B, Hkv, Sk, Dh)), 'v_cache': _w((lambda *s: torch.randn(*s, dtype=torch.bfloat16) * 1.6)(B, Hkv, Sk, Dh)), 'wq': _w((lambda *s: torch.randn(*s, dtype=torch.bfloat16) * 3.2)(D, Hq * Dh) * D ** (-0.5)), 'wo': _w((lambda *s: torch.randn(*s, dtype=torch.bfloat16) * 1.6)(Hq * Dh, D) * (Hq * Dh) ** (-0.5))}
    _A_in = _A_setup()

    def _B_setup():
        B, S, D, F = (1, 1, 1024, 3584)
        return {'x': _w((lambda *s: torch.randn(*s, dtype=torch.bfloat16) * 0.1)(B, S, D)), 'w1': _w((lambda *s: torch.randn(*s, dtype=torch.bfloat16) * 1.6)(S, F) * S ** (-0.5)), 'b1': _w((lambda *s: torch.randn(*s, dtype=torch.bfloat16) * 1.6)(F) * 0.02), 'w2': _w((lambda *s: torch.randn(*s, dtype=torch.bfloat16) * 1.6)(F, S) * F ** (-0.5)), 'b2': _w((lambda *s: torch.randn(*s, dtype=torch.bfloat16) * 1.6)(S) * 0.02)}
    _B_in = _B_setup()
    return {'A_x': _A_in['x'], 'A_k_cache': _A_in['k_cache'], 'A_v_cache': _A_in['v_cache'], 'A_wq': _A_in['wq'], 'A_wo': _A_in['wo'], 'B_x': _B_in['x'], 'B_w1': _B_in['w1'], 'B_b1': _B_in['b1'], 'B_w2': _B_in['w2'], 'B_b2': _B_in['b2'], 'c': _w((lambda *s: torch.randn(*s, dtype=torch.bfloat16) * 0.1)(1, 1024) * 8.0), 'w_mod': _w((lambda *s: torch.randn(*s, dtype=torch.bfloat16) * 0.1)(1024, 6 * 1024) * 1024 ** (-0.5) * 8.0)}

def reference(A_x, A_k_cache, A_v_cache, A_wq, A_wo, B_x, B_w1, B_b1, B_w2, B_b2, c, w_mod):

    def _A_ref(x, k_cache, v_cache, wq, wo):
        B, Sq, D = x.shape
        Hq, Dh = (32, 128)
        Hkv = k_cache.shape[1]
        rep = Hq // Hkv
        q = (lambda x, *d: x.permute(*d))((x @ wq).reshape(B, Sq, Hq, Dh), 0, 2, 1, 3)
        k = (lambda x, n, axis: torch.repeat_interleave(x, n, dim=axis))(k_cache, rep, axis=1)
        v = (lambda x, n, axis: torch.repeat_interleave(x, n, dim=axis))(v_cache, rep, axis=1)
        scores = torch.einsum('bhqd,bhkd->bhqk', q, k) * Dh ** (-0.5)
        p = _softmax(scores, axis=-1)
        o = torch.einsum('bhqk,bhkd->bhqd', p, v)
        return (lambda x, *d: x.permute(*d))(o, 0, 2, 1, 3).reshape(B, Sq, Hq * Dh) @ wo

    def _B_ref(x, w1, b1, w2, b2):
        B, S, D = x.shape
        h = _layernorm(x, axis=-1)
        u = torch.einsum('bsd,sf->bdf', h, w1) + b1
        u = _gelu(u)
        y = torch.einsum('bdf,fs->bds', u, w2) + b2
        return (lambda x, *d: x.permute(*d))(y, 0, 2, 1)
    x = A_x
    mod = (_silu(c) @ w_mod).reshape(c.shape[0], 6, 1, -1)
    sa, ca, ga, sb, cb, gb = (mod[:, 0].clone(), mod[:, 1].clone(), mod[:, 2].clone(), mod[:, 3].clone(), mod[:, 4].clone(), mod[:, 5].clone())
    h = _layernorm(x, axis=-1) * (1 + ca) + sa
    x = x + ga * _A_ref(h, A_k_cache, A_v_cache, A_wq, A_wo)
    h = _layernorm(x, axis=-1) * (1 + cb) + sb
    x = x + gb * _B_ref(h, B_w1, B_b1, B_w2, B_b2)
    return x
```

```python
import re

TRANS = ('v_exp_f32', 'v_log_f32', 'v_rcp_f32', 'v_rsq_f32', 'v_sqrt_f32', 'v_sin_f32', 'v_cos_f32')
RMW = ('v_fmac_f32', 'v_pk_fmac', 'v_dot2c', 'v_writelane')

def regs_of(op):
    op = op.strip()
    neg = op.lstrip('-')
    if neg.startswith('abs(') or neg.startswith('|'):
        neg = neg.replace('abs(', '').replace(')', '').replace('|', '')
    op = neg
    m = re.fullmatch(r'([vsa])(\d+)', op)
    if m: return {(m.group(1), int(m.group(2)))}
    m = re.fullmatch(r'([vsa])\[(\d+):(\d+)\]', op)
    if m: return {(m.group(1), i) for i in range(int(m.group(2)), int(m.group(3)) + 1)}
    if op in ('vcc', 'vcc_lo', 'vcc_hi'): return {('s', 'vcc')}
    if op in ('exec', 'exec_lo', 'exec_hi'): return {('s', 'exec')}
    if op == 'm0': return {('s', 'm0')}
    return set()

class Ins:
    def __init__(self, text):
        self.text = text
        t = text.split(';')[0].strip()
        self.label = None; self.op = None
        self.w = set(); self.r = set()
        self.kind = 'none'; self.states = 0
        self.dpp = False; self.A = self.B = self.C = self.D = set()
        self.target = None; self.uncond = False; self.wide_store = set(); self.ldsdma = False
        self.lanesel = set()
        if not t or t.startswith('.'):
            return
        if t.endswith(':'):
            self.label = t[:-1]; return
        parts = t.split(None, 1)
        op = parts[0]; self.op = op
        rest = parts[1] if len(parts) > 1 else ''
        ops = []; cur = ''; depth = 0
        for ch in rest:
            if ch == '[': depth += 1
            if ch == ']': depth -= 1
            if ch == ',' and depth == 0: ops.append(cur.strip()); cur = ''
            else: cur += ch
        if cur.strip(): ops.append(cur.strip())
        mods = ''
        if ops:
            last = ops[-1].split(None, 1)
            ops[-1] = last[0]
            mods = last[1] if len(last) > 1 else ''
        self.states = 1
        R = lambda i: regs_of(ops[i]) if i < len(ops) else set()
        allr = lambda st: set().union(*[regs_of(o) for o in ops[st:]]) if len(ops) > st else set()
        if op == 's_nop':
            self.kind = 'salu'; self.states = int(ops[0], 0) + 1
        elif op.startswith('s_cbranch') or op == 's_branch':
            self.kind = 'salu'; self.target = ops[0]; self.uncond = op == 's_branch'
        elif op == 's_endpgm':
            self.kind = 'salu'; self.uncond = True
        elif op.startswith('s_load') or op.startswith('s_mem'):
            self.kind = 'smem'; self.w = R(0); self.r = allr(1)
        elif op.startswith('s_cmp') or op in ('s_waitcnt', 's_barrier', 's_sleep', 's_setprio') or op.startswith('s_bitcmp'):
            self.kind = 'salu'; self.r = allr(0)
        elif op.startswith('s_'):
            self.kind = 'salu'; self.w = R(0); self.r = allr(1)
            if 'saveexec' in op: self.w |= {('s', 'exec')}
        elif op.startswith('v_mfma'):
            self.kind = 'mfma'; self.D = R(0); self.A = R(1); self.B = R(2); self.C = R(3)
            self.w = self.D; self.r = self.A | self.B | self.C
            assert '16x16x32' in op or '16x16x16' in op, op
        elif op.startswith('v_'):
            self.kind = 'trans' if op.replace('_e32', '').replace('_e64', '') in TRANS else 'valu'
            self.dpp = ('_dpp' in op) or any(k in mods for k in ('row_', 'quad_perm', 'wave_'))
            if op.startswith('v_permlane') and 'swap' in op:
                self.w = R(0) | R(1); self.r = R(0) | R(1)
            elif op.startswith('v_add_co') or op.startswith('v_sub_co') or op.startswith('v_addc_co'):
                self.w = R(0) | R(1); self.r = allr(2)
            else:
                self.w = R(0); self.r = allr(1)
                if any(op.startswith(k) for k in RMW): self.r |= R(0)
                if op.startswith('v_cndmask') and len(ops) == 3: self.r |= {('s', 'vcc')}
                if op.startswith('v_cmpx'): self.w |= {('s', 'exec')}
                if op.startswith('v_readlane') or op.startswith('v_writelane'): self.lanesel = R(2)
                if self.dpp: self.r |= R(0)
        elif op.startswith('ds_'):
            self.kind = 'ds'
            if op.startswith('ds_read') or '_rtn' in op or 'permute' in op or 'swizzle' in op:
                self.w = R(0); self.r = allr(1)
            else:
                self.r = allr(0)
        elif op.startswith('buffer_') or op.startswith('global_'):
            self.kind = 'vmem'
            lds = re.search(r'\blds\b', mods) is not None or '_lds_' in op
            if lds:
                self.ldsdma = True; self.r = allr(0) | {('s', 'm0')}
            elif '_load' in op:
                self.w = R(0); self.r = allr(1)
                if 'd16' in op: self.r |= R(0)
            elif '_store' in op:
                self.r = allr(0)
                if 'x4' in op or 'x3' in op:
                    self.wide_store = R(0) if op.startswith('buffer_') else R(1)
            elif 'atomic' in op:
                self.r = allr(0)
                if 'sc0' in mods: self.w = R(0)
            else:
                pass
        else:
            raise ValueError('unknown instruction: ' + text)

def need(p, c):
    n = 0
    isv = lambda s: {x for x in s if x[0] in 'va'}
    iss = lambda s: {x for x in s if x[0] == 's'}
    pv = p.kind in ('valu', 'trans')
    cv = c.kind in ('valu', 'trans')
    if pv:
        wv = isv(p.w); ws = iss(p.w)
        if c.kind == 'mfma' and wv & c.r: n = max(n, 2)
        if cv and wv & c.r:
            if c.dpp: n = max(n, 2)
            if c.op.startswith('v_permlane'): n = max(n, 2)
            if c.op.startswith('v_readlane') or c.op.startswith('v_readfirstlane'): n = max(n, 1)
            if p.kind == 'trans' and c.kind != 'trans': n = max(n, 1)
        if p.kind == 'trans' and c.kind in ('ds', 'vmem') and wv & c.r: n = max(n, 1)
        if ws:
            if c.kind == 'vmem' and ws & c.r: n = max(n, 5)
            if cv and ws & c.r: n = max(n, 2)
            if cv and ws & c.lanesel: n = max(n, 4)
            if c.kind == 'salu' and ws & c.r: n = max(n, 1)
            if ('s', 'exec') in ws:
                if c.dpp: n = max(n, 5)
                if c.kind == 'mfma' or (cv and (c.op.startswith('v_read') or c.op.startswith('v_perml') or c.op.startswith('v_writel'))): n = max(n, 4)
    if p.kind == 'mfma':
        if c.kind == 'mfma':
            if p.D & (c.A | c.B): n = max(n, 8)
            if p.D & c.C and p.D != c.C: n = max(n, 6)
            if p.D & c.D and not (p.D & c.C): n = max(n, 8)
        elif (cv or c.kind in ('ds', 'vmem')):
            if p.D & (c.r | c.w): n = max(n, 8)
            if cv and p.C & c.w: n = max(n, 3)
    if p.kind == 'salu' and ('s', 'm0') in p.w and c.ldsdma: n = max(n, 1)
    if p.wide_store and p.wide_store & c.w: n = max(n, 2 if cv else 1)
    return n

class Asm:
    def __init__(self):
        self.lines = []
        self.uid = 0
    def __call__(self, s):
        for l in s.split('\n'):
            l = l.strip()
            if l: self.lines.append(l)
    def lab(self, p='L'):
        self.uid += 1
        return f'{p}_{self.uid}'
    def finish(self):
        lines = list(self.lines)
        MAXW = 9
        inserted = 0
        while True:
            ins = [Ins(l) for l in lines]
            labels = {x.label: i for i, x in enumerate(ins) if x.label}
            n = len(ins)
            state = [None] * (n + 1)
            state[0] = {}
            work = [0]
            fix = {}
            while work:
                i = work.pop()
                st = state[i]
                if i >= n: continue
                x = ins[i]
                if x.op:
                    req = 0
                    for pi, age in st.items():
                        k = need(ins[pi], x)
                        if k > age: req = max(req, k - age)
                    if req: fix[i] = max(fix.get(i, 0), req)
                    add = x.states + fix.get(i, 0)
                    new = {pi: a + add for pi, a in st.items() if a + add < MAXW}
                    if x.kind in ('valu', 'trans', 'mfma') or x.wide_store or ('s', 'm0') in x.w:
                        new[i] = 0
                else:
                    new = dict(st)
                succ = []
                if not x.uncond: succ.append(i + 1)
                if x.target is not None:
                    assert x.target in labels, x.target
                    succ.append(labels[x.target])
                for s in succ:
                    old = state[s]
                    if old is None:
                        state[s] = dict(new); work.append(s)
                    else:
                        ch = False
                        for pi, a in new.items():
                            if pi not in old or old[pi] > a:
                                old[pi] = a; ch = True
                        if ch: work.append(s)
            if not fix: break
            out = []
            for i, l in enumerate(lines):
                if i in fix:
                    out.append(f's_nop {fix[i]-1}'); inserted += 1
                out.append(l)
            lines = out
        self.nops = inserted
        return '\n'.join(('' if l.endswith(':') or l.startswith('.') or l.startswith(';') else '  ') + l for l in lines) + '\n'
```

```python
import sys, struct
from asmfw import Asm

NAME = 'adaLN_cond__gqa_block_cached__mixer_token_mlp__decode'

def f2u(x): return struct.unpack('<I', struct.pack('<f', x))[0]
LOG2E = 1.4426950408889634
SCALE = 128 ** -0.5

P1 = 0x10000; P2 = 0x30000; P3 = 0x50000; P4 = 0x60000; ML = 0x70000; OB = 0x100000; DBG = 0x200000
RS = 6; RINGW = RS * 4096
WB = 4 * RINGW; WA = WB + 32768; MISC = WA + 16384
SC = 0; QL = 2048; HV = 4352; OV = 4864; MLW = 5376; FW = 5632; CNT = 5760; ST1 = 5888; ST2 = 6016; OWN = 6144; YP = 6208
LDS_BYTES = 163840
C_W1, C_WQ, C_WQF, C_H, C_Q, C_M2, C_M2F, C_ML, C_F, C_RED, C_WO = range(11)

HEADER = open('cdna_kernels/' + NAME + '.s.ref').read().split('; Override launch')[0]

def gen(F=6, NQ=50, nt=' nt', wnt=' nt', mimic=True, stamps=False, warm=True, spin=1 << 18):
    a = Asm()
    SRD_K, SRD_V, SRD_WS, SRD_WQ, SRD_WO, SRD_WM = 's[4:7]', 's[8:11]', 's[12:15]', 's[16:19]', 's[20:23]', 's[24:27]'
    sX, sW1, sB1, sW2, sB2, sC, sOUT, sWS = 's[36:37]', 's[48:49]', 's[50:51]', 's[52:53]', 's[54:55]', 's[56:57]', 's[60:61]', 's[64:65]'
    sT, sI, sBase, sSpin = 's66', 's67', 's68', 's69'
    MASK = lambda i: f's[{70+2*i}:{71+2*i}]'
    vM, vOne = 'v2', 'v3'
    V = lambda i, n=1: f'v{i}' if n == 1 else f'v[{i}:{i+n-1}]'

    def stamp(i):
        if stamps:
            a(f's_memrealtime s[34:35]\ns_waitcnt lgkmcnt(0)\nv_writelane_b32 v255, s34, {i}')
    def setexec(mask):
        if mask == -1: a('s_mov_b64 exec, -1')
        elif mask < 64: a(f's_mov_b64 exec, {mask}')
        else: a(f's_mov_b32 exec_lo, {mask & 0xffffffff:#x}\ns_mov_b32 exec_hi, {mask >> 32:#x}')
    def arrive(c):
        a(f's_mov_b64 exec, 1\nds_add_u32 {vM}, {vOne} offset:{CNT + 4*c}\ns_mov_b64 exec, -1')
    def await_(c, n, tmp, sleep=1):
        L = a.lab('W'); D = a.lab('WD')
        a(f's_mov_b32 {sSpin}, {spin}')
        a(f'{L}:\nds_read_b32 {tmp}, {vM} offset:{CNT + 4*c}\ns_waitcnt lgkmcnt(0)\nv_readfirstlane_b32 s30, {tmp}')
        a(f's_cmp_ge_u32 s30, {n}\ns_cbranch_scc1 {D}')
        if sleep: a(f's_sleep {sleep}')
        a(f's_sub_u32 {sSpin}, {sSpin}, 1\ns_cbranch_scc0 {L}\n{D}:')
    def rnd(r): a(f'v_cvt_pk_bf16_f32 {r}, 0, {r}')
    def allred(op, r, t, steps=(1, 2, 4, 8, 16, 32)):
        dpp = {1: 'quad_perm:[1,0,3,2]', 2: 'quad_perm:[2,3,0,1]', 4: 'row_half_mirror', 8: 'row_mirror'}
        if 8 in steps and 4 not in steps: dpp[8] = 'row_ror:8'
        for s in steps:
            if s < 16:
                a(f'{op}_dpp {r}, {r}, {r} {dpp[s]} row_mask:0xf bank_mask:0xf')
            else:
                a(f'v_mov_b32 {t}, {r}\nv_permlane{s}_swap_b32 {r}, {t}\n{op} {r}, {r}, {t}')
    def ws_load(dst, w, voff, off, st):
        hi, lo = off & ~0xfff, off & 0xfff
        if st.get('hi') != hi:
            a(f's_mov_b32 s31, {hi:#x}'); st['hi'] = hi
        sfx = {1: 'dword', 2: 'dwordx2', 4: 'dwordx4'}[w]
        a(f'buffer_load_{sfx} {V(dst, w)}, {voff}, {SRD_WS}, s31 offen offset:{lo} sc1')
    def gather(loads, voff, mode, fast=None, tmp=None, sleep=2):
        L = a.lab('G'); D = a.lab('GD')
        st = {}
        for d, w, off in loads: ws_load(d, w, voff, off, st)
        a(f's_mov_b32 {sSpin}, {spin}')
        a(f'{L}:')
        if fast is None: a('s_waitcnt vmcnt(0)')
        else:
            fast()
            a(f's_cbranch_vccz {D}')
        for i, (d, w, off) in enumerate(loads):
            if mode == 'tag':
                a(f'v_cmp_ne_u32 {MASK(i)}, {sT}, {V(d+1)}')
                if w == 4:
                    a(f'v_cmp_ne_u32 vcc, {sT}, {V(d+3)}\ns_or_b64 {MASK(i)}, {MASK(i)}, vcc')
            else:
                if w == 4: a(f'v_max3_u32 {tmp}, {V(d)}, {V(d+1)}, {V(d+2)}\nv_max_u32 {tmp}, {tmp}, {V(d+3)}')
                elif w == 2: a(f'v_max_u32 {tmp}, {V(d)}, {V(d+1)}')
                else: a(f'v_mov_b32 {tmp}, {V(d)}')
                a(f'v_cmp_eq_u32 {MASK(i)}, -1, {tmp}')
        a(f's_or_b64 s[28:29], {MASK(0)}, {MASK(1 if len(loads) > 1 else 0)}')
        for i in range(2, len(loads)): a(f's_or_b64 s[28:29], s[28:29], {MASK(i)}')
        a(f's_cbranch_scc0 {D}')
        a(f's_sub_u32 {sSpin}, {sSpin}, 1\ns_cbranch_scc1 {D}')
        if sleep: a(f's_sleep {sleep}')
        for i, (d, w, off) in enumerate(loads):
            S = a.lab('GS')
            a(f's_mov_b64 exec, {MASK(i)}\ns_cbranch_execz {S}')
            ws_load(d, w, voff, off, {})
            a(f'{S}:')
        a(f's_mov_b64 exec, -1\ns_waitcnt vmcnt(0)\ns_branch {L}\n{D}:')
    def w_voff(dst, stride, t):
        a(f'v_lshrrev_b32 {t}, 3, v1\nv_mul_u32_u24 {dst}, {stride}, {t}' if stride < 65536 else '')
        a(f'v_lshrrev_b32 {t}, 4, v1\nv_lshlrev_b32 {t}, 1, {t}\nv_xor_b32 {t}, {t}, v1\nv_and_b32 {t}, 7, {t}\nv_lshl_add_u32 {dst}, {t}, 4, {dst}')
    def w_dma(srd, voff, s_off, stride, n, lds_base, rows_per_wave, first=0):
        a(f's_mul_i32 s33, {sI}, {rows_per_wave*128}')
        for i in range(first, first + n):
            a(f's_add_u32 s32, {s_off}, {8*i*stride}\ns_add_u32 m0, s33, {lds_base + i*1024}')
            a(f'buffer_load_dwordx4 {voff}, {srd}, s32 offen{wnt} lds')
    def w_traddr(dst, base, t, t2):
        a(f'v_lshrrev_b32 {t}, 2, v1\nv_lshlrev_b32 {dst}, 7, {t}')
        a(f'v_and_b32 {t}, 6, {t}')
        a(f'v_lshrrev_b32 {t2}, 1, v1\nv_and_b32 {t2}, 1, {t2}\nv_lshl_add_u32 {t2}, {sI}, 1, {t2}')
        a(f'v_xor_b32 {t}, {t}, {t2}\nv_lshl_add_u32 {dst}, {t}, 4, {dst}')
        a(f'v_and_b32 {t}, 1, v1\nv_lshl_add_u32 {dst}, {t}, 3, {dst}\nv_add_u32 {dst}, {base}, {dst}')
    def w_read(areg, addr, nks):
        for ks in range(nks):
            a(f'ds_read_b64_tr_b16 {V(areg+4*ks, 2)}, {addr} offset:{ks*4096}')
            a(f'ds_read_b64_tr_b16 {V(areg+4*ks+2, 2)}, {addr} offset:{ks*4096+2048}')
    def b_read(breg, addr, nks):
        for ks in range(nks):
            a(f'ds_read2_b64 {V(breg+4*ks, 4)}, {addr} offset0:{8*ks} offset1:{8*ks+4}')
    def w_mfma(d, areg, breg, nks, staged=False):
        for ks in range(nks):
            if staged: a(f's_waitcnt lgkmcnt({nks-1-ks})')
            a(f'v_mfma_f32_16x16x32_bf16 {V(d,4)}, {V(areg+4*ks,4)}, {V(breg+4*ks,4)}, {"0" if ks == 0 else V(d,4)}')
    def load_coefs():
        for r in range(224, 246): a(f'v_mov_b32 v{r}, 0')
        a('v_lshlrev_b32 v247, 1, v0')
        for i in range(7):
            if i == 4: a('v_add_u32 v247, 0x1000, v247')
            off = (i % 4) * 1024
            a(f'global_load_short_d16_hi v{224+2*i}, v247, {sW1} offset:{off}')
            a(f'global_load_short_d16_hi v{225+2*i}, v247, {sB1} offset:{off}')
            a(f'global_load_short_d16_hi v{238+i}, v247, {sW2} offset:{off}')
        a(f'v_mov_b32 v247, 0\nglobal_load_short_d16_hi v245, v247, {sB2}')
        a('v_and_b32 v247, 31, v1\nv_lshlrev_b32 v247, 2, v247\nv_lshrrev_b32 v254, 5, v1\nv_lshl_add_u32 v247, v254, 1, v247')
        a('v_lshl_add_u32 v254, s3, 7, v247')
        a(f'v_lshlrev_b32 v247, 1, v254\nglobal_load_dword v246, v247, {sX}')

    a(f'{NAME}_kernel:')
    a('s_cmp_ge_u32 s2, 256\ns_cbranch_scc1 L_end')
    a('s_load_dwordx16 s[36:51], s[0:1], 0\ns_load_dwordx8 s[52:59], s[0:1], 64\ns_load_dwordx4 s[60:63], s[0:1], 96\ns_load_dwordx2 s[64:65], s[0:1], 112')
    a('v_lshrrev_b32 v1, 6, v0\nv_readfirstlane_b32 s3, v1\nv_and_b32 v1, 63, v0')
    a(f'v_mov_b32 {vM}, {MISC}\nv_mov_b32 {vOne}, 1')
    if stamps: a('v_mov_b32 v255, 0')
    a(f's_and_b32 {sI}, s3, 3')
    a('s_mov_b32 s6, 0x4000000\ns_mov_b32 s7, 0x20000\ns_mov_b32 s10, 0x4000000\ns_mov_b32 s11, 0x20000')
    a('s_mov_b32 s14, 0x10000000\ns_mov_b32 s15, 0x20000\ns_mov_b32 s18, 0x800000\ns_mov_b32 s19, 0x20000')
    a('s_mov_b32 s22, 0x800000\ns_mov_b32 s23, 0x20000\ns_mov_b32 s26, 0xc00000\ns_mov_b32 s27, 0x20000')
    a('s_waitcnt lgkmcnt(0)')
    for srd, p in ((4, 38), (8, 40), (12, 64), (16, 42), (20, 44), (24, 58)):
        a(f's_mov_b32 s{srd}, s{p}\ns_and_b32 s{srd+1}, s{p+1}, 0xffff')
    stamp(0)
    a('s_cmp_ge_u32 s3, 4\ns_cbranch_scc1 L_X')

    VOFF, KA, VA, Q, S, H = 4, 8, 16, 32, 64, 96
    PP, D1, D2, VS = 32, 96, 128, 160
    vMax, vSum, vNm = 'v224', 'v225', 'v226'
    a('v_lshrrev_b32 v24, 4, v1\nv_and_b32 v25, 15, v1')
    a('v_lshlrev_b32 v26, 1, v24\nv_xor_b32 v26, v26, v25\nv_lshlrev_b32 v26, 4, v26\nv_lshl_add_u32 v4, v24, 8, v26')
    for i in range(1, 4): a(f'v_xor_b32 v{VOFF+i}, {(8*(i&1) + (i>>1)) << 4:#x}, v4')
    a(f's_lshl_b32 {sBase}, s2, 18\ns_lshl_b32 s30, s3, 12\ns_add_u32 {sBase}, {sBase}, s30')
    a(f's_mul_i32 s38, s3, {RINGW}')
    vorder = []
    for u in range(4): vorder += [4*u, 4*u+2, 4*u+1, 4*u+3]
    def issue(n):
        gi, j = n // 4, n % 4
        if j == 0:
            grp = gi if gi < 16 else vorder[gi - 16]
            a(f's_add_u32 s39, {sBase}, {grp*16384}\ns_add_u32 m0, s38, {(gi % RS)*4096}')
        a(f'buffer_load_dwordx4 v{VOFF+j}, {SRD_K if gi < 16 else SRD_V}, s39 offen offset:{j*1024}{nt} lds')
    for n in range(F): issue(n)
    a('s_cmp_lg_u32 s3, 0\ns_cbranch_scc1 L_noinit')
    a(f'v_lshl_add_u32 v27, v1, 2, {vM}\nv_mov_b32 v28, 0')
    setexec(0xffff); a(f'ds_write_b32 v27, v28 offset:{CNT}'); setexec(-1)
    a('s_waitcnt lgkmcnt(0)\nL_noinit:\ns_barrier')
    a('v_and_b32 v26, 7, v25\nv_lshlrev_b32 v26, 1, v26\nv_lshrrev_b32 v27, 3, v25\nv_or_b32 v26, v26, v27')
    a('v_lshrrev_b32 v27, 1, v24\nv_xor_b32 v26, v26, v27\nv_lshlrev_b32 v26, 4, v26\nv_lshl_add_u32 v26, v25, 8, v26')
    a(f'v_and_b32 v27, 1, v24\nv_lshl_add_u32 v26, v27, 12, v26\nv_add_u32 v{KA}, s38, v26')
    for j in range(1, 8): a(f'v_xor_b32 v{KA+j}, {j << 5:#x}, v{KA}')
    a('v_lshrrev_b32 v27, 2, v1')
    a('v_and_b32 v26, 7, v27\nv_lshlrev_b32 v26, 1, v26\nv_lshrrev_b32 v28, 3, v27\nv_or_b32 v26, v26, v28')
    a('v_lshrrev_b32 v28, 1, v1\nv_and_b32 v28, 1, v28\nv_xor_b32 v26, v26, v28\nv_lshlrev_b32 v26, 4, v26\nv_lshl_add_u32 v26, v27, 8, v26')
    a(f'v_and_b32 v28, 1, v1\nv_lshl_add_u32 v26, v28, 3, v26\nv_add_u32 v{VA}, s38, v26')
    for t in range(1, 8): a(f'v_xor_b32 v{VA+t}, {t << 5:#x}, v{VA}')
    for r in range(Q, Q + 32): a(f'v_mov_b32 v{r}, 0')
    a(f'v_mov_b32 {vMax}, 0xff800000\nv_mov_b32 {vSum}, 0')
    a(f's_mov_b32 s40, {f2u(SCALE):#x}\ns_mov_b32 s41, {f2u(LOG2E):#x}')
    w_voff('v28', 2048, 'v26'); w_traddr('v29', WB, 'v26', 'v27')
    a(f'v_lshl_add_u32 v30, v24, 3, {vM}\nv_add_u32 v30, {OV}, v30')
    a('v_and_b32 v26, 7, v1\nv_mul_u32_u24 v26, 528, v26\nv_lshl_add_u32 v26, v24, 4, v26\nv_add_u32 v31, s38, v26')
    a('s_and_b32 s42, s2, 7\ns_lshl_b32 s42, s42, 1\ns_lshr_b32 s30, s2, 3\ns_and_b32 s30, s30, 1\ns_add_u32 s42, s42, s30')
    a('s_lshr_b32 s43, s2, 4')
    a(f's_lshl_b32 s44, s42, 19\ns_lshl_b32 s30, {sI}, 17\ns_add_u32 s44, s44, s30\ns_lshl_b32 s30, s43, 7\ns_add_u32 s44, s44, s30')

    def t_readK(t, h):
        def f():
            for j in range(8): a(f'ds_read_b128 {V(H+32*h+4*j,4)}, v{KA+j} offset:{((2*t) % RS)*4096}')
            a('s_waitcnt lgkmcnt(0)')
        return f
    def t_waitq():
        stamp(1)
        await_(C_Q, 4, 'v26')
        stamp(2)
        a(f'v_and_b32 v26, 7, v1\nv_mul_u32_u24 v26, 272, v26\nv_lshrrev_b32 v27, 5, v1\nv_lshl_add_u32 v26, v27, 4, v26\nv_add_u32 v26, {MISC+QL}, v26')
        setexec(0xff0000ffff0000ff)
        for j in range(8): a(f'ds_read_b128 {V(Q+4*j,4)}, v26 offset:{32*j}')
        setexec(-1)
        a('s_waitcnt lgkmcnt(0)')
    def t_qk(t, h):
        def f():
            for j in range(8):
                a(f'v_mfma_f32_16x16x32_bf16 {V(S+4*t,4)}, {V(H+32*h+4*j,4)}, {V(Q+4*j,4)}, {"0" if j == 0 else V(S+4*t,4)}')
        return f
    def t_round(t):
        def f():
            for r in range(4): rnd(V(S+4*t+r))
            for r in range(4): a(f'v_mul_f32 {V(S+4*t+r)}, s40, {V(S+4*t+r)}')
            for r in range(4): rnd(V(S+4*t+r))
            a(f'v_max3_f32 {vMax}, {vMax}, {V(S+4*t)}, {V(S+4*t+1)}\nv_max3_f32 {vMax}, {vMax}, {V(S+4*t+2)}, {V(S+4*t+3)}')
        return f
    def t_max():
        allred('v_max_f32', vMax, 'v26', (8, 16, 32))
        a(f'v_mul_f32 {vMax}, s41, {vMax}')
    def t_exp(t):
        def f():
            for r in range(4): a(f'v_fma_f32 {V(S+4*t+r)}, {V(S+4*t+r)}, s41, -{vMax}')
            for r in range(4): a(f'v_exp_f32 {V(S+4*t+r)}, {V(S+4*t+r)}')
            a(f'v_cvt_pk_bf16_f32 {V(PP+2*t)}, {V(S+4*t)}, {V(S+4*t+1)}\nv_cvt_pk_bf16_f32 {V(PP+2*t+1)}, {V(S+4*t+2)}, {V(S+4*t+3)}')
            a(f'v_add_f32 v26, {V(S+4*t)}, {V(S+4*t+1)}\nv_add_f32 v27, {V(S+4*t+2)}, {V(S+4*t+3)}\nv_add_f32 v26, v26, v27\nv_add_f32 {vSum}, {vSum}, v26')
        return f
    def t_ml():
        allred('v_add_f32', vSum, 'v26', (8, 16, 32))
        a(f'v_lshl_add_u32 v26, v1, 2, {vM}\nv_lshl_add_u32 v26, s3, 6, v26')
        setexec(0xff)
        a(f'ds_write_b32 v26, {vMax} offset:{MLW}\nds_write_b32 v26, {vSum} offset:{MLW+32}')
        arrive(C_ML)
        stamp(3)
    def readV(p, half):
        slot = (16 + 2*p + half) % RS
        for t in range(8):
            a(f'ds_read_b64_tr_b16 {V(VS+4*t+2*half,2)}, v{VA+t} offset:{slot*4096}')
    def pv(p, staged):
        u, which = p >> 1, p & 1
        Dd = D2 if which else D1
        for t in range(8):
            if staged: a(f's_waitcnt lgkmcnt({7-t})')
            a(f'v_mfma_f32_16x16x32_bf16 {V(Dd+4*t,4)}, {V(VS+4*t,4)}, {V(PP+4*u,4)}, {"0" if u == 0 else V(Dd+4*t,4)}')
    def t_pv(p):
        def f():
            readV(p, 0); readV(p, 1); pv(p, True)
        return f
    def writeD(which):
        setexec(0xff00ff00ff00ff00 if which else 0x00ff00ff00ff00ff)
        for t in range(8):
            a(f'ds_write_b128 v31, {V((D2 if which else D1)+4*t,4)} offset:{8192 + which*4352 + 64*t}')
        setexec(-1)
    def t_fread():
        await_(C_F, 4, 'v26')
        await_(C_M2F, 4, 'v26')
        a(f'v_lshrrev_b32 v26, 5, v0\nv_lshl_add_u32 v27, v26, 4, {vM}\nds_read_b128 v[228:231], v27 offset:{FW}')
        a('v_mul_u32_u24 v26, 528, v26\nv_and_b32 v27, 31, v0\nv_lshl_add_u32 v232, v27, 4, v26\nv_add_u32 v232, 8192, v232')
        a(f'v_add_u32 v233, {2*RINGW}, v232\nv_lshlrev_b32 v234, 4, v0')
        a(f's_lshl_b32 s45, s2, 12\ns_add_u32 s45, s45, {OB}')
        a('s_waitcnt lgkmcnt(0)')

    sched = {}
    def at(n, f): sched.setdefault(n, []).append(f)
    land = lambda t: 8*t + 7 + F
    for t in range(4): at(land(t), t_readK(t, t))
    assert NQ >= land(3) and NQ + 2 <= 8*4 + 4*RS
    at(NQ, t_waitq)
    n = NQ + 1
    free_h = {}
    for t in range(4):
        at(n, t_qk(t, t)); free_h[t] = n + 1
        at(n + 1, t_round(t))
        n += 2
    rd = {}
    for t in range(4, 8):
        rd[t] = max(free_h[t-4], land(t))
        assert rd[t] < 8*t + 4*RS, (t, rd[t])
        at(rd[t], t_readK(t, t - 4))
    for t in range(4, 8):
        n = max(n, rd[t] + 1)
        at(n, t_qk(t, t - 4)); at(n + 1, t_round(t)); n += 2
    at(n, t_max); n += 1
    for t in range(8):
        at(n, t_exp(t))
        if t & 1: n += 1
    at(n, t_ml); n += 1
    for p in range(7):
        m = max(n, land(8 + p))
        assert m < 64 + 8*p + 4*RS, (p, m)
        if m < 128: at(m, t_pv(p))
        n = m + 1
    assert land(14) <= 127
    at(land(13) + 2, t_fread)
    for n in range(F, 128):
        a(f's_waitcnt vmcnt({F-1})')
        issue(n)
        for f in sched.get(n, []): f()
    w_dma(SRD_WO, 'v28', 's44', 2048, 8, WB, 64)
    writeD(0)
    a('s_waitcnt vmcnt(12)')
    readV(7, 0)
    a('s_waitcnt vmcnt(8)')
    stamp(4)
    readV(7, 1); pv(7, True)
    writeD(1)
    arrive(C_RED)
    await_(C_RED, 4, 'v26', sleep=0)
    for w in range(4):
        for hf in range(2):
            a(f'ds_read_b128 {V(VS+8*w+4*hf,4)}, v{232 + (w >> 1)} offset:{(w & 1)*RINGW + hf*4352}')
    for w in range(4):
        a(f's_waitcnt lgkmcnt({6-2*w})')
        sel = w & 1; fp = V(228 + (w & 2), 2)
        for h2 in range(2):
            a(f'v_pk_add_f32 {V(VS+8*w+2*h2,2)}, {V(VS+8*w+2*h2,2)}, {V(VS+8*w+4+2*h2,2)}')
        for h2 in range(2):
            if w == 0: a(f'v_pk_mul_f32 {V(24+2*h2,2)}, {V(VS+2*h2,2)}, {fp} op_sel:[0,{sel}] op_sel_hi:[1,{sel}]')
            else: a(f'v_pk_fma_f32 {V(24+2*h2,2)}, {V(VS+8*w+2*h2,2)}, {fp}, {V(24+2*h2,2)} op_sel:[0,{sel},0] op_sel_hi:[1,{sel},1]')
    a(f'buffer_store_dwordx4 v[24:27], v234, {SRD_WS}, s45 offen sc1')
    stamp(5)
    a('s_waitcnt vmcnt(1)')
    arrive(C_WO)
    stamp(6)
    load_coefs()
    await_(C_WO, 4, 'v4', sleep=0)
    w_read(160, 'v29', 8)
    a(f'v_lshrrev_b32 v4, 4, v1\nv_lshlrev_b32 v4, 4, v4')
    a(f's_lshl_b32 s45, s42, 12\ns_lshl_b32 s30, s43, 8\ns_add_u32 s45, s45, s30\ns_lshl_b32 s30, {sI}, 6\ns_add_u32 s45, s45, s30\ns_add_u32 s45, s45, {P4}')
    a('s_waitcnt lgkmcnt(0)\ns_barrier')
    b_read(192, 'v30', 8)
    w_mfma(24, 160, 192, 8, staged=True)
    setexec(0x0001000100010001)
    a(f'buffer_store_dwordx4 v[24:27], v4, {SRD_WS}, s45 offen sc1')
    setexec(-1)
    stamp(7)
    a('s_branch L_final')

    a('L_X:')
    XA, XB, XD, G = 32, 64, 96, 100
    a(f's_load_dword {sT}, {sWS}, 4')
    a('v_and_b32 v10, 255, v0')
    a(f'v_lshlrev_b32 v11, 3, v10\nglobal_load_dwordx2 v[12:13], v11, {sC}')
    a(f'v_lshlrev_b32 v11, 5, v1\nglobal_load_dwordx4 v[16:19], v11, {sX}\nglobal_load_dwordx4 v[20:23], v11, {sX} offset:16')
    a('s_and_b32 s42, s2, 3\ns_lshr_b32 s43, s2, 2')
    a('v_lshl_add_u32 v15, s42, 8, v10\nv_lshlrev_b32 v11, 1, v15\nv_mov_b32 v14, 0')
    a(f'global_load_short_d16_hi v14, v11, {sX}')
    w_voff('v4', 12288, 'v11'); w_voff('v5', 8192, 'v11')
    a(f's_and_b32 s44, s2, 7\ns_lshr_b32 s45, s2, 3\ns_lshl_b32 s30, s44, 2\ns_add_u32 s30, s30, {sI}\ns_mul_i32 s46, s30, {32*12288}\ns_lshl_b32 s30, s45, 7\ns_add_u32 s46, s46, s30')
    w_dma(SRD_WM, 'v4', 's46', 12288, 4, WA, 32)
    for r in range(24, 28): a(f'v_mov_b32 v{r}, -1')
    a(f'v_lshlrev_b32 v11, 4, v10\ns_lshl_b32 s30, s2, 12\ns_add_u32 s30, s30, {OB}')
    a(f'buffer_store_dwordx4 v[24:27], v11, {SRD_WS}, s30 offen sc1')
    a('v_lshrrev_b32 v9, 4, v1\nv_lshlrev_b32 v9, 4, v9')
    a(f's_lshl_b32 s47, s42, 14\ns_lshl_b32 s30, s43, 8\ns_add_u32 s47, s47, s30\ns_lshl_b32 s30, {sI}, 6\ns_add_u32 s47, s47, s30\ns_add_u32 s47, s47, {P3}')
    a('s_and_b32 s38, s2, 7\ns_lshl_b32 s38, s38, 1\ns_lshr_b32 s30, s2, 3\ns_and_b32 s30, s30, 1\ns_add_u32 s38, s38, s30')
    a(f's_lshl_b32 s39, s38, 12\ns_lshr_b32 s30, s2, 4\ns_lshl_b32 s30, s30, 8\ns_add_u32 s39, s39, s30\ns_lshl_b32 s30, {sI}, 6\ns_add_u32 s39, s39, s30\ns_add_u32 s39, s39, {P4}')
    a(f's_lshl_b32 s40, s2, 6\ns_add_u32 s40, s40, {ML}')
    setexec(0x0001000100010001)
    a(f'buffer_store_dwordx4 v[24:27], v9, {SRD_WS}, s47 offen sc1')
    a(f'buffer_store_dwordx4 v[24:27], v9, {SRD_WS}, s39 offen sc1')
    a(f'buffer_store_dwordx4 v[24:27], v9, {SRD_WS}, s40 offen sc1')
    setexec(-1)
    nw = 0
    if warm:
        a('s_getpc_b64 s[32:33]\nL_pc:')
        a(f's_sub_u32 s32, s32, L_pc-{NAME}_kernel\ns_subb_u32 s33, s33, 0')
        a(f's_lshr_b32 s30, s2, 3\ns_and_b32 s30, s30, 7\ns_lshl_b32 s30, s30, 12\nv_lshlrev_b32 v11, 4, v10\nv_add_u32 v11, s30, v11')
        a(f'v_min_u32 v11, L_code_end-{NAME}_kernel-16, v11')
        a('global_load_dwordx4 v[28:31], v11, s[32:33]')
        nw = 1
    a('s_barrier')
    w_traddr('v6', WA, 'v11', 'v24')
    a(f'v_add_u32 v7, {(WB - WA) & 0xffffffff:#x}, v6')
    a(f'v_lshrrev_b32 v8, 1, v9\nv_add_u32 v8, {vM}, v8')
    a(f's_waitcnt vmcnt({8 + nw}) lgkmcnt(0)')
    a(f's_lshl_b32 s30, s42, 2\ns_add_u32 s30, s30, {sI}\ns_lshl_b32 s41, s30, 19\ns_lshl_b32 s30, s43, 7\ns_add_u32 s41, s41, s30')
    w_dma(SRD_WQ, 'v5', 's41', 8192, 8, WB, 64)
    a(f's_mul_i32 {sT}, {sT}, 1664525\ns_add_u32 {sT}, {sT}, 1013904223')
    a(f's_mov_b32 s30, {f2u(-LOG2E):#x}')
    a('v_lshlrev_b32 v24, 16, v12\nv_and_b32 v25, 0xffff0000, v12\nv_lshlrev_b32 v26, 16, v13\nv_and_b32 v27, 0xffff0000, v13')
    for i in range(4): a(f'v_mul_f32 v{100+i}, s30, v{24+i}')
    for i in range(4): a(f'v_exp_f32 v{100+i}, v{100+i}')
    for i in range(4): a(f'v_add_f32 v{100+i}, 1.0, v{100+i}')
    for i in range(4): a(f'v_rcp_f32 v{100+i}, v{100+i}')
    for i in range(4): a(f'v_mul_f32 v{24+i}, v{24+i}, v{100+i}')
    a('v_cvt_pk_bf16_f32 v12, v24, v25\nv_cvt_pk_bf16_f32 v13, v26, v27')
    a(f'v_lshl_add_u32 v11, v10, 3, {vM}\nds_write_b64 v11, v[12:13] offset:{SC}')
    a('s_waitcnt vmcnt(8)')
    arrive(C_W1)
    stamp(1)
    await_(C_W1, 4, 'v11', sleep=0)
    w_read(XA, 'v6', 4)
    a(f'v_lshl_add_u32 v11, s44, 8, v8')
    b_read(XB, 'v11', 4)
    def publish_tag(s_off):
        a('v_and_b32 v11, 1, v1\nv_cmp_eq_u32 vcc, 1, v11')
        a(f'v_mov_b32 v25, {sT}\nv_mov_b32 v27, {sT}\nv_lshlrev_b32 v11, 4, v11\nv_lshl_add_u32 v11, v9, 1, v11')
        a(f'v_cndmask_b32 v24, v{XD}, v{XD+2}, vcc\nv_cndmask_b32 v26, v{XD+1}, v{XD+3}, vcc')
        setexec(0x0003000300030003)
        a(f'buffer_store_dwordx4 v[24:27], v11, {SRD_WS}, {s_off} offen sc1')
        setexec(-1)
    a(f's_lshl_b32 s46, s44, 14\ns_lshl_b32 s30, s45, 9\ns_add_u32 s46, s46, s30\ns_lshl_b32 s30, {sI}, 7\ns_add_u32 s46, s46, s30\ns_add_u32 s46, s46, {P1}')
    a('s_waitcnt lgkmcnt(0)')
    w_mfma(XD, XA, XB, 4)
    publish_tag('s46')
    stamp(2)
    for i in range(8):
        a(f'v_lshlrev_b32 v{100+2*i}, 16, v{16+i}\nv_and_b32 v{101+2*i}, 0xffff0000, v{16+i}')
    a('v_add_f32 v16, v100, v101')
    for i in range(2, 16): a(f'v_add_f32 v16, v16, v{100+i}')
    allred('v_add_f32', 'v16', 'v17')
    a(f'v_mul_f32 v16, {f2u(1/1024):#x}, v16\nv_mov_b32 v18, 0')
    for i in range(16): a(f'v_sub_f32 v17, v{100+i}, v16\nv_fmac_f32 v18, v17, v17')
    allred('v_add_f32', 'v18', 'v17')
    def ln_scale(mean, var):
        rnd(mean); rnd(var)
        a(f'v_add_f32 {var}, {f2u(1e-5):#x}, {var}'); rnd(var)
        a(f'v_sqrt_f32 {var}, {var}'); rnd(var)
        a(f'v_rcp_f32 {var}, {var}')
    a(f'v_mul_f32 v18, {f2u(1/1024):#x}, v18')
    ln_scale('v16', 'v18')
    a('v_sub_f32 v14, v14, v16'); rnd('v14'); a('v_mul_f32 v14, v14, v18'); rnd('v14')
    a('s_waitcnt vmcnt(1)')
    arrive(C_WQ)
    await_(C_WQ, 4, 'v11')
    w_read(XA, 'v7', 8)
    a('s_waitcnt lgkmcnt(0)')
    arrive(C_WQF)
    stamp(3)
    a('v_lshlrev_b32 v12, 3, v15')
    gather([(G + 2*i, 2, P1 + (i & 7)*16384 + (i >> 3)*8192) for i in range(16)], 'v12', 'tag')
    stamp(4)
    for hf in range(2):
        b = G + 16*hf
        a(f'v_add_f32 v{b}, v{b}, v{b+2}\nv_add_f32 v{b+4}, v{b+4}, v{b+6}\nv_add_f32 v{b+8}, v{b+8}, v{b+10}\nv_add_f32 v{b+12}, v{b+12}, v{b+14}')
        a(f'v_add_f32 v{b}, v{b}, v{b+4}\nv_add_f32 v{b+8}, v{b+8}, v{b+12}\nv_add_f32 v{b}, v{b}, v{b+8}')
        rnd(f'v{b}')
    a(f'v_add_f32 v{G+16}, 1.0, v{G+16}'); rnd(f'v{G+16}')
    a(f'v_mul_f32 v14, v14, v{G+16}'); rnd('v14')
    a(f'v_add_f32 v14, v14, v{G}'); rnd('v14')
    a(f'v_lshl_add_u32 v11, v10, 1, {vM}\nds_write_b16_d16_hi v11, v14 offset:{HV}')
    arrive(C_H)
    await_(C_H, 4, 'v11', sleep=0)
    a(f'v_add_u32 v11, {HV}, v8')
    b_read(XB, 'v11', 8)
    a(f's_lshl_b32 s46, s42, 15\ns_lshl_b32 s30, s43, 9\ns_add_u32 s46, s46, s30\ns_lshl_b32 s30, {sI}, 7\ns_add_u32 s46, s46, s30\ns_add_u32 s46, s46, {P2}')
    w_mfma(XD, XA, XB, 8, staged=True)
    publish_tag('s46')
    stamp(5)
    a(f's_lshr_b32 s30, s2, 6\ns_lshl_b32 s30, s30, 13\ns_lshl_b32 s32, {sI}, 11\ns_add_u32 s30, s30, s32\nv_lshlrev_b32 v12, 4, v1\nv_add_u32 v12, s30, v12')
    gather([(G + 4*i, 4, P2 + (i & 3)*32768 + (i >> 2)*1024) for i in range(8)], 'v12', 'tag')
    for hd in range(2):
        b = G + 16*hd
        for e in (0, 2):
            a(f'v_add_f32 v{b+e}, v{b+e}, v{b+4+e}\nv_add_f32 v{b+8+e}, v{b+8+e}, v{b+12+e}\nv_add_f32 v{b+e}, v{b+e}, v{b+8+e}')
        a(f'v_cvt_pk_bf16_f32 v{b}, v{b}, v{b+2}')
    a(f's_mul_i32 s30, {sI}, 544\nv_lshl_add_u32 v11, v1, 2, {vM}\nv_add_u32 v11, s30, v11')
    a(f'ds_write_b32 v11, v{G} offset:{QL}\nds_write_b32 v11, v{G+16} offset:{QL+272}')
    arrive(C_Q)
    stamp(6)
    await_(C_WQF, 4, 'v11')
    a(f's_lshl_b32 s30, s42, 2\ns_add_u32 s30, s30, {sI}\ns_mul_i32 s46, s30, {64*12288}\ns_lshl_b32 s30, s43, 7\ns_add_u32 s46, s46, s30\ns_add_u32 s46, s46, 4096')
    w_dma(SRD_WM, 'v4', 's46', 12288, 8, WB, 64)
    load_coefs()
    a('s_waitcnt vmcnt(0)')
    arrive(C_M2)
    await_(C_M2, 4, 'v11')
    w_read(XA, 'v7', 8)
    a('v_lshl_add_u32 v11, s42, 9, v8')
    b_read(XB, 'v11', 8)
    a('s_waitcnt lgkmcnt(0)')
    arrive(C_M2F)
    w_mfma(XD, XA, XB, 8)
    setexec(0x0001000100010001)
    a(f'buffer_store_dwordx4 {V(XD,4)}, v9, {SRD_WS}, s47 offen sc1')
    setexec(-1)
    stamp(7)
    a('v_lshlrev_b32 v12, 4, v10')
    gather([(G + 4*i, 4, P3 + (i & 3)*16384 + (i >> 2)*4096) for i in range(16)], 'v12', 'sent', tmp='v11', sleep=8)
    a(f'v_add_u32 v11, {WA}, v12')
    for j in range(4):
        b = G + 16*j
        for e in (0, 2):
            a(f'v_pk_add_f32 {V(b+e,2)}, {V(b+e,2)}, {V(b+4+e,2)}\nv_pk_add_f32 {V(b+8+e,2)}, {V(b+8+e,2)}, {V(b+12+e,2)}\nv_pk_add_f32 {V(b+e,2)}, {V(b+e,2)}, {V(b+8+e,2)}')
        for e in range(4): rnd(V(b+e))
        if j == 2:
            for e in range(4): a(f'v_add_f32 {V(b+e)}, 1.0, {V(b+e)}')
            for e in range(4): rnd(V(b+e))
        a(f'ds_write_b128 v11, {V(b,4)} offset:{4096*j}')
    stamp(8)
    await_(C_ML, 4, 'v11', sleep=4)
    a(f'v_and_b32 v11, 7, v1\nv_lshl_add_u32 v11, v11, 2, {vM}')
    a(f'v_add_u32 v11, {MLW}, v11')
    for w in range(4): a(f'ds_read2_b32 {V(16+2*w,2)}, v11 offset0:{16*w} offset1:{16*w+8}')
    a('s_waitcnt lgkmcnt(0)')
    a('v_max3_f32 v24, v16, v18, v20\nv_max_f32 v24, v24, v22')
    for w in range(4): a(f'v_sub_f32 v{16+2*w}, v{16+2*w}, v24')
    for w in range(4): a(f'v_exp_f32 v{16+2*w}, v{16+2*w}')
    a('v_mul_f32 v25, v16, v17\nv_fmac_f32 v25, v18, v19\nv_fmac_f32 v25, v20, v21\nv_fmac_f32 v25, v22, v23')
    a('v_cmp_gt_u32 vcc, 8, v1\nv_lshlrev_b32 v11, 2, v1\nv_cndmask_b32 v24, v25, v24, vcc')
    Lnp = a.lab('NP')
    a(f's_cmp_lg_u32 {sI}, 0\ns_cbranch_scc1 {Lnp}')
    setexec(0xffff)
    a(f'buffer_store_dword v24, v11, {SRD_WS}, s40 offen sc1')
    setexec(-1)
    a(f'{Lnp}:')
    a(f's_lshr_b32 s30, s2, 6\ns_lshl_b32 s30, s30, 12\ns_lshl_b32 s32, {sI}, 3\ns_add_u32 s30, s30, s32\nv_lshlrev_b32 v12, 6, v1\nv_add_u32 v12, s30, v12')
    gather([(G, 2, ML), (G + 2, 2, ML + 32)], 'v12', 'sent', tmp='v11', sleep=8)
    a(f'v_mov_b32 v16, v{G}\nv_mov_b32 v17, v{G+1}')
    allred('v_max_f32', 'v16', 'v11'); allred('v_max_f32', 'v17', 'v11')
    a(f'v_sub_f32 v18, v{G}, v16\nv_sub_f32 v19, v{G+1}, v17\nv_exp_f32 v18, v18\nv_exp_f32 v19, v19')
    a(f'v_mul_f32 v18, v18, v{G+2}\nv_mul_f32 v19, v19, v{G+3}')
    allred('v_add_f32', 'v18', 'v11'); allred('v_add_f32', 'v19', 'v11')
    a(f'v_and_b32 v11, 3, v1\nv_lshlrev_b32 v11, 6, v11\nv_and_b32 v13, 4, v1\nv_add3_u32 v11, v11, v13, {vM}\nv_lshl_add_u32 v11, {sI}, 3, v11')
    a(f'ds_read_b32 v20, v11 offset:{MLW}')
    a('v_cmp_ne_u32 vcc, 0, v13\nv_cndmask_b32 v16, v16, v17, vcc\nv_cndmask_b32 v18, v18, v19, vcc\nv_rcp_f32 v18, v18')
    a(f'v_lshl_add_u32 v11, v1, 2, {vM}\nv_lshl_add_u32 v11, {sI}, 5, v11')
    a('s_waitcnt lgkmcnt(0)\nv_sub_f32 v20, v20, v16\nv_exp_f32 v20, v20\nv_mul_f32 v20, v20, v18')
    setexec(0xff)
    a(f'ds_write_b32 v11, v20 offset:{FW}')
    arrive(C_F)
    stamp(9)
    a(f's_lshr_b32 s30, s38, 2\ns_lshl_b32 s30, s30, 18\ns_and_b32 s32, s38, 3\ns_lshl_b32 s32, s32, 10\ns_add_u32 s30, s30, s32\ns_lshl_b32 s32, {sI}, 8\ns_add_u32 s30, s30, s32')
    a('v_and_b32 v12, 15, v1\nv_lshlrev_b32 v13, 3, v12\nv_lshlrev_b32 v12, 4, v12\nv_lshl_add_u32 v12, v9, 8, v12\nv_add_u32 v12, s30, v12')
    a(f'v_lshrrev_b32 v11, 3, v9\nv_add3_u32 v13, v13, v11, {vM}\nv_lshl_add_u32 v13, {sI}, 7, v13')
    await_(C_RED, 4, 'v11', sleep=1)
    stamp(10)
    def sum_fast(n, acc):
        def f():
            for i in range(1, n):
                if n - 1 - i < 16: a(f's_waitcnt vmcnt({n-1-i})')
                for e in (0, 2):
                    a(f'v_pk_add_f32 {V(acc+e,2)}, {V((G if i == 1 else acc)+e,2)}, {V(G+4*i+e,2)}')
            a(f'v_pk_add_f32 {V(acc+4,2)}, {V(acc,2)}, {V(acc+2,2)}\nv_cmp_u_f32 vcc, {V(acc+4)}, {V(acc+5)}')
        return f
    gather([(G + 4*i, 4, OB + i*16384) for i in range(16)], 'v12', 'sent', fast=sum_fast(16, 16), tmp='v11', sleep=1)
    a('v_permlane32_swap_b32 v16, v18\nv_permlane32_swap_b32 v17, v19\nv_add_f32 v16, v16, v18\nv_add_f32 v17, v17, v19')
    a('v_permlane16_swap_b32 v16, v17\nv_add_f32 v16, v16, v17')
    rnd('v16')
    a(f'ds_write_b16_d16_hi v13, v16 offset:{OV}')
    stamp(11)
    a('s_waitcnt lgkmcnt(0)\ns_barrier')

    a('L_final:')
    a(f'v_lshlrev_b32 v4, 2, v254\nv_add_u32 v4, {WA}, v4')
    a('ds_read_b64 v[248:249], v4\nds_read_b64 v[250:251], v4 offset:4096\nds_read_b64 v[252:253], v4 offset:8192')
    a(f'v_and_b32 v5, 31, v1\nv_lshlrev_b32 v5, 4, v5\nv_lshrrev_b32 v6, 5, v1\nv_lshl_add_u32 v5, v6, 12, v5\nv_lshl_add_u32 v5, s3, 9, v5')
    a(f'v_lshl_add_u32 v7, v6, 2, {vM}\nv_lshl_add_u32 v7, s3, 3, v7')
    a(f'v_lshl_add_u32 v8, v6, 3, {vM}')
    a('v_lshrrev_b32 v9, 2, v254\nv_cmp_eq_u32 s[42:43], s2, v9')
    gather([(G + 4*i, 4, P4 + i*8192) for i in range(8)], 'v5', 'sent', fast=sum_fast(8, 16), tmp='v11', sleep=0)
    stamp(12)
    a('v_permlane32_swap_b32 v16, v18\nv_permlane32_swap_b32 v17, v19\nv_lshlrev_b32 v20, 16, v246\nv_and_b32 v21, 0xffff0000, v246')
    a('v_pk_add_f32 v[16:17], v[16:17], v[18:19]'); rnd('v16'); rnd('v17')
    a('s_waitcnt lgkmcnt(0)')
    a('v_pk_mul_f32 v[16:17], v[16:17], v[248:249]'); rnd('v16'); rnd('v17')
    a('v_pk_add_f32 v[16:17], v[16:17], v[20:21]'); rnd('v16'); rnd('v17')
    def stats(st, own_off):
        a('v_add_f32 v18, v16, v17\nv_mul_f32 v19, v16, v16\nv_fmac_f32 v19, v17, v17')
        a(f's_mov_b64 exec, s[42:43]\nds_write_b64 v8, v[16:17] offset:{OWN + own_off}\ns_mov_b64 exec, -1')
        a('v_permlane32_swap_b32 v18, v19\nv_add_f32 v18, v18, v19')
        allred('v_add_f32', 'v18', 'v19', (16, 1, 2, 4, 8))
        setexec(0x0000000100000001)
        a(f'ds_write_b32 v7, v18 offset:{st}')
        setexec(-1)
        a('s_waitcnt lgkmcnt(0)\ns_barrier')
        for i in range(4): a(f'ds_read_b128 {V(24+4*i,4)}, {vM} offset:{st + 16*i}')
        if own_off: a(f'ds_read_b128 v[40:43], {vM} offset:{OWN+16}')
        k = 1 if own_off else 0
        a(f's_waitcnt lgkmcnt({2+k})\nv_pk_add_f32 v[24:25], v[24:25], v[26:27]\nv_pk_add_f32 v[28:29], v[28:29], v[30:31]')
        a(f's_waitcnt lgkmcnt({k})\nv_pk_add_f32 v[32:33], v[32:33], v[34:35]\nv_pk_add_f32 v[36:37], v[36:37], v[38:39]')
        a('v_pk_add_f32 v[24:25], v[24:25], v[28:29]\nv_pk_add_f32 v[32:33], v[32:33], v[36:37]\nv_pk_add_f32 v[24:25], v[24:25], v[32:33]')
        a(f'v_mul_f32 v24, {f2u(1/1024):#x}, v24\nv_mul_f32 v25, {f2u(1/1024):#x}, v25\nv_fma_f32 v25, -v24, v24, v25\nv_max_f32 v25, 0, v25')
        ln_scale('v24', 'v25')
    stats(ST1, 0)
    a('v_sub_f32 v16, v16, v24\nv_sub_f32 v17, v17, v24'); rnd('v16'); rnd('v17')
    a('v_mul_f32 v16, v16, v25\nv_mul_f32 v17, v17, v25'); rnd('v16'); rnd('v17')
    a('v_pk_mul_f32 v[16:17], v[16:17], v[252:253]'); rnd('v16'); rnd('v17')
    a('v_pk_add_f32 v[16:17], v[16:17], v[250:251]'); rnd('v16'); rnd('v17')
    stats(ST2, 16)
    stamp(13)
    a('s_waitcnt lgkmcnt(0) vmcnt(0)')
    for e in range(4): a(f'v_sub_f32 v{40+e}, v{40+e}, v24')
    for e in range(4): rnd(f'v{40+e}')
    for e in range(4): a(f'v_mul_f32 v{40+e}, v{40+e}, v25')
    for e in range(4): rnd(f'v{40+e}')
    c0 = -2 * LOG2E * 0.7978845608028654; c1 = c0 * 0.044715
    a(f'v_mov_b32 v44, {f2u(c1):#x}\nv_mov_b32 v45, {f2u(c0):#x}')
    for e in range(4): a(f'v_mov_b32 v{16+e}, 0')
    NB = 4
    U, Z = 48, 64
    units = [(i, dp) for i in range(7) for dp in range(2)]
    for s0 in range(0, 14, NB):
        blk = list(enumerate(units[s0:s0+NB]))
        R2 = lambda base, k: V(base + 2*k, 2)
        def both(fn):
            for k, _ in blk:
                fn(2*k); fn(2*k+1)
        if mimic:
            for k, (i, dp) in blk: a(f'v_pk_mul_f32 {R2(U,k)}, {V(40+2*dp,2)}, {V(224+2*i,2)} op_sel:[0,0] op_sel_hi:[1,0]')
            both(lambda r: rnd(V(U+r)))
            for k, (i, dp) in blk: a(f'v_pk_add_f32 {R2(U,k)}, {R2(U,k)}, {V(224+2*i,2)} op_sel:[0,1] op_sel_hi:[1,1]')
            both(lambda r: rnd(V(U+r)))
        else:
            for k, (i, dp) in blk: a(f'v_pk_fma_f32 {R2(U,k)}, {V(40+2*dp,2)}, {V(224+2*i,2)}, {V(224+2*i,2)} op_sel:[0,0,1] op_sel_hi:[1,0,1]')
        for k, _ in blk: a(f'v_pk_mul_f32 {R2(Z,k)}, {R2(U,k)}, {R2(U,k)}')
        for k, _ in blk: a(f'v_pk_fma_f32 {R2(Z,k)}, {R2(Z,k)}, v[44:45], v[44:45] op_sel:[0,0,1] op_sel_hi:[1,0,1]')
        for k, _ in blk: a(f'v_pk_mul_f32 {R2(Z,k)}, {R2(Z,k)}, {R2(U,k)}')
        both(lambda r: a(f'v_exp_f32 {V(Z+r)}, {V(Z+r)}'))
        for k, _ in blk: a(f'v_pk_add_f32 {R2(Z,k)}, {R2(Z,k)}, 1.0 op_sel_hi:[1,0]')
        both(lambda r: a(f'v_rcp_f32 {V(Z+r)}, {V(Z+r)}'))
        for k, _ in blk: a(f'v_pk_mul_f32 {R2(U,k)}, {R2(U,k)}, {R2(Z,k)}')
        if mimic: both(lambda r: rnd(V(U+r)))
        for k, (i, dp) in blk:
            sel = i & 1
            a(f'v_pk_fma_f32 {V(16+2*dp,2)}, {R2(U,k)}, {V(238+(i & ~1),2)}, {V(16+2*dp,2)} op_sel:[0,{sel},0] op_sel_hi:[1,{sel},1]')
    stamp(14)
    a(f'v_lshrrev_b32 v7, 4, v1\nv_lshl_add_u32 v7, v7, 2, {vM}\nv_lshl_add_u32 v7, s3, 4, v7')
    a('v_permlane32_swap_b32 v16, v18\nv_permlane32_swap_b32 v17, v19\nv_add_f32 v16, v16, v18\nv_add_f32 v17, v17, v19')
    a('v_permlane16_swap_b32 v16, v17\nv_add_f32 v16, v16, v17')
    allred('v_add_f32', 'v16', 'v17', (1, 2, 4, 8))
    setexec(0x0001000100010001)
    a(f'ds_write_b32 v7, v16 offset:{YP}')
    setexec(-1)
    a('s_waitcnt lgkmcnt(0)\ns_barrier')
    a('s_cmp_lg_u32 s3, 0\ns_cbranch_scc1 L_fin')
    a(f's_lshl_b32 s30, s2, 4\ns_add_u32 s30, s30, {WA + 3*4096}\nv_mov_b32 v7, s30')
    for i in range(8): a(f'ds_read_b128 {V(48+4*i,4)}, {vM} offset:{YP + 16*i}')
    a(f'ds_read_b128 v[40:43], {vM} offset:{OWN}\nds_read_b128 v[44:47], v7')
    a('s_waitcnt lgkmcnt(0)')
    for st in (4, 8, 16):
        for i in range(0, 32, 2*st):
            for e in (0, 2): a(f'v_pk_add_f32 {V(48+i+e,2)}, {V(48+i+e,2)}, {V(48+i+st+e,2)}')
    for e in range(4): rnd(f'v{48+e}')
    for e in range(4): a(f'v_add_f32 v{48+e}, v{48+e}, v245')
    for e in range(4): rnd(f'v{48+e}')
    for e in range(4): a(f'v_mul_f32 v{48+e}, v{48+e}, v{44+e}')
    for e in range(4): rnd(f'v{48+e}')
    for e in range(4): a(f'v_add_f32 v{48+e}, v{48+e}, v{40+e}')
    a('v_cvt_pk_bf16_f32 v48, v48, v49\nv_cvt_pk_bf16_f32 v49, v50, v51')
    a('s_lshl_b32 s30, s2, 3\nv_mov_b32 v7, s30')
    setexec(1)
    a(f'global_store_dwordx2 v7, v[48:49], {sOUT}')
    setexec(-1)
    a('L_fin:')
    a('s_cmp_lg_u32 s2, 0\ns_cbranch_scc1 L_fin2\ns_cmp_lg_u32 s3, 4\ns_cbranch_scc1 L_fin2')
    a(f'v_mov_b32 v7, {sT}\nv_mov_b32 v8, 0')
    setexec(1)
    a(f'global_store_dword v8, v7, {sWS} offset:4')
    setexec(-1)
    a('L_fin2:')
    if stamps:
        stamp(15)
        a(f's_lshl_b32 s30, s2, 11\ns_add_u32 s30, s30, {DBG}\nv_lshlrev_b32 v7, 2, v0')
        a(f'buffer_store_dword v255, v7, {SRD_WS}, s30 offen')
    a('L_end:\ns_endpgm\nL_code_end:')
    body = a.finish()
    out = HEADER + f'; @launch grid=(256,1,1) block=(512,1,1) lds={LDS_BYTES}\n'
    out += f'.amdgcn_target "amdgcn-amd-amdhsa--gfx950"\n.text\n.globl {NAME}_kernel\n.p2align 8\n.type {NAME}_kernel,@function\n'
    out += body
    out += f'''.section .rodata,"a"
.p2align 6
.amdhsa_kernel {NAME}_kernel
  .amdhsa_next_free_vgpr 256
  .amdhsa_next_free_sgpr 102
  .amdhsa_accum_offset 256
  .amdhsa_group_segment_fixed_size 0
  .amdhsa_kernarg_size 120
  .amdhsa_user_sgpr_count 2
  .amdhsa_user_sgpr_kernarg_segment_ptr 1
  .amdhsa_system_sgpr_workgroup_id_x 1
  .amdhsa_float_denorm_mode_32 3
.end_amdhsa_kernel
'''
    return out

if __name__ == '__main__':
    kw = {}
    for arg in sys.argv[2:]:
        k, v = arg.split('=')
        kw[k] = eval(v)
    open(sys.argv[1], 'w').write(gen(**kw))
```

```python
import sys, struct
from asmfw import Asm

NAME = 'adaLN_cond__gqa_block_cached__mixer_token_mlp__decode'

def f2u(x): return struct.unpack('<I', struct.pack('<f', x))[0]
LOG2E = 1.4426950408889634
SCALE = 128 ** -0.5

P1 = 0x10000; P2 = 0x30000; P3 = 0x50000; P4 = 0x60000; ML = 0x70000; OB = 0x100000; DBG = 0x200000
RS = 6; RINGW = RS * 4096
WB = 4 * RINGW; WA = WB + 32768; MISC = WA + 16384
SC = 0; QL = 2048; HV = 4352; OV = 4864; MLW = 5376; FW = 5632; CNT = 5760; ST1 = 5888; ST2 = 6016; OWN = 6144; YP = 6208
LDS_BYTES = 163840
C_W1, C_WQ, C_WQF, C_H, C_Q, C_M2, C_M2F, C_ML, C_F, C_RED, C_WO = range(11)

HEADER = open('cdna_kernels/' + NAME + '.s.ref').read().split('; Override launch')[0]

def gen(F=6, NQ=50, nt=' nt', wnt=' nt', mimic=True, stamps=False, warm=True, spin=1 << 18, dbgtime=False):
    a = Asm()
    SRD_K, SRD_V, SRD_WS, SRD_WQ, SRD_WO, SRD_WM = 's[4:7]', 's[8:11]', 's[12:15]', 's[16:19]', 's[20:23]', 's[24:27]'
    sX, sW1, sB1, sW2, sB2, sC, sOUT, sWS = 's[36:37]', 's[48:49]', 's[50:51]', 's[52:53]', 's[54:55]', 's[56:57]', 's[60:61]', 's[64:65]'
    sT, sI, sBase, sSpin = 's66', 's67', 's68', 's69'
    MASK = lambda i: f's[{70+2*i}:{71+2*i}]'
    vM, vOne = 'v2', 'v3'
    V = lambda i, n=1: f'v{i}' if n == 1 else f'v[{i}:{i+n-1}]'

    def stamp(i):
        if stamps:
            a(f's_memrealtime s[34:35]\ns_waitcnt lgkmcnt(0)\nv_writelane_b32 v255, s34, {i}')
    def setexec(mask):
        if mask == -1: a('s_mov_b64 exec, -1')
        elif mask < 64: a(f's_mov_b64 exec, {mask}')
        else: a(f's_mov_b32 exec_lo, {mask & 0xffffffff:#x}\ns_mov_b32 exec_hi, {mask >> 32:#x}')
    def arrive(c):
        a(f's_mov_b64 exec, 1\nds_add_u32 {vM}, {vOne} offset:{CNT + 4*c}\ns_mov_b64 exec, -1')
    def await_(c, n, tmp, sleep=1):
        L = a.lab('W'); D = a.lab('WD')
        a(f's_mov_b32 {sSpin}, {spin}')
        a(f'{L}:\nds_read_b32 {tmp}, {vM} offset:{CNT + 4*c}\ns_waitcnt lgkmcnt(0)\nv_readfirstlane_b32 s30, {tmp}')
        a(f's_cmp_ge_u32 s30, {n}\ns_cbranch_scc1 {D}')
        if sleep: a(f's_sleep {sleep}')
        a(f's_sub_u32 {sSpin}, {sSpin}, 1\ns_cbranch_scc0 {L}\n{D}:')
    def rnd(r): a(f'v_cvt_pk_bf16_f32 {r}, 0, {r}')
    def allred(op, r, t, steps=(1, 2, 4, 8, 16, 32)):
        dpp = {1: 'quad_perm:[1,0,3,2]', 2: 'quad_perm:[2,3,0,1]', 4: 'row_half_mirror', 8: 'row_mirror'}
        if 8 in steps and 4 not in steps: dpp[8] = 'row_ror:8'
        for s in steps:
            if s < 16:
                a(f'{op}_dpp {r}, {r}, {r} {dpp[s]} row_mask:0xf bank_mask:0xf')
            else:
                a(f'v_mov_b32 {t}, {r}\nv_permlane{s}_swap_b32 {r}, {t}\n{op} {r}, {r}, {t}')
    def ws_load(dst, w, voff, off, st):
        hi, lo = off & ~0xfff, off & 0xfff
        if st.get('hi') != hi:
            a(f's_mov_b32 s31, {hi:#x}'); st['hi'] = hi
        sfx = {1: 'dword', 2: 'dwordx2', 4: 'dwordx4'}[w]
        a(f'buffer_load_{sfx} {V(dst, w)}, {voff}, {SRD_WS}, s31 offen offset:{lo} sc1')
    def gather(loads, voff, mode, fast=None, tmp=None, sleep=2):
        L = a.lab('G'); D = a.lab('GD')
        st = {}
        for d, w, off in loads: ws_load(d, w, voff, off, st)
        a(f's_mov_b32 {sSpin}, {spin}')
        a(f'{L}:')
        if fast is None: a('s_waitcnt vmcnt(0)')
        else:
            fast()
            a(f's_cbranch_vccz {D}')
        for i, (d, w, off) in enumerate(loads):
            if mode == 'tag':
                a(f'v_cmp_ne_u32 {MASK(i)}, {sT}, {V(d+1)}')
                if w == 4:
                    a(f'v_cmp_ne_u32 vcc, {sT}, {V(d+3)}\ns_or_b64 {MASK(i)}, {MASK(i)}, vcc')
            else:
                if w == 4: a(f'v_max3_u32 {tmp}, {V(d)}, {V(d+1)}, {V(d+2)}\nv_max_u32 {tmp}, {tmp}, {V(d+3)}')
                elif w == 2: a(f'v_max_u32 {tmp}, {V(d)}, {V(d+1)}')
                else: a(f'v_mov_b32 {tmp}, {V(d)}')
                a(f'v_cmp_eq_u32 {MASK(i)}, -1, {tmp}')
        a(f's_or_b64 s[28:29], {MASK(0)}, {MASK(1 if len(loads) > 1 else 0)}')
        for i in range(2, len(loads)): a(f's_or_b64 s[28:29], s[28:29], {MASK(i)}')
        a(f's_cbranch_scc0 {D}')
        a(f's_sub_u32 {sSpin}, {sSpin}, 1\ns_cbranch_scc1 {D}')
        if sleep: a(f's_sleep {sleep}')
        for i, (d, w, off) in enumerate(loads):
            S = a.lab('GS')
            a(f's_mov_b64 exec, {MASK(i)}\ns_cbranch_execz {S}')
            ws_load(d, w, voff, off, {})
            a(f'{S}:')
        a(f's_mov_b64 exec, -1\ns_waitcnt vmcnt(0)\ns_branch {L}\n{D}:')
    def w_voff(dst, stride, t):
        a(f'v_lshrrev_b32 {t}, 3, v1\nv_mul_u32_u24 {dst}, {stride}, {t}' if stride < 65536 else '')
        a(f'v_lshrrev_b32 {t}, 4, v1\nv_lshlrev_b32 {t}, 1, {t}\nv_xor_b32 {t}, {t}, v1\nv_and_b32 {t}, 7, {t}\nv_lshl_add_u32 {dst}, {t}, 4, {dst}')
    def w_dma(srd, voff, s_off, stride, n, lds_base, rows_per_wave, first=0):
        a(f's_mul_i32 s33, {sI}, {rows_per_wave*128}')
        for i in range(first, first + n):
            a(f's_add_u32 s32, {s_off}, {8*i*stride}\ns_add_u32 m0, s33, {lds_base + i*1024}')
            a(f'buffer_load_dwordx4 {voff}, {srd}, s32 offen{wnt} lds')
    def w_traddr(dst, base, t, t2):
        a(f'v_lshrrev_b32 {t}, 2, v1\nv_lshlrev_b32 {dst}, 7, {t}')
        a(f'v_and_b32 {t}, 6, {t}')
        a(f'v_lshrrev_b32 {t2}, 1, v1\nv_and_b32 {t2}, 1, {t2}\nv_lshl_add_u32 {t2}, {sI}, 1, {t2}')
        a(f'v_xor_b32 {t}, {t}, {t2}\nv_lshl_add_u32 {dst}, {t}, 4, {dst}')
        a(f'v_and_b32 {t}, 1, v1\nv_lshl_add_u32 {dst}, {t}, 3, {dst}\nv_add_u32 {dst}, {base}, {dst}')
    def w_read(areg, addr, nks):
        for ks in range(nks):
            a(f'ds_read_b64_tr_b16 {V(areg+4*ks, 2)}, {addr} offset:{ks*4096}')
            a(f'ds_read_b64_tr_b16 {V(areg+4*ks+2, 2)}, {addr} offset:{ks*4096+2048}')
    def b_read(breg, addr, nks):
        for ks in range(nks):
            a(f'ds_read2_b64 {V(breg+4*ks, 4)}, {addr} offset0:{8*ks} offset1:{8*ks+4}')
    def w_mfma(d, areg, breg, nks, staged=False):
        for ks in range(nks):
            if staged: a(f's_waitcnt lgkmcnt({nks-1-ks})')
            a(f'v_mfma_f32_16x16x32_bf16 {V(d,4)}, {V(areg+4*ks,4)}, {V(breg+4*ks,4)}, {"0" if ks == 0 else V(d,4)}')
    def load_coefs():
        for r in range(224, 246): a(f'v_mov_b32 v{r}, 0')
        a('v_lshlrev_b32 v247, 1, v0')
        for i in range(7):
            if i == 4: a('v_add_u32 v247, 0x1000, v247')
            off = (i % 4) * 1024
            a(f'global_load_short_d16_hi v{224+2*i}, v247, {sW1} offset:{off}')
            a(f'global_load_short_d16_hi v{225+2*i}, v247, {sB1} offset:{off}')
            a(f'global_load_short_d16_hi v{238+i}, v247, {sW2} offset:{off}')
        a(f'v_mov_b32 v247, 0\nglobal_load_short_d16_hi v245, v247, {sB2}')
        a('v_and_b32 v247, 31, v1\nv_lshlrev_b32 v247, 2, v247\nv_lshrrev_b32 v254, 5, v1\nv_lshl_add_u32 v247, v254, 1, v247')
        a('v_lshl_add_u32 v254, s3, 7, v247')
        a(f'v_lshlrev_b32 v247, 1, v254\nglobal_load_dword v246, v247, {sX}')

    a(f'{NAME}_kernel:')
    a('s_cmp_ge_u32 s2, 256\ns_cbranch_scc1 L_end')
    if dbgtime: a('s_memrealtime s[34:35]')
    a('s_load_dwordx16 s[36:51], s[0:1], 0\ns_load_dwordx8 s[52:59], s[0:1], 64\ns_load_dwordx4 s[60:63], s[0:1], 96\ns_load_dwordx2 s[64:65], s[0:1], 112')
    a('v_lshrrev_b32 v1, 6, v0\nv_readfirstlane_b32 s3, v1\nv_and_b32 v1, 63, v0')
    a(f'v_mov_b32 {vM}, {MISC}\nv_mov_b32 {vOne}, 1')
    if stamps: a('v_mov_b32 v255, 0')
    a(f's_and_b32 {sI}, s3, 3')
    a('s_mov_b32 s6, 0x4000000\ns_mov_b32 s7, 0x20000\ns_mov_b32 s10, 0x4000000\ns_mov_b32 s11, 0x20000')
    a('s_mov_b32 s14, 0x10000000\ns_mov_b32 s15, 0x20000\ns_mov_b32 s18, 0x800000\ns_mov_b32 s19, 0x20000')
    a('s_mov_b32 s22, 0x800000\ns_mov_b32 s23, 0x20000\ns_mov_b32 s26, 0xc00000\ns_mov_b32 s27, 0x20000')
    a('s_waitcnt lgkmcnt(0)')
    for srd, p in ((4, 38), (8, 40), (12, 64), (16, 42), (20, 44), (24, 58)):
        a(f's_mov_b32 s{srd}, s{p}\ns_and_b32 s{srd+1}, s{p+1}, 0xffff')
    stamp(0)
    a('s_cmp_ge_u32 s3, 4\ns_cbranch_scc1 L_X')

    VOFF, KA, VA, Q, S, H = 4, 8, 16, 32, 64, 96
    PP, D1, D2, VS = 32, 96, 128, 160
    vMax, vSum, vNm = 'v224', 'v225', 'v226'
    a('v_lshrrev_b32 v24, 4, v1\nv_and_b32 v25, 15, v1')
    a('v_lshlrev_b32 v26, 1, v24\nv_xor_b32 v26, v26, v25\nv_lshlrev_b32 v26, 4, v26\nv_lshl_add_u32 v4, v24, 8, v26')
    for i in range(1, 4): a(f'v_xor_b32 v{VOFF+i}, {(8*(i&1) + (i>>1)) << 4:#x}, v4')
    a(f's_lshl_b32 {sBase}, s2, 18\ns_lshl_b32 s30, s3, 12\ns_add_u32 {sBase}, {sBase}, s30')
    a(f's_mul_i32 s38, s3, {RINGW}')
    vorder = []
    for u in range(4): vorder += [4*u, 4*u+2, 4*u+1, 4*u+3]
    def issue(n):
        gi, j = n // 4, n % 4
        if j == 0:
            grp = gi if gi < 16 else vorder[gi - 16]
            a(f's_add_u32 s39, {sBase}, {grp*16384}\ns_add_u32 m0, s38, {(gi % RS)*4096}')
        a(f'buffer_load_dwordx4 v{VOFF+j}, {SRD_K if gi < 16 else SRD_V}, s39 offen offset:{j*1024}{nt} lds')
    for n in range(F): issue(n)
    stamp(16)
    a('s_cmp_lg_u32 s3, 0\ns_cbranch_scc1 L_noinit')
    a(f'v_lshl_add_u32 v27, v1, 2, {vM}\nv_mov_b32 v28, 0')
    setexec(0xffff); a(f'ds_write_b32 v27, v28 offset:{CNT}'); setexec(-1)
    a('s_waitcnt lgkmcnt(0)\nL_noinit:\ns_barrier')
    a('v_and_b32 v26, 7, v25\nv_lshlrev_b32 v26, 1, v26\nv_lshrrev_b32 v27, 3, v25\nv_or_b32 v26, v26, v27')
    a('v_lshrrev_b32 v27, 1, v24\nv_xor_b32 v26, v26, v27\nv_lshlrev_b32 v26, 4, v26\nv_lshl_add_u32 v26, v25, 8, v26')
    a(f'v_and_b32 v27, 1, v24\nv_lshl_add_u32 v26, v27, 12, v26\nv_add_u32 v{KA}, s38, v26')
    for j in range(1, 8): a(f'v_xor_b32 v{KA+j}, {j << 5:#x}, v{KA}')
    a('v_lshrrev_b32 v27, 2, v1')
    a('v_and_b32 v26, 7, v27\nv_lshlrev_b32 v26, 1, v26\nv_lshrrev_b32 v28, 3, v27\nv_or_b32 v26, v26, v28')
    a('v_lshrrev_b32 v28, 1, v1\nv_and_b32 v28, 1, v28\nv_xor_b32 v26, v26, v28\nv_lshlrev_b32 v26, 4, v26\nv_lshl_add_u32 v26, v27, 8, v26')
    a(f'v_and_b32 v28, 1, v1\nv_lshl_add_u32 v26, v28, 3, v26\nv_add_u32 v{VA}, s38, v26')
    for t in range(1, 8): a(f'v_xor_b32 v{VA+t}, {t << 5:#x}, v{VA}')
    for r in range(Q, Q + 32): a(f'v_mov_b32 v{r}, 0')
    a(f'v_mov_b32 {vMax}, 0xff800000\nv_mov_b32 {vSum}, 0')
    a(f's_mov_b32 s40, {f2u(SCALE):#x}\ns_mov_b32 s41, {f2u(LOG2E):#x}')
    w_voff('v28', 2048, 'v26'); w_traddr('v29', WB, 'v26', 'v27')
    a(f'v_lshl_add_u32 v30, v24, 3, {vM}\nv_add_u32 v30, {OV}, v30')
    a('v_and_b32 v26, 7, v1\nv_mul_u32_u24 v26, 528, v26\nv_lshl_add_u32 v26, v24, 4, v26\nv_add_u32 v31, s38, v26')
    a('s_and_b32 s42, s2, 7\ns_lshl_b32 s42, s42, 1\ns_lshr_b32 s30, s2, 3\ns_and_b32 s30, s30, 1\ns_add_u32 s42, s42, s30')
    a('s_lshr_b32 s43, s2, 4')
    a(f's_lshl_b32 s44, s42, 19\ns_lshl_b32 s30, {sI}, 17\ns_add_u32 s44, s44, s30\ns_lshl_b32 s30, s43, 7\ns_add_u32 s44, s44, s30')

    stamp(17)
    def t_readK(t, h):
        def f():
            for j in range(8): a(f'ds_read_b128 {V(H+32*h+4*j,4)}, v{KA+j} offset:{((2*t) % RS)*4096}')
            a('s_waitcnt lgkmcnt(0)')
        return f
    def t_waitq():
        stamp(1)
        await_(C_Q, 4, 'v26')
        stamp(2)
        a(f'v_and_b32 v26, 7, v1\nv_mul_u32_u24 v26, 272, v26\nv_lshrrev_b32 v27, 5, v1\nv_lshl_add_u32 v26, v27, 4, v26\nv_add_u32 v26, {MISC+QL}, v26')
        setexec(0xff0000ffff0000ff)
        for j in range(8): a(f'ds_read_b128 {V(Q+4*j,4)}, v26 offset:{32*j}')
        setexec(-1)
        a('s_waitcnt lgkmcnt(0)')
    def t_qk(t, h):
        def f():
            for j in range(8):
                a(f'v_mfma_f32_16x16x32_bf16 {V(S+4*t,4)}, {V(H+32*h+4*j,4)}, {V(Q+4*j,4)}, {"0" if j == 0 else V(S+4*t,4)}')
        return f
    def t_round(t):
        def f():
            for r in range(4): rnd(V(S+4*t+r))
            for r in range(4): a(f'v_mul_f32 {V(S+4*t+r)}, s40, {V(S+4*t+r)}')
            for r in range(4): rnd(V(S+4*t+r))
            a(f'v_max3_f32 {vMax}, {vMax}, {V(S+4*t)}, {V(S+4*t+1)}\nv_max3_f32 {vMax}, {vMax}, {V(S+4*t+2)}, {V(S+4*t+3)}')
        return f
    def t_max():
        allred('v_max_f32', vMax, 'v26', (8, 16, 32))
        a(f'v_mul_f32 {vMax}, s41, {vMax}')
    def t_exp(t):
        def f():
            for r in range(4): a(f'v_fma_f32 {V(S+4*t+r)}, {V(S+4*t+r)}, s41, -{vMax}')
            for r in range(4): a(f'v_exp_f32 {V(S+4*t+r)}, {V(S+4*t+r)}')
            a(f'v_cvt_pk_bf16_f32 {V(PP+2*t)}, {V(S+4*t)}, {V(S+4*t+1)}\nv_cvt_pk_bf16_f32 {V(PP+2*t+1)}, {V(S+4*t+2)}, {V(S+4*t+3)}')
            a(f'v_add_f32 v26, {V(S+4*t)}, {V(S+4*t+1)}\nv_add_f32 v27, {V(S+4*t+2)}, {V(S+4*t+3)}\nv_add_f32 v26, v26, v27\nv_add_f32 {vSum}, {vSum}, v26')
        return f
    def t_ml():
        allred('v_add_f32', vSum, 'v26', (8, 16, 32))
        a(f'v_lshl_add_u32 v26, v1, 2, {vM}\nv_lshl_add_u32 v26, s3, 6, v26')
        setexec(0xff)
        a(f'ds_write_b32 v26, {vMax} offset:{MLW}\nds_write_b32 v26, {vSum} offset:{MLW+32}')
        arrive(C_ML)
        stamp(3)
    def readV(p, half):
        slot = (16 + 2*p + half) % RS
        for t in range(8):
            a(f'ds_read_b64_tr_b16 {V(VS+4*t+2*half,2)}, v{VA+t} offset:{slot*4096}')
    def pv(p, staged):
        u, which = p >> 1, p & 1
        Dd = D2 if which else D1
        for t in range(8):
            if staged: a(f's_waitcnt lgkmcnt({7-t})')
            a(f'v_mfma_f32_16x16x32_bf16 {V(Dd+4*t,4)}, {V(VS+4*t,4)}, {V(PP+4*u,4)}, {"0" if u == 0 else V(Dd+4*t,4)}')
    def t_pv(p):
        def f():
            readV(p, 0); readV(p, 1); pv(p, True)
        return f
    def writeD(which):
        setexec(0xff00ff00ff00ff00 if which else 0x00ff00ff00ff00ff)
        for t in range(8):
            a(f'ds_write_b128 v31, {V((D2 if which else D1)+4*t,4)} offset:{8192 + which*4352 + 64*t}')
        setexec(-1)
    def t_fread():
        await_(C_F, 4, 'v26')
        await_(C_M2F, 4, 'v26')
        a(f'v_lshrrev_b32 v26, 5, v0\nv_lshl_add_u32 v27, v26, 4, {vM}\nds_read_b128 v[228:231], v27 offset:{FW}')
        a('v_mul_u32_u24 v26, 528, v26\nv_and_b32 v27, 31, v0\nv_lshl_add_u32 v232, v27, 4, v26\nv_add_u32 v232, 8192, v232')
        a(f'v_add_u32 v233, {2*RINGW}, v232\nv_lshlrev_b32 v234, 4, v0')
        a(f's_lshl_b32 s45, s2, 12\ns_add_u32 s45, s45, {OB}')
        a('s_waitcnt lgkmcnt(0)')

    sched = {}
    def at(n, f): sched.setdefault(n, []).append(f)
    land = lambda t: 8*t + 7 + F
    for t in range(4): at(land(t), t_readK(t, t))
    assert NQ >= land(3) and NQ + 2 <= 8*4 + 4*RS
    at(NQ, t_waitq)
    n = NQ + 1
    free_h = {}
    for t in range(4):
        at(n, t_qk(t, t)); free_h[t] = n + 1
        at(n + 1, t_round(t))
        n += 2
    rd = {}
    for t in range(4, 8):
        rd[t] = max(free_h[t-4], land(t))
        assert rd[t] < 8*t + 4*RS, (t, rd[t])
        at(rd[t], t_readK(t, t - 4))
    for t in range(4, 8):
        n = max(n, rd[t] + 1)
        at(n, t_qk(t, t - 4)); at(n + 1, t_round(t)); n += 2
    at(n, t_max); n += 1
    for t in range(8):
        at(n, t_exp(t))
        if t & 1: n += 1
    at(n, t_ml); n += 1
    for p in range(7):
        m = max(n, land(8 + p))
        assert m < 64 + 8*p + 4*RS, (p, m)
        if m < 128: at(m, t_pv(p))
        n = m + 1
    assert land(14) <= 127
    at(land(13) + 2, t_fread)
    for n in range(F, 128):
        a(f's_waitcnt vmcnt({F-1})')
        issue(n)
        if n % 16 == 0: stamp(18 + n // 16)
        for f in sched.get(n, []): f()
    w_dma(SRD_WO, 'v28', 's44', 2048, 8, WB, 64)
    writeD(0)
    a('s_waitcnt vmcnt(12)')
    readV(7, 0)
    a('s_waitcnt vmcnt(8)')
    stamp(4)
    readV(7, 1); pv(7, True)
    writeD(1)
    arrive(C_RED)
    await_(C_RED, 4, 'v26', sleep=0)
    for w in range(4):
        for hf in range(2):
            a(f'ds_read_b128 {V(VS+8*w+4*hf,4)}, v{232 + (w >> 1)} offset:{(w & 1)*RINGW + hf*4352}')
    for w in range(4):
        a(f's_waitcnt lgkmcnt({6-2*w})')
        sel = w & 1; fp = V(228 + (w & 2), 2)
        for h2 in range(2):
            a(f'v_pk_add_f32 {V(VS+8*w+2*h2,2)}, {V(VS+8*w+2*h2,2)}, {V(VS+8*w+4+2*h2,2)}')
        for h2 in range(2):
            if w == 0: a(f'v_pk_mul_f32 {V(24+2*h2,2)}, {V(VS+2*h2,2)}, {fp} op_sel:[0,{sel}] op_sel_hi:[1,{sel}]')
            else: a(f'v_pk_fma_f32 {V(24+2*h2,2)}, {V(VS+8*w+2*h2,2)}, {fp}, {V(24+2*h2,2)} op_sel:[0,{sel},0] op_sel_hi:[1,{sel},1]')
    a(f'buffer_store_dwordx4 v[24:27], v234, {SRD_WS}, s45 offen sc1')
    stamp(5)
    a('s_waitcnt vmcnt(1)')
    arrive(C_WO)
    stamp(6)
    load_coefs()
    await_(C_WO, 4, 'v4', sleep=0)
    w_read(160, 'v29', 8)
    a(f'v_lshrrev_b32 v4, 4, v1\nv_lshlrev_b32 v4, 4, v4')
    a(f's_lshl_b32 s45, s42, 12\ns_lshl_b32 s30, s43, 8\ns_add_u32 s45, s45, s30\ns_lshl_b32 s30, {sI}, 6\ns_add_u32 s45, s45, s30\ns_add_u32 s45, s45, {P4}')
    a('s_waitcnt lgkmcnt(0)\ns_barrier')
    b_read(192, 'v30', 8)
    w_mfma(24, 160, 192, 8, staged=True)
    setexec(0x0001000100010001)
    a(f'buffer_store_dwordx4 v[24:27], v4, {SRD_WS}, s45 offen sc1')
    setexec(-1)
    stamp(7)
    a('s_branch L_final')

    a('L_X:')
    XA, XB, XD, G = 32, 64, 96, 100
    a(f's_load_dword {sT}, {sWS}, 4')
    a('v_and_b32 v10, 255, v0')
    a(f'v_lshlrev_b32 v11, 3, v10\nglobal_load_dwordx2 v[12:13], v11, {sC}')
    a(f'v_lshlrev_b32 v11, 5, v1\nglobal_load_dwordx4 v[16:19], v11, {sX}\nglobal_load_dwordx4 v[20:23], v11, {sX} offset:16')
    a('s_and_b32 s42, s2, 3\ns_lshr_b32 s43, s2, 2')
    a('v_lshl_add_u32 v15, s42, 8, v10\nv_lshlrev_b32 v11, 1, v15\nv_mov_b32 v14, 0')
    a(f'global_load_short_d16_hi v14, v11, {sX}')
    stamp(16)
    w_voff('v4', 12288, 'v11'); w_voff('v5', 8192, 'v11')
    a(f's_and_b32 s44, s2, 7\ns_lshr_b32 s45, s2, 3\ns_lshl_b32 s30, s44, 2\ns_add_u32 s30, s30, {sI}\ns_mul_i32 s46, s30, {32*12288}\ns_lshl_b32 s30, s45, 7\ns_add_u32 s46, s46, s30')
    w_dma(SRD_WM, 'v4', 's46', 12288, 4, WA, 32)
    stamp(17)
    for r in range(24, 28): a(f'v_mov_b32 v{r}, -1')
    a(f'v_lshlrev_b32 v11, 4, v10\ns_lshl_b32 s30, s2, 12\ns_add_u32 s30, s30, {OB}')
    a(f'buffer_store_dwordx4 v[24:27], v11, {SRD_WS}, s30 offen sc1')
    a('v_lshrrev_b32 v9, 4, v1\nv_lshlrev_b32 v9, 4, v9')
    a(f's_lshl_b32 s47, s42, 14\ns_lshl_b32 s30, s43, 8\ns_add_u32 s47, s47, s30\ns_lshl_b32 s30, {sI}, 6\ns_add_u32 s47, s47, s30\ns_add_u32 s47, s47, {P3}')
    a('s_and_b32 s38, s2, 7\ns_lshl_b32 s38, s38, 1\ns_lshr_b32 s30, s2, 3\ns_and_b32 s30, s30, 1\ns_add_u32 s38, s38, s30')
    a(f's_lshl_b32 s39, s38, 12\ns_lshr_b32 s30, s2, 4\ns_lshl_b32 s30, s30, 8\ns_add_u32 s39, s39, s30\ns_lshl_b32 s30, {sI}, 6\ns_add_u32 s39, s39, s30\ns_add_u32 s39, s39, {P4}')
    a(f's_lshl_b32 s40, s2, 6\ns_add_u32 s40, s40, {ML}')
    setexec(0x0001000100010001)
    a(f'buffer_store_dwordx4 v[24:27], v9, {SRD_WS}, s47 offen sc1')
    a(f'buffer_store_dwordx4 v[24:27], v9, {SRD_WS}, s39 offen sc1')
    a(f'buffer_store_dwordx4 v[24:27], v9, {SRD_WS}, s40 offen sc1')
    setexec(-1)
    nw = 0
    if warm:
        a('s_getpc_b64 s[32:33]\nL_pc:')
        a(f's_sub_u32 s32, s32, L_pc-{NAME}_kernel\ns_subb_u32 s33, s33, 0')
        a(f's_lshr_b32 s30, s2, 3\ns_and_b32 s30, s30, 7\ns_lshl_b32 s30, s30, 12\nv_lshlrev_b32 v11, 4, v10\nv_add_u32 v11, s30, v11')
        a(f'v_min_u32 v11, L_code_end-{NAME}_kernel-16, v11')
        a('global_load_dwordx4 v[28:31], v11, s[32:33]')
        nw = 1
    stamp(18)
    a('s_barrier')
    stamp(19)
    w_traddr('v6', WA, 'v11', 'v24')
    a(f'v_add_u32 v7, {(WB - WA) & 0xffffffff:#x}, v6')
    a(f'v_lshrrev_b32 v8, 1, v9\nv_add_u32 v8, {vM}, v8')
    a(f's_waitcnt vmcnt({8 + nw}) lgkmcnt(0)')
    stamp(20)
    a(f's_lshl_b32 s30, s42, 2\ns_add_u32 s30, s30, {sI}\ns_lshl_b32 s41, s30, 19\ns_lshl_b32 s30, s43, 7\ns_add_u32 s41, s41, s30')
    w_dma(SRD_WQ, 'v5', 's41', 8192, 8, WB, 64)
    a(f's_mul_i32 {sT}, {sT}, 1664525\ns_add_u32 {sT}, {sT}, 1013904223')
    a(f's_mov_b32 s30, {f2u(-LOG2E):#x}')
    a('v_lshlrev_b32 v24, 16, v12\nv_and_b32 v25, 0xffff0000, v12\nv_lshlrev_b32 v26, 16, v13\nv_and_b32 v27, 0xffff0000, v13')
    for i in range(4): a(f'v_mul_f32 v{100+i}, s30, v{24+i}')
    for i in range(4): a(f'v_exp_f32 v{100+i}, v{100+i}')
    for i in range(4): a(f'v_add_f32 v{100+i}, 1.0, v{100+i}')
    for i in range(4): a(f'v_rcp_f32 v{100+i}, v{100+i}')
    for i in range(4): a(f'v_mul_f32 v{24+i}, v{24+i}, v{100+i}')
    a('v_cvt_pk_bf16_f32 v12, v24, v25\nv_cvt_pk_bf16_f32 v13, v26, v27')
    a(f'v_lshl_add_u32 v11, v10, 3, {vM}\nds_write_b64 v11, v[12:13] offset:{SC}')
    stamp(21)
    a(f's_waitcnt vmcnt({8+4+nw})')
    stamp(22)
    a('s_waitcnt vmcnt(8)')
    arrive(C_W1)
    stamp(1)
    await_(C_W1, 4, 'v11', sleep=0)
    w_read(XA, 'v6', 4)
    a(f'v_lshl_add_u32 v11, s44, 8, v8')
    b_read(XB, 'v11', 4)
    def publish_tag(s_off):
        a('v_and_b32 v11, 1, v1\nv_cmp_eq_u32 vcc, 1, v11')
        a(f'v_mov_b32 v25, {sT}\nv_mov_b32 v27, {sT}\nv_lshlrev_b32 v11, 4, v11\nv_lshl_add_u32 v11, v9, 1, v11')
        a(f'v_cndmask_b32 v24, v{XD}, v{XD+2}, vcc\nv_cndmask_b32 v26, v{XD+1}, v{XD+3}, vcc')
        setexec(0x0003000300030003)
        a(f'buffer_store_dwordx4 v[24:27], v11, {SRD_WS}, {s_off} offen sc1')
        setexec(-1)
    a(f's_lshl_b32 s46, s44, 14\ns_lshl_b32 s30, s45, 9\ns_add_u32 s46, s46, s30\ns_lshl_b32 s30, {sI}, 7\ns_add_u32 s46, s46, s30\ns_add_u32 s46, s46, {P1}')
    a('s_waitcnt lgkmcnt(0)')
    w_mfma(XD, XA, XB, 4)
    publish_tag('s46')
    stamp(2)
    for i in range(8):
        a(f'v_lshlrev_b32 v{100+2*i}, 16, v{16+i}\nv_and_b32 v{101+2*i}, 0xffff0000, v{16+i}')
    a('v_add_f32 v16, v100, v101')
    for i in range(2, 16): a(f'v_add_f32 v16, v16, v{100+i}')
    allred('v_add_f32', 'v16', 'v17')
    a(f'v_mul_f32 v16, {f2u(1/1024):#x}, v16\nv_mov_b32 v18, 0')
    for i in range(16): a(f'v_sub_f32 v17, v{100+i}, v16\nv_fmac_f32 v18, v17, v17')
    allred('v_add_f32', 'v18', 'v17')
    def ln_scale(mean, var):
        rnd(mean); rnd(var)
        a(f'v_add_f32 {var}, {f2u(1e-5):#x}, {var}'); rnd(var)
        a(f'v_sqrt_f32 {var}, {var}'); rnd(var)
        a(f'v_rcp_f32 {var}, {var}')
    a(f'v_mul_f32 v18, {f2u(1/1024):#x}, v18')
    ln_scale('v16', 'v18')
    a('v_sub_f32 v14, v14, v16'); rnd('v14'); a('v_mul_f32 v14, v14, v18'); rnd('v14')
    stamp(23)
    a('s_waitcnt vmcnt(1)')
    arrive(C_WQ)
    await_(C_WQ, 4, 'v11')
    w_read(XA, 'v7', 8)
    a('s_waitcnt lgkmcnt(0)')
    arrive(C_WQF)
    stamp(3)
    a('v_lshlrev_b32 v12, 3, v15')
    gather([(G + 2*i, 2, P1 + (i & 7)*16384 + (i >> 3)*8192) for i in range(16)], 'v12', 'tag')
    stamp(4)
    for hf in range(2):
        b = G + 16*hf
        a(f'v_add_f32 v{b}, v{b}, v{b+2}\nv_add_f32 v{b+4}, v{b+4}, v{b+6}\nv_add_f32 v{b+8}, v{b+8}, v{b+10}\nv_add_f32 v{b+12}, v{b+12}, v{b+14}')
        a(f'v_add_f32 v{b}, v{b}, v{b+4}\nv_add_f32 v{b+8}, v{b+8}, v{b+12}\nv_add_f32 v{b}, v{b}, v{b+8}')
        rnd(f'v{b}')
    a(f'v_add_f32 v{G+16}, 1.0, v{G+16}'); rnd(f'v{G+16}')
    a(f'v_mul_f32 v14, v14, v{G+16}'); rnd('v14')
    a(f'v_add_f32 v14, v14, v{G}'); rnd('v14')
    a(f'v_lshl_add_u32 v11, v10, 1, {vM}\nds_write_b16_d16_hi v11, v14 offset:{HV}')
    arrive(C_H)
    await_(C_H, 4, 'v11', sleep=0)
    a(f'v_add_u32 v11, {HV}, v8')
    b_read(XB, 'v11', 8)
    a(f's_lshl_b32 s46, s42, 15\ns_lshl_b32 s30, s43, 9\ns_add_u32 s46, s46, s30\ns_lshl_b32 s30, {sI}, 7\ns_add_u32 s46, s46, s30\ns_add_u32 s46, s46, {P2}')
    w_mfma(XD, XA, XB, 8, staged=True)
    publish_tag('s46')
    stamp(5)
    a(f's_lshr_b32 s30, s2, 6\ns_lshl_b32 s30, s30, 13\ns_lshl_b32 s32, {sI}, 11\ns_add_u32 s30, s30, s32\nv_lshlrev_b32 v12, 4, v1\nv_add_u32 v12, s30, v12')
    gather([(G + 4*i, 4, P2 + (i & 3)*32768 + (i >> 2)*1024) for i in range(8)], 'v12', 'tag')
    for hd in range(2):
        b = G + 16*hd
        for e in (0, 2):
            a(f'v_add_f32 v{b+e}, v{b+e}, v{b+4+e}\nv_add_f32 v{b+8+e}, v{b+8+e}, v{b+12+e}\nv_add_f32 v{b+e}, v{b+e}, v{b+8+e}')
        a(f'v_cvt_pk_bf16_f32 v{b}, v{b}, v{b+2}')
    a(f's_mul_i32 s30, {sI}, 544\nv_lshl_add_u32 v11, v1, 2, {vM}\nv_add_u32 v11, s30, v11')
    a(f'ds_write_b32 v11, v{G} offset:{QL}\nds_write_b32 v11, v{G+16} offset:{QL+272}')
    arrive(C_Q)
    stamp(6)
    await_(C_WQF, 4, 'v11')
    a(f's_lshl_b32 s30, s42, 2\ns_add_u32 s30, s30, {sI}\ns_mul_i32 s46, s30, {64*12288}\ns_lshl_b32 s30, s43, 7\ns_add_u32 s46, s46, s30\ns_add_u32 s46, s46, 4096')
    w_dma(SRD_WM, 'v4', 's46', 12288, 8, WB, 64)
    load_coefs()
    a('s_waitcnt vmcnt(0)')
    arrive(C_M2)
    await_(C_M2, 4, 'v11')
    w_read(XA, 'v7', 8)
    a('v_lshl_add_u32 v11, s42, 9, v8')
    b_read(XB, 'v11', 8)
    a('s_waitcnt lgkmcnt(0)')
    arrive(C_M2F)
    w_mfma(XD, XA, XB, 8)
    setexec(0x0001000100010001)
    a(f'buffer_store_dwordx4 {V(XD,4)}, v9, {SRD_WS}, s47 offen sc1')
    setexec(-1)
    stamp(7)
    a('v_lshlrev_b32 v12, 4, v10')
    gather([(G + 4*i, 4, P3 + (i & 3)*16384 + (i >> 2)*4096) for i in range(16)], 'v12', 'sent', tmp='v11', sleep=8)
    a(f'v_add_u32 v11, {WA}, v12')
    for j in range(4):
        b = G + 16*j
        for e in (0, 2):
            a(f'v_pk_add_f32 {V(b+e,2)}, {V(b+e,2)}, {V(b+4+e,2)}\nv_pk_add_f32 {V(b+8+e,2)}, {V(b+8+e,2)}, {V(b+12+e,2)}\nv_pk_add_f32 {V(b+e,2)}, {V(b+e,2)}, {V(b+8+e,2)}')
        for e in range(4): rnd(V(b+e))
        if j == 2:
            for e in range(4): a(f'v_add_f32 {V(b+e)}, 1.0, {V(b+e)}')
            for e in range(4): rnd(V(b+e))
        a(f'ds_write_b128 v11, {V(b,4)} offset:{4096*j}')
    stamp(8)
    await_(C_ML, 4, 'v11', sleep=4)
    a(f'v_and_b32 v11, 7, v1\nv_lshl_add_u32 v11, v11, 2, {vM}')
    a(f'v_add_u32 v11, {MLW}, v11')
    for w in range(4): a(f'ds_read2_b32 {V(16+2*w,2)}, v11 offset0:{16*w} offset1:{16*w+8}')
    a('s_waitcnt lgkmcnt(0)')
    a('v_max3_f32 v24, v16, v18, v20\nv_max_f32 v24, v24, v22')
    for w in range(4): a(f'v_sub_f32 v{16+2*w}, v{16+2*w}, v24')
    for w in range(4): a(f'v_exp_f32 v{16+2*w}, v{16+2*w}')
    a('v_mul_f32 v25, v16, v17\nv_fmac_f32 v25, v18, v19\nv_fmac_f32 v25, v20, v21\nv_fmac_f32 v25, v22, v23')
    a('v_cmp_gt_u32 vcc, 8, v1\nv_lshlrev_b32 v11, 2, v1\nv_cndmask_b32 v24, v25, v24, vcc')
    Lnp = a.lab('NP')
    a(f's_cmp_lg_u32 {sI}, 0\ns_cbranch_scc1 {Lnp}')
    setexec(0xffff)
    a(f'buffer_store_dword v24, v11, {SRD_WS}, s40 offen sc1')
    setexec(-1)
    a(f'{Lnp}:')
    a(f's_lshr_b32 s30, s2, 6\ns_lshl_b32 s30, s30, 12\ns_lshl_b32 s32, {sI}, 3\ns_add_u32 s30, s30, s32\nv_lshlrev_b32 v12, 6, v1\nv_add_u32 v12, s30, v12')
    gather([(G, 2, ML), (G + 2, 2, ML + 32)], 'v12', 'sent', tmp='v11', sleep=8)
    a(f'v_mov_b32 v16, v{G}\nv_mov_b32 v17, v{G+1}')
    allred('v_max_f32', 'v16', 'v11'); allred('v_max_f32', 'v17', 'v11')
    a(f'v_sub_f32 v18, v{G}, v16\nv_sub_f32 v19, v{G+1}, v17\nv_exp_f32 v18, v18\nv_exp_f32 v19, v19')
    a(f'v_mul_f32 v18, v18, v{G+2}\nv_mul_f32 v19, v19, v{G+3}')
    allred('v_add_f32', 'v18', 'v11'); allred('v_add_f32', 'v19', 'v11')
    a(f'v_and_b32 v11, 3, v1\nv_lshlrev_b32 v11, 6, v11\nv_and_b32 v13, 4, v1\nv_add3_u32 v11, v11, v13, {vM}\nv_lshl_add_u32 v11, {sI}, 3, v11')
    a(f'ds_read_b32 v20, v11 offset:{MLW}')
    a('v_cmp_ne_u32 vcc, 0, v13\nv_cndmask_b32 v16, v16, v17, vcc\nv_cndmask_b32 v18, v18, v19, vcc\nv_rcp_f32 v18, v18')
    a(f'v_lshl_add_u32 v11, v1, 2, {vM}\nv_lshl_add_u32 v11, {sI}, 5, v11')
    a('s_waitcnt lgkmcnt(0)\nv_sub_f32 v20, v20, v16\nv_exp_f32 v20, v20\nv_mul_f32 v20, v20, v18')
    setexec(0xff)
    a(f'ds_write_b32 v11, v20 offset:{FW}')
    arrive(C_F)
    stamp(9)
    a(f's_lshr_b32 s30, s38, 2\ns_lshl_b32 s30, s30, 18\ns_and_b32 s32, s38, 3\ns_lshl_b32 s32, s32, 10\ns_add_u32 s30, s30, s32\ns_lshl_b32 s32, {sI}, 8\ns_add_u32 s30, s30, s32')
    a('v_and_b32 v12, 15, v1\nv_lshlrev_b32 v13, 3, v12\nv_lshlrev_b32 v12, 4, v12\nv_lshl_add_u32 v12, v9, 8, v12\nv_add_u32 v12, s30, v12')
    a(f'v_lshrrev_b32 v11, 3, v9\nv_add3_u32 v13, v13, v11, {vM}\nv_lshl_add_u32 v13, {sI}, 7, v13')
    await_(C_RED, 4, 'v11', sleep=1)
    stamp(10)
    def sum_fast(n, acc):
        def f():
            for i in range(1, n):
                if n - 1 - i < 16: a(f's_waitcnt vmcnt({n-1-i})')
                for e in (0, 2):
                    a(f'v_pk_add_f32 {V(acc+e,2)}, {V((G if i == 1 else acc)+e,2)}, {V(G+4*i+e,2)}')
            a(f'v_pk_add_f32 {V(acc+4,2)}, {V(acc,2)}, {V(acc+2,2)}\nv_cmp_u_f32 vcc, {V(acc+4)}, {V(acc+5)}')
        return f
    gather([(G + 4*i, 4, OB + i*16384) for i in range(16)], 'v12', 'sent', fast=sum_fast(16, 16), tmp='v11', sleep=1)
    a('v_permlane32_swap_b32 v16, v18\nv_permlane32_swap_b32 v17, v19\nv_add_f32 v16, v16, v18\nv_add_f32 v17, v17, v19')
    a('v_permlane16_swap_b32 v16, v17\nv_add_f32 v16, v16, v17')
    rnd('v16')
    a(f'ds_write_b16_d16_hi v13, v16 offset:{OV}')
    stamp(11)
    a('s_waitcnt lgkmcnt(0)\ns_barrier')

    a('L_final:')
    a(f'v_lshlrev_b32 v4, 2, v254\nv_add_u32 v4, {WA}, v4')
    a('ds_read_b64 v[248:249], v4\nds_read_b64 v[250:251], v4 offset:4096\nds_read_b64 v[252:253], v4 offset:8192')
    a(f'v_and_b32 v5, 31, v1\nv_lshlrev_b32 v5, 4, v5\nv_lshrrev_b32 v6, 5, v1\nv_lshl_add_u32 v5, v6, 12, v5\nv_lshl_add_u32 v5, s3, 9, v5')
    a(f'v_lshl_add_u32 v7, v6, 2, {vM}\nv_lshl_add_u32 v7, s3, 3, v7')
    a(f'v_lshl_add_u32 v8, v6, 3, {vM}')
    a('v_lshrrev_b32 v9, 2, v254\nv_cmp_eq_u32 s[42:43], s2, v9')
    gather([(G + 4*i, 4, P4 + i*8192) for i in range(8)], 'v5', 'sent', fast=sum_fast(8, 16), tmp='v11', sleep=0)
    stamp(12)
    a('v_permlane32_swap_b32 v16, v18\nv_permlane32_swap_b32 v17, v19\nv_lshlrev_b32 v20, 16, v246\nv_and_b32 v21, 0xffff0000, v246')
    a('v_pk_add_f32 v[16:17], v[16:17], v[18:19]'); rnd('v16'); rnd('v17')
    a('s_waitcnt lgkmcnt(0)')
    a('v_pk_mul_f32 v[16:17], v[16:17], v[248:249]'); rnd('v16'); rnd('v17')
    a('v_pk_add_f32 v[16:17], v[16:17], v[20:21]'); rnd('v16'); rnd('v17')
    def stats(st, own_off):
        a('v_add_f32 v18, v16, v17\nv_mul_f32 v19, v16, v16\nv_fmac_f32 v19, v17, v17')
        a(f's_mov_b64 exec, s[42:43]\nds_write_b64 v8, v[16:17] offset:{OWN + own_off}\ns_mov_b64 exec, -1')
        a('v_permlane32_swap_b32 v18, v19\nv_add_f32 v18, v18, v19')
        allred('v_add_f32', 'v18', 'v19', (16, 1, 2, 4, 8))
        setexec(0x0000000100000001)
        a(f'ds_write_b32 v7, v18 offset:{st}')
        setexec(-1)
        a('s_waitcnt lgkmcnt(0)\ns_barrier')
        for i in range(4): a(f'ds_read_b128 {V(24+4*i,4)}, {vM} offset:{st + 16*i}')
        if own_off: a(f'ds_read_b128 v[40:43], {vM} offset:{OWN+16}')
        k = 1 if own_off else 0
        a(f's_waitcnt lgkmcnt({2+k})\nv_pk_add_f32 v[24:25], v[24:25], v[26:27]\nv_pk_add_f32 v[28:29], v[28:29], v[30:31]')
        a(f's_waitcnt lgkmcnt({k})\nv_pk_add_f32 v[32:33], v[32:33], v[34:35]\nv_pk_add_f32 v[36:37], v[36:37], v[38:39]')
        a('v_pk_add_f32 v[24:25], v[24:25], v[28:29]\nv_pk_add_f32 v[32:33], v[32:33], v[36:37]\nv_pk_add_f32 v[24:25], v[24:25], v[32:33]')
        a(f'v_mul_f32 v24, {f2u(1/1024):#x}, v24\nv_mul_f32 v25, {f2u(1/1024):#x}, v25\nv_fma_f32 v25, -v24, v24, v25\nv_max_f32 v25, 0, v25')
        ln_scale('v24', 'v25')
    stats(ST1, 0)
    a('v_sub_f32 v16, v16, v24\nv_sub_f32 v17, v17, v24'); rnd('v16'); rnd('v17')
    a('v_mul_f32 v16, v16, v25\nv_mul_f32 v17, v17, v25'); rnd('v16'); rnd('v17')
    a('v_pk_mul_f32 v[16:17], v[16:17], v[252:253]'); rnd('v16'); rnd('v17')
    a('v_pk_add_f32 v[16:17], v[16:17], v[250:251]'); rnd('v16'); rnd('v17')
    stats(ST2, 16)
    stamp(13)
    a('s_waitcnt lgkmcnt(0) vmcnt(0)')
    for e in range(4): a(f'v_sub_f32 v{40+e}, v{40+e}, v24')
    for e in range(4): rnd(f'v{40+e}')
    for e in range(4): a(f'v_mul_f32 v{40+e}, v{40+e}, v25')
    for e in range(4): rnd(f'v{40+e}')
    c0 = -2 * LOG2E * 0.7978845608028654; c1 = c0 * 0.044715
    a(f'v_mov_b32 v44, {f2u(c1):#x}\nv_mov_b32 v45, {f2u(c0):#x}')
    for e in range(4): a(f'v_mov_b32 v{16+e}, 0')
    NB = 4
    U, Z = 48, 64
    units = [(i, dp) for i in range(7) for dp in range(2)]
    for s0 in range(0, 14, NB):
        blk = list(enumerate(units[s0:s0+NB]))
        R2 = lambda base, k: V(base + 2*k, 2)
        def both(fn):
            for k, _ in blk:
                fn(2*k); fn(2*k+1)
        if mimic:
            for k, (i, dp) in blk: a(f'v_pk_mul_f32 {R2(U,k)}, {V(40+2*dp,2)}, {V(224+2*i,2)} op_sel:[0,0] op_sel_hi:[1,0]')
            both(lambda r: rnd(V(U+r)))
            for k, (i, dp) in blk: a(f'v_pk_add_f32 {R2(U,k)}, {R2(U,k)}, {V(224+2*i,2)} op_sel:[0,1] op_sel_hi:[1,1]')
            both(lambda r: rnd(V(U+r)))
        else:
            for k, (i, dp) in blk: a(f'v_pk_fma_f32 {R2(U,k)}, {V(40+2*dp,2)}, {V(224+2*i,2)}, {V(224+2*i,2)} op_sel:[0,0,1] op_sel_hi:[1,0,1]')
        for k, _ in blk: a(f'v_pk_mul_f32 {R2(Z,k)}, {R2(U,k)}, {R2(U,k)}')
        for k, _ in blk: a(f'v_pk_fma_f32 {R2(Z,k)}, {R2(Z,k)}, v[44:45], v[44:45] op_sel:[0,0,1] op_sel_hi:[1,0,1]')
        for k, _ in blk: a(f'v_pk_mul_f32 {R2(Z,k)}, {R2(Z,k)}, {R2(U,k)}')
        both(lambda r: a(f'v_exp_f32 {V(Z+r)}, {V(Z+r)}'))
        for k, _ in blk: a(f'v_pk_add_f32 {R2(Z,k)}, {R2(Z,k)}, 1.0 op_sel_hi:[1,0]')
        both(lambda r: a(f'v_rcp_f32 {V(Z+r)}, {V(Z+r)}'))
        for k, _ in blk: a(f'v_pk_mul_f32 {R2(U,k)}, {R2(U,k)}, {R2(Z,k)}')
        if mimic: both(lambda r: rnd(V(U+r)))
        for k, (i, dp) in blk:
            sel = i & 1
            a(f'v_pk_fma_f32 {V(16+2*dp,2)}, {R2(U,k)}, {V(238+(i & ~1),2)}, {V(16+2*dp,2)} op_sel:[0,{sel},0] op_sel_hi:[1,{sel},1]')
    stamp(14)
    a(f'v_lshrrev_b32 v7, 4, v1\nv_lshl_add_u32 v7, v7, 2, {vM}\nv_lshl_add_u32 v7, s3, 4, v7')
    a('v_permlane32_swap_b32 v16, v18\nv_permlane32_swap_b32 v17, v19\nv_add_f32 v16, v16, v18\nv_add_f32 v17, v17, v19')
    a('v_permlane16_swap_b32 v16, v17\nv_add_f32 v16, v16, v17')
    allred('v_add_f32', 'v16', 'v17', (1, 2, 4, 8))
    setexec(0x0001000100010001)
    a(f'ds_write_b32 v7, v16 offset:{YP}')
    setexec(-1)
    a('s_waitcnt lgkmcnt(0)\ns_barrier')
    a('s_cmp_lg_u32 s3, 0\ns_cbranch_scc1 L_fin')
    a(f's_lshl_b32 s30, s2, 4\ns_add_u32 s30, s30, {WA + 3*4096}\nv_mov_b32 v7, s30')
    for i in range(8): a(f'ds_read_b128 {V(48+4*i,4)}, {vM} offset:{YP + 16*i}')
    a(f'ds_read_b128 v[40:43], {vM} offset:{OWN}\nds_read_b128 v[44:47], v7')
    a('s_waitcnt lgkmcnt(0)')
    for st in (4, 8, 16):
        for i in range(0, 32, 2*st):
            for e in (0, 2): a(f'v_pk_add_f32 {V(48+i+e,2)}, {V(48+i+e,2)}, {V(48+i+st+e,2)}')
    for e in range(4): rnd(f'v{48+e}')
    for e in range(4): a(f'v_add_f32 v{48+e}, v{48+e}, v245')
    for e in range(4): rnd(f'v{48+e}')
    for e in range(4): a(f'v_mul_f32 v{48+e}, v{48+e}, v{44+e}')
    for e in range(4): rnd(f'v{48+e}')
    for e in range(4): a(f'v_add_f32 v{48+e}, v{48+e}, v{40+e}')
    a('v_cvt_pk_bf16_f32 v48, v48, v49\nv_cvt_pk_bf16_f32 v49, v50, v51')
    a('s_lshl_b32 s30, s2, 3\nv_mov_b32 v7, s30')
    setexec(1)
    a(f'global_store_dwordx2 v7, v[48:49], {sOUT}')
    setexec(-1)
    a('L_fin:')
    a('s_cmp_lg_u32 s2, 0\ns_cbranch_scc1 L_fin2\ns_cmp_lg_u32 s3, 4\ns_cbranch_scc1 L_fin2')
    a(f'v_mov_b32 v7, {sT}\nv_mov_b32 v8, 0')
    setexec(1)
    a(f'global_store_dword v8, v7, {sWS} offset:4')
    setexec(-1)
    a('L_fin2:')
    if stamps:
        stamp(15)
        a(f's_lshl_b32 s30, s2, 11\ns_add_u32 s30, s30, {DBG}\nv_lshlrev_b32 v7, 2, v0')
        a(f'buffer_store_dword v255, v7, {SRD_WS}, s30 offen')
    if dbgtime:
        a('s_cmp_lg_u32 s3, 0\ns_cbranch_scc1 L_end')
        a('s_memrealtime s[32:33]\ns_not_b32 s34, s34\ns_waitcnt lgkmcnt(0)')
        a('v_mov_b32 v7, 0\nv_mov_b32 v8, s32\nv_mov_b32 v9, s34')
        setexec(1)
        a('global_atomic_umax v7, v8, s[62:63]\nglobal_atomic_umax v7, v9, s[62:63] offset:4')
    a('L_end:\ns_endpgm\nL_code_end:')
    body = a.finish()
    out = HEADER + f'; @launch grid=(256,1,1) block=(512,1,1) lds={LDS_BYTES}\n'
    out += f'.amdgcn_target "amdgcn-amd-amdhsa--gfx950"\n.text\n.globl {NAME}_kernel\n.p2align 8\n.type {NAME}_kernel,@function\n'
    out += body
    out += f'''.section .rodata,"a"
.p2align 6
.amdhsa_kernel {NAME}_kernel
  .amdhsa_next_free_vgpr 256
  .amdhsa_next_free_sgpr 102
  .amdhsa_accum_offset 256
  .amdhsa_group_segment_fixed_size 0
  .amdhsa_kernarg_size 120
  .amdhsa_user_sgpr_count 2
  .amdhsa_user_sgpr_kernarg_segment_ptr 1
  .amdhsa_system_sgpr_workgroup_id_x 1
  .amdhsa_float_denorm_mode_32 3
.end_amdhsa_kernel
'''
    return out

if __name__ == '__main__':
    kw = {}
    for arg in sys.argv[2:]:
        k, v = arg.split('=')
        kw[k] = eval(v)
    open(sys.argv[1], 'w').write(gen(**kw))
```

```python
import sys, struct
from asmfw import Asm

NAME = 'adaLN_cond__gqa_block_cached__mixer_token_mlp__decode'

def f2u(x): return struct.unpack('<I', struct.pack('<f', x))[0]
LOG2E = 1.4426950408889634
SCALE = 128 ** -0.5

P1 = 0x10000; P2 = 0x20000; P3 = 0x30000; ML = 0x40000; X1 = 0x4c000; ST0 = 0x50000; ST = 0x58000
P4 = 0x80000; OB = 0x100000; DBG = 0x200000
RS = 6; RINGW = RS * 4096
WB = 4 * RINGW; WA = WB + 32768; MISC = WA + 16384
SC = 0; QL = 2048; HV = 4352; OV = 4864; MLW = 5376; FW = 5632; CNT = 5760; OWNM = 5888; YP = 6016; H3 = 6144; W2L = 6400
LDS_BYTES = 163840
C_W1, C_WQ, C_WQF, C_H, C_Q, C_M2, C_M2F, C_ML, C_F, C_RED, C_WO, C_TICK, C_T1, C_T2, C_PUB, C_VI = range(16)

HEADER = open('cdna_kernels/' + NAME + '.s.ref').read().split('; Override launch')[0]

def gen(F=6, NQ=50, nt=' nt', wnt=' nt', mimic=False, stamps=False, warm=True, spin=1 << 18, dbgtime=False,
        M2AT=44, psleep=16, MLD=20, F2=None, FSW=70, F0=None, FS0=12, xprio=3, T1=26, T2=46, h1sleep=6, h1thr=48, fsleep=1, pretouch=True, pd1=0, pd2=0, pd3=0, ps1=0, ps2=0, xwo=0, Fs=None):
    a = Asm()
    SRD_K, SRD_V, SRD_WS, SRD_WQ, SRD_WO, SRD_WM = 's[4:7]', 's[8:11]', 's[12:15]', 's[16:19]', 's[20:23]', 's[24:27]'
    sX, sW1, sB1, sW2, sB2, sC, sOUT, sWS = 's[36:37]', 's[48:49]', 's[50:51]', 's[52:53]', 's[54:55]', 's[56:57]', 's[60:61]', 's[64:65]'
    sE, sI, sBase, sSpin = 's66', 's67', 's68', 's69'
    sT, sT2, sT4, sSelA, sSelB, sPi = 's86', 's87', 's88', 's89', 's90', 's91'
    MASK = lambda i: f's[{70+2*i}:{71+2*i}]'
    SOFF = lambda i: f's{92+i}'
    vM, vOne, vHi = 'v2', 'v3', 'v247'
    V = lambda i, n=1: f'v{i}' if n == 1 else f'v[{i}:{i+n-1}]'

    def stamp(i):
        if stamps:
            a(f's_memrealtime s[34:35]\ns_waitcnt lgkmcnt(0)\nv_writelane_b32 v255, s34, {i}')
    def setexec(mask):
        if mask == -1: a('s_mov_b64 exec, -1')
        elif mask < 64: a(f's_mov_b64 exec, {mask}')
        else: a(f's_mov_b32 exec_lo, {mask & 0xffffffff:#x}\ns_mov_b32 exec_hi, {mask >> 32:#x}')
    def arrive(c):
        a(f's_mov_b64 exec, 1\nds_add_u32 {vM}, {vOne} offset:{CNT + 4*c}\ns_mov_b64 exec, -1')
    def await_(c, n, tmp, sleep=1):
        L = a.lab('W'); D = a.lab('WD')
        a(f's_mov_b32 {sSpin}, {spin}')
        a(f'{L}:\nds_read_b32 {tmp}, {vM} offset:{CNT + 4*c}\ns_waitcnt lgkmcnt(0)\nv_readfirstlane_b32 s30, {tmp}')
        a(f's_cmp_ge_u32 s30, {n}\ns_cbranch_scc1 {D}')
        if sleep: a(f's_sleep {sleep}')
        a(f's_sub_u32 {sSpin}, {sSpin}, 1\ns_cbranch_scc0 {L}\n{D}:')
    def rnd(r): a(f'v_cvt_pk_bf16_f32 {r}, 0, {r}')
    def tag(r): a(f'v_and_or_b32 {r}, {r}, {vHi}, {sT}')
    DPP = {1: 'quad_perm:[1,0,3,2]', 2: 'quad_perm:[2,3,0,1]', 'hm': 'row_half_mirror', 'm': 'row_mirror', 'r4': 'row_ror:4', 'r8': 'row_ror:8'}
    def allred(op, r, t, steps=(1, 2, 'hm', 'm', 16, 32)):
        for s in steps:
            if s in DPP: a(f'{op}_dpp {r}, {r}, {r} {DPP[s]} row_mask:0xf bank_mask:0xf')
            else: a(f'v_mov_b32 {t}, {r}\nv_permlane{s}_swap_b32 {r}, {t}\n{op} {r}, {r}, {t}')
    def scat4(b):
        a(f'v_permlane32_swap_b32 v{b}, v{b+2}\nv_permlane32_swap_b32 v{b+1}, v{b+3}\nv_pk_add_f32 {V(b,2)}, {V(b,2)}, {V(b+2,2)}')
        a(f'v_permlane16_swap_b32 v{b}, v{b+1}\nv_add_f32 v{b}, v{b}, v{b+1}')
    def setup_tags():
        a(f's_add_u32 {sE}, {sE}, 1\ns_and_b32 {sT}, {sE}, 0xff\ns_mul_i32 {sT2}, {sT}, 0x101\ns_mul_i32 {sT4}, {sT}, 0x1010101')
        a(f's_mov_b32 {sSelA}, 0x0c0c0400\ns_mov_b32 {sSelB}, 0x04000c0c\nv_mov_b32 {vHi}, 0xffffff00')
        a(f's_and_b32 {sPi}, s2, 7\ns_lshl_b32 {sPi}, {sPi}, 5\ns_lshr_b32 s30, s2, 3\ns_add_u32 {sPi}, {sPi}, s30')
    def gather(loads, tmp, sleep=0, full=False, thr=None):
        L = a.lab('G'); D = a.lab('GD')
        his = []
        for d, w, vo, off in loads:
            if off & ~0xfff not in his: his.append(off & ~0xfff)
        for i, h in enumerate(his): a(f's_mov_b32 {SOFF(i)}, {h:#x}')
        def ld(d, w, vo, off):
            sfx = {1: 'dword', 2: 'dwordx2', 4: 'dwordx4'}[w]
            a(f'buffer_load_{sfx} {V(d, w)}, {vo}, {SRD_WS}, {SOFF(his.index(off & ~0xfff))} offen offset:{off & 0xfff} sc1')
        for x in loads: ld(*x)
        a(f's_mov_b32 {sSpin}, {spin}')
        a(f'{L}:')
        n = len(loads)
        for i, (d, w, vo, off) in enumerate(loads):
            a(f's_waitcnt vmcnt({n-1-i})')
            if w == 1: a(f'v_and_b32 {tmp}, 0xff, {V(d)}\nv_cmp_ne_u32 {MASK(i)}, {sT}, {tmp}')
            elif full:
                t2 = f'v{int(tmp[1:]) + 1}'
                a(f'v_perm_b32 {tmp}, {V(d+1)}, {V(d)}, {sSelA}\nv_perm_b32 {t2}, {V(d+3)}, {V(d+2)}, {sSelB}\nv_or_b32 {tmp}, {tmp}, {t2}')
                if full == 2: a(f'v_xor_b32 {tmp}, {sT4}, {tmp}\nv_and_b32 {tmp}, 0x03030303, {tmp}\nv_cmp_ne_u32 {MASK(i)}, 0, {tmp}')
                else: a(f'v_cmp_ne_u32 {MASK(i)}, {sT4}, {tmp}')
            else: a(f'v_perm_b32 {tmp}, {V(d+w-1)}, {V(d)}, {sSelA}\nv_cmp_ne_u32 {MASK(i)}, {sT2}, {tmp}')
        a(f's_or_b64 s[28:29], {MASK(0)}, {MASK(1 if n > 1 else 0)}')
        for i in range(2, n): a(f's_or_b64 s[28:29], s[28:29], {MASK(i)}')
        a(f's_cbranch_scc0 {D}')
        a(f's_sub_u32 {sSpin}, {sSpin}, 1\ns_cbranch_scc1 {D}')
        if sleep and thr is not None:
            S = a.lab('GN')
            a(f's_bcnt1_i32_b64 s30, {MASK(0)}')
            for i in range(1, n): a(f's_bcnt1_i32_b64 s31, {MASK(i)}\ns_add_u32 s30, s30, s31')
            a(f's_cmp_le_u32 s30, {thr}\ns_cbranch_scc1 {S}\ns_sleep {sleep}\n{S}:')
        elif sleep: a(f's_sleep {sleep}')
        for i, x in enumerate(loads):
            S = a.lab('GS')
            a(f's_wqm_b64 exec, {MASK(i)}\ns_cbranch_execz {S}')
            ld(*x)
            a(f'{S}:')
        a(f's_mov_b64 exec, -1\ns_waitcnt vmcnt(0)\ns_branch {L}\n{D}:')
    def gather_p(loads, tmp, depth=3, sleep=1, full=False, thr=None, bsleep=0):
        L = a.lab('G'); D = a.lab('GD')
        his = []
        for d, w, vo, off in loads:
            if off & ~0xfff not in his: his.append(off & ~0xfff)
        for i, h in enumerate(his): a(f's_mov_b32 {SOFF(i)}, {h:#x}')
        n = len(loads)
        def ld(d, w, vo, off):
            a(f'buffer_load_dwordx4 {V(d, w)}, {vo}, {SRD_WS}, {SOFF(his.index(off & ~0xfff))} offen offset:{off & 0xfff} sc1')
        for x in loads: ld(*x)
        a(f's_mov_b32 {sSpin}, {spin}\ns_waitcnt vmcnt(0)')
        a(f'{L}:')
        for i, (d, w, vo, off) in enumerate(loads):
            if full:
                t2 = f'v{int(tmp[1:]) + 1}'
                a(f'v_perm_b32 {tmp}, {V(d+1)}, {V(d)}, {sSelA}\nv_perm_b32 {t2}, {V(d+3)}, {V(d+2)}, {sSelB}\nv_or_b32 {tmp}, {tmp}, {t2}')
                a(f'v_cmp_ne_u32 {MASK(i)}, {sT4}, {tmp}')
            else: a(f'v_perm_b32 {tmp}, {V(d+w-1)}, {V(d)}, {sSelA}\nv_cmp_ne_u32 {MASK(i)}, {sT2}, {tmp}')
        a(f's_or_b64 s[28:29], {MASK(0)}, {MASK(1 if n > 1 else 0)}')
        for i in range(2, n): a(f's_or_b64 s[28:29], s[28:29], {MASK(i)}')
        a(f's_cbranch_scc0 {D}')
        a(f's_sub_u32 {sSpin}, {sSpin}, 1\ns_cbranch_scc1 {D}')
        if thr is not None:
            S = a.lab('GN')
            a(f's_bcnt1_i32_b64 s30, {MASK(0)}')
            for i in range(1, n): a(f's_bcnt1_i32_b64 s31, {MASK(i)}\ns_add_u32 s30, s30, s31')
            a(f's_cmp_le_u32 s30, {thr}\ns_cbranch_scc1 {S}\ns_sleep {bsleep}\n{S}:')
        for i, x in enumerate(loads):
            a(f's_or_b32 s{70+2*i}, s{70+2*i}, 1\ns_wqm_b64 exec, {MASK(i)}')
            ld(*x)
        a('s_mov_b64 exec, -1')
        if sleep: a(f's_sleep {sleep}')
        a(f's_waitcnt vmcnt({n*depth})\ns_branch {L}\n{D}:\ns_waitcnt vmcnt(0)')
    def w_voff(dst, stride, t):
        a(f'v_lshrrev_b32 {t}, 3, v1\nv_mul_u32_u24 {dst}, {stride}, {t}')
        a(f'v_lshrrev_b32 {t}, 4, v1\nv_lshlrev_b32 {t}, 1, {t}\nv_xor_b32 {t}, {t}, v1\nv_and_b32 {t}, 7, {t}\nv_lshl_add_u32 {dst}, {t}, 4, {dst}')
    def w_traddr(dst, base, t, t2):
        a(f'v_lshrrev_b32 {t}, 2, v1\nv_lshlrev_b32 {dst}, 7, {t}')
        a(f'v_and_b32 {t}, 6, {t}')
        a(f'v_lshrrev_b32 {t2}, 1, v1\nv_and_b32 {t2}, 1, {t2}\nv_lshl_add_u32 {t2}, {sI}, 1, {t2}')
        a(f'v_xor_b32 {t}, {t}, {t2}\nv_lshl_add_u32 {dst}, {t}, 4, {dst}')
        a(f'v_and_b32 {t}, 1, v1\nv_lshl_add_u32 {dst}, {t}, 3, {dst}\nv_add_u32 {dst}, {base}, {dst}')
    def w_read(areg, addr, nks):
        for ks in range(nks):
            a(f'ds_read_b64_tr_b16 {V(areg+4*ks, 2)}, {addr} offset:{ks*4096}')
            a(f'ds_read_b64_tr_b16 {V(areg+4*ks+2, 2)}, {addr} offset:{ks*4096+2048}')
    def b_read(breg, addr, nks):
        for ks in range(nks):
            a(f'ds_read2_b64 {V(breg+4*ks, 4)}, {addr} offset0:{8*ks} offset1:{8*ks+4}')
    def w_mfma(d, areg, breg, nks, staged=False):
        for ks in range(nks):
            if staged: a(f's_waitcnt lgkmcnt({nks-1-ks})')
            a(f'v_mfma_f32_16x16x32_bf16 {V(d,4)}, {V(areg+4*ks,4)}, {V(breg+4*ks,4)}, {"0" if ks == 0 else V(d,4)}')
    def ln_scale(mean, var):
        rnd(var); rnd(mean)
        a(f'v_add_f32 {var}, {f2u(1e-5):#x}, {var}'); rnd(var)
        a(f'v_sqrt_f32 {var}, {var}'); rnd(var)
        a(f'v_rcp_f32 {var}, {var}')
    def read_coefs():
        for r in range(224, 246): a(f'v_mov_b32 v{r}, 0')
        a(f'v_lshlrev_b32 v246, 1, v0\nv_add_u32 v246, {WA}, v246')
        for i in range(7):
            a(f'ds_read_u16_d16_hi v{224+2*i}, v246 offset:{1024*i}')
            a(f'ds_read_u16_d16_hi v{225+2*i}, v246 offset:{7168 + 1024*i}')
            a(f'ds_read_u16_d16_hi v{238+i}, v246 offset:{MISC - WA + W2L + 1024*i}')
        for j in range(4): a(f'ds_read_b128 {V(132+4*j,4)}, {vM} offset:{OWNM + 16*j}')
        a(f'ds_read_b128 v[148:151], {vM} offset:{OWNM + 64}')
        a(f'v_lshrrev_b32 v7, 4, v1\nv_lshl_add_u32 v7, v7, 2, {vM}\nv_lshl_add_u32 v7, s3, 4, v7')

    a(f'{NAME}_kernel:')
    a('s_cmp_ge_u32 s2, 256\ns_cbranch_scc1 L_end')
    if dbgtime: a('s_memrealtime s[34:35]')
    if warm:
        a('s_getpc_b64 s[32:33]\nL_pc:')
        a(f'v_lshlrev_b32 v4, 7, v0\nv_cmp_gt_u32 vcc, L_code_end-L_pc-4, v4\ns_and_saveexec_b64 s[28:29], vcc\ns_cbranch_execz L_nowarm')
        a('global_load_dword v254, v4, s[32:33]\nL_nowarm:\ns_mov_b64 exec, -1')
    a('s_load_dwordx16 s[36:51], s[0:1], 0\ns_load_dwordx8 s[52:59], s[0:1], 64\ns_load_dwordx4 s[60:63], s[0:1], 96\ns_load_dwordx2 s[64:65], s[0:1], 112')
    a('v_lshrrev_b32 v1, 6, v0\nv_readfirstlane_b32 s3, v1\nv_and_b32 v1, 63, v0')
    a(f'v_mov_b32 {vM}, {MISC}\nv_mov_b32 {vOne}, 1')
    if stamps: a('v_mov_b32 v255, 0')
    a(f's_and_b32 {sI}, s3, 3')
    a('s_cmp_lg_u32 s3, 7\ns_cbranch_scc1 L_noinit')
    a(f'v_lshl_add_u32 v27, v1, 2, {vM}\nv_mov_b32 v28, 0')
    setexec(0xffff); a(f'ds_write_b32 v27, v28 offset:{CNT}'); setexec(-1)
    a('L_noinit:')
    a('s_mov_b32 s6, 0x4000000\ns_mov_b32 s7, 0x20000\ns_mov_b32 s10, 0x4000000\ns_mov_b32 s11, 0x20000')
    a('s_mov_b32 s14, 0x10000000\ns_mov_b32 s15, 0x20000\ns_mov_b32 s18, 0x800000\ns_mov_b32 s19, 0x20000')
    a('s_mov_b32 s22, 0x800000\ns_mov_b32 s23, 0x20000\ns_mov_b32 s26, 0xc00000\ns_mov_b32 s27, 0x20000')
    w_voff('v236', 12288, 'v26')
    a('s_waitcnt lgkmcnt(0)')
    a(f's_load_dword {sE}, {sWS}, 12')
    for srd, p in ((24, 58), (16, 42), (4, 38), (8, 40), (12, 64), (20, 44)):
        a(f's_mov_b32 s{srd}, s{p}\ns_and_b32 s{srd+1}, s{p+1}, 0xffff')
    a('s_barrier')
    stamp(0)
    a('s_cmp_ge_u32 s3, 4\ns_cbranch_scc1 L_X')

    VOFF, KA, VA, Q, S, H = 4, 8, 16, 32, 64, 96
    PP, D1, D2, VS = 32, 96, 128, 160
    vMax, vSum = 'v224', 'v225'
    seq = [('w1', i) for i in range(4)] + [('wq', i) for i in range(8)] + [('kv', i) for i in range(M2AT)] \
        + [('m2', i) for i in range(8)] + [('kv', i) for i in range(M2AT, 128)]
    pos = {e: n for n, e in enumerate(seq)}
    Fn = lambda n: (F0 if F0 and n < FS0 else F) if (F2 is None or n < FSW) else F2
    if Fs:
        Fn = lambda n: [f for (n0, f) in Fs if n0 <= n][-1]
    FI = Fn(0)
    def landed_at(k):
        n = k + 1
        while n < FI or n - Fn(n) < k: n += 1
        return n
    a(f's_and_b32 s30, s2, 7\ns_lshl_b32 s30, s30, 2\ns_add_u32 s30, s30, {sI}\ns_mul_i32 s46, s30, {32*12288}\ns_lshr_b32 s30, s2, 3\ns_lshl_b32 s30, s30, 7\ns_add_u32 s46, s46, s30')
    a(f's_lshl_b32 s58, {sI}, 12\ns_lshl_b32 s59, {sI}, 13')
    vorder = []
    for u in range(4): vorder += [4*u, 4*u+2, 4*u+1, 4*u+3]
    def issue(n):
        kind, i = seq[n]
        if kind == 'kv':
            gi, j = i // 4, i % 4
            if j == 0 or seq[n-1][0] != 'kv':
                grp = gi if gi < 16 else vorder[gi - 16]
                a(f's_add_u32 s39, {sBase}, {grp*16384}\ns_add_u32 m0, s38, {(gi % RS)*4096}')
            a(f'buffer_load_dwordx4 v{VOFF+j}, {SRD_K if gi < 16 else SRD_V}, s39 offen offset:{j*1024}{nt} lds')
        else:
            srd, vo, so, stride, lb, sl = {'w1': (SRD_WM, 'v236', 's46', 12288, WA, 's58'), 'wq': (SRD_WQ, 'v237', 's47', 8192, WB, 's59'),
                                           'm2': (SRD_WM, 'v236', 's46', 12288, WB, 's59')}[kind]
            a(f's_add_u32 s32, {so}, {8*i*stride}\ns_add_u32 m0, {sl}, {lb + i*1024}')
            a(f'buffer_load_dwordx4 {vo}, {srd}, s32 offen{wnt} lds')
    for n in range(4): issue(n)
    w_voff('v237', 8192, 'v26')
    a(f's_and_b32 s30, s2, 3\ns_lshl_b32 s30, s30, 2\ns_add_u32 s30, s30, {sI}\ns_lshl_b32 s47, s30, 19\ns_mul_i32 s46, s30, {64*12288}')
    a('s_lshr_b32 s30, s2, 2\ns_lshl_b32 s30, s30, 7\ns_add_u32 s47, s47, s30\ns_add_u32 s46, s46, s30\ns_add_u32 s46, s46, 4096')
    for n in range(4, FI): issue(n)
    stamp(16)
    a('v_lshrrev_b32 v24, 4, v1\nv_and_b32 v25, 15, v1')
    a('v_lshlrev_b32 v26, 1, v24\nv_xor_b32 v26, v26, v25\nv_lshlrev_b32 v26, 4, v26\nv_lshl_add_u32 v4, v24, 8, v26')
    for i in range(1, 4): a(f'v_xor_b32 v{VOFF+i}, {(8*(i&1) + (i>>1)) << 4:#x}, v4')
    a(f's_lshl_b32 {sBase}, s2, 18\ns_lshl_b32 s30, s3, 12\ns_add_u32 {sBase}, {sBase}, s30')
    a(f's_mul_i32 s38, s3, {RINGW}')
    def t_setup():
        a('v_and_b32 v26, 7, v25\nv_lshlrev_b32 v26, 1, v26\nv_lshrrev_b32 v27, 3, v25\nv_or_b32 v26, v26, v27')
        a('v_lshrrev_b32 v27, 1, v24\nv_xor_b32 v26, v26, v27\nv_lshlrev_b32 v26, 4, v26\nv_lshl_add_u32 v26, v25, 8, v26')
        a(f'v_and_b32 v27, 1, v24\nv_lshl_add_u32 v26, v27, 12, v26\nv_add_u32 v{KA}, s38, v26')
        for j in range(1, 8): a(f'v_xor_b32 v{KA+j}, {j << 5:#x}, v{KA}')
        a('v_lshrrev_b32 v27, 2, v1')
        a('v_and_b32 v26, 7, v27\nv_lshlrev_b32 v26, 1, v26\nv_lshrrev_b32 v28, 3, v27\nv_or_b32 v26, v26, v28')
        a('v_lshrrev_b32 v28, 1, v1\nv_and_b32 v28, 1, v28\nv_xor_b32 v26, v26, v28\nv_lshlrev_b32 v26, 4, v26\nv_lshl_add_u32 v26, v27, 8, v26')
        a(f'v_and_b32 v28, 1, v1\nv_lshl_add_u32 v26, v28, 3, v26\nv_add_u32 v{VA}, s38, v26')
        for t in range(1, 8): a(f'v_xor_b32 v{VA+t}, {t << 5:#x}, v{VA}')
    def t_setup2():
        for r in range(Q, Q + 32): a(f'v_mov_b32 v{r}, 0')
        a(f'v_mov_b32 {vMax}, 0xff800000\nv_mov_b32 {vSum}, 0')
        a(f's_mov_b32 s40, {f2u(SCALE):#x}\ns_mov_b32 s41, {f2u(LOG2E):#x}')
    def t_setup3():
        a('v_lshrrev_b32 v26, 5, v1\nv_lshlrev_b32 v27, 1, v26\nv_xor_b32 v27, v27, v1\nv_and_b32 v27, 31, v27\nv_lshlrev_b32 v27, 4, v27\nv_lshl_add_u32 v28, v26, 11, v27')
        a('v_lshrrev_b32 v26, 2, v1\nv_lshlrev_b32 v29, 9, v26\nv_and_b32 v26, 7, v26\nv_lshlrev_b32 v26, 1, v26')
        a(f'v_lshrrev_b32 v27, 1, v1\nv_and_b32 v27, 1, v27\nv_lshl_add_u32 v27, {sI}, 3, v27\nv_xor_b32 v26, v26, v27\nv_lshl_add_u32 v29, v26, 4, v29')
        a(f'v_and_b32 v26, 1, v1\nv_lshl_add_u32 v29, v26, 3, v29\nv_add_u32 v29, {WB}, v29')
        a(f'v_lshl_add_u32 v30, v24, 3, {vM}\nv_add_u32 v30, {OV}, v30')
        a('v_and_b32 v26, 7, v1\nv_mul_u32_u24 v26, 528, v26\nv_lshl_add_u32 v26, v24, 4, v26\nv_add_u32 v31, s38, v26')
        a('s_and_b32 s42, s2, 7\ns_lshl_b32 s42, s42, 3\ns_lshr_b32 s30, s2, 3\ns_and_b32 s30, s30, 7\ns_add_u32 s42, s42, s30\ns_lshr_b32 s43, s2, 6')
        a(f's_lshl_b32 s44, s42, 17\ns_lshl_b32 s30, {sI}, 15\ns_add_u32 s44, s44, s30\ns_lshl_b32 s30, s43, 9\ns_add_u32 s44, s44, s30')
        a('s_waitcnt lgkmcnt(0)')
        setup_tags()
    def t_readK(t, h):
        def f():
            for j in range(8): a(f'ds_read_b128 {V(H+32*h+4*j,4)}, v{KA+j} offset:{((2*t) % RS)*4096}')
            a('s_waitcnt lgkmcnt(0)')
        return f
    def t_waitq():
        stamp(1)
        await_(C_Q, 4, 'v26')
        stamp(2)
        a(f'v_and_b32 v26, 7, v1\nv_mul_u32_u24 v26, 272, v26\nv_lshrrev_b32 v27, 5, v1\nv_lshl_add_u32 v26, v27, 4, v26\nv_add_u32 v26, {MISC+QL}, v26')
        setexec(0xff0000ffff0000ff)
        for j in range(8): a(f'ds_read_b128 {V(Q+4*j,4)}, v26 offset:{32*j}')
        setexec(-1)
        a('s_waitcnt lgkmcnt(0)')
    def t_qk(t, h):
        def f():
            for j in range(8):
                a(f'v_mfma_f32_16x16x32_bf16 {V(S+4*t,4)}, {V(H+32*h+4*j,4)}, {V(Q+4*j,4)}, {"0" if j == 0 else V(S+4*t,4)}')
        return f
    def t_round(t):
        def f():
            for r in range(4): rnd(V(S+4*t+r))
            for r in range(4): a(f'v_mul_f32 {V(S+4*t+r)}, s40, {V(S+4*t+r)}')
            for r in range(4): rnd(V(S+4*t+r))
            a(f'v_max3_f32 {vMax}, {vMax}, {V(S+4*t)}, {V(S+4*t+1)}\nv_max3_f32 {vMax}, {vMax}, {V(S+4*t+2)}, {V(S+4*t+3)}')
        return f
    def t_max():
        allred('v_max_f32', vMax, 'v26', ('r8', 16, 32))
        a(f'v_mul_f32 {vMax}, s41, {vMax}')
    def t_exp(t):
        def f():
            for r in range(4): a(f'v_fma_f32 {V(S+4*t+r)}, {V(S+4*t+r)}, s41, -{vMax}')
            for r in range(4): a(f'v_exp_f32 {V(S+4*t+r)}, {V(S+4*t+r)}')
            a(f'v_cvt_pk_bf16_f32 {V(PP+2*t)}, {V(S+4*t)}, {V(S+4*t+1)}\nv_cvt_pk_bf16_f32 {V(PP+2*t+1)}, {V(S+4*t+2)}, {V(S+4*t+3)}')
            a(f'v_add_f32 v26, {V(S+4*t)}, {V(S+4*t+1)}\nv_add_f32 v27, {V(S+4*t+2)}, {V(S+4*t+3)}\nv_add_f32 v26, v26, v27\nv_add_f32 {vSum}, {vSum}, v26')
        return f
    def t_ml():
        allred('v_add_f32', vSum, 'v26', ('r8', 16, 32))
        a(f'v_lshl_add_u32 v26, v1, 2, {vM}\nv_lshl_add_u32 v26, s3, 6, v26')
        setexec(0xff)
        a(f'ds_write_b32 v26, {vMax} offset:{MLW}\nds_write_b32 v26, {vSum} offset:{MLW+32}')
        arrive(C_ML)
        stamp(3)
    def readV(p, half):
        slot = (16 + 2*p + half) % RS
        for t in range(8):
            a(f'ds_read_b64_tr_b16 {V(VS+4*t+2*half,2)}, v{VA+t} offset:{slot*4096}')
    def pv(p, staged):
        u, which = p >> 1, p & 1
        Dd = D2 if which else D1
        for t in range(8):
            if staged: a(f's_waitcnt lgkmcnt({7-t})')
            a(f'v_mfma_f32_16x16x32_bf16 {V(Dd+4*t,4)}, {V(VS+4*t,4)}, {V(PP+4*u,4)}, {"0" if u == 0 else V(Dd+4*t,4)}')
    def t_pv(p):
        def f():
            readV(p, 0); readV(p, 1); pv(p, True)
        return f
    def writeD(which):
        setexec(0xff00ff00ff00ff00 if which else 0x00ff00ff00ff00ff)
        for t in range(8):
            a(f'ds_write_b128 v31, {V((D2 if which else D1)+4*t,4)} offset:{8192 + which*4352 + 64*t}')
        setexec(-1)
    def t_fread():
        await_(C_F, 1, 'v26')
        await_(C_M2F, 4, 'v26')
        a(f'v_lshrrev_b32 v26, 5, v0\nv_lshl_add_u32 v27, v26, 4, {vM}\nds_read_b128 v[228:231], v27 offset:{FW}')
        a('v_mul_u32_u24 v26, 528, v26\nv_and_b32 v27, 31, v0\nv_lshl_add_u32 v232, v27, 4, v26\nv_add_u32 v232, 8192, v232')
        a(f'v_add_u32 v233, {2*RINGW}, v232\nv_and_b32 v234, 15, v0\nv_lshlrev_b32 v234, 4, v234\nv_lshrrev_b32 v26, 4, v0\nv_lshl_add_u32 v234, v26, 14, v234')
        a(f's_lshr_b32 s45, s2, 6\ns_lshl_b32 s45, s45, 18\ns_and_b32 s30, s2, 63\ns_lshl_b32 s30, s30, 8\ns_add_u32 s45, s45, s30\ns_add_u32 s45, s45, {OB}')
        for r in range(192, 224): a(f'v_mov_b32 v{r}, 0')
        for i in range(1, 4): a(f'v_xor_b32 v{64+i}, {i << 6:#x}, v28')
        for i in range(1, 4): a(f'v_xor_b32 v{68+i}, {i << 5:#x}, v29')
        a('s_waitcnt lgkmcnt(0)')

    sched = {}; late = []
    NS = len(seq)
    def at(n, f): sched.setdefault(n, []).append(f)
    land = lambda t: landed_at(pos[('kv', 8*t + 7)])
    reuse = lambda t: pos.get(('kv', 8*t + 4*RS), NS + 100)
    at(landed_at(pos[('w1', 3)]), lambda: arrive(C_W1))
    at(landed_at(pos[('w1', 3)]) + 1, t_setup)
    at(landed_at(pos[('w1', 3)]) + 3, t_setup2)
    at(landed_at(pos[('wq', 7)]), lambda: arrive(C_WQ))
    at(landed_at(pos[('wq', 7)]) + 1, t_setup3)
    at(pos[('m2', 0)] - 1, lambda: await_(C_WQF, 4, 'v26'))
    at(landed_at(pos[('m2', 7)]), lambda: arrive(C_M2))
    if T1: at(T1, lambda: arrive(C_T1))
    if T2: at(T2, lambda: arrive(C_T2))
    for t in range(4): at(land(t), t_readK(t, t))
    nq = pos[('kv', NQ)]
    assert nq >= land(3)
    at(nq, t_waitq)
    n = nq + 1
    free_h = {}
    for t in range(4):
        at(n, t_qk(t, t)); free_h[t] = n + 1
        at(n + 1, t_round(t))
        n += 2
    rd = {}
    for t in range(4, 8):
        rd[t] = max(free_h[t-4], land(t))
        assert rd[t] < reuse(t), (t, rd[t])
        at(rd[t], t_readK(t, t - 4))
    for t in range(4, 8):
        n = max(n, rd[t] + 1)
        at(n, t_qk(t, t - 4)); at(n + 1, t_round(t)); n += 2
    at(n, t_max); n += 1
    for t in range(8):
        at(n, t_exp(t))
        if t & 1: n += 1
    at(n, t_ml); at(n + MLD, lambda: arrive(C_TICK)); n += 1
    for p in range(7):
        m = max(n, land(8 + p))
        assert m < reuse(8 + p), (p, m)
        if m < NS: at(m, t_pv(p))
        else: late.append(p)
        n = m + 1
    at(min(land(12) + 2, NS - 2), t_fread)
    for n in range(FI, NS):
        a(f's_waitcnt vmcnt({Fn(n)-1})')
        issue(n)
        if n % 16 == 0: stamp(18 + n // 16)
        for f in sched.get(n, []): f()
    def wo_issue(v0r, vx):
        for i in range(8):
            a(f's_add_u32 s32, s44, {i*4096}\ns_add_u32 m0, s59, {WB + i*1024}')
            a(f'buffer_load_dwordx4 {v0r if i % 4 == 0 else V(vx + i % 4)}, {SRD_WO}, s32 offen{wnt} lds')
    NW = 0 if xwo else 8
    if xwo: arrive(C_VI)
    else: wo_issue('v28', 64)
    for p in late:
        a(f's_waitcnt vmcnt({NW + 8*(7-p)})')
        t_pv(p)()
    writeD(0)
    a(f's_waitcnt vmcnt({NW + 4})')
    readV(7, 0)
    a(f's_waitcnt vmcnt({NW})')
    stamp(4)
    readV(7, 1); pv(7, True)
    writeD(1)
    arrive(C_RED)
    await_(C_RED, 4, 'v26', sleep=0)
    for w in range(4):
        for hf in range(2):
            a(f'ds_read_b128 {V(VS+8*w+4*hf,4)}, v{232 + (w >> 1)} offset:{(w & 1)*RINGW + hf*4352}')
    for w in range(4):
        a(f's_waitcnt lgkmcnt({6-2*w})')
        sel = w & 1; fp = V(228 + (w & 2), 2)
        for h2 in range(2):
            a(f'v_pk_add_f32 {V(VS+8*w+2*h2,2)}, {V(VS+8*w+2*h2,2)}, {V(VS+8*w+4+2*h2,2)}')
        for h2 in range(2):
            if w == 0: a(f'v_pk_mul_f32 {V(24+2*h2,2)}, {V(VS+2*h2,2)}, {fp} op_sel:[0,{sel}] op_sel_hi:[1,{sel}]')
            else: a(f'v_pk_fma_f32 {V(24+2*h2,2)}, {V(VS+8*w+2*h2,2)}, {fp}, {V(24+2*h2,2)} op_sel:[0,{sel},0] op_sel_hi:[1,{sel},1]')
    for e in range(4): tag(V(24+e))
    a(f'buffer_store_dwordx4 v[24:27], v234, {SRD_WS}, s45 offen sc1')
    arrive(C_PUB)
    stamp(5)
    if not xwo:
        a('s_waitcnt vmcnt(1)')
        arrive(C_WO)
    await_(C_WO, 4, 'v4', sleep=0)
    stamp(6)
    for ct in range(4):
        for ks in range(2):
            for hf in range(2):
                a(f'ds_read_b64_tr_b16 {V(160+8*ct+4*ks+2*hf,2)}, {"v29" if ct == 0 else V(68+ct)} offset:{ks*16384 + hf*8192}')
    a('v_lshrrev_b32 v4, 4, v1\nv_lshlrev_b32 v4, 4, v4\nv_and_b32 v8, 1, v1\nv_lshl_add_u32 v4, v8, 6, v4\nv_and_b32 v8, 2, v1\nv_lshl_add_u32 v4, v8, 12, v4')
    a(f's_lshl_b32 s45, s42, 7\ns_lshl_b32 s30, s43, 16\ns_add_u32 s45, s45, s30\ns_lshl_b32 s30, {sI}, 14\ns_add_u32 s45, s45, s30\ns_add_u32 s45, s45, {P4}')
    a('s_waitcnt lgkmcnt(0)\ns_barrier')
    for ct in range(4):
        setexec(0x0001000100010001 << ct)
        b_read(192 + 8*ct, 'v30', 2)
    setexec(-1)
    w_mfma(24, 160, 192, 8, staged=True)
    for e in range(4): tag(V(24+e))
    setexec(0x000f000f000f000f)
    a(f'buffer_store_dwordx4 v[24:27], v4, {SRD_WS}, s45 offen sc1')
    setexec(-1)
    stamp(7)
    a('s_branch L_final')

    a('L_X:')
    if xprio: a(f's_setprio {xprio}')
    XA, XB, XD, G = 32, 64, 96, 100
    a('v_and_b32 v10, 255, v0')
    a(f'v_lshlrev_b32 v11, 3, v10\nglobal_load_dwordx2 v[12:13], v11, {sC}')
    a(f'v_lshlrev_b32 v11, 5, v1\nglobal_load_dwordx4 v[16:19], v11, {sX}\nglobal_load_dwordx4 v[20:23], v11, {sX} offset:16')
    a('s_and_b32 s42, s2, 3\ns_lshr_b32 s43, s2, 2\ns_and_b32 s44, s2, 7\ns_lshr_b32 s45, s2, 3')
    a('v_lshrrev_b32 v9, 4, v1\nv_and_b32 v15, 15, v1')
    a(f'v_lshl_add_u32 v28, v15, 2, v9\nv_lshl_add_u32 v28, {sI}, 6, v28')
    a('v_lshl_add_u32 v11, s42, 8, v28\nv_lshlrev_b32 v11, 1, v11\nv_mov_b32 v14, 0')
    a(f'global_load_short_d16_hi v14, v11, {sX}')
    stamp(17)
    w_traddr('v6', WA, 'v11', 'v24')
    a(f'v_add_u32 v7, {(WB - WA) & 0xffffffff:#x}, v6')
    a(f'v_lshl_add_u32 v8, v9, 3, {vM}\nv_lshlrev_b32 v29, 4, v9')
    a('s_waitcnt vmcnt(3) lgkmcnt(0)')
    stamp(20)
    a(f's_mov_b32 s30, {f2u(-LOG2E):#x}')
    a('v_lshlrev_b32 v24, 16, v12\nv_and_b32 v25, 0xffff0000, v12\nv_lshlrev_b32 v26, 16, v13\nv_and_b32 v27, 0xffff0000, v13')
    for i in range(4): a(f'v_mul_f32 v{100+i}, s30, v{24+i}')
    for i in range(4): a(f'v_exp_f32 v{100+i}, v{100+i}')
    for i in range(4): a(f'v_add_f32 v{100+i}, 1.0, v{100+i}')
    for i in range(4): a(f'v_rcp_f32 v{100+i}, v{100+i}')
    for i in range(4): a(f'v_mul_f32 v{24+i}, v{24+i}, v{100+i}')
    a('v_cvt_pk_bf16_f32 v12, v24, v25\nv_cvt_pk_bf16_f32 v13, v26, v27')
    a(f'v_lshl_add_u32 v11, v10, 3, {vM}\nds_write_b64 v11, v[12:13] offset:{SC}')
    arrive(C_W1)
    setup_tags()
    a(f's_lshl_b32 s46, s44, 13\ns_lshl_b32 s30, s45, 8\ns_add_u32 s46, s46, s30\ns_lshl_b32 s30, {sI}, 6\ns_add_u32 s46, s46, s30\ns_add_u32 s46, s46, {P1}')
    stamp(1)
    await_(C_W1, 8, 'v11', sleep=0)
    stamp(22)
    w_read(XA, 'v6', 4)
    a(f'v_lshl_add_u32 v11, s44, 8, v8')
    b_read(XB, 'v11', 4)
    def publish(s_off, fine=False):
        for e in range(4):
            if fine: a(f'v_bfi_b32 {V(XD+e)}, 3, {sT}, {V(XD+e)}')
            else: tag(V(XD+e))
        setexec(0x0001000100010001)
        a(f'buffer_store_dwordx4 {V(XD,4)}, v29, {SRD_WS}, {s_off} offen sc1')
        setexec(-1)
    w_mfma(XD, XA, XB, 4, staged=True)
    publish('s46', True)
    stamp(2)
    a('s_waitcnt vmcnt(1)')
    for i in range(8):
        a(f'v_lshlrev_b32 v{100+2*i}, 16, v{16+i}\nv_and_b32 v{101+2*i}, 0xffff0000, v{16+i}')
    a('v_add_f32 v16, v100, v101')
    for i in range(2, 16): a(f'v_add_f32 v16, v16, v{100+i}')
    allred('v_add_f32', 'v16', 'v17')
    a(f'v_mul_f32 v16, {f2u(1/1024):#x}, v16\nv_mov_b32 v18, 0')
    for i in range(16): a(f'v_sub_f32 v17, v{100+i}, v16\nv_fmac_f32 v18, v17, v17')
    allred('v_add_f32', 'v18', 'v17')
    a(f'v_mul_f32 v18, {f2u(1/1024):#x}, v18')
    ln_scale('v16', 'v18')
    a('v_sub_f32 v14, v14, v16'); rnd('v14'); a('v_mul_f32 v14, v14, v18'); rnd('v14')
    a('v_mov_b32 v30, 0\nv_mov_b32 v31, 0')
    a('s_and_b32 s30, s2, 7\ns_lshl_b32 s30, s30, 12\nv_and_b32 v5, 1, v1\nv_lshl_add_u32 v5, v5, 4, s30\nv_lshrrev_b32 v11, 1, v1\nv_lshl_add_u32 v5, v11, 7, v5')
    a(f's_lshl_b32 s30, {sPi}, 4\nv_mov_b32 v4, s30')
    stamp(23)
    await_(C_WQ, 4, 'v11')
    w_read(XA, 'v7', 8)
    a('s_waitcnt lgkmcnt(0)')
    arrive(C_WQF)
    stamp(3)
    a(f's_lshl_b32 s30, s42, 10\ns_lshl_b32 s31, {sI}, 8\ns_add_u32 s30, s30, s31\nv_lshl_add_u32 v12, v15, 4, s30\nv_lshl_add_u32 v12, v9, 13, v12')
    if T1: await_(C_T1, 2, 'v11', sleep=2)
    stamp(19)
    gather([(G + 4*i, 4, 'v12', P1 + (i & 1)*32768 + (i >> 1)*4096) for i in range(4)], 'v26', sleep=psleep, full=2)
    stamp(4)
    for hf in range(2):
        b = G + 8*hf
        a(f'v_pk_add_f32 {V(b,2)}, {V(b,2)}, {V(b+4,2)}\nv_pk_add_f32 {V(b+2,2)}, {V(b+2,2)}, {V(b+6,2)}')
        scat4(b); rnd(f'v{b}')
    a(f'v_add_f32 v{G+8}, 1.0, v{G+8}'); rnd(f'v{G+8}')
    a(f'v_mul_f32 v14, v14, v{G+8}'); rnd('v14')
    a(f'v_add_f32 v14, v14, v{G}'); rnd('v14')
    a(f'v_lshl_add_u32 v11, v28, 1, {vM}\nds_write_b16_d16_hi v11, v14 offset:{HV}')
    arrive(C_H)
    a(f's_lshl_b32 s47, s42, 14\ns_lshl_b32 s30, s43, 8\ns_add_u32 s47, s47, s30\ns_lshl_b32 s30, {sI}, 6\ns_add_u32 s47, s47, s30\ns_add_u32 s46, s47, {P2}\ns_add_u32 s47, s47, {P3}')
    await_(C_H, 4, 'v11', sleep=0)
    a(f'v_add_u32 v11, {HV}, v8')
    b_read(XB, 'v11', 8)
    w_mfma(XD, XA, XB, 8, staged=True)
    publish('s46', True)
    stamp(5)
    a('v_lshlrev_b32 v12, 4, v1')
    for j, (ptr, base) in enumerate(((sW1, WA), (sB1, WA + 7168), (sW2, MISC + W2L))):
        for k in range(2):
            Ls = a.lab('CF')
            if k == 1: a(f's_cmp_eq_u32 {sI}, 3\ns_cbranch_scc1 {Ls}')
            a(f's_lshl_b32 s30, {sI}, 10\ns_add_u32 s30, s30, {4096*k}\nv_add_u32 v11, s30, v12\ns_add_u32 m0, s30, {base}')
            a(f'global_load_lds_dwordx4 v11, {ptr}')
            if k == 1: a(f'{Ls}:')
    a(f's_lshr_b32 s30, s2, 6\ns_lshl_b32 s30, s30, 12\ns_lshl_b32 s32, {sI}, 10\ns_add_u32 s30, s30, s32\nv_add_u32 v12, s30, v12')
    if T2: await_(C_T2, 2, 'v11', sleep=2)
    stamp(8)
    gather([(G + 4*i, 4, 'v12', P2 + i*16384) for i in range(4)], 'v26', sleep=psleep, full=2)
    for e in (0, 2):
        a(f'v_pk_add_f32 {V(G+e,2)}, {V(G+e,2)}, {V(G+4+e,2)}\nv_pk_add_f32 {V(G+8+e,2)}, {V(G+8+e,2)}, {V(G+12+e,2)}\nv_pk_add_f32 {V(G+e,2)}, {V(G+e,2)}, {V(G+8+e,2)}')
    a(f'v_cvt_pk_bf16_f32 v{G}, v{G}, v{G+1}\nv_cvt_pk_bf16_f32 v{G+1}, v{G+2}, v{G+3}')
    a(f's_mul_i32 s30, {sI}, 544\nv_lshrrev_b32 v11, 5, v1\nv_lshlrev_b32 v11, 4, v11\nv_lshl_add_u32 v11, v1, 3, v11\nv_add3_u32 v11, v11, {vM}, s30')
    a(f'ds_write_b64 v11, {V(G,2)} offset:{QL}')
    arrive(C_Q)
    stamp(6)
    await_(C_M2, 4, 'v11')
    w_read(XA, 'v7', 8)
    a('v_lshl_add_u32 v11, s42, 9, v8')
    b_read(XB, 'v11', 8)
    a('s_waitcnt lgkmcnt(0)')
    arrive(C_M2F)
    w_mfma(XD, XA, XB, 8)
    publish('s47')
    stamp(7)
    LX1, LX2, LXD = a.lab('X1'), a.lab('X2'), a.lab('XD')
    a(f's_cmp_eq_u32 {sI}, 1\ns_cbranch_scc1 {LX1}\ns_cmp_eq_u32 {sI}, 2\ns_cbranch_scc1 {LX2}\ns_cmp_lg_u32 {sI}, 0\ns_cbranch_scc1 {LXD}')
    await_(C_ML, 4, 'v11', sleep=4)
    a(f'v_lshrrev_b32 v11, 1, v1\nv_and_b32 v11, 7, v11\nv_lshl_add_u32 v11, v11, 2, {vM}\nv_add_u32 v11, {MLW}, v11')
    for w in range(4): a(f'ds_read2_b32 {V(16+2*w,2)}, v11 offset0:{16*w} offset1:{16*w+8}')
    a(f's_lshl_b32 s40, s2, 6\ns_add_u32 s40, s40, {ML}')
    a('s_waitcnt lgkmcnt(0)')
    a('v_max3_f32 v24, v16, v18, v20\nv_max_f32 v24, v24, v22'); tag('v24')
    for w in range(4): a(f'v_sub_f32 v{16+2*w}, v{16+2*w}, v24')
    for w in range(4): a(f'v_exp_f32 v{16+2*w}, v{16+2*w}')
    a('v_mul_f32 v25, v16, v17\nv_fmac_f32 v25, v18, v19\nv_fmac_f32 v25, v20, v21\nv_fmac_f32 v25, v22, v23'); tag('v25')
    a('v_and_b32 v11, 1, v1\nv_cmp_eq_u32 vcc, 0, v11\nv_lshlrev_b32 v11, 2, v1\nv_cndmask_b32 v24, v25, v24, vcc')
    setexec(0xffff)
    a(f'buffer_store_dword v24, v11, {SRD_WS}, s40 offen sc1')
    setexec(-1)
    await_(C_TICK, 1, 'v11', sleep=4)
    a('s_lshr_b32 s30, s2, 6\ns_lshl_b32 s30, s30, 12\nv_lshl_add_u32 v12, v1, 4, s30')
    gather([(G + 4*i, 4, 'v12', ML + 1024*i) for i in range(4)], 'v26', sleep=psleep, full=True)
    for e in range(2):
        a(f'v_max3_f32 v{16+e}, v{G+2*e}, v{G+4+2*e}, v{G+8+2*e}\nv_max_f32 v{16+e}, v{16+e}, v{G+12+2*e}')
        allred('v_max_f32', f'v{16+e}', 'v11', ('r4', 'r8', 16, 32))
        for i in range(4): a(f'v_sub_f32 v{G+4*i+2*e}, v{G+4*i+2*e}, v{16+e}')
        for i in range(4): a(f'v_exp_f32 v{G+4*i+2*e}, v{G+4*i+2*e}')
        a(f'v_mul_f32 v{18+e}, v{G+2*e}, v{G+2*e+1}')
        for i in range(1, 4): a(f'v_fmac_f32 v{18+e}, v{G+4*i+2*e}, v{G+4*i+2*e+1}')
        allred('v_add_f32', f'v{18+e}', 'v11', ('r4', 'r8', 16, 32))
        a(f'v_rcp_f32 v{18+e}, v{18+e}')
    a(f'v_and_b32 v13, 3, v1\nv_lshrrev_b32 v22, 2, v1\nv_and_b32 v22, 3, v22\nv_lshlrev_b32 v11, 6, v22\nv_lshl_add_u32 v11, v13, 3, v11\nv_add_u32 v11, {vM}, v11')
    a(f'ds_read_b64 v[20:21], v11 offset:{MLW}')
    a(f'v_lshlrev_b32 v11, 2, v22\nv_lshl_add_u32 v11, v13, 5, v11\nv_add_u32 v11, {vM}, v11')
    a('s_waitcnt lgkmcnt(0)\nv_sub_f32 v20, v20, v16\nv_sub_f32 v21, v21, v17\nv_exp_f32 v20, v20\nv_exp_f32 v21, v21\nv_mul_f32 v20, v20, v18\nv_mul_f32 v21, v21, v19')
    setexec(0xffff)
    a(f'ds_write_b32 v11, v20 offset:{FW}\nds_write_b32 v11, v21 offset:{FW+16}')
    arrive(C_F)
    a(f's_branch {LXD}')
    def st_reduce(b):
        scat4(b)
        allred('v_add_f32', f'v{b}', None, (2, 'r4', 'r8'))
    def st_publish(base):
        scat4(20)
        allred('v_add_f32', 'v20', None, (1, 2, 'hm'))
        tag('v20')
        a(f'buffer_store_dword v20, v31, {SRD_WS}, {base} offen sc1')
    a(f'{LX1}:')
    await_(C_TICK, 1, 'v11', sleep=4)
    a(f'v_and_b32 v12, 3, v1\nv_lshlrev_b32 v12, 14, v12\nv_lshrrev_b32 v13, 2, v1\nv_and_b32 v13, 3, v13\nv_lshl_add_u32 v12, v13, 12, v12\nv_lshl_add_u32 v12, {sPi}, 4, v12')
    a('v_mov_b32 v17, 0\nv_mov_b32 v18, 0')
    a(f'global_load_short_d16_hi v17, v18, {sB2}')
    gather([(G, 4, 'v12', P3), (G + 4, 4, 'v5', ST0)], 'v26', sleep=psleep, full=True)
    for e in range(4): allred('v_add_f32', V(G+e), None, (1,))
    for e in range(4): allred('v_add_f32', V(G+e), None, (2,))
    for e in range(4): rnd(V(G+e))
    setexec(0x100)
    for e in range(4): a(f'v_add_f32 {V(G+e)}, 1.0, {V(G+e)}')
    for e in range(4): rnd(V(G+e))
    setexec(-1)
    a(f'v_lshl_add_u32 v13, v13, 4, {vM}')
    st_reduce(G + 4)
    setexec(0x1110)
    a(f'ds_write_b128 v13, {V(G,4)} offset:{OWNM - 16}')
    setexec(-1)
    a(f'v_and_b32 v13, 1, v1\nv_lshlrev_b32 v13, 4, v13\nv_lshl_add_u32 v13, v9, 2, v13\nv_add_u32 v13, {vM}, v13')
    setexec(0x0002000000000000)
    a(f'v_mov_b32 v{G+4}, v17')
    setexec(0x0003000300030003)
    a(f'ds_write_b32 v13, v{G+4} offset:{OWNM + 48}')
    setexec(-1)
    a(f's_branch {LXD}')
    a(f'{LX2}:')
    a(f's_and_b32 s30, {sPi}, 7\ns_cmp_lg_u32 s30, 0\ns_cbranch_scc1 {LXD}')
    await_(C_ML, 1, 'v11', sleep=4)
    a(f'v_and_b32 v13, 7, v1\nv_lshl_add_u32 v30, v13, 2, v9\nv_lshl_add_u32 v30, {sPi}, 2, v30\nv_lshlrev_b32 v11, 1, v30\nv_lshlrev_b32 v30, 2, v30')
    a(f'v_mov_b32 v152, 0\nglobal_load_short_d16_hi v152, v11, {sX}')
    a(f'v_lshrrev_b32 v11, 3, v1\nv_and_b32 v11, 1, v11\nv_cmp_eq_u32 s[100:101], 1, v11')
    a(f'v_lshlrev_b32 v31, 12, v13\nv_lshl_add_u32 v31, v11, 4, v31\nv_lshl_add_u32 v31, v9, 2, v31\nv_lshl_add_u32 v31, {sPi}, 4, v31')
    for half in range(2):
        lds_ = [(G + 6*half + k, 1, 'v30', P3 + (2*half + k % 2)*16384 + (k // 2)*4096) for k in range(6)]
        gather(lds_, 'v26', sleep=psleep)
    for j in range(3):
        a(f'v_add_f32 v{G+2*j}, v{G+2*j}, v{G+2*j+1}\nv_add_f32 v{G+6+2*j}, v{G+6+2*j}, v{G+6+2*j+1}\nv_add_f32 v{153+j}, v{G+2*j}, v{G+6+2*j}')
        rnd(f'v{153+j}')
    a('v_add_f32 v155, 1.0, v155'); rnd('v155')
    a('v_cndmask_b32 v156, v155, v154, s[100:101]')
    a('v_cndmask_b32 v16, 1.0, v154, s[100:101]\nv_mul_f32 v20, v156, v16\nv_mul_f32 v21, v156, v155\nv_cndmask_b32 v22, v154, 0, s[100:101]\nv_mov_b32 v23, 0')
    a(f's_mov_b32 s41, {ST0}')
    st_publish('s41')
    if pretouch:
        a(f'v_lshlrev_b32 v12, 7, v1\nv_lshl_add_u32 v12, {sPi}, 10, v12\ns_mov_b32 s41, {P4}')
        a(f'buffer_load_dword v16, v12, {SRD_WS}, s41 offen sc1')
    a(f'{LXD}:')
    stamp(9)
    a('s_and_b32 s38, s2, 7\ns_lshl_b32 s38, s38, 3\ns_lshr_b32 s30, s2, 3\ns_and_b32 s30, s30, 7\ns_add_u32 s38, s38, s30')
    a(f's_lshl_b32 s30, s38, 14\ns_lshl_b32 s32, {sI}, 6\ns_add_u32 s30, s30, s32')
    a('v_and_b32 v13, 3, v1\nv_lshl_add_u32 v12, v13, 4, s30\nv_lshrrev_b32 v11, 2, v1\nv_lshl_add_u32 v12, v11, 8, v12')
    a(f'v_lshlrev_b32 v13, 3, v13\nv_lshl_add_u32 v13, v9, 1, v13\nv_lshl_add_u32 v13, {sI}, 5, v13\nv_add_u32 v13, {vM}, v13')
    if xprio: a('s_setprio 0')
    a('s_waitcnt vmcnt(0)')
    if xwo:
        a('v_lshrrev_b32 v26, 5, v1\nv_lshlrev_b32 v27, 1, v26\nv_xor_b32 v27, v27, v1\nv_and_b32 v27, 31, v27\nv_lshlrev_b32 v27, 4, v27\nv_lshl_add_u32 v64, v26, 11, v27')
        for i in range(1, 4): a(f'v_xor_b32 v{64+i}, {i << 6:#x}, v64')
        a(f's_lshl_b32 s44, s38, 17\ns_lshl_b32 s30, {sI}, 15\ns_add_u32 s44, s44, s30\ns_lshr_b32 s30, s2, 6\ns_lshl_b32 s30, s30, 9\ns_add_u32 s44, s44, s30\ns_lshl_b32 s59, {sI}, 13')
        await_(C_VI if xwo == 1 else C_PUB, 4, 'v11', sleep=1)
        wo_issue('v64', 64)
        a('s_waitcnt vmcnt(0)')
        arrive(C_WO)
    await_(C_PUB, 4, 'v11', sleep=1)
    stamp(10)
    gather_p([(G + 4*i, 4, 'v12', OB + i*4096) for i in range(4)], 'v11', depth=pd1, sleep=ps1, thr=h1thr, bsleep=h1sleep)
    for e in (0, 2):
        a(f'v_pk_add_f32 {V(G+e,2)}, {V(G+e,2)}, {V(G+4+e,2)}\nv_pk_add_f32 {V(G+8+e,2)}, {V(G+8+e,2)}, {V(G+12+e,2)}')
    for e in (0, 2): a(f'v_pk_add_f32 {V(G+e,2)}, {V(G+e,2)}, {V(G+8+e,2)}')
    scat4(G)
    allred('v_add_f32', V(G), None, ('r4', 'r8'))
    rnd(V(G))
    setexec(0x000f000f000f000f)
    a(f'ds_write_b16_d16_hi v13, v{G} offset:{OV}')
    setexec(-1)
    stamp(11)
    a('s_waitcnt lgkmcnt(0)\ns_barrier')
    LNR = a.lab('NR')
    a(f's_cmp_lg_u32 {sI}, 2\ns_cbranch_scc1 {LNR}\ns_and_b32 s30, {sPi}, 7\ns_cmp_lg_u32 s30, 0\ns_cbranch_scc1 {LNR}')
    a(f'v_lshlrev_b32 v12, 4, v1\nv_lshl_add_u32 v12, {sPi}, 10, v12')
    a(f's_mov_b32 s41, {ST}\ns_mov_b32 s40, {X1}')
    stamp(25)
    gather_p([(G + 4*i, 4, 'v12', P4 + i*1024) for i in range(8)], 'v11', depth=pd2, sleep=ps2)
    stamp(24)
    if stamps: a(f'v_writelane_b32 v255, {sSpin}, 42')
    for st in (4, 8, 16):
        for i in range(0, 32, 2*st):
            for e in (0, 2): a(f'v_pk_add_f32 {V(G+i+e,2)}, {V(G+i+e,2)}, {V(G+i+st+e,2)}')
    scat4(G)
    allred('v_add_f32', V(G), None, ('r8',))
    rnd(V(G)); a(f'v_mul_f32 v16, v{G}, v153'); rnd('v16'); a('v_add_f32 v16, v16, v152'); rnd('v16')
    a('v_mul_f32 v17, v16, v155')
    a(f'v_or_b32 v19, {sT}, v16')
    a('v_cndmask_b32 v18, v16, v17, s[100:101]\nv_cndmask_b32 v20, 1.0, v17, s[100:101]\nv_cndmask_b32 v21, v16, v155, s[100:101]')
    setexec(0x00ff00ff00ff00ff)
    a(f'buffer_store_dword v19, v30, {SRD_WS}, s40 offen sc1')
    setexec(-1)
    a('v_mul_f32 v20, v18, v20\nv_mul_f32 v21, v18, v21\nv_mul_f32 v22, v18, v156\nv_mov_b32 v23, 0')
    st_publish('s41')
    stamp(21)
    a(f'{LNR}:')

    a('L_final:')
    read_coefs()
    c0 = -2 * LOG2E * 0.7978845608028654; c1 = c0 * 0.044715
    a(f'v_mov_b32 v44, {f2u(c1):#x}\nv_mov_b32 v45, {f2u(c0):#x}\nv_mov_b32 v46, {f2u(1/1024):#x}')
    for e in range(4): a(f'v_mov_b32 v{16+e}, 0')
    a('s_cmp_lg_u32 s3, 7\ns_cbranch_scc1 L_wait')
    gather_p([(G, 4, 'v5', ST), (G + 4, 4, 'v4', X1)], 'v26', full=True, depth=pd3, sleep=fsleep)
    stamp(12)
    if stamps: a(f'v_writelane_b32 v255, {sSpin}, 43')
    st_reduce(G)
    for e in range(4): a(f'v_and_b32 v{G+4+e}, 0xffff0000, v{G+4+e}')
    for k, ln in enumerate((0, 16, 32, 1, 17, 33)): a(f'v_readlane_b32 s{38+k}, v{G}, {ln}')
    a('v_mul_f32 v24, s38, v46\nv_mul_f32 v25, s39, v46\nv_fma_f32 v25, -v24, v24, v25\nv_max_f32 v25, 0, v25')
    ln_scale('v24', 'v25')
    a('s_waitcnt lgkmcnt(0)')
    a('v_fma_f32 v26, -v24, v144, s40\nv_fma_f32 v28, -v24, v149, s43')
    a('v_mul_f32 v27, v24, v145\nv_fma_f32 v27, -2.0, s42, v27\nv_fma_f32 v27, v27, v24, s41')
    for e in range(4): a(f'v_sub_f32 v{40+e}, v{G+4+e}, v24')
    a('v_fma_f32 v26, v26, v25, v146\nv_add_f32 v28, v28, v28\nv_fma_f32 v27, v27, v25, v28\nv_fma_f32 v27, v27, v25, v148')
    for e in range(4): rnd(f'v{40+e}')
    a('v_mul_f32 v26, v26, v46\nv_mul_f32 v27, v27, v46\nv_fma_f32 v27, -v26, v26, v27\nv_max_f32 v27, 0, v27')
    for e in range(4): a(f'v_mul_f32 v{40+e}, v{40+e}, v25')
    ln_scale('v26', 'v27')
    for e in range(4): rnd(f'v{40+e}')
    a('v_pk_mul_f32 v[40:41], v[40:41], v[136:137]\nv_pk_mul_f32 v[42:43], v[42:43], v[138:139]')
    for e in range(4): rnd(f'v{40+e}')
    a('v_pk_add_f32 v[40:41], v[40:41], v[132:133]\nv_pk_add_f32 v[42:43], v[42:43], v[134:135]')
    for e in range(4): rnd(f'v{40+e}')
    for e in range(4): a(f'v_sub_f32 v{40+e}, v{40+e}, v26')
    for e in range(4): rnd(f'v{40+e}')
    for e in range(4): a(f'v_mul_f32 v{40+e}, v{40+e}, v27')
    for e in range(4): rnd(f'v{40+e}')
    a(f'ds_write_b128 {vM}, v[40:43] offset:{H3}\nds_write_b128 {vM}, {V(G+4,4)} offset:{H3+16}')
    a('L_wait:\ns_waitcnt lgkmcnt(0)\ns_barrier')
    a(f'ds_read_b128 v[40:43], {vM} offset:{H3}\nds_read_b128 {V(G+4,4)}, {vM} offset:{H3+16}\ns_waitcnt lgkmcnt(1)')
    stamp(13)
    NB = 4
    U, Z = 48, 64
    units = [(i, dp) for i in range(7) for dp in range(2)]
    for s0 in range(0, 14, NB):
        blk = list(enumerate(units[s0:s0+NB]))
        R2 = lambda base, k: V(base + 2*k, 2)
        def both(fn):
            for k, _ in blk:
                fn(2*k); fn(2*k+1)
        if mimic:
            for k, (i, dp) in blk: a(f'v_pk_mul_f32 {R2(U,k)}, {V(40+2*dp,2)}, {V(224+2*i,2)} op_sel:[0,0] op_sel_hi:[1,0]')
            both(lambda r: rnd(V(U+r)))
            for k, (i, dp) in blk: a(f'v_pk_add_f32 {R2(U,k)}, {R2(U,k)}, {V(224+2*i,2)} op_sel:[0,1] op_sel_hi:[1,1]')
            both(lambda r: rnd(V(U+r)))
        else:
            for k, (i, dp) in blk: a(f'v_pk_fma_f32 {R2(U,k)}, {V(40+2*dp,2)}, {V(224+2*i,2)}, {V(224+2*i,2)} op_sel:[0,0,1] op_sel_hi:[1,0,1]')
        for k, _ in blk: a(f'v_pk_mul_f32 {R2(Z,k)}, {R2(U,k)}, {R2(U,k)}')
        for k, _ in blk: a(f'v_pk_fma_f32 {R2(Z,k)}, {R2(Z,k)}, v[44:45], v[44:45] op_sel:[0,0,1] op_sel_hi:[1,0,1]')
        for k, _ in blk: a(f'v_pk_mul_f32 {R2(Z,k)}, {R2(Z,k)}, {R2(U,k)}')
        both(lambda r: a(f'v_exp_f32 {V(Z+r)}, {V(Z+r)}'))
        for k, _ in blk: a(f'v_pk_add_f32 {R2(Z,k)}, {R2(Z,k)}, 1.0 op_sel_hi:[1,0]')
        both(lambda r: a(f'v_rcp_f32 {V(Z+r)}, {V(Z+r)}'))
        for k, _ in blk: a(f'v_pk_mul_f32 {R2(U,k)}, {R2(U,k)}, {R2(Z,k)}')
        if mimic: both(lambda r: rnd(V(U+r)))
        for k, (i, dp) in blk:
            sel = i & 1
            a(f'v_pk_fma_f32 {V(16+2*dp,2)}, {R2(U,k)}, {V(238+(i & ~1),2)}, {V(16+2*dp,2)} op_sel:[0,{sel},0] op_sel_hi:[1,{sel},1]')
    stamp(14)
    scat4(16)
    allred('v_add_f32', 'v16', None, (1, 2, 'hm', 'm'))
    setexec(0x0001000100010001)
    a(f'ds_write_b32 v7, v16 offset:{YP}')
    setexec(-1)
    a('s_waitcnt lgkmcnt(0)\ns_barrier')
    a('s_cmp_lg_u32 s3, 0\ns_cbranch_scc1 L_fin')
    for i in range(8): a(f'ds_read_b128 {V(48+4*i,4)}, {vM} offset:{YP + 16*i}')
    a(f's_lshl_b32 s30, {sPi}, 3\nv_mov_b32 v7, s30')
    a('s_waitcnt lgkmcnt(0)')
    for st in (4, 8, 16):
        for i in range(0, 32, 2*st):
            for e in (0, 2): a(f'v_pk_add_f32 {V(48+i+e,2)}, {V(48+i+e,2)}, {V(48+i+st+e,2)}')
    for e in range(4): rnd(f'v{48+e}')
    for e in range(4): a(f'v_add_f32 v{48+e}, v{48+e}, v151')
    for e in range(4): rnd(f'v{48+e}')
    for e in range(4): a(f'v_mul_f32 v{48+e}, v{48+e}, v{140+e}')
    for e in range(4): rnd(f'v{48+e}')
    for e in range(4): a(f'v_add_f32 v{48+e}, v{48+e}, v{G+4+e}')
    a('v_cvt_pk_bf16_f32 v48, v48, v49\nv_cvt_pk_bf16_f32 v49, v50, v51')
    setexec(1)
    a(f'global_store_dwordx2 v7, v[48:49], {sOUT}')
    setexec(-1)
    a('L_fin:')
    a('s_cmp_lg_u32 s2, 0\ns_cbranch_scc1 L_fin2\ns_cmp_lg_u32 s3, 4\ns_cbranch_scc1 L_fin2')
    a(f'v_mov_b32 v7, {sE}\nv_mov_b32 v8, 0')
    setexec(1)
    a(f'global_store_dword v8, v7, {sWS} offset:12')
    setexec(-1)
    a('L_fin2:')
    if stamps:
        stamp(15)
        a('s_getreg_b32 s30, hwreg(HW_REG_XCC_ID)\nv_writelane_b32 v255, s30, 40')
        a(f's_lshl_b32 s30, s2, 11\ns_add_u32 s30, s30, {DBG}\nv_lshlrev_b32 v7, 2, v0')
        a(f'buffer_store_dword v255, v7, {SRD_WS}, s30 offen')
    if dbgtime:
        a('s_cmp_lg_u32 s3, 0\ns_cbranch_scc1 L_end')
        a('s_memrealtime s[32:33]\ns_not_b32 s34, s34\ns_waitcnt lgkmcnt(0)')
        a('v_mov_b32 v7, 0\nv_mov_b32 v8, s32\nv_mov_b32 v9, s34')
        setexec(1)
        a('global_atomic_umax v7, v8, s[62:63]\nglobal_atomic_umax v7, v9, s[62:63] offset:4')
    a('L_end:\ns_endpgm\nL_code_end:')
    body = a.finish()
    out = HEADER + f'; @launch grid=(256,1,1) block=(512,1,1) lds={LDS_BYTES}\n'
    out += f'.amdgcn_target "amdgcn-amd-amdhsa--gfx950"\n.text\n.globl {NAME}_kernel\n.p2align 8\n.type {NAME}_kernel,@function\n'
    out += body
    out += f'''.section .rodata,"a"
.p2align 6
.amdhsa_kernel {NAME}_kernel
  .amdhsa_next_free_vgpr 256
  .amdhsa_next_free_sgpr 102
  .amdhsa_accum_offset 256
  .amdhsa_group_segment_fixed_size 0
  .amdhsa_kernarg_size 120
  .amdhsa_user_sgpr_count 2
  .amdhsa_user_sgpr_kernarg_segment_ptr 1
  .amdhsa_system_sgpr_workgroup_id_x 1
  .amdhsa_float_denorm_mode_32 3
.end_amdhsa_kernel
'''
    return out

if __name__ == '__main__':
    kw = {}
    for arg in sys.argv[2:]:
        k, v = arg.split('=')
        kw[k] = eval(v)
    open(sys.argv[1], 'w').write(gen(**kw))
```

```python
import sys, struct
from asmfw import Asm

NAME = 'adaLN_cond__gqa_block_cached__mixer_token_mlp__decode'

def f2u(x): return struct.unpack('<I', struct.pack('<f', x))[0]
LOG2E = 1.4426950408889634
SCALE = 128 ** -0.5

P1 = 0x10000; P2 = 0x20000; P3 = 0x30000; ML = 0x40000; X1 = 0x4c000; ST0 = 0x50000; ST = 0x58000
RK = 0x60000; TAB = 0x68000; P4 = 0x80000; OB = 0x100000; DBG = 0x200000
RS = 6; RINGW = RS * 4096
WB = 4 * RINGW; WA = WB + 32768; MISC = WA + 16384
SC = 0; QL = 2048; HV = 4352; OV = 4864; MLW = 5376; FW = 5632; CNT = 5760; WL = 5888; YT = 6144
LDS_BYTES = 163840
C_W1, C_WQ, C_WQF, C_H, C_Q, C_M2, C_M2F, C_ML, C_F, C_RED, C_WO, C_TICK, C_T1, C_T2, C_PUB, C_VI, C_WL, C_CP, C_MODE, C_RANK, C_YT, C_TAB = range(22)

HEADER = open('cdna_kernels/' + NAME + '.s.ref').read().split('; Override launch')[0]

def gen(F=6, NQ=52, nt=' nt', wnt=' nt', mimic=False, stamps=False, warm=True, spin=1 << 18, dbgtime=False,
        M2AT=44, psleep=16, MLD=20, F2=None, FSW=70, F0=None, FS0=12, xprio=3, T1=26, T2=46, h1sleep=6, h1thr=48, fsleep=1, pretouch=True, pd1=0, pd2=0, pd3=0, ps1=0, ps2=0, xwo=3, Fs=None, wothr=256, TK=16, h1at='pub', CP=(), SH=16, rlo=3, rhi=11, Fhi=8, Flo=5, rwo=11, h1w=True, aprio=1):
    a = Asm()
    SRD_K, SRD_V, SRD_WS, SRD_WQ, SRD_WO, SRD_WM = 's[4:7]', 's[8:11]', 's[12:15]', 's[16:19]', 's[20:23]', 's[24:27]'
    sX, sW1, sB1, sW2, sB2, sC, sOUT, sWS = 's[36:37]', 's[48:49]', 's[50:51]', 's[52:53]', 's[54:55]', 's[56:57]', 's[60:61]', 's[64:65]'
    sE, sI, sBase, sSpin = 's66', 's67', 's68', 's69'
    sT, sT2, sT4, sSelA, sSelB, sPi = 's86', 's87', 's88', 's89', 's90', 's91'
    MASK = lambda i: f's[{70+2*i}:{71+2*i}]'
    SOFF = lambda i: f's{92+i}'
    vM, vOne, vHi = 'v2', 'v3', 'v247'
    V = lambda i, n=1: f'v{i}' if n == 1 else f'v[{i}:{i+n-1}]'

    def stamp(i):
        if stamps:
            a(f's_memrealtime s[34:35]\ns_waitcnt lgkmcnt(0)\nv_writelane_b32 v255, s34, {i}')
    def setexec(mask):
        if mask == -1: a('s_mov_b64 exec, -1')
        elif mask < 64: a(f's_mov_b64 exec, {mask}')
        else: a(f's_mov_b32 exec_lo, {mask & 0xffffffff:#x}\ns_mov_b32 exec_hi, {mask >> 32:#x}')
    def arrive(c):
        a(f's_mov_b64 exec, 1\nds_add_u32 {vM}, {vOne} offset:{CNT + 4*c}\ns_mov_b64 exec, -1')
    def await_(c, n, tmp, sleep=1):
        L = a.lab('W'); D = a.lab('WD')
        a(f's_mov_b32 {sSpin}, {spin}')
        a(f'{L}:\nds_read_b32 {tmp}, {vM} offset:{CNT + 4*c}\ns_waitcnt lgkmcnt(0)\nv_readfirstlane_b32 s30, {tmp}')
        a(f's_cmp_ge_u32 s30, {n}\ns_cbranch_scc1 {D}')
        if sleep: a(f's_sleep {sleep}')
        a(f's_sub_u32 {sSpin}, {sSpin}, 1\ns_cbranch_scc0 {L}\n{D}:')
    def rnd(r): a(f'v_cvt_pk_bf16_f32 {r}, 0, {r}')
    def tag(r): a(f'v_and_or_b32 {r}, {r}, {vHi}, {sT}')
    DPP = {1: 'quad_perm:[1,0,3,2]', 2: 'quad_perm:[2,3,0,1]', 'hm': 'row_half_mirror', 'm': 'row_mirror', 'r4': 'row_ror:4', 'r8': 'row_ror:8'}
    def allred(op, r, t, steps=(1, 2, 'hm', 'm', 16, 32)):
        for s in steps:
            if s in DPP: a(f'{op}_dpp {r}, {r}, {r} {DPP[s]} row_mask:0xf bank_mask:0xf')
            else: a(f'v_mov_b32 {t}, {r}\nv_permlane{s}_swap_b32 {r}, {t}\n{op} {r}, {r}, {t}')
    def scat4(b):
        a(f'v_permlane32_swap_b32 v{b}, v{b+2}\nv_permlane32_swap_b32 v{b+1}, v{b+3}\nv_pk_add_f32 {V(b,2)}, {V(b,2)}, {V(b+2,2)}')
        a(f'v_permlane16_swap_b32 v{b}, v{b+1}\nv_add_f32 v{b}, v{b}, v{b+1}')
    def setup_tags():
        a(f's_add_u32 {sE}, {sE}, 1\ns_and_b32 {sT}, {sE}, 0xff\ns_mul_i32 {sT2}, {sT}, 0x101\ns_mul_i32 {sT4}, {sT}, 0x1010101')
        a(f's_mov_b32 {sSelA}, 0x0c0c0400\ns_mov_b32 {sSelB}, 0x04000c0c\nv_mov_b32 {vHi}, 0xffffff00')
        a(f's_and_b32 {sPi}, s2, 7\ns_lshl_b32 {sPi}, {sPi}, 5\ns_lshr_b32 s30, s2, 3\ns_add_u32 {sPi}, {sPi}, s30')
    def gather(loads, tmp, sleep=0, full=False, thr=None):
        L = a.lab('G'); D = a.lab('GD')
        his = []
        for d, w, vo, off in loads:
            if off & ~0xfff not in his: his.append(off & ~0xfff)
        for i, h in enumerate(his): a(f's_mov_b32 {SOFF(i)}, {h:#x}')
        def ld(d, w, vo, off):
            sfx = {1: 'dword', 2: 'dwordx2', 4: 'dwordx4'}[w]
            a(f'buffer_load_{sfx} {V(d, w)}, {vo}, {SRD_WS}, {SOFF(his.index(off & ~0xfff))} offen offset:{off & 0xfff} sc1')
        for x in loads: ld(*x)
        a(f's_mov_b32 {sSpin}, {spin}')
        a(f'{L}:')
        n = len(loads)
        for i, (d, w, vo, off) in enumerate(loads):
            a(f's_waitcnt vmcnt({n-1-i})')
            if w == 1: a(f'v_and_b32 {tmp}, 0xff, {V(d)}\nv_cmp_ne_u32 {MASK(i)}, {sT}, {tmp}')
            elif full:
                t2 = f'v{int(tmp[1:]) + 1}'
                a(f'v_perm_b32 {tmp}, {V(d+1)}, {V(d)}, {sSelA}\nv_perm_b32 {t2}, {V(d+3)}, {V(d+2)}, {sSelB}\nv_or_b32 {tmp}, {tmp}, {t2}')
                if full == 2: a(f'v_xor_b32 {tmp}, {sT4}, {tmp}\nv_and_b32 {tmp}, 0x03030303, {tmp}\nv_cmp_ne_u32 {MASK(i)}, 0, {tmp}')
                else: a(f'v_cmp_ne_u32 {MASK(i)}, {sT4}, {tmp}')
            else: a(f'v_perm_b32 {tmp}, {V(d+w-1)}, {V(d)}, {sSelA}\nv_cmp_ne_u32 {MASK(i)}, {sT2}, {tmp}')
        a(f's_or_b64 s[28:29], {MASK(0)}, {MASK(1 if n > 1 else 0)}')
        for i in range(2, n): a(f's_or_b64 s[28:29], s[28:29], {MASK(i)}')
        a(f's_cbranch_scc0 {D}')
        a(f's_sub_u32 {sSpin}, {sSpin}, 1\ns_cbranch_scc1 {D}')
        if sleep and thr is not None:
            S = a.lab('GN')
            a(f's_bcnt1_i32_b64 s30, {MASK(0)}')
            for i in range(1, n): a(f's_bcnt1_i32_b64 s31, {MASK(i)}\ns_add_u32 s30, s30, s31')
            a(f's_cmp_le_u32 s30, {thr}\ns_cbranch_scc1 {S}\ns_sleep {sleep}\n{S}:')
        elif sleep: a(f's_sleep {sleep}')
        for i, x in enumerate(loads):
            S = a.lab('GS')
            a(f's_wqm_b64 exec, {MASK(i)}\ns_cbranch_execz {S}')
            ld(*x)
            a(f'{S}:')
        a(f's_mov_b64 exec, -1\ns_waitcnt vmcnt(0)\ns_branch {L}\n{D}:')
    def gather_p(loads, tmp, depth=3, sleep=1, full=False, thr=None, bsleep=0):
        L = a.lab('G'); D = a.lab('GD')
        his = []
        for d, w, vo, off in loads:
            if off & ~0xfff not in his: his.append(off & ~0xfff)
        for i, h in enumerate(his): a(f's_mov_b32 {SOFF(i)}, {h:#x}')
        n = len(loads)
        def ld(d, w, vo, off):
            a(f'buffer_load_dwordx4 {V(d, w)}, {vo}, {SRD_WS}, {SOFF(his.index(off & ~0xfff))} offen offset:{off & 0xfff} sc1')
        for x in loads: ld(*x)
        a(f's_mov_b32 {sSpin}, {spin}\ns_waitcnt vmcnt(0)')
        a(f'{L}:')
        for i, (d, w, vo, off) in enumerate(loads):
            if full:
                t2 = f'v{int(tmp[1:]) + 1}'
                a(f'v_perm_b32 {tmp}, {V(d+1)}, {V(d)}, {sSelA}\nv_perm_b32 {t2}, {V(d+3)}, {V(d+2)}, {sSelB}\nv_or_b32 {tmp}, {tmp}, {t2}')
                a(f'v_cmp_ne_u32 {MASK(i)}, {sT4}, {tmp}')
            else: a(f'v_perm_b32 {tmp}, {V(d+w-1)}, {V(d)}, {sSelA}\nv_cmp_ne_u32 {MASK(i)}, {sT2}, {tmp}')
        a(f's_or_b64 s[28:29], {MASK(0)}, {MASK(1 if n > 1 else 0)}')
        for i in range(2, n): a(f's_or_b64 s[28:29], s[28:29], {MASK(i)}')
        a(f's_cbranch_scc0 {D}')
        a(f's_sub_u32 {sSpin}, {sSpin}, 1\ns_cbranch_scc1 {D}')
        if thr is not None:
            S = a.lab('GN')
            a(f's_bcnt1_i32_b64 s30, {MASK(0)}')
            for i in range(1, n): a(f's_bcnt1_i32_b64 s31, {MASK(i)}\ns_add_u32 s30, s30, s31')
            a(f's_cmp_le_u32 s30, {thr}\ns_cbranch_scc1 {S}\ns_sleep {bsleep}\n{S}:')
        for i, x in enumerate(loads):
            a(f's_or_b32 s{70+2*i}, s{70+2*i}, 1\ns_wqm_b64 exec, {MASK(i)}')
            ld(*x)
        a('s_mov_b64 exec, -1')
        if sleep: a(f's_sleep {sleep}')
        a(f's_waitcnt vmcnt({n*depth})\ns_branch {L}\n{D}:\ns_waitcnt vmcnt(0)')
    def w_voff(dst, stride, t):
        a(f'v_lshrrev_b32 {t}, 3, v1\nv_mul_u32_u24 {dst}, {stride}, {t}')
        a(f'v_lshrrev_b32 {t}, 4, v1\nv_lshlrev_b32 {t}, 1, {t}\nv_xor_b32 {t}, {t}, v1\nv_and_b32 {t}, 7, {t}\nv_lshl_add_u32 {dst}, {t}, 4, {dst}')
    def w_traddr(dst, base, t, t2):
        a(f'v_lshrrev_b32 {t}, 2, v1\nv_lshlrev_b32 {dst}, 7, {t}')
        a(f'v_and_b32 {t}, 6, {t}')
        a(f'v_lshrrev_b32 {t2}, 1, v1\nv_and_b32 {t2}, 1, {t2}\nv_lshl_add_u32 {t2}, {sI}, 1, {t2}')
        a(f'v_xor_b32 {t}, {t}, {t2}\nv_lshl_add_u32 {dst}, {t}, 4, {dst}')
        a(f'v_and_b32 {t}, 1, v1\nv_lshl_add_u32 {dst}, {t}, 3, {dst}\nv_add_u32 {dst}, {base}, {dst}')
    def w_read(areg, addr, nks):
        for ks in range(nks):
            a(f'ds_read_b64_tr_b16 {V(areg+4*ks, 2)}, {addr} offset:{ks*4096}')
            a(f'ds_read_b64_tr_b16 {V(areg+4*ks+2, 2)}, {addr} offset:{ks*4096+2048}')
    def b_read(breg, addr, nks):
        for ks in range(nks):
            a(f'ds_read2_b64 {V(breg+4*ks, 4)}, {addr} offset0:{8*ks} offset1:{8*ks+4}')
    def w_mfma(d, areg, breg, nks, staged=False):
        for ks in range(nks):
            if staged: a(f's_waitcnt lgkmcnt({nks-1-ks})')
            a(f'v_mfma_f32_16x16x32_bf16 {V(d,4)}, {V(areg+4*ks,4)}, {V(breg+4*ks,4)}, {"0" if ks == 0 else V(d,4)}')
    def ln_scale(mean, var):
        rnd(var); rnd(mean)
        a(f'v_add_f32 {var}, {f2u(1e-5):#x}, {var}'); rnd(var)
        a(f'v_sqrt_f32 {var}, {var}'); rnd(var)
        a(f'v_rcp_f32 {var}, {var}')
    E0 = 101
    c0 = -2 * LOG2E * 0.7978845608028654; c1 = c0 * 0.044715
    def gelu_units(units, U, Z, NB):
        for s0 in range(0, len(units), NB):
            blk = list(enumerate(units[s0:s0+NB]))
            R2 = lambda base, k: V(base + 2*k, 2)
            def both(fn):
                for k, _ in blk:
                    fn(2*k); fn(2*k+1)
            for k, (first, last) in blk: a(first(R2(U, k)))
            for k, _ in blk: a(f'v_pk_mul_f32 {R2(Z,k)}, {R2(U,k)}, {R2(U,k)}')
            for k, _ in blk: a(f'v_pk_fma_f32 {R2(Z,k)}, {R2(Z,k)}, v[44:45], v[44:45] op_sel:[0,0,1] op_sel_hi:[1,0,1]')
            for k, _ in blk: a(f'v_pk_mul_f32 {R2(Z,k)}, {R2(Z,k)}, {R2(U,k)}')
            both(lambda r: a(f'v_exp_f32 {V(Z+r)}, {V(Z+r)}'))
            for k, _ in blk: a(f'v_pk_add_f32 {R2(Z,k)}, {R2(Z,k)}, 1.0 op_sel_hi:[1,0]')
            both(lambda r: a(f'v_rcp_f32 {V(Z+r)}, {V(Z+r)}'))
            for k, _ in blk: a(f'v_pk_mul_f32 {R2(U,k)}, {R2(U,k)}, {R2(Z,k)}')
            for k, (first, last) in blk: a(last(R2(U, k)))

    a(f'{NAME}_kernel:')
    a('s_cmp_ge_u32 s2, 256\ns_cbranch_scc1 L_end')
    if dbgtime: a('s_memrealtime s[34:35]')
    if warm:
        a('s_getpc_b64 s[32:33]\nL_pc:')
        a(f'v_lshlrev_b32 v4, 7, v0\nv_cmp_gt_u32 vcc, L_code_end-L_pc-4, v4\ns_and_saveexec_b64 s[28:29], vcc\ns_cbranch_execz L_nowarm')
        a('global_load_dword v254, v4, s[32:33]\nL_nowarm:\ns_mov_b64 exec, -1')
    a('s_load_dwordx16 s[36:51], s[0:1], 0\ns_load_dwordx8 s[52:59], s[0:1], 64\ns_load_dwordx4 s[60:63], s[0:1], 96\ns_load_dwordx2 s[64:65], s[0:1], 112')
    a('v_lshrrev_b32 v1, 6, v0\nv_readfirstlane_b32 s3, v1\nv_and_b32 v1, 63, v0')
    a(f'v_mov_b32 {vM}, {MISC}\nv_mov_b32 {vOne}, 1')
    if stamps: a('v_mov_b32 v255, 0')
    a(f's_and_b32 {sI}, s3, 3')
    a('s_cmp_lg_u32 s3, 7\ns_cbranch_scc1 L_noinit')
    a(f'v_lshl_add_u32 v27, v1, 2, {vM}\nv_mov_b32 v28, 0')
    setexec(0xffffffff); a(f'ds_write_b32 v27, v28 offset:{CNT}'); setexec(-1)
    a('L_noinit:')
    a('s_mov_b32 s6, 0x4000000\ns_mov_b32 s7, 0x20000\ns_mov_b32 s10, 0x4000000\ns_mov_b32 s11, 0x20000')
    a('s_mov_b32 s14, 0x10000000\ns_mov_b32 s15, 0x20000\ns_mov_b32 s18, 0x800000\ns_mov_b32 s19, 0x20000')
    a('s_mov_b32 s22, 0x800000\ns_mov_b32 s23, 0x20000\ns_mov_b32 s26, 0xc00000\ns_mov_b32 s27, 0x20000')
    w_voff('v236', 12288, 'v26')
    a('s_waitcnt lgkmcnt(0)')
    a(f's_load_dword {sE}, {sWS}, 12')
    for srd, p in ((24, 58), (16, 42), (4, 38), (8, 40), (12, 64), (20, 44)):
        a(f's_mov_b32 s{srd}, s{p}\ns_and_b32 s{srd+1}, s{p+1}, 0xffff')
    a('s_barrier')
    stamp(0)
    a('s_cmp_ge_u32 s3, 4\ns_cbranch_scc1 L_X')

    VOFF, KA, VA, Q, S, H = 4, 8, 16, 32, 64, 96
    PP, D1, D2, VS = 32, 96, 128, 160
    vMax, vSum = 'v224', 'v225'
    if aprio: a(f's_setprio {aprio}')
    seq = [('w1', i) for i in range(4)] + [('wq', i) for i in range(8)] + [('kv', i) for i in range(128)]
    slot_of = lambda gi: gi % RS if gi < 28 else gi - 28
    pos = {e: n for n, e in enumerate(seq)}
    Fn = lambda n: (F0 if F0 and n < FS0 else F) if (F2 is None or n < FSW) else F2
    if Fs:
        Fn = lambda n: [f for (n0, f) in Fs if n0 <= n][-1]
    NS = len(seq)
    CPS = list(CP) + ([NS - TK] if (CP or rwo is not None) else [])
    CTL = CP[0] + 4 if CP else NS + 1
    Fbase = Fn
    Fn = lambda n: Fhi if n >= CTL else Fbase(n)
    FI = Fn(0)
    def landed_at(k):
        n = k + 1
        while n < FI or n - Fn(n) < k: n += 1
        return n
    a(f's_and_b32 s30, s2, 7\ns_lshl_b32 s30, s30, 2\ns_add_u32 s30, s30, {sI}\ns_mul_i32 s46, s30, {32*12288}\ns_lshr_b32 s30, s2, 3\ns_lshl_b32 s30, s30, 7\ns_add_u32 s46, s46, s30')
    a(f's_lshl_b32 s58, {sI}, 12\ns_lshl_b32 s59, {sI}, 13')
    vorder = []
    for u in range(4): vorder += [4*u, 4*u+2, 4*u+1, 4*u+3]
    def issue(n):
        kind, i = seq[n]
        if kind == 'kv':
            gi, j = i // 4, i % 4
            if j == 0 or seq[n-1][0] != 'kv':
                grp = gi if gi < 16 else vorder[gi - 16]
                a(f's_add_u32 s39, {sBase}, {grp*16384}\ns_add_u32 m0, s38, {slot_of(gi)*4096}')
            a(f'buffer_load_dwordx4 v{VOFF+j}, {SRD_K if gi < 16 else SRD_V}, s39 offen offset:{j*1024}{nt} lds')
        else:
            srd, vo, so, stride, lb, sl = {'w1': (SRD_WM, 'v236', 's46', 12288, WA, 's58'), 'wq': (SRD_WQ, 'v237', 's47', 8192, WB, 's59')}[kind]
            a(f's_add_u32 s32, {so}, {8*i*stride}\ns_add_u32 m0, {sl}, {lb + i*1024}')
            a(f'buffer_load_dwordx4 {vo}, {srd}, s32 offen{wnt} lds')
    for n in range(4): issue(n)
    w_voff('v237', 8192, 'v26')
    a(f's_and_b32 s30, s2, 3\ns_lshl_b32 s30, s30, 2\ns_add_u32 s30, s30, {sI}\ns_lshl_b32 s47, s30, 19')
    a('s_lshr_b32 s30, s2, 2\ns_lshl_b32 s30, s30, 7\ns_add_u32 s47, s47, s30')
    for n in range(4, FI): issue(n)
    stamp(16)
    a('v_lshrrev_b32 v24, 4, v1\nv_and_b32 v25, 15, v1')
    a('v_lshlrev_b32 v26, 1, v24\nv_xor_b32 v26, v26, v25\nv_lshlrev_b32 v26, 4, v26\nv_lshl_add_u32 v4, v24, 8, v26')
    for i in range(1, 4): a(f'v_xor_b32 v{VOFF+i}, {(8*(i&1) + (i>>1)) << 4:#x}, v4')
    a(f's_lshl_b32 {sBase}, s2, 18\ns_lshl_b32 s30, s3, 12\ns_add_u32 {sBase}, {sBase}, s30')
    a(f's_mul_i32 s38, s3, {RINGW}')
    def t_setup():
        a('v_and_b32 v26, 7, v25\nv_lshlrev_b32 v26, 1, v26\nv_lshrrev_b32 v27, 3, v25\nv_or_b32 v26, v26, v27')
        a('v_lshrrev_b32 v27, 1, v24\nv_xor_b32 v26, v26, v27\nv_lshlrev_b32 v26, 4, v26\nv_lshl_add_u32 v26, v25, 8, v26')
        a(f'v_and_b32 v27, 1, v24\nv_lshl_add_u32 v26, v27, 12, v26\nv_add_u32 v{KA}, s38, v26')
        for j in range(1, 8): a(f'v_xor_b32 v{KA+j}, {j << 5:#x}, v{KA}')
        a('v_lshrrev_b32 v27, 2, v1')
        a('v_and_b32 v26, 7, v27\nv_lshlrev_b32 v26, 1, v26\nv_lshrrev_b32 v28, 3, v27\nv_or_b32 v26, v26, v28')
        a('v_lshrrev_b32 v28, 1, v1\nv_and_b32 v28, 1, v28\nv_xor_b32 v26, v26, v28\nv_lshlrev_b32 v26, 4, v26\nv_lshl_add_u32 v26, v27, 8, v26')
        a(f'v_and_b32 v28, 1, v1\nv_lshl_add_u32 v26, v28, 3, v26\nv_add_u32 v{VA}, s38, v26')
        for t in range(1, 8): a(f'v_xor_b32 v{VA+t}, {t << 5:#x}, v{VA}')
    def t_setup2():
        for r in range(Q, Q + 32): a(f'v_mov_b32 v{r}, 0')
        a(f'v_mov_b32 {vMax}, 0xff800000\nv_mov_b32 {vSum}, 0')
        a(f's_mov_b32 s40, {f2u(SCALE):#x}\ns_mov_b32 s41, {f2u(LOG2E):#x}')
    def t_setup3():
        w_traddr('v28', 16384, 'v26', 'v27')
        a('v_lshrrev_b32 v26, 2, v1\nv_lshlrev_b32 v29, 9, v26\nv_and_b32 v26, 7, v26\nv_lshlrev_b32 v26, 1, v26')
        a(f'v_lshrrev_b32 v27, 1, v1\nv_and_b32 v27, 1, v27\nv_lshl_add_u32 v27, {sI}, 3, v27\nv_xor_b32 v26, v26, v27\nv_lshl_add_u32 v29, v26, 4, v29')
        a(f'v_and_b32 v26, 1, v1\nv_lshl_add_u32 v29, v26, 3, v29\nv_add_u32 v29, {WB}, v29')
        a(f'v_lshl_add_u32 v30, v24, 3, {vM}\nv_add_u32 v30, {OV}, v30')
        a('v_and_b32 v26, 7, v1\nv_mul_u32_u24 v26, 528, v26\nv_lshl_add_u32 v26, v24, 4, v26\nv_add_u32 v31, s38, v26')
        a('s_and_b32 s42, s2, 7\ns_lshl_b32 s42, s42, 3\ns_lshr_b32 s30, s2, 3\ns_and_b32 s30, s30, 7\ns_add_u32 s42, s42, s30\ns_lshr_b32 s43, s2, 6')
        a('s_waitcnt lgkmcnt(0)')
        setup_tags()
    def t_readK(t, h):
        def f():
            for j in range(8): a(f'ds_read_b128 {V(H+32*h+4*j,4)}, v{KA+j} offset:{((2*t) % RS)*4096}')
            a('s_waitcnt lgkmcnt(0)')
        return f
    def t_waitq():
        stamp(1)
        await_(C_Q, 4, 'v26')
        stamp(2)
        a(f'v_and_b32 v26, 7, v1\nv_mul_u32_u24 v26, 272, v26\nv_lshrrev_b32 v27, 5, v1\nv_lshl_add_u32 v26, v27, 4, v26\nv_add_u32 v26, {MISC+QL}, v26')
        setexec(0xff0000ffff0000ff)
        for j in range(8): a(f'ds_read_b128 {V(Q+4*j,4)}, v26 offset:{32*j}')
        setexec(-1)
        a('s_waitcnt lgkmcnt(0)')
    def t_qk(t, h):
        def f():
            for j in range(8):
                a(f'v_mfma_f32_16x16x32_bf16 {V(S+4*t,4)}, {V(H+32*h+4*j,4)}, {V(Q+4*j,4)}, {"0" if j == 0 else V(S+4*t,4)}')
        return f
    def t_round(t):
        def f():
            for r in range(4): rnd(V(S+4*t+r))
            for r in range(4): a(f'v_mul_f32 {V(S+4*t+r)}, s40, {V(S+4*t+r)}')
            for r in range(4): rnd(V(S+4*t+r))
            a(f'v_max3_f32 {vMax}, {vMax}, {V(S+4*t)}, {V(S+4*t+1)}\nv_max3_f32 {vMax}, {vMax}, {V(S+4*t+2)}, {V(S+4*t+3)}')
        return f
    def t_max():
        allred('v_max_f32', vMax, 'v26', ('r8', 16, 32))
        a(f'v_mul_f32 {vMax}, s41, {vMax}')
    def t_exp(t):
        def f():
            for r in range(4): a(f'v_fma_f32 {V(S+4*t+r)}, {V(S+4*t+r)}, s41, -{vMax}')
            for r in range(4): a(f'v_exp_f32 {V(S+4*t+r)}, {V(S+4*t+r)}')
            a(f'v_cvt_pk_bf16_f32 {V(PP+2*t)}, {V(S+4*t)}, {V(S+4*t+1)}\nv_cvt_pk_bf16_f32 {V(PP+2*t+1)}, {V(S+4*t+2)}, {V(S+4*t+3)}')
            a(f'v_add_f32 v26, {V(S+4*t)}, {V(S+4*t+1)}\nv_add_f32 v27, {V(S+4*t+2)}, {V(S+4*t+3)}\nv_add_f32 v26, v26, v27\nv_add_f32 {vSum}, {vSum}, v26')
        return f
    def t_ml():
        allred('v_add_f32', vSum, 'v26', ('r8', 16, 32))
        a(f'v_lshl_add_u32 v26, v1, 2, {vM}\nv_lshl_add_u32 v26, s3, 6, v26')
        setexec(0xff)
        a(f'ds_write_b32 v26, {vMax} offset:{MLW}\nds_write_b32 v26, {vSum} offset:{MLW+32}')
        arrive(C_ML)
        stamp(3)
    def readV(p, half):
        slot = slot_of(16 + 2*p + half)
        for t in range(8):
            a(f'ds_read_b64_tr_b16 {V(VS+4*t+2*half,2)}, v{VA+t} offset:{slot*4096}')
    def pv(p, staged):
        u, which = p >> 1, p & 1
        Dd = D2 if which else D1
        for t in range(8):
            if staged: a(f's_waitcnt lgkmcnt({7-t})')
            a(f'v_mfma_f32_16x16x32_bf16 {V(Dd+4*t,4)}, {V(VS+4*t,4)}, {V(PP+4*u,4)}, {"0" if u == 0 else V(Dd+4*t,4)}')
    def t_pv(p):
        def f():
            readV(p, 0); readV(p, 1); pv(p, True)
        return f
    def writeD(which):
        setexec(0xff00ff00ff00ff00 if which else 0x00ff00ff00ff00ff)
        for t in range(8):
            a(f'ds_write_b128 v31, {V((D2 if which else D1)+4*t,4)} offset:{which*4352 + 64*t}')
        setexec(-1)
    def wg_stats(head, mreg, lreg):
        a(f'v_lshl_add_u32 v27, {head}, 2, {vM}')
        for w in range(4): a(f'ds_read_b32 v{mreg+w}, v27 offset:{MLW + 64*w}')
        if lreg:
            for w in range(4): a(f'ds_read_b32 v{lreg+w}, v27 offset:{MLW + 64*w + 32}')
        a('s_waitcnt lgkmcnt(0)')
        a(f'v_max3_f32 v26, v{mreg}, v{mreg+1}, v{mreg+2}\nv_max_f32 v26, v26, v{mreg+3}'); tag('v26')
        for w in range(4): a(f'v_sub_f32 v{mreg+w}, v{mreg+w}, v26')
        for w in range(4): a(f'v_exp_f32 v{mreg+w}, v{mreg+w}')
    def t_mlpub():
        await_(C_ML, 4, 'v26')
        Ls = a.lab('MP')
        a(f's_cmp_lg_u32 s3, 0\ns_cbranch_scc1 {Ls}')
        a('v_and_b32 v72, 7, v1')
        wg_stats('v72', 64, 68)
        a(f'v_mov_b32 v76, v26\nv_mul_f32 v77, v64, v68\nv_fmac_f32 v77, v65, v69\nv_fmac_f32 v77, v66, v70\nv_fmac_f32 v77, v67, v71')
        tag('v77')
        a(f'v_mov_b32 v78, {sT}\nv_mov_b32 v79, {sT}\nv_lshlrev_b32 v72, 4, v72\ns_lshl_b32 s30, s2, 7\ns_add_u32 s30, s30, {ML}')
        setexec(0xff)
        a(f'buffer_store_dwordx4 v[76:79], v72, {SRD_WS}, s30 offen sc1')
        setexec(-1)
        a(f'{Ls}:')
    def t_fread():
        a('v_lshrrev_b32 v232, 5, v0')
        wg_stats('v232', 228, None)
        a('v_mul_u32_u24 v26, 528, v232\nv_and_b32 v27, 31, v0\nv_lshl_add_u32 v232, v27, 4, v26')
        a(f'v_add_u32 v233, {2*RINGW}, v232\nv_and_b32 v234, 15, v0\nv_lshlrev_b32 v234, 4, v234\nv_lshrrev_b32 v26, 4, v0\nv_lshl_add_u32 v234, v26, 14, v234')
        a(f's_lshr_b32 s45, s2, 6\ns_lshl_b32 s45, s45, 18\ns_and_b32 s30, s2, 63\ns_lshl_b32 s30, s30, 8\ns_add_u32 s45, s45, s30\ns_add_u32 s45, s45, {OB}')
    def t_fread2():
        for r in range(192, 224): a(f'v_mov_b32 v{r}, 0')
        for i in range(1, 4): a(f'v_xor_b32 v{68+i}, {i << 5:#x}, v29')
        a(f'v_add_u32 v64, {2*RINGW}, v28\nv_lshrrev_b32 v65, 4, v1\nv_lshlrev_b32 v66, 4, v65\nv_lshl_add_u32 v65, v65, 3, {vM}')
        a('s_and_b32 s30, s2, 3\nv_lshl_add_u32 v65, s30, 9, v65')
        a(f's_lshl_b32 s46, s30, 14\ns_lshr_b32 s30, s2, 2\ns_lshl_b32 s30, s30, 8\ns_add_u32 s46, s46, s30\ns_lshl_b32 s30, {sI}, 6\ns_add_u32 s46, s46, s30\ns_add_u32 s46, s46, {P3}')

    sched = {}; late = []
    def at(n, f): sched.setdefault(n, []).append(f)
    land = lambda t: landed_at(pos[('kv', 8*t + 7)])
    def reuse(t):
        later = [g for g in range(2*t + 2, 32) if slot_of(g) == slot_of(2*t)]
        return pos[('kv', 4*later[0])] if later else NS + 100
    at(landed_at(pos[('w1', 3)]), lambda: arrive(C_W1))
    at(landed_at(pos[('w1', 3)]) + 1, t_setup)
    at(landed_at(pos[('w1', 3)]) + 3, t_setup2)
    at(landed_at(pos[('wq', 7)]), lambda: arrive(C_WQ))
    at(landed_at(pos[('wq', 7)]) + 1, t_setup3)
    if T1: at(T1, lambda: arrive(C_T1))
    if T2: at(T2, lambda: arrive(C_T2))
    for t in range(4): at(land(t), t_readK(t, t))
    nq = pos[('kv', NQ)]
    assert nq >= land(3)
    at(nq, t_waitq)
    n = nq + 1
    free_h = {}
    for t in range(4):
        at(n, t_qk(t, t)); free_h[t] = n + 1
        at(n + 1, t_round(t))
        n += 2
    rd = {}
    for t in range(4, 8):
        rd[t] = max(free_h[t-4], land(t))
        assert rd[t] < reuse(t), (t, rd[t])
        at(rd[t], t_readK(t, t - 4))
    for t in range(4, 8):
        n = max(n, rd[t] + 1)
        at(n, t_qk(t, t - 4)); at(n + 1, t_round(t)); n += 2
    at(n, t_max); n += 1
    for t in range(8):
        at(n, t_exp(t))
        if t & 1: n += 1
    at(n, t_ml); at(n + 7, t_mlpub); at(n + 11, t_fread); at(n + 15, t_fread2); n += 1
    for p in range(7):
        m = max(n, land(8 + p))
        assert m < reuse(8 + p), (p, m)
        if m < NS: at(m, t_pv(p))
        else: late.append(p)
        n = m + 1
    at(NS - TK, lambda: arrive(C_TICK))
    for c in CPS: at(c, lambda: arrive(C_CP))
    def t_mode():
        a(f'ds_read_b32 v26, {vM} offset:{CNT + 4*C_MODE}\ns_waitcnt lgkmcnt(0)\nv_readfirstlane_b32 s47, v26')
    for n in range(CTL - 1, NS - 2, 3): at(n, t_mode)
    for n in range(FI, NS):
        a(f's_waitcnt vmcnt({Fn(n)-1})')
        if n >= CTL:
            Lg = a.lab('GO')
            a(f's_bitcmp1_b32 s47, 0\ns_cbranch_scc1 {Lg}\ns_waitcnt vmcnt({Fbase(n)-1})\ns_bitcmp0_b32 s47, 1\ns_cbranch_scc1 {Lg}\ns_waitcnt vmcnt({Flo-1})\n{Lg}:')
        issue(n)
        if n % 16 == 0: stamp(18 + n // 16)
        for f in sched.get(n, []): f()
    NW = 0
    arrive(C_VI)
    for p in late:
        a(f's_waitcnt vmcnt({NW + 8*(7-p)})')
        t_pv(p)()
    writeD(0)
    a(f's_waitcnt vmcnt({NW + 4})')
    readV(7, 0)
    a(f's_waitcnt vmcnt({NW})')
    stamp(4)
    readV(7, 1); pv(7, True)
    writeD(1)
    arrive(C_RED)
    await_(C_RED, 4, 'v26', sleep=0)
    for w in range(4):
        for hf in range(2):
            a(f'ds_read_b128 {V(VS+8*w+4*hf,4)}, v{232 + (w >> 1)} offset:{(w & 1)*RINGW + hf*4352}')
    for w in range(4):
        a(f's_waitcnt lgkmcnt({6-2*w})')
        sel = w & 1; fp = V(228 + (w & 2), 2)
        for h2 in range(2):
            a(f'v_pk_add_f32 {V(VS+8*w+2*h2,2)}, {V(VS+8*w+2*h2,2)}, {V(VS+8*w+4+2*h2,2)}')
        for h2 in range(2):
            if w == 0: a(f'v_pk_mul_f32 {V(24+2*h2,2)}, {V(VS+2*h2,2)}, {fp} op_sel:[0,{sel}] op_sel_hi:[1,{sel}]')
            else: a(f'v_pk_fma_f32 {V(24+2*h2,2)}, {V(VS+8*w+2*h2,2)}, {fp}, {V(24+2*h2,2)} op_sel:[0,{sel},0] op_sel_hi:[1,{sel},1]')
    for e in range(4): tag(V(24+e))
    a(f'buffer_store_dwordx4 v[24:27], v234, {SRD_WS}, s45 offen sc1')
    arrive(C_PUB)
    stamp(5)
    await_(C_M2, 4, 'v4', sleep=0)
    for ks in range(8):
        for hf in range(2):
            a(f'ds_read_b64_tr_b16 {V(96+4*ks+2*hf,2)}, {"v28" if ks < 4 else "v64"} offset:{((ks >> 1) & 1)*RINGW + (ks & 1)*4096 + hf*2048}')
    b_read(128, 'v65', 8)
    w_mfma(8, 96, 128, 8, staged=True)
    for e in range(4): tag(V(8+e))
    setexec(0x0001000100010001)
    a(f'buffer_store_dwordx4 v[8:11], v66, {SRD_WS}, s46 offen sc1')
    setexec(-1)
    stamp(8)
    await_(C_WO, 4, 'v4', sleep=0)
    stamp(6)
    for ct in range(4):
        for ks in range(2):
            for hf in range(2):
                a(f'ds_read_b64_tr_b16 {V(160+8*ct+4*ks+2*hf,2)}, {"v29" if ct == 0 else V(68+ct)} offset:{ks*16384 + hf*8192}')
    a('v_lshrrev_b32 v4, 4, v1\nv_lshlrev_b32 v4, 4, v4\nv_and_b32 v8, 1, v1\nv_lshl_add_u32 v4, v8, 6, v4\nv_and_b32 v8, 2, v1\nv_lshl_add_u32 v4, v8, 12, v4')
    a(f's_lshl_b32 s45, s42, 7\ns_lshl_b32 s30, s43, 16\ns_add_u32 s45, s45, s30\ns_lshl_b32 s30, {sI}, 14\ns_add_u32 s45, s45, s30\ns_add_u32 s45, s45, {P4}')
    a('s_waitcnt lgkmcnt(0)\ns_barrier')
    for ct in range(4):
        setexec(0x0001000100010001 << ct)
        b_read(192 + 8*ct, 'v30', 2)
    setexec(-1)
    w_mfma(24, 160, 192, 8, staged=True)
    for e in range(4): tag(V(24+e))
    setexec(0x000f000f000f000f)
    a(f'buffer_store_dwordx4 v[24:27], v4, {SRD_WS}, s45 offen sc1')
    setexec(-1)
    stamp(7)
    a(f's_and_b32 s30, {sPi}, 7\ns_cmp_lg_u32 s30, 0\ns_cbranch_scc1 L_fin2')
    a(f'v_lshlrev_b32 v4, 4, v0\nv_add_u32 v5, {WB}, v4')
    gather([(96 + 4*i, 4, 'v4', TAB + 4096*i) for i in range(8)], 'v26', sleep=1)
    for i in range(8): a(f'ds_write_b128 v5, {V(96+4*i,4)} offset:{4096*i}')
    arrive(C_TAB)
    stamp(9)
    a('s_branch L_fin2')

    a('L_X:')
    if xprio: a(f's_setprio {xprio}')
    XA, XB, XD, G = 32, 64, 96, 100
    a('v_and_b32 v10, 255, v0')
    a(f'v_lshlrev_b32 v11, 3, v10\nglobal_load_dwordx2 v[12:13], v11, {sC}')
    a(f'v_lshlrev_b32 v11, 5, v1\nglobal_load_dwordx4 v[16:19], v11, {sX}\nglobal_load_dwordx4 v[20:23], v11, {sX} offset:16')
    a('s_and_b32 s42, s2, 3\ns_lshr_b32 s43, s2, 2\ns_and_b32 s44, s2, 7\ns_lshr_b32 s45, s2, 3')
    a('v_lshrrev_b32 v9, 4, v1\nv_and_b32 v15, 15, v1')
    a(f'v_lshl_add_u32 v28, v15, 2, v9\nv_lshl_add_u32 v28, {sI}, 6, v28')
    a('v_lshl_add_u32 v11, s42, 8, v28\nv_lshlrev_b32 v11, 1, v11\nv_mov_b32 v14, 0')
    a(f'global_load_short_d16_hi v14, v11, {sX}')
    stamp(17)
    w_traddr('v6', WA, 'v11', 'v24')
    a(f'v_add_u32 v7, {(WB - WA) & 0xffffffff:#x}, v6')
    a(f'v_lshl_add_u32 v8, v9, 3, {vM}\nv_lshlrev_b32 v29, 4, v9')
    a('s_waitcnt vmcnt(3) lgkmcnt(0)')
    stamp(20)
    a(f's_mov_b32 s30, {f2u(-LOG2E):#x}')
    a('v_lshlrev_b32 v24, 16, v12\nv_and_b32 v25, 0xffff0000, v12\nv_lshlrev_b32 v26, 16, v13\nv_and_b32 v27, 0xffff0000, v13')
    for i in range(4): a(f'v_mul_f32 v{100+i}, s30, v{24+i}')
    for i in range(4): a(f'v_exp_f32 v{100+i}, v{100+i}')
    for i in range(4): a(f'v_add_f32 v{100+i}, 1.0, v{100+i}')
    for i in range(4): a(f'v_rcp_f32 v{100+i}, v{100+i}')
    for i in range(4): a(f'v_mul_f32 v{24+i}, v{24+i}, v{100+i}')
    a('v_cvt_pk_bf16_f32 v12, v24, v25\nv_cvt_pk_bf16_f32 v13, v26, v27')
    a(f'v_lshl_add_u32 v11, v10, 3, {vM}\nds_write_b64 v11, v[12:13] offset:{SC}')
    arrive(C_W1)
    setup_tags()
    a(f's_lshl_b32 s46, s44, 13\ns_lshl_b32 s30, s45, 8\ns_add_u32 s46, s46, s30\ns_lshl_b32 s30, {sI}, 6\ns_add_u32 s46, s46, s30\ns_add_u32 s46, s46, {P1}')
    stamp(1)
    await_(C_W1, 8, 'v11', sleep=0)
    stamp(22)
    w_read(XA, 'v6', 4)
    a(f'v_lshl_add_u32 v11, s44, 8, v8')
    b_read(XB, 'v11', 4)
    def publish(s_off, fine=False):
        for e in range(4):
            if fine: a(f'v_bfi_b32 {V(XD+e)}, 3, {sT}, {V(XD+e)}')
            else: tag(V(XD+e))
        setexec(0x0001000100010001)
        a(f'buffer_store_dwordx4 {V(XD,4)}, v29, {SRD_WS}, {s_off} offen sc1')
        setexec(-1)
    w_mfma(XD, XA, XB, 4, staged=True)
    publish('s46', True)
    stamp(2)
    a('s_waitcnt vmcnt(1)')
    for i in range(8):
        a(f'v_lshlrev_b32 v{100+2*i}, 16, v{16+i}\nv_and_b32 v{101+2*i}, 0xffff0000, v{16+i}')
    a('v_add_f32 v16, v100, v101')
    for i in range(2, 16): a(f'v_add_f32 v16, v16, v{100+i}')
    allred('v_add_f32', 'v16', 'v17')
    a(f'v_mul_f32 v16, {f2u(1/1024):#x}, v16\nv_mov_b32 v18, 0')
    for i in range(16): a(f'v_sub_f32 v17, v{100+i}, v16\nv_fmac_f32 v18, v17, v17')
    allred('v_add_f32', 'v18', 'v17')
    a(f'v_mul_f32 v18, {f2u(1/1024):#x}, v18')
    ln_scale('v16', 'v18')
    a('v_sub_f32 v14, v14, v16'); rnd('v14'); a('v_mul_f32 v14, v14, v18'); rnd('v14')
    a('v_mov_b32 v30, 0\nv_mov_b32 v31, 0')
    if CPS:
        Lz = a.lab('RZ')
        a(f's_lshr_b32 s58, s2, {SH.bit_length()-1}\ns_lshl_b32 s58, s58, 7\ns_add_u32 s58, s58, {RK}')
        a(f's_and_b32 s30, s2, {SH-1}\ns_add_u32 s30, s30, {sI}\ns_cmp_lg_u32 s30, 0\ns_cbranch_scc1 {Lz}')
        a('v_lshlrev_b32 v11, 2, v1')
        setexec(0xffffffff)
        a(f'buffer_store_dword v30, v11, {SRD_WS}, s58 offen sc1')
        setexec(-1)
        a(f'{Lz}:')
    a('s_and_b32 s30, s2, 7\ns_lshl_b32 s30, s30, 12\nv_and_b32 v5, 1, v1\nv_lshl_add_u32 v5, v5, 4, s30\nv_lshrrev_b32 v11, 1, v1\nv_lshl_add_u32 v5, v11, 7, v5')
    stamp(23)
    await_(C_WQ, 4, 'v11')
    w_read(XA, 'v7', 8)
    a('s_waitcnt lgkmcnt(0)')
    stamp(3)
    a(f's_lshl_b32 s30, s42, 10\ns_lshl_b32 s31, {sI}, 8\ns_add_u32 s30, s30, s31\nv_lshl_add_u32 v12, v15, 4, s30\nv_lshl_add_u32 v12, v9, 13, v12')
    if T1: await_(C_T1, 2, 'v11', sleep=2)
    stamp(19)
    gather([(G + 4*i, 4, 'v12', P1 + (i & 1)*32768 + (i >> 1)*4096) for i in range(4)], 'v26', sleep=psleep, full=2)
    stamp(4)
    for hf in range(2):
        b = G + 8*hf
        a(f'v_pk_add_f32 {V(b,2)}, {V(b,2)}, {V(b+4,2)}\nv_pk_add_f32 {V(b+2,2)}, {V(b+2,2)}, {V(b+6,2)}')
        scat4(b); rnd(f'v{b}')
    a(f'v_add_f32 v{G+8}, 1.0, v{G+8}'); rnd(f'v{G+8}')
    a(f'v_mul_f32 v14, v14, v{G+8}'); rnd('v14')
    a(f'v_add_f32 v14, v14, v{G}'); rnd('v14')
    a(f'v_lshl_add_u32 v11, v28, 1, {vM}\nds_write_b16_d16_hi v11, v14 offset:{HV}')
    arrive(C_H)
    a(f's_lshl_b32 s47, s42, 14\ns_lshl_b32 s30, s43, 8\ns_add_u32 s47, s47, s30\ns_lshl_b32 s30, {sI}, 6\ns_add_u32 s47, s47, s30\ns_add_u32 s46, s47, {P2}')
    await_(C_H, 4, 'v11', sleep=0)
    a(f'v_add_u32 v11, {HV}, v8')
    b_read(XB, 'v11', 8)
    w_mfma(XD, XA, XB, 8, staged=True)
    publish('s46', True)
    stamp(5)
    a('v_lshlrev_b32 v12, 4, v1')
    a(f's_lshr_b32 s30, s2, 6\ns_lshl_b32 s30, s30, 12\ns_lshl_b32 s32, {sI}, 10\ns_add_u32 s30, s30, s32\nv_add_u32 v12, s30, v12')
    if T2: await_(C_T2, 2, 'v11', sleep=2)
    stamp(8)
    gather([(G + 4*i, 4, 'v12', P2 + i*16384) for i in range(4)], 'v26', sleep=psleep, full=2)
    for e in (0, 2):
        a(f'v_pk_add_f32 {V(G+e,2)}, {V(G+e,2)}, {V(G+4+e,2)}\nv_pk_add_f32 {V(G+8+e,2)}, {V(G+8+e,2)}, {V(G+12+e,2)}\nv_pk_add_f32 {V(G+e,2)}, {V(G+e,2)}, {V(G+8+e,2)}')
    a(f'v_cvt_pk_bf16_f32 v{G}, v{G}, v{G+1}\nv_cvt_pk_bf16_f32 v{G+1}, v{G+2}, v{G+3}')
    a(f's_mul_i32 s30, {sI}, 544\nv_lshrrev_b32 v11, 5, v1\nv_lshlrev_b32 v11, 4, v11\nv_lshl_add_u32 v11, v1, 3, v11\nv_add3_u32 v11, v11, {vM}, s30')
    a(f'ds_write_b64 v11, {V(G,2)} offset:{QL}')
    arrive(C_Q)
    stamp(6)
    if xprio: a('s_setprio 0')
    CW, CB, C2 = 160, 174, 188
    a('v_lshlrev_b32 v11, 2, v10\nv_add_u32 v12, 0x1000, v11\nv_mov_b32 v17, 0\nv_mov_b32 v159, 0')
    for j, ptr in enumerate((sW1, sB1, sW2)):
        for i in range(7): a(f'global_load_dword v{G+7*j+i}, {"v11" if i < 4 else "v12"}, {ptr} offset:{(i % 4)*1024}')
    a(f'global_load_short_d16_hi v159, v17, {sB2}')
    a(f'v_mov_b32 v44, {f2u(c1):#x}\nv_mov_b32 v45, {f2u(c0):#x}')
    a(f'v_lshl_add_u32 v13, v9, 2, {vM}\nv_lshl_add_u32 v13, {sI}, 7, v13')
    a(f's_lshl_b32 s39, s2, 5\ns_and_b32 s40, s39, 0xfff\ns_add_u32 s40, s40, {E0 << 7}\ns_lshr_b32 s30, s39, 12\ns_lshl_b32 s30, s30, 15\ns_or_b32 s40, s40, s30\ns_lshl_b32 s40, s40, 16')
    a('s_mov_b32 s41, 0\ns_waitcnt vmcnt(0)')
    for j, base in enumerate((CW, CB, C2)):
        for i in range(7): a(f'v_lshlrev_b32 v{base+2*i}, 16, v{G+7*j+i}\nv_and_b32 v{base+2*i+1}, 0xffff0000, v{G+7*j+i}')
    a('L_tab:')
    for e in range(4): a(f'v_mov_b32 v{40+e}, s40\ns_add_u32 s40, s40, 0x10000\nv_mov_b32 v{16+e}, 0')
    Lz = a.lab('TZ')
    a(f's_add_u32 s39, s39, 4\ns_cmp_lg_u32 s39, 4096\ns_cbranch_scc1 {Lz}\nv_mov_b32 v43, 0\n{Lz}:')
    units = []
    for i in range(14):
        sel = i & 1; pr = i & ~1
        for dp in range(2):
            units.append((lambda u, sel=sel, pr=pr, dp=dp: f'v_pk_fma_f32 {u}, {V(40+2*dp,2)}, {V(CW+pr,2)}, {V(CB+pr,2)} op_sel:[0,{sel},{sel}] op_sel_hi:[1,{sel},{sel}]',
                          lambda u, sel=sel, pr=pr, dp=dp: f'v_pk_fma_f32 {V(16+2*dp,2)}, {u}, {V(C2+pr,2)}, {V(16+2*dp,2)} op_sel:[0,{sel},0] op_sel_hi:[1,{sel},1]'))
    gelu_units(units, 48, 64, 4)
    scat4(16)
    allred('v_add_f32', 'v16', None, (1, 2, 'hm', 'm'))
    setexec(0x0001000100010001)
    a(f'ds_write_b32 v13, v16 offset:{YT}')
    setexec(-1)
    a('v_add_u32 v13, 16, v13\ns_add_u32 s41, s41, 1\ns_cmp_lt_u32 s41, 8\ns_cbranch_scc1 L_tab')
    arrive(C_YT)
    stamp(7)
    LX3, LXD = a.lab('X3'), a.lab('XD')
    a('s_and_b32 s38, s2, 7\ns_lshl_b32 s38, s38, 3\ns_lshr_b32 s30, s2, 3\ns_and_b32 s30, s30, 7\ns_add_u32 s38, s38, s30')
    a(f's_cmp_eq_u32 {sI}, 3\ns_cbranch_scc1 {LX3}\ns_cmp_lg_u32 {sI}, 0\ns_cbranch_scc1 {LXD}')
    await_(C_YT, 4, 'v11')
    a(f'v_and_b32 v12, 7, v1\nv_lshlrev_b32 v12, 4, v12\nv_add_u32 v11, {vM}, v12')
    for w in range(4): a(f'ds_read_b128 {V(48+4*w,4)}, v11 offset:{YT + 128*w}')
    a(f's_lshl_b32 s30, s2, 7\ns_add_u32 s30, s30, {TAB}\ns_waitcnt lgkmcnt(0)')
    for e in (0, 2): a(f'v_pk_add_f32 {V(48+e,2)}, {V(48+e,2)}, {V(52+e,2)}\nv_pk_add_f32 {V(56+e,2)}, {V(56+e,2)}, {V(60+e,2)}\nv_pk_add_f32 {V(48+e,2)}, {V(48+e,2)}, {V(56+e,2)}')
    for e in range(4): rnd(V(48+e))
    for e in range(4): a(f'v_add_f32 v{48+e}, v{48+e}, v159')
    for e in range(4): rnd(V(48+e))
    for e in range(4): a(f'v_or_b32 v{48+e}, {sT}, v{48+e}')
    setexec(0xff)
    a(f'buffer_store_dwordx4 v[48:51], v12, {SRD_WS}, s30 offen sc1')
    setexec(-1)
    a(f's_branch {LXD}')
    def st_reduce(b):
        scat4(b)
        allred('v_add_f32', f'v{b}', None, (2, 'r4', 'r8'))
    def st_publish(base):
        scat4(20)
        allred('v_add_f32', 'v20', None, (1, 2, 'hm'))
        tag('v20')
        a(f'buffer_store_dword v20, v31, {SRD_WS}, {base} offen sc1')
    a(f'{LX3}:')
    a('s_lshr_b32 s30, s38, 4\ns_lshl_b32 s30, s30, 13\ns_lshr_b32 s31, s38, 1\ns_and_b32 s31, s31, 7\ns_lshl_b32 s31, s31, 4\ns_add_u32 s30, s30, s31\nv_lshl_add_u32 v12, v1, 7, s30')
    for k, c in enumerate(CPS):
        await_(C_CP, 4*k + 2, 'v11', sleep=2)
        a('v_mov_b32 v16, 1\nv_mov_b32 v17, 0')
        setexec(1)
        a(f'buffer_atomic_add v16, v17, {SRD_WS}, s58 offen offset:{4*k} sc0 sc1')
        if k == len(CPS) - 1:
            setexec(-1)
            break
        a('s_waitcnt vmcnt(0)')
        a(f'v_cmp_le_u32 vcc, {rhi}, v16\nv_cndmask_b32 v17, 0, 1, vcc\nv_cmp_ge_u32 vcc, {rlo}, v16\nv_cndmask_b32 v17, v17, 2, vcc')
        a(f'ds_write_b32 {vM}, v17 offset:{CNT + 4*C_MODE}')
        setexec(-1)
    await_(C_TICK, 1, 'v11', sleep=4)
    gather([(G, 4, 'v12', ML)], 'v26', sleep=psleep, full=True)
    if CPS:
        setexec(1)
        a(f'v_cmp_le_u32 vcc, {rhi}, v16\nv_cndmask_b32 v17, 0, 1, vcc\nv_cmp_ge_u32 vcc, {rlo}, v16\nv_cndmask_b32 v17, v17, 2, vcc')
        a(f'ds_write_b32 {vM}, v17 offset:{CNT + 4*C_MODE}\nds_write_b32 {vM}, v16 offset:{CNT + 4*C_RANK}')
        setexec(-1)
    a(f'v_mov_b32 v16, v{G}')
    allred('v_max_f32', 'v16', 'v11')
    a(f'v_sub_f32 v16, v{G}, v16\nv_exp_f32 v16, v16\nv_mul_f32 v17, v16, v{G+1}')
    allred('v_add_f32', 'v17', 'v11')
    a(f'v_rcp_f32 v17, v17\nv_and_b32 v12, 15, v1\nv_lshlrev_b32 v12, 4, v12\nv_lshl_add_u32 v12, v9, 2, v12\nv_add_u32 v12, {vM}, v12\nv_mul_f32 v16, v16, v17')
    a(f'ds_write_b32 v12, v16 offset:{WL}')
    arrive(C_WL)
    a(f'{LXD}:')
    stamp(9)
    a(f's_lshl_b32 s30, s38, 14\ns_lshl_b32 s32, {sI}, 6\ns_add_u32 s30, s30, s32')
    a('v_and_b32 v13, 3, v1\nv_lshl_add_u32 v12, v13, 4, s30\nv_lshrrev_b32 v11, 2, v1\nv_lshl_add_u32 v12, v11, 8, v12')
    a(f'v_lshlrev_b32 v13, 3, v13\nv_lshl_add_u32 v13, v9, 1, v13\nv_lshl_add_u32 v13, {sI}, 5, v13\nv_add_u32 v13, {vM}, v13')
    a(f's_lshl_b32 s30, s42, 2\ns_add_u32 s30, s30, {sI}\ns_mul_i32 s46, s30, {64*12288}\ns_lshl_b32 s30, s43, 7\ns_add_u32 s46, s46, s30\ns_add_u32 s46, s46, 4096')
    a(f's_mul_i32 s47, {sI}, {RINGW}')
    def tiles_issue():
        for i in range(8):
            a(f's_add_u32 s32, s46, {8*i*12288}\ns_add_u32 m0, s47, {16384 + i*1024}')
            a(f'buffer_load_dwordx4 v236, {SRD_WM}, s32 offen{wnt} lds')
        for i in range(8):
            a(f's_add_u32 s32, s44, {i*4096}\ns_add_u32 m0, s59, {WB + i*1024}')
            a(f'buffer_load_dwordx4 {V(64 + i % 4)}, {SRD_WO}, s32 offen{wnt} lds')
        a('s_waitcnt vmcnt(8)')
        arrive(C_M2)
    a('v_lshrrev_b32 v26, 5, v1\nv_lshlrev_b32 v27, 1, v26\nv_xor_b32 v27, v27, v1\nv_and_b32 v27, 31, v27\nv_lshlrev_b32 v27, 4, v27\nv_lshl_add_u32 v64, v26, 11, v27')
    for i in range(1, 4): a(f'v_xor_b32 v{64+i}, {i << 6:#x}, v64')
    a(f's_lshl_b32 s44, s38, 17\ns_lshl_b32 s30, {sI}, 15\ns_add_u32 s44, s44, s30\ns_lshr_b32 s30, s2, 6\ns_lshl_b32 s30, s30, 9\ns_add_u32 s44, s44, s30\ns_lshl_b32 s59, {sI}, 13')
    W = 80
    a(f'v_lshl_add_u32 v14, v11, 4, {vM}')
    await_(C_WL, 1, 'v11', sleep=2)
    a(f'ds_read_b128 {V(W,4)}, v14 offset:{WL}')
    LH, LHD, LHW, LHS = a.lab('H'), a.lab('HD'), a.lab('HW'), a.lab('HS')
    for i in range(4): a(f's_mov_b32 {SOFF(i)}, {OB + 4096*i:#x}')
    def h1ld(i): a(f'buffer_load_dwordx4 {V(G+4*i,4)}, v12, {SRD_WS}, {SOFF(i)} offen sc1')
    LE, LJ = a.lab('HE'), a.lab('HJ')
    if rwo is not None:
        a(f'ds_read_b32 v11, {vM} offset:{CNT + 4*C_RANK}\ns_waitcnt lgkmcnt(0)\nv_readfirstlane_b32 s31, v11')
        a(f's_cmp_lt_u32 s31, {rwo}\ns_cbranch_scc1 {LE}')
        await_(C_VI, 4, 'v11', sleep=1)
        tiles_issue()
        await_(C_PUB, 4, 'v11', sleep=1)
        a(f's_branch {LJ}')
    a(f'{LE}:')
    await_(C_PUB, 4, 'v11', sleep=1)
    tiles_issue()
    if h1w: a('s_waitcnt vmcnt(0)')
    a(f'{LJ}:')
    stamp(10)
    for i in range(4): h1ld(i)
    a(f's_mov_b32 {sSpin}, {spin}\ns_waitcnt vmcnt(4)')
    arrive(C_WO)
    a(f'{LH}:\ns_waitcnt vmcnt(0)')
    for i in range(4): a(f'v_perm_b32 v11, v{G+4*i+3}, v{G+4*i}, {sSelA}\nv_cmp_ne_u32 {MASK(i)}, {sT2}, v11')
    a(f's_bcnt1_i32_b64 s30, {MASK(0)}')
    for i in range(1, 4): a(f's_bcnt1_i32_b64 s31, {MASK(i)}\ns_add_u32 s30, s30, s31')
    a(f's_cmp_eq_u32 s30, 0\ns_cbranch_scc1 {LHD}')
    a(f's_sub_u32 {sSpin}, {sSpin}, 1\ns_cbranch_scc1 {LHD}')
    a(f's_cmp_le_u32 s30, {h1thr}\ns_cbranch_scc1 {LHS}\ns_sleep {h1sleep}\n{LHS}:')
    for i in range(4):
        Sk = a.lab('GS')
        a(f's_wqm_b64 exec, {MASK(i)}\ns_cbranch_execz {Sk}')
        h1ld(i)
        a(f'{Sk}:')
    a(f's_mov_b64 exec, -1\ns_branch {LH}\n{LHD}:')
    for e in (0, 2): a(f'v_pk_mul_f32 {V(G+e,2)}, {V(G+e,2)}, {V(W,2)} op_sel:[0,0] op_sel_hi:[1,0]')
    for i in range(1, 4):
        for e in (0, 2): a(f'v_pk_fma_f32 {V(G+e,2)}, {V(G+4*i+e,2)}, {V(W+(i&2),2)}, {V(G+e,2)} op_sel:[0,{i&1},0] op_sel_hi:[1,{i&1},1]')
    scat4(G)
    allred('v_add_f32', V(G), None, ('r4', 'r8'))
    rnd(V(G))
    setexec(0x000f000f000f000f)
    a(f'ds_write_b16_d16_hi v13, v{G} offset:{OV}')
    setexec(-1)
    stamp(11)
    a('s_waitcnt lgkmcnt(0)\ns_barrier')
    a(f's_cmp_lg_u32 {sI}, 2\ns_cbranch_scc1 L_fin2\ns_and_b32 s30, {sPi}, 7\ns_cmp_lg_u32 s30, 0\ns_cbranch_scc1 L_fin2')
    a(f'v_and_b32 v13, 7, v1\nv_lshl_add_u32 v30, v13, 2, v9\nv_lshl_add_u32 v30, {sPi}, 2, v30\nv_lshlrev_b32 v29, 1, v30\nv_lshlrev_b32 v30, 2, v30')
    a(f'v_mov_b32 v152, 0\nglobal_load_short_d16_hi v152, v29, {sX}')
    a(f'v_lshrrev_b32 v11, 3, v1\nv_and_b32 v11, 1, v11\nv_cmp_eq_u32 s[100:101], 1, v11\nv_lshl_add_u32 v28, v11, 15, v30')
    a(f'v_lshlrev_b32 v31, 12, v13\nv_lshl_add_u32 v31, v11, 4, v31\nv_lshl_add_u32 v31, v9, 2, v31\nv_lshl_add_u32 v31, {sPi}, 4, v31')
    gather([(G + k, 1, 'v28', P3 + (k % 2)*16384 + (k // 2)*4096) for k in range(8)], 'v26', sleep=1)
    for j in range(4): a(f'v_add_f32 v{153+j}, v{G+2*j}, v{G+2*j+1}')
    for j in range(4): allred('v_add_f32', f'v{153+j}', None, ('r8',))
    for j in range(4): rnd(f'v{153+j}')
    a('v_add_f32 v155, 1.0, v155'); rnd('v155')
    a('v_cndmask_b32 v157, v155, v154, s[100:101]')
    a('v_cndmask_b32 v16, 1.0, v154, s[100:101]\nv_mul_f32 v20, v157, v16\nv_mul_f32 v21, v157, v155\nv_cndmask_b32 v22, v154, 0, s[100:101]\nv_mov_b32 v23, 0')
    a(f's_mov_b32 s41, {ST0}')
    st_publish('s41')
    a(f'v_lshlrev_b32 v12, 4, v1\nv_lshl_add_u32 v12, {sPi}, 10, v12\nv_mov_b32 v46, {f2u(1/1024):#x}')
    a(f's_mov_b32 s40, {ST}\nv_mov_b32 v150, 4095\nv_mov_b32 v151, {WB}')
    stamp(25)
    gather([(G + 4*i, 4, 'v12', P4 + i*1024) for i in range(8)], 'v11')
    stamp(24)
    for st in (4, 8, 16):
        for i in range(0, 32, 2*st):
            for e in (0, 2): a(f'v_pk_add_f32 {V(G+i+e,2)}, {V(G+i+e,2)}, {V(G+i+st+e,2)}')
    scat4(G)
    allred('v_add_f32', V(G), None, ('r8',))
    rnd(V(G)); a(f'v_mul_f32 v16, v{G}, v153'); rnd('v16'); a('v_add_f32 v16, v16, v152'); rnd('v16')
    a('v_mul_f32 v17, v16, v155')
    a('v_cndmask_b32 v18, v16, v17, s[100:101]\nv_cndmask_b32 v20, 1.0, v17, s[100:101]\nv_cndmask_b32 v21, v16, v155, s[100:101]')
    a('v_mul_f32 v20, v18, v20\nv_mul_f32 v21, v18, v21\nv_mul_f32 v22, v18, v157\nv_mov_b32 v23, 0')
    st_publish('s40')
    stamp(21)
    gather([(G + 4, 4, 'v5', ST0)], 'v26', full=True)
    st_reduce(G + 4)
    for k, ln in enumerate((0, 16, 32, 1, 17)): a(f'v_readlane_b32 s{44+k if k < 4 else 58}, v{G+4}, {ln}')
    a('v_mov_b32 v144, s44\nv_mov_b32 v145, s45\nv_mov_b32 v146, s46\nv_mov_b32 v148, s47\nv_mov_b32 v149, s58')
    await_(C_TAB, 4, 'v11', sleep=0)
    gather([(G, 4, 'v5', ST)], 'v26', full=True, sleep=fsleep)
    stamp(12)
    st_reduce(G)
    for k, ln in enumerate((0, 16, 32, 1, 17, 33)): a(f'v_readlane_b32 s{38+k}, v{G}, {ln}')
    a('v_mul_f32 v24, s38, v46\nv_mul_f32 v25, s39, v46\nv_fma_f32 v25, -v24, v24, v25\nv_max_f32 v25, 0, v25')
    ln_scale('v24', 'v25')
    a('v_fma_f32 v26, -v24, v144, s40\nv_fma_f32 v28, -v24, v149, s43')
    a('v_mul_f32 v27, v24, v145\nv_fma_f32 v27, -2.0, s42, v27\nv_fma_f32 v27, v27, v24, s41')
    a('v_sub_f32 v40, v16, v24')
    a('v_fma_f32 v26, v26, v25, v146\nv_add_f32 v28, v28, v28\nv_fma_f32 v27, v27, v25, v28\nv_fma_f32 v27, v27, v25, v148')
    rnd('v40')
    a('v_mul_f32 v26, v26, v46\nv_mul_f32 v27, v27, v46\nv_mul_f32 v40, v40, v25\nv_fma_f32 v27, -v26, v26, v27')
    rnd('v40')
    a('v_max_f32 v27, 0, v27\nv_mul_f32 v40, v40, v155')
    rnd('v27'); rnd('v40'); rnd('v26')
    a(f'v_add_f32 v27, {f2u(1e-5):#x}, v27\nv_add_f32 v40, v40, v154'); rnd('v27'); rnd('v40')
    a('v_sqrt_f32 v27, v27\nv_sub_f32 v40, v40, v26'); rnd('v27'); rnd('v40')
    a('v_rcp_f32 v27, v27\nv_mul_f32 v40, v40, v27'); rnd('v40')
    a(f'v_bfe_u32 v41, v40, 16, 15\nv_lshrrev_b32 v43, 31, v40\nv_subrev_u32 v42, {E0 << 7}, v41\nv_cmp_eq_u32 vcc, 0, v41')
    a(f'v_cmp_lt_u32 s[38:39], v42, v47\nv_lshl_add_u32 v42, v43, 12, v42\nv_cndmask_b32 v42, v42, v47, vcc'.replace('v47', 'v150'))
    a(f'v_and_b32 v42, 0x1fff, v42\nv_lshl_add_u32 v42, v42, 2, v151\nds_read_b32 v41, v42')
    a('s_or_b64 s[38:39], s[38:39], vcc\ns_not_b64 s[38:39], s[38:39]\ns_cbranch_scc1 L_slow')
    a('s_waitcnt lgkmcnt(0)\nv_and_b32 v41, 0xffff0000, v41')
    a('L_out:')
    a('v_mul_f32 v41, v41, v156'); rnd('v41'); a('v_add_f32 v41, v41, v16'); rnd('v41')
    setexec(0x00ff00ff00ff00ff)
    a(f'global_store_short_d16_hi v29, v41, {sOUT}')
    setexec(-1)
    stamp(14)
    a('L_fin:')
    a('s_cmp_lg_u32 s2, 0\ns_cbranch_scc1 L_fin2')
    a(f'v_mov_b32 v7, {sE}\nv_mov_b32 v8, 0')
    setexec(1)
    a(f'global_store_dword v8, v7, {sWS} offset:12')
    setexec(-1)
    a('L_fin2:')
    if stamps:
        stamp(15)
        a('s_getreg_b32 s30, hwreg(HW_REG_XCC_ID)\nv_writelane_b32 v255, s30, 40')
        a(f's_lshl_b32 s30, s2, 11\ns_add_u32 s30, s30, {DBG}\nv_lshlrev_b32 v7, 2, v0')
        a(f'buffer_store_dword v255, v7, {SRD_WS}, s30 offen')
    if dbgtime:
        a('s_cmp_lg_u32 s3, 0\ns_cbranch_scc1 L_end')
        a('s_memrealtime s[32:33]\ns_not_b32 s34, s34\ns_waitcnt lgkmcnt(0)')
        a('v_mov_b32 v7, 0\nv_mov_b32 v8, s32\nv_mov_b32 v9, s34')
        setexec(1)
        a('global_atomic_umax v7, v8, s[62:63]\nglobal_atomic_umax v7, v9, s[62:63] offset:4')
    a('L_end:\ns_endpgm')
    a('L_slow:\ns_waitcnt lgkmcnt(0)\nv_and_b32 v41, 0xffff0000, v41')
    a('L_slow1:\ns_ff1_i32_b64 s40, s[38:39]\ns_bitset0_b64 s[38:39], s40\nv_readlane_b32 s41, v40, s40')
    a('v_lshlrev_b32 v11, 4, v1\nv_mov_b32 v18, 0\nv_mov_b32 v19, 0\nv_mov_b32 v42, s41\nv_mov_b32 v43, s41\ns_mov_b32 s42, 0')
    a('L_slow2:')
    for j, ptr in enumerate((sW1, sB1, sW2)): a(f'global_load_dwordx4 {V(G+4*j,4)}, v11, {ptr}')
    a('v_add_u32 v11, 0x400, v11\ns_waitcnt vmcnt(0)')
    for j in range(3):
        for i in range(4): a(f'v_lshlrev_b32 v{160+8*j+2*i}, 16, v{G+4*j+i}\nv_and_b32 v{161+8*j+2*i}, 0xffff0000, v{G+4*j+i}')
    gelu_units([(lambda u, i=i: f'v_pk_fma_f32 {u}, v[42:43], {V(160+2*i,2)}, {V(168+2*i,2)}',
                 lambda u, i=i: f'v_pk_fma_f32 v[18:19], {u}, {V(176+2*i,2)}, v[18:19]') for i in range(4)], 48, 64, 4)
    a('s_add_u32 s42, s42, 1\ns_cmp_lt_u32 s42, 7\ns_cbranch_scc1 L_slow2')
    a('v_add_f32 v18, v18, v19')
    allred('v_add_f32', 'v18', 'v19')
    rnd('v18'); a('v_add_f32 v18, v18, v159'); rnd('v18')
    a('v_readfirstlane_b32 s41, v18\ns_mov_b32 m0, s40\nv_writelane_b32 v41, s41, m0')
    a('s_cmp_lg_u64 s[38:39], 0\ns_cbranch_scc1 L_slow1\ns_branch L_out')
    a('L_code_end:')
    body = a.finish()
    out = HEADER + f'; @launch grid=(256,1,1) block=(512,1,1) lds={LDS_BYTES}\n'
    out += f'.amdgcn_target "amdgcn-amd-amdhsa--gfx950"\n.text\n.globl {NAME}_kernel\n.p2align 8\n.type {NAME}_kernel,@function\n'
    out += body
    out += f'''.section .rodata,"a"
.p2align 6
.amdhsa_kernel {NAME}_kernel
  .amdhsa_next_free_vgpr 256
  .amdhsa_next_free_sgpr 102
  .amdhsa_accum_offset 256
  .amdhsa_group_segment_fixed_size 0
  .amdhsa_kernarg_size 120
  .amdhsa_user_sgpr_count 2
  .amdhsa_user_sgpr_kernarg_segment_ptr 1
  .amdhsa_system_sgpr_workgroup_id_x 1
  .amdhsa_float_denorm_mode_32 3
.end_amdhsa_kernel
'''
    return out

if __name__ == '__main__':
    kw = {}
    for arg in sys.argv[2:]:
        k, v = arg.split('=')
        kw[k] = eval(v)
    open(sys.argv[1], 'w').write(gen(**kw))
```

```python
import sys, struct
from asmfw import Asm

NAME = 'adaLN_cond__gqa_block_cached__mixer_token_mlp__decode'

def f2u(x): return struct.unpack('<I', struct.pack('<f', x))[0]
LOG2E = 1.4426950408889634
SCALE = 128 ** -0.5

P1 = 0x10000; P2 = 0x20000; P3 = 0x30000; ML = 0x40000; ST0 = 0x50000; ST = 0x52000; STB = 0x1000
RK = 0x60000; TAB = 0x68000; P4 = 0x80000; OB = 0x100000; DBG = 0x200000
RS = 6; RINGW = RS * 4096
WB = 4 * RINGW; WA = WB + 32768; MISC = WA + 16384
SC = 0; QL = 2048; HV = 4352; OV = 4864; MLW = 5376; CNT = 5760; WL = 5888; YT = 6144; SM = 6656
LDS_BYTES = 163840
C_W1, C_WQ, C_H, C_Q, C_M2, C_ML, C_RED, C_WO, C_WOF, C_TICK, C_T1, C_T2, C_PUB, C_VI, C_WL, C_RANK, C_YT, C_TAB, C_OV, C_MD, C_SM, C_RANK2 = range(22)

HEADER = open('cdna_kernels/' + NAME + '.s.ref').read().split('; Override launch')[0]

def gen(F=6, NQ=52, nt=' nt', wnt=' nt', stamps=False, warm=True, spin=1 << 18, psleep=16, xprio=3, aprio=1,
        T1=26, T2=46, h1sleep=6, h1thr=48, fsleep=1, Fs=None, TK=16, XTRA=2, h1m=1, NZ=16, AF=7, MLP_AT=7, dual=True, pretouch=1, RX=0, p3sleep=2, pd2=2, ps2=1, TR=2, T2AT=0, a1w=True, SPL=0, smp4=1, smp3=0, su=False, tlb=0):
    a = Asm()
    lite = stamps == 'lite'
    if lite: stamps = False
    SRD_K, SRD_V, SRD_WS, SRD_WQ, SRD_WO, SRD_WM = 's[4:7]', 's[8:11]', 's[12:15]', 's[16:19]', 's[20:23]', 's[24:27]'
    sX, sW1, sB1, sW2, sB2, sC, sOUT, sWS = 's[36:37]', 's[48:49]', 's[50:51]', 's[52:53]', 's[54:55]', 's[56:57]', 's[60:61]', 's[64:65]'
    sE, sI, sBase, sSpin = 's66', 's67', 's68', 's69'
    sT, sT2, sT4, sSelA, sSelB, sPi = 's86', 's87', 's88', 's89', 's90', 's91'
    MASK = lambda i: f's[{70+2*i}:{71+2*i}]'
    SOFF = lambda i: f's{92+i}'
    vM, vOne, vHi = 'v2', 'v3', 'v247'
    V = lambda i, n=1: f'v{i}' if n == 1 else f'v[{i}:{i+n-1}]'

    def stamp(i):
        if stamps:
            a(f's_memrealtime s[34:35]\ns_waitcnt lgkmcnt(0)\nv_writelane_b32 v255, s34, {i}')
    def setexec(mask):
        if mask == -1: a('s_mov_b64 exec, -1')
        elif mask < 64: a(f's_mov_b64 exec, {mask}')
        else: a(f's_mov_b32 exec_lo, {mask & 0xffffffff:#x}\ns_mov_b32 exec_hi, {mask >> 32:#x}')
    def arrive(c):
        a(f's_mov_b64 exec, 1\nds_add_u32 {vM}, {vOne} offset:{CNT + 4*c}\ns_mov_b64 exec, -1')
    def await_(c, n, tmp, sleep=1):
        L = a.lab('W'); D = a.lab('WD')
        a(f's_mov_b32 {sSpin}, {spin}')
        a(f'{L}:\nds_read_b32 {tmp}, {vM} offset:{CNT + 4*c}\ns_waitcnt lgkmcnt(0)\nv_readfirstlane_b32 s30, {tmp}')
        a(f's_cmp_ge_u32 s30, {n}\ns_cbranch_scc1 {D}')
        if sleep: a(f's_sleep {sleep}')
        a(f's_sub_u32 {sSpin}, {sSpin}, 1\ns_cbranch_scc0 {L}\n{D}:')
    def rnd(r): a(f'v_cvt_pk_bf16_f32 {r}, 0, {r}')
    def tag(r): a(f'v_and_or_b32 {r}, {r}, {vHi}, {sT}')
    DPP = {1: 'quad_perm:[1,0,3,2]', 2: 'quad_perm:[2,3,0,1]', 'hm': 'row_half_mirror', 'm': 'row_mirror', 'r4': 'row_ror:4', 'r8': 'row_ror:8'}
    def allred(op, r, t, steps=(1, 2, 'hm', 'm', 16, 32)):
        for s in steps:
            if s in DPP: a(f'{op}_dpp {r}, {r}, {r} {DPP[s]} row_mask:0xf bank_mask:0xf')
            else: a(f'v_mov_b32 {t}, {r}\nv_permlane{s}_swap_b32 {r}, {t}\n{op} {r}, {r}, {t}')
    def scat4(b):
        a(f'v_permlane32_swap_b32 v{b}, v{b+2}\nv_permlane32_swap_b32 v{b+1}, v{b+3}\nv_pk_add_f32 {V(b,2)}, {V(b,2)}, {V(b+2,2)}')
        a(f'v_permlane16_swap_b32 v{b}, v{b+1}\nv_add_f32 v{b}, v{b}, v{b+1}')
    def setup_tags():
        a(f's_add_u32 {sE}, {sE}, 1\ns_and_b32 {sT}, {sE}, 0xff\ns_mul_i32 {sT2}, {sT}, 0x101\ns_mul_i32 {sT4}, {sT}, 0x1010101')
        a(f's_mov_b32 {sSelA}, 0x0c0c0400\ns_mov_b32 {sSelB}, 0x04000c0c\nv_mov_b32 {vHi}, 0xffffff00')
        a(f's_and_b32 {sPi}, s2, 0xf8')
    def gather(loads, tmp, sleep=0, full=False, thr=None, alt=None):
        L = a.lab('G'); D = a.lab('GD')
        his = []
        for d, w, vo, off in loads:
            if off & ~0xfff not in his: his.append(off & ~0xfff)
        for i, h in enumerate(his): a(f's_mov_b32 {SOFF(i)}, {h:#x}')
        if alt: a(f's_mov_b32 {SOFF(1)}, {his[0] + alt:#x}')
        def ld(d, w, vo, off):
            sfx = {1: 'dword', 2: 'dwordx2', 4: 'dwordx4'}[w]
            a(f'buffer_load_{sfx} {V(d, w)}, {vo}, {SRD_WS}, {SOFF(his.index(off & ~0xfff))} offen offset:{off & 0xfff} sc1')
        for x in loads: ld(*x)
        a(f's_mov_b32 {sSpin}, {spin}')
        a(f'{L}:')
        n = len(loads)
        for i, (d, w, vo, off) in enumerate(loads):
            a(f's_waitcnt vmcnt({n-1-i})')
            if w == 1: a(f'v_and_b32 {tmp}, 0xff, {V(d)}\nv_cmp_ne_u32 {MASK(i)}, {sT}, {tmp}')
            elif full:
                t2 = f'v{int(tmp[1:]) + 1}'
                a(f'v_perm_b32 {tmp}, {V(d+1)}, {V(d)}, {sSelA}\nv_perm_b32 {t2}, {V(d+3)}, {V(d+2)}, {sSelB}\nv_or_b32 {tmp}, {tmp}, {t2}')
                if full == 2: a(f'v_xor_b32 {tmp}, {sT4}, {tmp}\nv_and_b32 {tmp}, 0x03030303, {tmp}\nv_cmp_ne_u32 {MASK(i)}, 0, {tmp}')
                else: a(f'v_cmp_ne_u32 {MASK(i)}, {sT4}, {tmp}')
            else: a(f'v_perm_b32 {tmp}, {V(d+w-1)}, {V(d)}, {sSelA}\nv_cmp_ne_u32 {MASK(i)}, {sT2}, {tmp}')
        a(f's_or_b64 s[28:29], {MASK(0)}, {MASK(1 if n > 1 else 0)}')
        for i in range(2, n): a(f's_or_b64 s[28:29], s[28:29], {MASK(i)}')
        a(f's_cbranch_scc0 {D}')
        a(f's_sub_u32 {sSpin}, {sSpin}, 1\ns_cbranch_scc1 {D}')
        if sleep and thr is not None:
            S = a.lab('GN')
            a(f's_bcnt1_i32_b64 s30, {MASK(0)}')
            for i in range(1, n): a(f's_bcnt1_i32_b64 s31, {MASK(i)}\ns_add_u32 s30, s30, s31')
            a(f's_cmp_le_u32 s30, {thr}\ns_cbranch_scc1 {S}\ns_sleep {sleep}\n{S}:')
        elif sleep: a(f's_sleep {sleep}')
        if alt:
            a(f's_and_b32 s30, {sSpin}, 15\ns_cselect_b32 {SOFF(0)}, {his[0]:#x}, {SOFF(1)}')
        for i, x in enumerate(loads):
            S = a.lab('GS')
            a(f's_wqm_b64 exec, {MASK(i)}\ns_cbranch_execz {S}')
            ld(*x)
            a(f'{S}:')
        a(f's_mov_b64 exec, -1\ns_waitcnt vmcnt(0)\ns_branch {L}\n{D}:')
    def gather_p(loads, tmp, depth=3, sleep=1, full=False, thr=None, bsleep=0):
        L = a.lab('G'); D = a.lab('GD')
        his = []
        for d, w, vo, off in loads:
            if off & ~0xfff not in his: his.append(off & ~0xfff)
        for i, h in enumerate(his): a(f's_mov_b32 {SOFF(i)}, {h:#x}')
        n = len(loads)
        def ld(d, w, vo, off):
            a(f'buffer_load_dwordx4 {V(d, w)}, {vo}, {SRD_WS}, {SOFF(his.index(off & ~0xfff))} offen offset:{off & 0xfff} sc1')
        for x in loads: ld(*x)
        a(f's_mov_b32 {sSpin}, {spin}\ns_waitcnt vmcnt(0)')
        a(f'{L}:')
        for i, (d, w, vo, off) in enumerate(loads):
            if full:
                t2 = f'v{int(tmp[1:]) + 1}'
                a(f'v_perm_b32 {tmp}, {V(d+1)}, {V(d)}, {sSelA}\nv_perm_b32 {t2}, {V(d+3)}, {V(d+2)}, {sSelB}\nv_or_b32 {tmp}, {tmp}, {t2}')
                a(f'v_cmp_ne_u32 {MASK(i)}, {sT4}, {tmp}')
            else: a(f'v_perm_b32 {tmp}, {V(d+w-1)}, {V(d)}, {sSelA}\nv_cmp_ne_u32 {MASK(i)}, {sT2}, {tmp}')
        a(f's_or_b64 s[28:29], {MASK(0)}, {MASK(1 if n > 1 else 0)}')
        for i in range(2, n): a(f's_or_b64 s[28:29], s[28:29], {MASK(i)}')
        a(f's_cbranch_scc0 {D}')
        a(f's_sub_u32 {sSpin}, {sSpin}, 1\ns_cbranch_scc1 {D}')
        if thr is not None:
            S = a.lab('GN')
            a(f's_bcnt1_i32_b64 s30, {MASK(0)}')
            for i in range(1, n): a(f's_bcnt1_i32_b64 s31, {MASK(i)}\ns_add_u32 s30, s30, s31')
            a(f's_cmp_le_u32 s30, {thr}\ns_cbranch_scc1 {S}\ns_sleep {bsleep}\n{S}:')
        for i, x in enumerate(loads):
            a(f's_or_b32 s{70+2*i}, s{70+2*i}, 1\ns_wqm_b64 exec, {MASK(i)}')
            ld(*x)
        a('s_mov_b64 exec, -1')
        if sleep: a(f's_sleep {sleep}')
        a(f's_waitcnt vmcnt({n*depth})\ns_branch {L}\n{D}:\ns_waitcnt vmcnt(0)')
    def w_voff(dst, stride, t):
        a(f'v_lshrrev_b32 {t}, 3, v1\nv_mul_u32_u24 {dst}, {stride}, {t}')
        a(f'v_lshrrev_b32 {t}, 4, v1\nv_lshlrev_b32 {t}, 1, {t}\nv_xor_b32 {t}, {t}, v1\nv_and_b32 {t}, 7, {t}\nv_lshl_add_u32 {dst}, {t}, 4, {dst}')
    def w_traddr(dst, base, t, t2):
        a(f'v_lshrrev_b32 {t}, 2, v1\nv_lshlrev_b32 {dst}, 7, {t}')
        a(f'v_and_b32 {t}, 6, {t}')
        a(f'v_lshrrev_b32 {t2}, 1, v1\nv_and_b32 {t2}, 1, {t2}\nv_lshl_add_u32 {t2}, {sI}, 1, {t2}')
        a(f'v_xor_b32 {t}, {t}, {t2}\nv_lshl_add_u32 {dst}, {t}, 4, {dst}')
        a(f'v_and_b32 {t}, 1, v1\nv_lshl_add_u32 {dst}, {t}, 3, {dst}\nv_add_u32 {dst}, {base}, {dst}')
    def w_read(areg, addr, nks):
        for ks in range(nks):
            a(f'ds_read_b64_tr_b16 {V(areg+4*ks, 2)}, {addr} offset:{ks*4096}')
            a(f'ds_read_b64_tr_b16 {V(areg+4*ks+2, 2)}, {addr} offset:{ks*4096+2048}')
    def b_read(breg, addr, nks):
        for ks in range(nks):
            a(f'ds_read2_b64 {V(breg+4*ks, 4)}, {addr} offset0:{8*ks} offset1:{8*ks+4}')
    def w_mfma(d, areg, breg, nks, staged=False):
        for ks in range(nks):
            if staged: a(f's_waitcnt lgkmcnt({nks-1-ks})')
            a(f'v_mfma_f32_16x16x32_bf16 {V(d,4)}, {V(areg+4*ks,4)}, {V(breg+4*ks,4)}, {"0" if ks == 0 else V(d,4)}')
    def ln_scale(mean, var):
        rnd(var); rnd(mean)
        a(f'v_add_f32 {var}, {f2u(1e-5):#x}, {var}'); rnd(var)
        a(f'v_sqrt_f32 {var}, {var}'); rnd(var)
        a(f'v_rcp_f32 {var}, {var}')
    E0 = 101
    c0 = -2 * LOG2E * 0.7978845608028654; c1 = c0 * 0.044715
    def gelu_units(units, U, Z, NB):
        for s0 in range(0, len(units), NB):
            blk = list(enumerate(units[s0:s0+NB]))
            R2 = lambda base, k: V(base + 2*k, 2)
            def both(fn):
                for k, _ in blk:
                    fn(2*k); fn(2*k+1)
            for k, (first, last) in blk: a(first(R2(U, k)))
            for k, _ in blk: a(f'v_pk_mul_f32 {R2(Z,k)}, {R2(U,k)}, {R2(U,k)}')
            for k, _ in blk: a(f'v_pk_fma_f32 {R2(Z,k)}, {R2(Z,k)}, v[44:45], v[44:45] op_sel:[0,0,1] op_sel_hi:[1,0,1]')
            for k, _ in blk: a(f'v_pk_mul_f32 {R2(Z,k)}, {R2(Z,k)}, {R2(U,k)}')
            both(lambda r: a(f'v_exp_f32 {V(Z+r)}, {V(Z+r)}'))
            for k, _ in blk: a(f'v_pk_add_f32 {R2(Z,k)}, {R2(Z,k)}, 1.0 op_sel_hi:[1,0]')
            both(lambda r: a(f'v_rcp_f32 {V(Z+r)}, {V(Z+r)}'))
            for k, _ in blk: a(f'v_pk_mul_f32 {R2(U,k)}, {R2(U,k)}, {R2(Z,k)}')
            for k, (first, last) in blk: a(last(R2(U, k)))

    def st_reduce(b):
        scat4(b)
        allred('v_add_f32', f'v{b}', None, (2, 'r4', 'r8'))
    def st_publish(base):
        scat4(20)
        allred('v_add_f32', 'v20', None, (1, 2, 'hm'))
        tag('v20')
        setexec(0x0101010101010101)
        if dual: a(f'buffer_store_dword v20, v31, {SRD_WS}, {base} offen')
        a(f's_add_u32 {base}, {base}, {STB}\nbuffer_store_dword v20, v31, {SRD_WS}, {base} offen sc1')
        setexec(-1)
    def red_setup():
        a(f'v_lshrrev_b32 v9, 4, v1\nv_and_b32 v13, 7, v1\nv_lshl_add_u32 v30, v13, 2, v9\nv_lshl_add_u32 v30, {sPi}, 2, v30\nv_lshlrev_b32 v29, 1, v30\nv_lshlrev_b32 v30, 2, v30')
        a(f'v_lshrrev_b32 v11, 3, v1\nv_and_b32 v11, 1, v11\nv_cmp_eq_u32 s[100:101], 1, v11\nv_lshl_add_u32 v28, v11, 15, v30')
        a(f'v_lshlrev_b32 v31, 4, v11\nv_lshl_add_u32 v31, v9, 2, v31\nv_lshl_add_u32 v31, {sPi}, 2, v31\nv_lshlrev_b32 v5, 4, v1')
        a(f'v_lshl_add_u32 v6, v1, 4, {vM}')

    a(f'{NAME}_kernel:')
    a('s_cmp_ge_u32 s2, 256\ns_cbranch_scc1 L_end')
    if lite: a('s_memrealtime s[34:35]')
    def sus(k):
        if su: a(f's_memrealtime s[{70+2*k}:{71+2*k}]')
    sus(0)
    if warm:
        a('s_getpc_b64 s[32:33]\nL_pc:')
        if warm == 2: a('s_lshl_b32 s30, s2, 3\ns_and_b32 s30, s30, 0x1c0\nv_xor_b32 v4, s30, v0\nv_cmp_gt_u32 vcc, 64, v4\ns_mov_b64 exec, vcc')
        a(f'v_lshlrev_b32 v4, 7, v0\nv_cmp_gt_u32 vcc, L_code_end-L_pc-4, v4\ns_and_saveexec_b64 s[28:29], vcc\ns_cbranch_execz L_nowarm')
        a('global_load_dword v254, v4, s[32:33]\nL_nowarm:\ns_mov_b64 exec, -1')
    a('s_load_dwordx16 s[36:51], s[0:1], 0\ns_load_dwordx8 s[52:59], s[0:1], 64\ns_load_dwordx4 s[60:63], s[0:1], 96\ns_load_dwordx2 s[64:65], s[0:1], 112')
    a('v_lshrrev_b32 v1, 6, v0\nv_readfirstlane_b32 s3, v1\nv_and_b32 v1, 63, v0')
    a(f'v_mov_b32 {vM}, {MISC}\nv_mov_b32 {vOne}, 1')
    if stamps: a('v_mov_b32 v255, 0')
    a(f's_and_b32 {sI}, s3, 3')
    a('s_cmp_lg_u32 s3, 7\ns_cbranch_scc1 L_noinit')
    a(f'v_lshl_add_u32 v27, v1, 2, {vM}\nv_mov_b32 v28, 0')
    setexec(0xffffffff); a(f'ds_write_b32 v27, v28 offset:{CNT}'); setexec(-1)
    a('L_noinit:')
    a('s_mov_b32 s6, 0x4000000\ns_mov_b32 s7, 0x20000\ns_mov_b32 s10, 0x4000000\ns_mov_b32 s11, 0x20000')
    a('s_mov_b32 s14, 0x10000000\ns_mov_b32 s15, 0x20000\ns_mov_b32 s18, 0x800000\ns_mov_b32 s19, 0x20000')
    a('s_mov_b32 s22, 0x800000\ns_mov_b32 s23, 0x20000\ns_mov_b32 s26, 0xc00000\ns_mov_b32 s27, 0x20000')
    w_voff('v236', 12288, 'v26')
    sus(1)
    a('s_waitcnt lgkmcnt(0)')
    sus(2)
    a(f's_load_dword {sE}, {sWS}, 12')
    for srd, p in ((24, 58), (16, 42), (4, 38), (8, 40), (12, 64), (20, 44)):
        a(f's_mov_b32 s{srd}, s{p}\ns_and_b32 s{srd+1}, s{p+1}, 0xffff')
    sus(3)
    a('s_barrier')
    sus(4)
    stamp(0)
    a('s_cmp_ge_u32 s3, 4\ns_cbranch_scc1 L_X')

    VOFF, KA, VA, Q, S, H = 4, 8, 16, 32, 64, 96
    PP, D1, D2, VS = 32, 96, 128, 160
    vMax, vSum = 'v224', 'v225'
    if aprio: a(f's_setprio {aprio}')
    seq = [('w1', i) for i in range(4)] + [('wq', i) for i in range(8)]
    seq += [('kv', i) for i in range(128)] + [('wo', k) for k in range(8)]
    slot_of = lambda gi: gi % RS if gi < 28 else gi - 28
    pos = {e: n for n, e in enumerate(seq)}
    NS = len(seq)
    Fbase = (lambda n: [f for (n0, f) in Fs if n0 <= n][-1]) if Fs else (lambda n: F)
    Fn = Fbase
    FI = Fn(0)
    def landed_at(k):
        n = k + 1
        while n < FI or n - Fn(n) < k: n += 1
        return n
    a(f's_and_b32 s30, s2, 7\ns_lshl_b32 s30, s30, 2\ns_add_u32 s30, s30, {sI}\ns_mul_i32 s46, s30, {32*12288}\ns_lshr_b32 s30, s2, 3\ns_lshl_b32 s30, s30, 7\ns_add_u32 s46, s46, s30')
    a(f's_lshl_b32 s58, {sI}, 12\ns_lshl_b32 s59, {sI}, 13')
    vorder = []
    for u in range(4): vorder += [4*u, 4*u+2, 4*u+1, 4*u+3]
    def issue(n):
        kind, i = seq[n]
        if kind == 'kv':
            gi, j = i // 4, i % 4
            if j == 0 or seq[n-1][0] != 'kv':
                grp = gi if gi < 16 else vorder[gi - 16]
                a(f's_add_u32 s39, {sBase}, {grp*16384}\ns_add_u32 m0, s38, {slot_of(gi)*4096}')
            a(f'buffer_load_dwordx4 v{VOFF+j}, {SRD_K if gi < 16 else SRD_V}, s39 offen offset:{j*1024}{nt} lds')
        elif kind == 'wo':
            a(f's_add_u32 s32, s44, {i*4096}\ns_add_u32 m0, s59, {WB + i*1024}')
            a(f'buffer_load_dwordx4 v{238 + i % 4}, {SRD_WO}, s32 offen{wnt} lds')
        else:
            srd, vo, so, stride, lb, sl = {'w1': (SRD_WM, 'v236', 's46', 12288, WA, 's58'), 'wq': (SRD_WQ, 'v237', 's47', 8192, WB, 's59')}[kind]
            a(f's_add_u32 s32, {so}, {8*i*stride}\ns_add_u32 m0, {sl}, {lb + i*1024}')
            a(f'buffer_load_dwordx4 {vo}, {srd}, s32 offen{wnt} lds')
    sus(5)
    for n in range(4): issue(n)
    sus(6)
    w_voff('v237', 8192, 'v26')
    a(f's_and_b32 s30, s2, 3\ns_lshl_b32 s30, s30, 2\ns_add_u32 s30, s30, {sI}\ns_lshl_b32 s47, s30, 19')
    a('s_lshr_b32 s30, s2, 2\ns_lshl_b32 s30, s30, 7\ns_add_u32 s47, s47, s30')
    for n in range(4, FI): issue(n)
    sus(7)
    stamp(16)
    a('v_lshrrev_b32 v24, 4, v1\nv_and_b32 v25, 15, v1')
    a('v_lshlrev_b32 v26, 1, v24\nv_xor_b32 v26, v26, v25\nv_lshlrev_b32 v26, 4, v26\nv_lshl_add_u32 v4, v24, 8, v26')
    for i in range(1, 4): a(f'v_xor_b32 v{VOFF+i}, {(8*(i&1) + (i>>1)) << 4:#x}, v4')
    a(f's_lshl_b32 {sBase}, s2, 18\ns_lshl_b32 s30, s3, 12\ns_add_u32 {sBase}, {sBase}, s30')
    a(f's_mul_i32 s38, s3, {RINGW}')
    def t_setup():
        a('v_and_b32 v26, 7, v25\nv_lshlrev_b32 v26, 1, v26\nv_lshrrev_b32 v27, 3, v25\nv_or_b32 v26, v26, v27')
        a('v_lshrrev_b32 v27, 1, v24\nv_xor_b32 v26, v26, v27\nv_lshlrev_b32 v26, 4, v26\nv_lshl_add_u32 v26, v25, 8, v26')
        a(f'v_and_b32 v27, 1, v24\nv_lshl_add_u32 v26, v27, 12, v26\nv_add_u32 v{KA}, s38, v26')
        for j in range(1, 8): a(f'v_xor_b32 v{KA+j}, {j << 5:#x}, v{KA}')
        a('v_lshrrev_b32 v27, 2, v1')
        a('v_and_b32 v26, 7, v27\nv_lshlrev_b32 v26, 1, v26\nv_lshrrev_b32 v28, 3, v27\nv_or_b32 v26, v26, v28')
        a('v_lshrrev_b32 v28, 1, v1\nv_and_b32 v28, 1, v28\nv_xor_b32 v26, v26, v28\nv_lshlrev_b32 v26, 4, v26\nv_lshl_add_u32 v26, v27, 8, v26')
        a(f'v_and_b32 v28, 1, v1\nv_lshl_add_u32 v26, v28, 3, v26\nv_add_u32 v{VA}, s38, v26')
        for t in range(1, 8): a(f'v_xor_b32 v{VA+t}, {t << 5:#x}, v{VA}')
    def t_setup2():
        if su:
            a('s_memrealtime s[92:93]\ns_waitcnt lgkmcnt(0)\nv_mov_b32 v40, 0')
            for k in range(8): a(f'v_writelane_b32 v40, s{70+2*k}, {k}')
            a(f'v_writelane_b32 v40, s92, 8\ns_lshl_b32 s30, s2, 10\ns_add_u32 s30, s30, {DBG + 0x10000}\nv_lshlrev_b32 v41, 2, v0')
            a(f'buffer_store_dword v40, v41, {SRD_WS}, s30 offen')
        for r in range(Q, Q + 32): a(f'v_mov_b32 v{r}, 0')
        a(f'v_mov_b32 {vMax}, 0xff800000\nv_mov_b32 {vSum}, 0')
        a(f's_mov_b32 s40, {f2u(SCALE):#x}\ns_mov_b32 s41, {f2u(LOG2E):#x}')
    def t_setup3():
        w_traddr('v28', 8192, 'v26', 'v27')
        a('s_lshr_b32 s42, s2, 6')
        a('v_lshrrev_b32 v26, 5, v1\nv_lshlrev_b32 v27, 1, v26\nv_xor_b32 v27, v27, v1\nv_and_b32 v27, 31, v27\nv_lshlrev_b32 v27, 4, v27\nv_lshl_add_u32 v238, v26, 11, v27')
        for i in range(1, 4): a(f'v_xor_b32 v{238+i}, {i << 6:#x}, v238')
        a('s_and_b32 s44, s2, 7\ns_lshl_b32 s44, s44, 1\ns_lshr_b32 s30, s2, 3\ns_and_b32 s30, s30, 1\ns_add_u32 s44, s44, s30\ns_lshr_b32 s30, s2, 6\ns_lshl_b32 s30, s30, 4\ns_add_u32 s44, s44, s30')
        a(f's_lshl_b32 s44, s44, 17\ns_lshl_b32 s30, {sI}, 15\ns_add_u32 s44, s44, s30\ns_bfe_u32 s30, s2, 0x20004\ns_lshl_b32 s30, s30, 9\ns_add_u32 s44, s44, s30')
        a(f'v_add_u32 v29, {2*RINGW}, v28\nv_lshl_add_u32 v30, v24, 3, {vM}\nv_lshl_add_u32 v30, s42, 9, v30\nv_lshlrev_b32 v242, 4, v24')
        a('v_and_b32 v26, 7, v1\nv_mul_u32_u24 v26, 528, v26\nv_lshl_add_u32 v26, v24, 4, v26\nv_add_u32 v31, s38, v26')
        a('s_waitcnt lgkmcnt(0)')
        setup_tags()
    def t_readK(t, h):
        def f():
            for j in range(8): a(f'ds_read_b128 {V(H+32*h+4*j,4)}, v{KA+j} offset:{((2*t) % RS)*4096}')
            a('s_waitcnt lgkmcnt(0)')
        return f
    def t_waitq():
        stamp(1)
        await_(C_Q, 4, 'v26')
        stamp(2)
        a(f'v_and_b32 v26, 7, v1\nv_mul_u32_u24 v26, 272, v26\nv_lshrrev_b32 v27, 5, v1\nv_lshl_add_u32 v26, v27, 4, v26\nv_add_u32 v26, {MISC+QL}, v26')
        setexec(0xff0000ffff0000ff)
        for j in range(8): a(f'ds_read_b128 {V(Q+4*j,4)}, v26 offset:{32*j}')
        setexec(-1)
        a('s_waitcnt lgkmcnt(0)')
    def t_qk(t, h):
        def f():
            for j in range(8):
                a(f'v_mfma_f32_16x16x32_bf16 {V(S+4*t,4)}, {V(H+32*h+4*j,4)}, {V(Q+4*j,4)}, {"0" if j == 0 else V(S+4*t,4)}')
        return f
    def t_round(t):
        def f():
            for r in range(4): rnd(V(S+4*t+r))
            for r in range(4): a(f'v_mul_f32 {V(S+4*t+r)}, s40, {V(S+4*t+r)}')
            for r in range(4): rnd(V(S+4*t+r))
            a(f'v_max3_f32 {vMax}, {vMax}, {V(S+4*t)}, {V(S+4*t+1)}\nv_max3_f32 {vMax}, {vMax}, {V(S+4*t+2)}, {V(S+4*t+3)}')
        return f
    def t_max():
        allred('v_max_f32', vMax, 'v26', ('r8', 16, 32))
        a(f'v_mul_f32 {vMax}, s41, {vMax}')
    def t_exp(t):
        def f():
            for r in range(4): a(f'v_fma_f32 {V(S+4*t+r)}, {V(S+4*t+r)}, s41, -{vMax}')
            for r in range(4): a(f'v_exp_f32 {V(S+4*t+r)}, {V(S+4*t+r)}')
            a(f'v_cvt_pk_bf16_f32 {V(PP+2*t)}, {V(S+4*t)}, {V(S+4*t+1)}\nv_cvt_pk_bf16_f32 {V(PP+2*t+1)}, {V(S+4*t+2)}, {V(S+4*t+3)}')
            a(f'v_add_f32 v26, {V(S+4*t)}, {V(S+4*t+1)}\nv_add_f32 v27, {V(S+4*t+2)}, {V(S+4*t+3)}\nv_add_f32 v26, v26, v27\nv_add_f32 {vSum}, {vSum}, v26')
        return f
    def t_ml():
        allred('v_add_f32', vSum, 'v26', ('r8', 16, 32))
        a(f'v_lshl_add_u32 v26, v1, 2, {vM}\nv_lshl_add_u32 v26, s3, 6, v26')
        setexec(0xff)
        a(f'ds_write_b32 v26, {vMax} offset:{MLW}\nds_write_b32 v26, {vSum} offset:{MLW+32}')
        arrive(C_ML)
        stamp(3)
    def readV(p, half):
        slot = slot_of(16 + 2*p + half)
        for t in range(8):
            a(f'ds_read_b64_tr_b16 {V(VS+4*t+2*half,2)}, v{VA+t} offset:{slot*4096}')
    def pv(p, staged):
        u, which = p >> 1, p & 1
        Dd = D2 if which else D1
        for t in range(8):
            if staged: a(f's_waitcnt lgkmcnt({7-t})')
            a(f'v_mfma_f32_16x16x32_bf16 {V(Dd+4*t,4)}, {V(VS+4*t,4)}, {V(PP+4*u,4)}, {"0" if u == 0 else V(Dd+4*t,4)}')
    def t_pv(p):
        def f():
            readV(p, 0); readV(p, 1); pv(p, True)
        return f
    def writeD(which):
        setexec(0xff00ff00ff00ff00 if which else 0x00ff00ff00ff00ff)
        for t in range(8):
            a(f'ds_write_b128 v31, {V((D2 if which else D1)+4*t,4)} offset:{which*4352 + 64*t}')
        setexec(-1)
    def wg_stats(head, mreg, lreg):
        a(f'v_lshl_add_u32 v27, {head}, 2, {vM}')
        for w in range(4): a(f'ds_read_b32 v{mreg+w}, v27 offset:{MLW + 64*w}')
        if lreg:
            for w in range(4): a(f'ds_read_b32 v{lreg+w}, v27 offset:{MLW + 64*w + 32}')
        a('s_waitcnt lgkmcnt(0)')
        a(f'v_max3_f32 v26, v{mreg}, v{mreg+1}, v{mreg+2}\nv_max_f32 v26, v26, v{mreg+3}'); tag('v26')
        for w in range(4): a(f'v_sub_f32 v{mreg+w}, v{mreg+w}, v26')
        for w in range(4): a(f'v_exp_f32 v{mreg+w}, v{mreg+w}')
    def t_mlpub():
        await_(C_ML, 4, 'v26')
        Ls = a.lab('MP')
        a(f's_cmp_lg_u32 s3, 0\ns_cbranch_scc1 {Ls}')
        a('v_and_b32 v72, 7, v1')
        wg_stats('v72', 64, 68)
        a(f'v_mov_b32 v76, v26\nv_mul_f32 v77, v64, v68\nv_fmac_f32 v77, v65, v69\nv_fmac_f32 v77, v66, v70\nv_fmac_f32 v77, v67, v71')
        tag('v77')
        a(f'v_mov_b32 v78, {sT}\nv_mov_b32 v79, {sT}\nv_lshlrev_b32 v72, 4, v72\ns_lshl_b32 s30, s2, 7\ns_add_u32 s30, s30, {ML}')
        setexec(0xff)
        a(f'buffer_store_dwordx4 v[76:79], v72, {SRD_WS}, s30 offen sc1')
        setexec(-1)
        a(f'{Ls}:')
    def t_fread():
        a('v_lshrrev_b32 v232, 5, v0')
        wg_stats('v232', 228, None)
        a('v_mul_u32_u24 v26, 528, v232\nv_and_b32 v27, 31, v0\nv_lshl_add_u32 v232, v27, 4, v26')
        a(f'v_add_u32 v233, {2*RINGW}, v232\nv_and_b32 v234, 15, v0\nv_lshlrev_b32 v234, 4, v234\nv_lshrrev_b32 v26, 4, v0\nv_lshl_add_u32 v234, v26, 14, v234')
        a(f's_lshr_b32 s45, s2, 6\ns_lshl_b32 s45, s45, 18\ns_and_b32 s30, s2, 63\ns_lshl_b32 s30, s30, 8\ns_add_u32 s45, s45, s30\ns_add_u32 s45, s45, {OB}')

    sched = {}
    def at(n, f): sched.setdefault(n, []).append(f)
    land = lambda t: landed_at(pos[('kv', 8*t + 7)])
    def reuse(t):
        later = [g for g in range(2*t + 2, 32) if slot_of(g) == slot_of(2*t)]
        return pos[('kv', 4*later[0])] if later else NS + 100
    at(landed_at(pos[('w1', 3)]), lambda: arrive(C_W1))
    at(landed_at(pos[('w1', 3)]) + 1, t_setup)
    at(landed_at(pos[('w1', 3)]) + 3, t_setup2)
    at(landed_at(pos[('wq', 7)]), lambda: arrive(C_WQ))
    at(landed_at(pos[('wq', 7)]) + 1, t_setup3)
    if T1: at(T1, lambda: arrive(C_T1))
    if T2: at(T2, lambda: arrive(C_T2))
    for t in range(4): at(land(t), t_readK(t, t))
    nq = pos[('kv', NQ)]
    assert nq >= land(3)
    at(nq, t_waitq)
    n = nq + 1
    free_h = {}
    for t in range(4):
        at(n, t_qk(t, t)); free_h[t] = n + 1
        at(n + 1, t_round(t))
        n += 2
    rd = {}
    for t in range(4, 8):
        rd[t] = max(free_h[t-4], land(t))
        assert rd[t] < reuse(t), (t, rd[t])
        at(rd[t], t_readK(t, t - 4))
    for t in range(4, 8):
        n = max(n, rd[t] + 1)
        at(n, t_qk(t, t - 4)); at(n + 1, t_round(t)); n += 2
    at(n, t_max); n += 1
    for t in range(8):
        at(n, t_exp(t))
        if t & 1: n += 1
    at(n, t_ml); at(n + MLP_AT, t_mlpub); at(n + MLP_AT + 4, t_fread); n += 1
    for p in range(7):
        m = max(n, land(8 + p))
        assert m < reuse(8 + p) and m < NS, (p, m)
        at(m, t_pv(p))
        n = m + 1
    at(n, lambda: writeD(0))
    NV = pos[('kv', 127)]
    at(NV + 1 - TK, lambda: arrive(C_TICK))
    def t_final():
        stamp(4)
        readV(7, 1); pv(7, True)
        writeD(1)
        arrive(C_RED)
        if not SPL: t_final2()
    def t_final2():
        await_(C_RED, 4, 'v26', sleep=0)
        for w in range(4):
            for hf in range(2):
                a(f'ds_read_b128 {V(VS+8*w+4*hf,4)}, v{232 + (w >> 1)} offset:{(w & 1)*RINGW + hf*4352}')
        for w in range(4):
            a(f's_waitcnt lgkmcnt({6-2*w})')
            sel = w & 1; fp = V(228 + (w & 2), 2)
            for h2 in range(2):
                a(f'v_pk_add_f32 {V(VS+8*w+2*h2,2)}, {V(VS+8*w+2*h2,2)}, {V(VS+8*w+4+2*h2,2)}')
            for h2 in range(2):
                if w == 0: a(f'v_pk_mul_f32 {V(24+2*h2,2)}, {V(VS+2*h2,2)}, {fp} op_sel:[0,{sel}] op_sel_hi:[1,{sel}]')
                else: a(f'v_pk_fma_f32 {V(24+2*h2,2)}, {V(VS+8*w+2*h2,2)}, {fp}, {V(24+2*h2,2)} op_sel:[0,{sel},0] op_sel_hi:[1,{sel},1]')
        for e in range(4): tag(V(24+e))
        a(f'buffer_store_dwordx4 v[24:27], v234, {SRD_WS}, s45 offen sc1')
        arrive(C_PUB)
        stamp(5)
    def draw():
        Ls = a.lab('RK')
        a(f's_cmp_lg_u32 s3, 0\ns_cbranch_scc1 {Ls}')
        a(f's_lshl_b32 s30, s42, 12\ns_add_u32 s30, s30, {RK}\nv_mov_b32 v72, 1\nv_mov_b32 v73, 0')
        setexec(1)
        a(f'buffer_atomic_add v72, v73, {SRD_WS}, s30 offen sc0 sc1')
        setexec(-1)
        a(f'{Ls}:')
    def post(c):
        Ls = a.lab('RK')
        a(f's_cmp_lg_u32 s3, 0\ns_cbranch_scc1 {Ls}')
        setexec(1)
        a(f'v_add_u32 v72, 1, v72\nds_write_b32 {vM}, v72 offset:{CNT + 4*c}')
        setexec(-1)
        a(f'{Ls}:')
    at(NV - TR - 1, draw)
    assert TR >= 0
    at(landed_at(NV - TR), lambda: post(C_RANK))
    at(max(landed_at(pos[('kv', 123)]), n), lambda: readV(7, 0))
    nowait = set(range(landed_at(NV) + 1, min(landed_at(NV) + 1 + XTRA, NS)))
    n_final = max([landed_at(NV)] + list(nowait))
    assert n_final < NS
    at(n_final, t_final)
    if SPL:
        n_final += SPL
        assert n_final < NS
        at(n_final, t_final2)
    for n in range(FI, NS):
        if n not in nowait: a(f's_waitcnt vmcnt({Fn(n)-1})')
        issue(n)
        if n % 16 == 0: stamp(18 + n // 16)
        for f in sched.get(n, []): f()
    st0 = 1 if n_final == NS - 1 else 0
    LT0, LT1, LTD = a.lab('T0'), a.lab('T1'), a.lab('TD')
    def m2_addr(k):
        a(f's_sub_u32 s43, s30, 1\ns_cmp_ge_u32 s43, 64\ns_cbranch_scc1 {LT0 if k == 0 else LT1}')
        a(f's_lshl_b32 s30, s42, 2\ns_add_u32 s30, s30, {sI}\ns_mul_i32 s46, s30, {64*12288}\ns_lshl_b32 s30, s43, 7\ns_add_u32 s46, s46, s30\ns_add_u32 s46, s46, 4096')
        d = 's44' if k == 0 else 's47'
        a(f's_lshl_b32 {d}, s42, 14\ns_lshl_b32 s30, s43, 8\ns_add_u32 {d}, {d}, s30\ns_lshl_b32 s30, {sI}, 6\ns_add_u32 {d}, {d}, s30\ns_add_u32 {d}, {d}, {P3}')
    def m2_issue(k):
        for i in range(8):
            a(f's_waitcnt vmcnt({AF-1})')
            if k == 0 and i + st0 == AF - 1: arrive(C_WO)
            if k == 0 and i == T2AT + AF - 1: post(C_RANK2)
            if k == 0 and i == T2AT: draw()
            a(f's_add_u32 s32, s46, {8*i*12288}\ns_add_u32 m0, s38, {16384 - 8192*k + i*1024}')
            a(f'buffer_load_dwordx4 v236, {SRD_WM}, s32 offen{wnt} lds')
        assert T2AT + AF - 1 <= 7
    def m2_compute(k):
        arrive(C_M2)
        await_(C_M2, 4*(k+1), 'v6', sleep=0)
        for ks in range(8):
            for hf in range(2):
                a(f'ds_read_b64_tr_b16 {V(96+4*ks+2*hf,2)}, {"v28" if ks < 4 else "v29"} offset:{((ks >> 1) & 1)*RINGW + (ks & 1)*4096 + hf*2048 + 8192*(1-k)}')
        a('s_waitcnt lgkmcnt(0)')
        w_mfma(8 + 4*k, 96, 128, 8)
        for e in range(4): tag(V(8+4*k+e))
        setexec(0x0001000100010001)
        a(f'buffer_store_dwordx4 {V(8+4*k,4)}, v242, {SRD_WS}, {"s44" if k == 0 else "s47"} offen sc1')
        setexec(-1)
    assert 2 <= AF <= 8
    await_(C_RANK, 1, 'v4', sleep=0)
    m2_addr(0)
    b_read(128, 'v30', 8)
    m2_issue(0)
    await_(C_PUB, 4, 'v6', sleep=0)
    await_(C_RANK2, 1, 'v4', sleep=0)
    m2_addr(1)
    m2_issue(1)
    arrive(C_MD)
    m2_compute(0)
    a('s_waitcnt vmcnt(1)')
    m2_compute(1)
    a(f's_branch {LTD}\n{LT1}:')
    arrive(C_MD)
    a('s_waitcnt vmcnt(0)')
    m2_compute(0)
    a(f's_branch {LTD}\n{LT0}:')
    arrive(C_MD)
    a(f's_waitcnt vmcnt({st0})')
    arrive(C_WO)
    a(f'{LTD}:')
    stamp(8)
    a(f's_and_b32 s30, s2, 7\ns_cmp_lg_u32 s30, {RX}\ns_cbranch_scc1 L_fin2')
    a('s_cmp_lg_u32 s3, 1\ns_cbranch_scc1 L_fin2')
    G = 100
    red_setup()
    if a1w: await_(C_OV, 4, 'v12', sleep=1)
    a(f's_mov_b32 s40, {ST0}\ns_mov_b32 s41, {ST}\ns_lshl_b32 s42, {sPi}, 7\ns_add_u32 s42, s42, {TAB}')
    a(f'buffer_load_dword v120, v5, {SRD_WS}, s40 offen sc1\nbuffer_load_dword v121, v5, {SRD_WS}, s41 offen sc1\nbuffer_load_dword v122, v5, {SRD_WS}, s42 offen sc1')
    if pretouch == 2:
        a(f's_mov_b32 s42, {P4}\nv_lshlrev_b32 v12, 7, v1\nv_lshl_add_u32 v12, {sPi}, 10, v12\nbuffer_load_dword v123, v12, {SRD_WS}, s42 offen sc1')
    l3 = [(G + k, 1, 'v28', P3 + (k % 2)*16384 + (k // 2)*4096) for k in range(8)]
    if smp3: gather(l3[8-smp3:], 'v26', sleep=p3sleep)
    gather(l3[:8-smp3], 'v26', sleep=p3sleep)
    for j in range(4): a(f'v_add_f32 v{152+j}, v{G+2*j}, v{G+2*j+1}')
    for j in range(4): allred('v_add_f32', f'v{152+j}', None, ('r8',))
    for j in range(4): rnd(f'v{152+j}')
    a('v_add_f32 v154, 1.0, v154'); rnd('v154')
    a(f'ds_write_b128 v6, v[152:155] offset:{SM}')
    arrive(C_SM)
    a('v_cndmask_b32 v157, v154, v153, s[100:101]')
    a('v_cndmask_b32 v16, 1.0, v153, s[100:101]\nv_mul_f32 v20, v157, v16\nv_mul_f32 v21, v157, v154\nv_cndmask_b32 v22, v153, 0, s[100:101]\nv_mov_b32 v23, 0')
    a(f's_mov_b32 s41, {ST0}')
    st_publish('s41')
    stamp(10)
    gather([(G + 4, 4, 'v5', ST0 + (0 if dual else STB))], 'v26', full=True, sleep=2, alt=STB if dual else None)
    st_reduce(G + 4)
    a(f'v_and_b32 v13, 1, v1\nv_lshlrev_b32 v13, 4, v13\nv_lshl_add_u32 v13, v9, 2, v13\nv_add_u32 v13, {vM}, v13')
    setexec(0x0003000300030003)
    a(f'ds_write_b32 v13, v{G+4} offset:{SM + 1024}')
    arrive(C_TAB)
    stamp(11)
    a('s_branch L_fin2')

    a('L_X:')
    if xprio: a(f's_setprio {xprio}')
    XA, XB, XD, G = 32, 64, 96, 100
    a('v_and_b32 v10, 255, v0')
    a(f'v_lshlrev_b32 v11, 3, v10\nglobal_load_dwordx2 v[12:13], v11, {sC}')
    a(f'v_lshlrev_b32 v11, 5, v1\nglobal_load_dwordx4 v[16:19], v11, {sX}\nglobal_load_dwordx4 v[20:23], v11, {sX} offset:16')
    a('s_and_b32 s42, s2, 3\ns_lshr_b32 s43, s2, 2\ns_and_b32 s44, s2, 7\ns_lshr_b32 s45, s2, 3')
    a('v_lshrrev_b32 v9, 4, v1\nv_and_b32 v15, 15, v1')
    a(f'v_lshl_add_u32 v28, v15, 2, v9\nv_lshl_add_u32 v28, {sI}, 6, v28')
    a('v_lshl_add_u32 v11, s42, 8, v28\nv_lshlrev_b32 v11, 1, v11\nv_mov_b32 v14, 0')
    a(f'global_load_short_d16_hi v14, v11, {sX}')
    if tlb:
        Lt = a.lab('TL')
        a(f's_cmp_lg_u32 {sI}, 1\ns_cbranch_scc1 {Lt}')
        a('s_lshl_b32 s30, s2, 18\nv_mov_b32 v11, 0\ns_lshr_b32 s31, s2, 6\ns_lshl_b32 s32, s31, 21\ns_mul_i32 s31, s31, 0x300000\nv_lshlrev_b32 v24, 20, v1')
        setexec(1)
        a(f'buffer_load_dword v250, v11, {SRD_K}, s30 offen nt\nbuffer_load_dword v251, v11, {SRD_V}, s30 offen nt\nbuffer_load_dword v252, v11, {SRD_WO}, s32 offen nt')
        setexec(7)
        a(f'buffer_load_dword v253, v24, {SRD_WM}, s31 offen nt')
        setexec(-1)
        a(f'{Lt}:')
    Lz0 = a.lab('RZ')
    a(f's_and_b32 s30, s2, 63\ns_add_u32 s30, s30, {sI}\ns_cmp_lg_u32 s30, 0\ns_cbranch_scc1 {Lz0}')
    a(f's_lshl_b32 s30, s2, 6\ns_add_u32 s30, s30, {RK}\nv_lshlrev_b32 v11, 2, v1\nv_mov_b32 v24, 0')
    setexec(0xffffffff)
    a(f'buffer_store_dword v24, v11, {SRD_WS}, s30 offen sc1')
    setexec(-1)
    a(f's_waitcnt vmcnt(0)\n{Lz0}:')
    stamp(17)
    w_traddr('v6', WA, 'v11', 'v24')
    a(f'v_add_u32 v7, {(WB - WA) & 0xffffffff:#x}, v6')
    a(f'v_lshl_add_u32 v8, v9, 3, {vM}\nv_lshlrev_b32 v29, 4, v9')
    a('s_waitcnt vmcnt(3) lgkmcnt(0)')
    stamp(20)
    a(f's_mov_b32 s30, {f2u(-LOG2E):#x}')
    a('v_lshlrev_b32 v24, 16, v12\nv_and_b32 v25, 0xffff0000, v12\nv_lshlrev_b32 v26, 16, v13\nv_and_b32 v27, 0xffff0000, v13')
    for i in range(4): a(f'v_mul_f32 v{100+i}, s30, v{24+i}')
    for i in range(4): a(f'v_exp_f32 v{100+i}, v{100+i}')
    for i in range(4): a(f'v_add_f32 v{100+i}, 1.0, v{100+i}')
    for i in range(4): a(f'v_rcp_f32 v{100+i}, v{100+i}')
    for i in range(4): a(f'v_mul_f32 v{24+i}, v{24+i}, v{100+i}')
    a('v_cvt_pk_bf16_f32 v12, v24, v25\nv_cvt_pk_bf16_f32 v13, v26, v27')
    a(f'v_lshl_add_u32 v11, v10, 3, {vM}\nds_write_b64 v11, v[12:13] offset:{SC}')
    arrive(C_W1)
    setup_tags()
    a(f's_lshl_b32 s46, s44, 13\ns_lshl_b32 s30, s45, 8\ns_add_u32 s46, s46, s30\ns_lshl_b32 s30, {sI}, 6\ns_add_u32 s46, s46, s30\ns_add_u32 s46, s46, {P1}')
    stamp(1)
    await_(C_W1, 8, 'v11', sleep=0)
    stamp(22)
    w_read(XA, 'v6', 4)
    a(f'v_lshl_add_u32 v11, s44, 8, v8')
    b_read(XB, 'v11', 4)
    def publish(s_off, fine=False):
        for e in range(4):
            if fine: a(f'v_bfi_b32 {V(XD+e)}, 3, {sT}, {V(XD+e)}')
            else: tag(V(XD+e))
        setexec(0x0001000100010001)
        a(f'buffer_store_dwordx4 {V(XD,4)}, v29, {SRD_WS}, {s_off} offen sc1')
        setexec(-1)
    w_mfma(XD, XA, XB, 4, staged=True)
    publish('s46', True)
    stamp(2)
    a('s_waitcnt vmcnt(1)')
    for i in range(8):
        a(f'v_lshlrev_b32 v{100+2*i}, 16, v{16+i}\nv_and_b32 v{101+2*i}, 0xffff0000, v{16+i}')
    a('v_add_f32 v16, v100, v101')
    for i in range(2, 16): a(f'v_add_f32 v16, v16, v{100+i}')
    allred('v_add_f32', 'v16', 'v17')
    a(f'v_mul_f32 v16, {f2u(1/1024):#x}, v16\nv_mov_b32 v18, 0')
    for i in range(16): a(f'v_sub_f32 v17, v{100+i}, v16\nv_fmac_f32 v18, v17, v17')
    allred('v_add_f32', 'v18', 'v17')
    a(f'v_mul_f32 v18, {f2u(1/1024):#x}, v18')
    ln_scale('v16', 'v18')
    a('v_sub_f32 v14, v14, v16'); rnd('v14'); a('v_mul_f32 v14, v14, v18'); rnd('v14')
    stamp(23)
    await_(C_WQ, 4, 'v11')
    w_read(XA, 'v7', 8)
    a('s_waitcnt lgkmcnt(0)')
    stamp(3)
    a(f's_lshl_b32 s30, s42, 10\ns_lshl_b32 s31, {sI}, 8\ns_add_u32 s30, s30, s31\nv_lshl_add_u32 v12, v15, 4, s30\nv_lshl_add_u32 v12, v9, 13, v12')
    if T1: await_(C_T1, 2, 'v11', sleep=2)
    stamp(19)
    gather([(G + 4*i, 4, 'v12', P1 + (i & 1)*32768 + (i >> 1)*4096) for i in range(4)], 'v26', sleep=psleep, full=2)
    stamp(4)
    for hf in range(2):
        b = G + 8*hf
        a(f'v_pk_add_f32 {V(b,2)}, {V(b,2)}, {V(b+4,2)}\nv_pk_add_f32 {V(b+2,2)}, {V(b+2,2)}, {V(b+6,2)}')
        scat4(b); rnd(f'v{b}')
    a(f'v_add_f32 v{G+8}, 1.0, v{G+8}'); rnd(f'v{G+8}')
    a(f'v_mul_f32 v14, v14, v{G+8}'); rnd('v14')
    a(f'v_add_f32 v14, v14, v{G}'); rnd('v14')
    a(f'v_lshl_add_u32 v11, v28, 1, {vM}\nds_write_b16_d16_hi v11, v14 offset:{HV}')
    arrive(C_H)
    a(f's_lshl_b32 s47, s42, 14\ns_lshl_b32 s30, s43, 8\ns_add_u32 s47, s47, s30\ns_lshl_b32 s30, {sI}, 6\ns_add_u32 s47, s47, s30\ns_add_u32 s46, s47, {P2}')
    await_(C_H, 4, 'v11', sleep=0)
    a(f'v_add_u32 v11, {HV}, v8')
    b_read(XB, 'v11', 8)
    w_mfma(XD, XA, XB, 8, staged=True)
    publish('s46', True)
    stamp(5)
    a('v_lshlrev_b32 v12, 4, v1')
    a(f's_lshr_b32 s30, s2, 6\ns_lshl_b32 s30, s30, 12\ns_lshl_b32 s32, {sI}, 10\ns_add_u32 s30, s30, s32\nv_add_u32 v12, s30, v12')
    if T2: await_(C_T2, 2, 'v11', sleep=2)
    stamp(8)
    gather([(G + 4*i, 4, 'v12', P2 + i*16384) for i in range(4)], 'v26', sleep=psleep, full=2)
    for e in (0, 2):
        a(f'v_pk_add_f32 {V(G+e,2)}, {V(G+e,2)}, {V(G+4+e,2)}\nv_pk_add_f32 {V(G+8+e,2)}, {V(G+8+e,2)}, {V(G+12+e,2)}\nv_pk_add_f32 {V(G+e,2)}, {V(G+e,2)}, {V(G+8+e,2)}')
    a(f'v_cvt_pk_bf16_f32 v{G}, v{G}, v{G+1}\nv_cvt_pk_bf16_f32 v{G+1}, v{G+2}, v{G+3}')
    a(f's_mul_i32 s30, {sI}, 544\nv_lshrrev_b32 v11, 5, v1\nv_lshlrev_b32 v11, 4, v11\nv_lshl_add_u32 v11, v1, 3, v11\nv_add3_u32 v11, v11, {vM}, s30')
    a(f'ds_write_b64 v11, {V(G,2)} offset:{QL}')
    arrive(C_Q)
    if lite:
        Ll = a.lab('LI')
        a(f's_cmp_lg_u32 s3, 5\ns_cbranch_scc1 {Ll}\ns_lshl_b32 s30, s2, 7\ns_add_u32 s30, s30, {DBG}\nv_mov_b32 v11, 0\nv_mov_b32 v12, s34')
        setexec(1)
        a(f'buffer_store_dword v12, v11, {SRD_WS}, s30 offen')
        setexec(-1)
        a(f'{Ll}:')
    stamp(6)
    if xprio: a('s_setprio 0')
    CW, CB, C2 = 160, 174, 188
    a('v_lshlrev_b32 v11, 2, v10\nv_add_u32 v12, 0x1000, v11\nv_mov_b32 v17, 0\nv_mov_b32 v159, 0')
    for j, ptr in enumerate((sW1, sB1, sW2)):
        for i in range(7): a(f'global_load_dword v{G+7*j+i}, {"v11" if i < 4 else "v12"}, {ptr} offset:{(i % 4)*1024}')
    a(f'global_load_short_d16_hi v159, v17, {sB2}')
    a(f'v_mov_b32 v44, {f2u(c1):#x}\nv_mov_b32 v45, {f2u(c0):#x}')
    a(f'v_lshl_add_u32 v13, v9, 2, {vM}\nv_lshl_add_u32 v13, {sI}, 7, v13')
    a(f's_lshl_b32 s39, s2, 5\ns_and_b32 s40, s39, 0xfff\ns_add_u32 s40, s40, {E0 << 7}\ns_lshr_b32 s30, s39, 12\ns_lshl_b32 s30, s30, 15\ns_or_b32 s40, s40, s30\ns_lshl_b32 s40, s40, 16')
    a('s_mov_b32 s41, 0\ns_waitcnt vmcnt(0)')
    for j, base in enumerate((CW, CB, C2)):
        for i in range(7): a(f'v_lshlrev_b32 v{base+2*i}, 16, v{G+7*j+i}\nv_and_b32 v{base+2*i+1}, 0xffff0000, v{G+7*j+i}')
    a('s_and_b32 s38, s2, 7\ns_lshl_b32 s38, s38, 1\ns_lshr_b32 s30, s2, 3\ns_and_b32 s30, s30, 1\ns_add_u32 s38, s38, s30\ns_lshr_b32 s30, s2, 6\ns_lshl_b32 s30, s30, 4\ns_add_u32 s38, s38, s30')
    def weights():
        a('s_lshr_b32 s30, s38, 4\ns_lshl_b32 s30, s30, 13\ns_lshr_b32 s31, s38, 1\ns_and_b32 s31, s31, 7\ns_lshl_b32 s31, s31, 4\ns_add_u32 s30, s30, s31\nv_lshl_add_u32 v12, v1, 7, s30')
        gather([(G, 4, 'v12', ML)], 'v26', sleep=psleep, full=True)
        a(f'v_mov_b32 v16, v{G}')
        allred('v_max_f32', 'v16', 'v11')
        a(f'v_sub_f32 v16, v{G}, v16\nv_exp_f32 v16, v16\nv_mul_f32 v17, v16, v{G+1}')
        allred('v_add_f32', 'v17', 'v11')
        a(f'v_rcp_f32 v17, v17\nv_and_b32 v12, 15, v1\nv_lshlrev_b32 v12, 4, v12\nv_lshl_add_u32 v12, v9, 2, v12\nv_add_u32 v12, {vM}, v12\nv_mul_f32 v16, v16, v17')
        a(f'ds_write_b32 v12, v16 offset:{WL}')
        arrive(C_WL)
    a('L_tab:')
    for e in range(4): a(f'v_mov_b32 v{40+e}, s40\ns_add_u32 s40, s40, 0x10000\nv_mov_b32 v{16+e}, 0')
    Lz = a.lab('TZ')
    a(f's_add_u32 s39, s39, 4\ns_cmp_lg_u32 s39, 4096\ns_cbranch_scc1 {Lz}\nv_mov_b32 v43, 0\n{Lz}:')
    units = []
    for i in range(14):
        sel = i & 1; pr = i & ~1
        for dp in range(2):
            units.append((lambda u, sel=sel, pr=pr, dp=dp: f'v_pk_fma_f32 {u}, {V(40+2*dp,2)}, {V(CW+pr,2)}, {V(CB+pr,2)} op_sel:[0,{sel},{sel}] op_sel_hi:[1,{sel},{sel}]',
                          lambda u, sel=sel, pr=pr, dp=dp: f'v_pk_fma_f32 {V(16+2*dp,2)}, {u}, {V(C2+pr,2)}, {V(16+2*dp,2)} op_sel:[0,{sel},0] op_sel_hi:[1,{sel},1]'))
    gelu_units(units, 48, 64, 4)
    scat4(16)
    allred('v_add_f32', 'v16', None, (1, 2, 'hm', 'm'))
    setexec(0x0001000100010001)
    a(f'ds_write_b32 v13, v16 offset:{YT}')
    setexec(-1)
    a('v_add_u32 v13, 16, v13\ns_add_u32 s41, s41, 1\ns_cmp_lt_u32 s41, 8\ns_cbranch_scc1 L_tab')
    arrive(C_YT)
    stamp(7)
    LX3, LXD = a.lab('X3'), a.lab('XD')
    a(f's_cmp_eq_u32 {sI}, 3\ns_cbranch_scc1 {LX3}\ns_cmp_lg_u32 {sI}, 0\ns_cbranch_scc1 {LXD}')
    await_(C_YT, 4, 'v11')
    a(f'v_and_b32 v12, 7, v1\nv_lshlrev_b32 v12, 4, v12\nv_add_u32 v11, {vM}, v12')
    for w in range(4): a(f'ds_read_b128 {V(48+4*w,4)}, v11 offset:{YT + 128*w}')
    a(f's_lshl_b32 s30, s2, 7\ns_add_u32 s30, s30, {TAB}\ns_waitcnt lgkmcnt(0)')
    for e in (0, 2): a(f'v_pk_add_f32 {V(48+e,2)}, {V(48+e,2)}, {V(52+e,2)}\nv_pk_add_f32 {V(56+e,2)}, {V(56+e,2)}, {V(60+e,2)}\nv_pk_add_f32 {V(48+e,2)}, {V(48+e,2)}, {V(56+e,2)}')
    for e in range(4): rnd(V(48+e))
    for e in range(4): a(f'v_add_f32 v{48+e}, v{48+e}, v159')
    for e in range(4): rnd(V(48+e))
    for e in range(4): a(f'v_or_b32 v{48+e}, {sT}, v{48+e}')
    setexec(0xff)
    a(f'buffer_store_dwordx4 v[48:51], v12, {SRD_WS}, s30 offen sc1')
    setexec(-1)
    a(f's_branch {LXD}')
    a(f'{LX3}:')
    await_(C_TICK, 1, 'v11', sleep=4)
    weights()
    a(f'{LXD}:')
    stamp(9)
    a(f's_lshl_b32 s30, s38, 14\ns_lshl_b32 s32, {sI}, 6\ns_add_u32 s30, s30, s32')
    a('v_and_b32 v13, 3, v1\nv_lshl_add_u32 v12, v13, 4, s30\nv_lshrrev_b32 v11, 2, v1\nv_lshl_add_u32 v12, v11, 8, v12')
    a(f'v_lshlrev_b32 v13, 3, v13\nv_lshl_add_u32 v13, v9, 1, v13\nv_lshl_add_u32 v13, {sI}, 5, v13\nv_add_u32 v13, {vM}, v13')
    W = 80
    a(f'v_lshl_add_u32 v14, v11, 4, {vM}')
    a('v_lshlrev_b32 v68, 9, v11\nv_and_b32 v26, 7, v11\nv_lshlrev_b32 v26, 1, v26')
    a(f'v_lshrrev_b32 v27, 1, v1\nv_and_b32 v27, 1, v27\nv_lshl_add_u32 v27, {sI}, 3, v27\nv_xor_b32 v26, v26, v27\nv_lshl_add_u32 v68, v26, 4, v68')
    a(f'v_and_b32 v26, 1, v1\nv_lshl_add_u32 v68, v26, 3, v68\nv_add_u32 v68, {WB}, v68')
    for i in range(1, 4): a(f'v_xor_b32 v{68+i}, {i << 5:#x}, v68')
    for r in range(202, 234): a(f'v_mov_b32 v{r}, 0')
    a(f'v_add_u32 v72, {OV}, v8\nv_lshl_add_u32 v73, v26, 6, v29\nv_and_b32 v26, 2, v1\nv_lshl_add_u32 v73, v26, 12, v73')
    a(f's_lshl_b32 s45, s38, 7\ns_bfe_u32 s30, s2, 0x20004\ns_lshl_b32 s30, s30, 16\ns_add_u32 s45, s45, s30\ns_lshl_b32 s30, {sI}, 14\ns_add_u32 s45, s45, s30\ns_add_u32 s45, s45, {P4}')
    LH, LHD, LHS = a.lab('H'), a.lab('HD'), a.lab('HS')
    for i in range(4): a(f's_mov_b32 {SOFF(i)}, {OB + 4096*i:#x}')
    def h1ld(i): a(f'buffer_load_dwordx4 {V(G+4*i,4)}, v12, {SRD_WS}, {SOFF(i)} offen sc1')
    await_(C_WL, 1, 'v11', sleep=1)
    a(f'ds_read_b128 {V(W,4)}, v14 offset:{WL}')
    await_(C_MD, 4, 'v11', sleep=1)
    stamp(10)
    for i in range(4): h1ld(i)
    await_(C_WO, 4, 'v11', sleep=0)
    for ct in range(4):
        for ks in range(2):
            for hf in range(2):
                a(f'ds_read_b64_tr_b16 {V(120+8*ct+4*ks+2*hf,2)}, v{68+ct} offset:{ks*16384 + hf*8192}')
    stamp(13)
    a(f's_mov_b32 {sSpin}, {spin}')
    a(f'{LH}:\ns_waitcnt vmcnt(0)')
    for i in range(4): a(f'v_perm_b32 v11, v{G+4*i+3}, v{G+4*i}, {sSelA}\nv_cmp_ne_u32 {MASK(i)}, {sT2}, v11')
    a(f's_bcnt1_i32_b64 s30, {MASK(0)}')
    for i in range(1, 4): a(f's_bcnt1_i32_b64 s31, {MASK(i)}\ns_add_u32 s30, s30, s31')
    a(f's_cmp_eq_u32 s30, 0\ns_cbranch_scc1 {LHD}')
    a(f's_sub_u32 {sSpin}, {sSpin}, 1\ns_cbranch_scc1 {LHD}')
    a(f's_cmp_le_u32 s30, {h1thr}\ns_cbranch_scc1 {LHS}\ns_sleep {h1sleep}\n{LHS}:')
    for i in range(4):
        Sk = a.lab('GS')
        a(f's_wqm_b64 exec, {MASK(i)}\ns_cbranch_execz {Sk}')
        h1ld(i)
        a(f'{Sk}:')
    a(f's_mov_b64 exec, -1\ns_branch {LH}\n{LHD}:')
    for e in (0, 2): a(f'v_pk_mul_f32 {V(G+e,2)}, {V(G+e,2)}, {V(W,2)} op_sel:[0,0] op_sel_hi:[1,0]')
    for i in range(1, 4):
        for e in (0, 2): a(f'v_pk_fma_f32 {V(G+e,2)}, {V(G+4*i+e,2)}, {V(W+(i&2),2)}, {V(G+e,2)} op_sel:[0,{i&1},0] op_sel_hi:[1,{i&1},1]')
    scat4(G)
    allred('v_add_f32', V(G), None, ('r4', 'r8'))
    rnd(V(G))
    setexec(0x000f000f000f000f)
    a(f'ds_write_b16_d16_hi v13, v{G} offset:{OV}')
    arrive(C_OV)
    stamp(11)
    await_(C_OV, 4, 'v11', sleep=0)
    for ct in range(4):
        setexec(0x0001000100010001 << ct)
        b_read(202 + 8*ct, 'v72', 2)
    setexec(-1)
    w_mfma(24, 120, 202, 8, staged=True)
    for e in range(4): tag(V(24+e))
    setexec(0x000f000f000f000f)
    a(f'buffer_store_dwordx4 v[24:27], v73, {SRD_WS}, s45 offen sc1')
    setexec(-1)
    stamp(26)
    a(f's_cmp_lg_u32 {sI}, 2\ns_cbranch_scc1 L_fin2\ns_and_b32 s30, s2, 7\ns_cmp_lg_u32 s30, {RX}\ns_cbranch_scc1 L_fin2')
    red_setup()
    a(f'v_mov_b32 v152, 0\nglobal_load_short_d16_hi v152, v29, {sX}')
    a(f'v_lshlrev_b32 v12, 4, v1\nv_lshl_add_u32 v12, {sPi}, 10, v12\nv_mov_b32 v46, {f2u(1/1024):#x}')
    a(f's_mov_b32 s40, {ST}\nv_mov_b32 v150, 4095\ns_mov_b32 s59, {TAB}')
    stamp(25)
    l4 = [(G + 4*i, 4, 'v14' if i < smp4 else 'v12', P4 + i*1024) for i in range(8)]
    l4 = [(G + 4*i, 4, 'v12', P4 + i*1024) for i in range(8)]
    if smp4: gather(l4[:smp4], 'v11', sleep=1)
    if pd2 is None: gather(l4[smp4:], 'v11')
    else: gather_p(l4[smp4:], 'v11', depth=pd2, sleep=ps2)
    stamp(24)
    await_(C_SM, 1, 'v11', sleep=0)
    a(f'ds_read_b128 v[140:143], v6 offset:{SM}')
    for st in (4, 8, 16):
        for i in range(0, 32, 2*st):
            for e in (0, 2): a(f'v_pk_add_f32 {V(G+i+e,2)}, {V(G+i+e,2)}, {V(G+i+st+e,2)}')
    scat4(G)
    allred('v_add_f32', V(G), None, ('r8',))
    a('s_waitcnt lgkmcnt(0)\nv_cndmask_b32 v157, v142, v141, s[100:101]')
    rnd(V(G)); a(f'v_mul_f32 v16, v{G}, v140'); rnd('v16'); a('v_add_f32 v16, v16, v152'); rnd('v16')
    a('v_mul_f32 v17, v16, v142')
    a('v_cndmask_b32 v18, v16, v17, s[100:101]\nv_cndmask_b32 v20, 1.0, v17, s[100:101]\nv_cndmask_b32 v21, v16, v142, s[100:101]')
    a('v_mul_f32 v20, v18, v20\nv_mul_f32 v21, v18, v21\nv_mul_f32 v22, v18, v157\nv_mov_b32 v23, 0')
    st_publish('s40')
    stamp(21)
    gather([(G, 4, 'v5', ST + (0 if dual else STB))], 'v26', full=True, sleep=fsleep, alt=STB if dual else None)
    stamp(12)
    await_(C_TAB, 1, 'v11', sleep=0)
    a(f'ds_read_b128 v[144:147], {vM} offset:{SM + 1024}\nds_read_b64 v[148:149], {vM} offset:{SM + 1040}')
    st_reduce(G)
    for k, ln in enumerate((0, 16, 32, 1, 17, 33)): a(f'v_readlane_b32 s{38+k}, v{G}, {ln}')
    a('v_mul_f32 v24, s38, v46\nv_mul_f32 v25, s39, v46\nv_fma_f32 v25, -v24, v24, v25\nv_max_f32 v25, 0, v25')
    ln_scale('v24', 'v25')
    a('s_waitcnt lgkmcnt(0)')
    a('v_fma_f32 v26, -v24, v144, s40\nv_fma_f32 v28, -v24, v149, s43')
    a('v_mul_f32 v27, v24, v145\nv_fma_f32 v27, -2.0, s42, v27\nv_fma_f32 v27, v27, v24, s41')
    a('v_sub_f32 v40, v16, v24')
    a('v_fma_f32 v26, v26, v25, v146\nv_add_f32 v28, v28, v28\nv_fma_f32 v27, v27, v25, v28\nv_fma_f32 v27, v27, v25, v148')
    rnd('v40')
    a('v_mul_f32 v26, v26, v46\nv_mul_f32 v27, v27, v46\nv_mul_f32 v40, v40, v25\nv_fma_f32 v27, -v26, v26, v27')
    rnd('v40')
    a('v_max_f32 v27, 0, v27\nv_mul_f32 v40, v40, v142')
    rnd('v27'); rnd('v40'); rnd('v26')
    a(f'v_add_f32 v27, {f2u(1e-5):#x}, v27\nv_add_f32 v40, v40, v141'); rnd('v27'); rnd('v40')
    a('v_sqrt_f32 v27, v27\nv_sub_f32 v40, v40, v26'); rnd('v27'); rnd('v40')
    a('v_rcp_f32 v27, v27\nv_mul_f32 v40, v40, v27'); rnd('v40')
    a(f'v_bfe_u32 v41, v40, 16, 15\nv_lshrrev_b32 v43, 31, v40\nv_subrev_u32 v42, {E0 << 7}, v41\nv_cmp_eq_u32 vcc, 0, v41')
    a(f'v_cmp_lt_u32 s[38:39], v42, v47\nv_lshl_add_u32 v42, v43, 12, v42\nv_cndmask_b32 v42, v42, v47, vcc'.replace('v47', 'v150'))
    a(f'v_and_b32 v42, 0x1fff, v42\nv_lshlrev_b32 v42, 2, v42\nbuffer_load_dword v41, v42, {SRD_WS}, s59 offen sc1')
    a('s_or_b64 s[38:39], s[38:39], vcc\ns_waitcnt vmcnt(0)')
    a(f'v_and_b32 v42, 0xffff, v41\nv_and_b32 v41, 0xffff0000, v41\nv_cmp_ne_u32 vcc, {sT}, v42\ns_orn2_b64 s[38:39], vcc, s[38:39]\ns_cbranch_scc1 L_slow1')
    a('L_out:')
    a('v_mul_f32 v41, v41, v143'); rnd('v41'); a('v_add_f32 v41, v41, v16'); rnd('v41')
    setexec(0x00ff00ff00ff00ff)
    a(f'global_store_short_d16_hi v29, v41, {sOUT}')
    setexec(-1)
    stamp(14)
    if lite:
        a(f's_memrealtime s[34:35]\ns_lshl_b32 s30, s2, 7\ns_add_u32 s30, s30, {DBG + 64}\nv_mov_b32 v11, 0\ns_waitcnt lgkmcnt(0)\nv_mov_b32 v12, s34')
        setexec(1)
        a(f'buffer_store_dword v12, v11, {SRD_WS}, s30 offen')
        setexec(-1)
    a('L_fin:')
    a(f's_cmp_lg_u32 s2, {RX}\ns_cbranch_scc1 L_fin2')
    a(f'v_mov_b32 v7, {sE}\nv_mov_b32 v8, 0')
    setexec(1)
    a(f'global_store_dword v8, v7, {sWS} offset:12')
    setexec(-1)
    a('L_fin2:')
    if stamps:
        stamp(15)
        a('s_getreg_b32 s30, hwreg(HW_REG_XCC_ID)\nv_writelane_b32 v255, s30, 40')
        a(f's_lshl_b32 s30, s2, 11\ns_add_u32 s30, s30, {DBG}\nv_lshlrev_b32 v7, 2, v0')
        a(f'buffer_store_dword v255, v7, {SRD_WS}, s30 offen')
    a('L_end:\ns_endpgm')
    a('L_slow1:\ns_ff1_i32_b64 s40, s[38:39]\ns_bitset0_b64 s[38:39], s40\nv_readlane_b32 s41, v40, s40')
    a('v_lshlrev_b32 v11, 4, v1\nv_mov_b32 v18, 0\nv_mov_b32 v19, 0\nv_mov_b32 v42, s41\nv_mov_b32 v43, s41\ns_mov_b32 s42, 0')
    a('L_slow2:')
    for j, ptr in enumerate((sW1, sB1, sW2)): a(f'global_load_dwordx4 {V(G+4*j,4)}, v11, {ptr}')
    a('v_add_u32 v11, 0x400, v11\ns_waitcnt vmcnt(0)')
    for j in range(3):
        for i in range(4): a(f'v_lshlrev_b32 v{160+8*j+2*i}, 16, v{G+4*j+i}\nv_and_b32 v{161+8*j+2*i}, 0xffff0000, v{G+4*j+i}')
    gelu_units([(lambda u, i=i: f'v_pk_fma_f32 {u}, v[42:43], {V(160+2*i,2)}, {V(168+2*i,2)}',
                 lambda u, i=i: f'v_pk_fma_f32 v[18:19], {u}, {V(176+2*i,2)}, v[18:19]') for i in range(4)], 48, 64, 4)
    a('s_add_u32 s42, s42, 1\ns_cmp_lt_u32 s42, 7\ns_cbranch_scc1 L_slow2')
    a('v_add_f32 v18, v18, v19')
    allred('v_add_f32', 'v18', 'v19')
    rnd('v18'); a('v_add_f32 v18, v18, v159'); rnd('v18')
    a('v_readfirstlane_b32 s41, v18\ns_mov_b32 m0, s40\nv_writelane_b32 v41, s41, m0')
    a('s_cmp_lg_u64 s[38:39], 0\ns_cbranch_scc1 L_slow1\ns_branch L_out')
    a('L_code_end:')
    body = a.finish()
    out = HEADER + f'; @launch grid=(256,1,1) block=(512,1,1) lds={LDS_BYTES}\n'
    out += f'.amdgcn_target "amdgcn-amd-amdhsa--gfx950"\n.text\n.globl {NAME}_kernel\n.p2align 8\n.type {NAME}_kernel,@function\n'
    out += body
    out += f'''.section .rodata,"a"
.p2align 6
.amdhsa_kernel {NAME}_kernel
  .amdhsa_next_free_vgpr 256
  .amdhsa_next_free_sgpr 102
  .amdhsa_accum_offset 256
  .amdhsa_group_segment_fixed_size 0
  .amdhsa_kernarg_size 120
  .amdhsa_user_sgpr_count 2
  .amdhsa_user_sgpr_kernarg_segment_ptr 1
  .amdhsa_system_sgpr_workgroup_id_x 1
  .amdhsa_float_denorm_mode_32 3
.end_amdhsa_kernel
'''
    return out

if __name__ == '__main__':
    kw = {}
    for arg in sys.argv[2:]:
        k, v = arg.split('=')
        kw[k] = eval(v)
    open(sys.argv[1], 'w').write(gen(**kw))
```

```python
import sys, struct
from asmfw import Asm

NAME = 'adaLN_cond__gqa_block_cached__mixer_token_mlp__decode'

def f2u(x): return struct.unpack('<I', struct.pack('<f', x))[0]
LOG2E = 1.4426950408889634
SCALE = 128 ** -0.5

P1 = 0x10000; P2 = 0x20000; P3 = 0x30000; ML = 0x40000; ST0 = 0x50000; ST = 0x52000; STB = 0x1000
RK = 0x60000; TAB = 0x68000; P4 = 0x80000; OB = 0x100000; DBG = 0x200000
RS = 6; RINGW = RS * 4096
WB = 4 * RINGW; WA = WB + 32768; MISC = WA + 16384
SC = 0; QL = 2048; HV = 4352; OV = 4864; MLW = 5376; CNT = 5760; WL = 5888; YT = 6144; SM = 6656
LDS_BYTES = 163840
C_W1, C_WQ, C_H, C_Q, C_M2, C_ML, C_RED, C_WO, C_WOF, C_TICK, C_T1, C_T2, C_PUB, C_VI, C_WL, C_RANK, C_YT, C_TAB, C_OV, C_MD, C_SM, C_RANK2, C_RANK3, C_AD, C_R1 = range(25)

HEADER = open('cdna_kernels/' + NAME + '.s.ref').read().split('; Override launch')[0]

def gen(F=6, NQ=52, nt=' nt', wnt=' nt', stamps=False, warm=True, spin=1 << 18, psleep=16, xprio=3, aprio=1,
        T1=26, T2=46, h1sleep=6, h1thr=48, fsleep=1, Fs=None, TK=16, XTRA=0, h1m=1, NZ=16, AF=7, MLP_AT=7, dual=True, pretouch=1, RX=0, p3sleep=2, pd2=1, ps2=2, TR=12, T2AT=0, CF=5, ept=2, Fhi=None, Flo=None, rth=33, a1w=True, SPL=0, smp4=0, smp3=0, su=False, tlb=0, E0=101, TH=64, gbl=True):
    a = Asm()
    lite = stamps == 'lite'
    if lite: stamps = False
    SRD_K, SRD_V, SRD_WS, SRD_WQ, SRD_WO, SRD_WM = 's[4:7]', 's[8:11]', 's[12:15]', 's[16:19]', 's[20:23]', 's[24:27]'
    sX, sW1, sB1, sW2, sB2, sC, sOUT, sWS = 's[36:37]', 's[48:49]', 's[50:51]', 's[52:53]', 's[54:55]', 's[56:57]', 's[60:61]', 's[64:65]'
    sE, sI, sBase, sSpin = 's66', 's67', 's68', 's69'
    sT, sT2, sT4, sSelA, sSelB, sPi = 's86', 's87', 's88', 's89', 's90', 's91'
    MASK = lambda i: f's[{70+2*i}:{71+2*i}]'
    SOFF = lambda i: f's{92+i}'
    vM, vOne, vHi = 'v2', 'v3', 'v247'
    V = lambda i, n=1: f'v{i}' if n == 1 else f'v[{i}:{i+n-1}]'

    def stamp(i):
        if stamps:
            a(f's_memrealtime s[34:35]\ns_waitcnt lgkmcnt(0)\nv_writelane_b32 v255, s34, {i}')
    def setexec(mask):
        if mask == -1: a('s_mov_b64 exec, -1')
        elif mask < 64: a(f's_mov_b64 exec, {mask}')
        else: a(f's_mov_b32 exec_lo, {mask & 0xffffffff:#x}\ns_mov_b32 exec_hi, {mask >> 32:#x}')
    def arrive(c):
        a(f's_mov_b64 exec, 1\nds_add_u32 {vM}, {vOne} offset:{CNT + 4*c}\ns_mov_b64 exec, -1')
    def await_(c, n, tmp, sleep=1):
        L = a.lab('W'); D = a.lab('WD')
        a(f's_mov_b32 {sSpin}, {spin}')
        a(f'{L}:\nds_read_b32 {tmp}, {vM} offset:{CNT + 4*c}\ns_waitcnt lgkmcnt(0)\nv_readfirstlane_b32 s30, {tmp}')
        a(f's_cmp_ge_u32 s30, {n}\ns_cbranch_scc1 {D}')
        if sleep: a(f's_sleep {sleep}')
        a(f's_sub_u32 {sSpin}, {sSpin}, 1\ns_cbranch_scc0 {L}\n{D}:')
    def late_await(c, n, tmp, reads, work):
        D = a.lab('LA')
        a(f'ds_read_b32 {tmp}, {vM} offset:{CNT + 4*c}')
        reads()
        work()
        a(f's_waitcnt lgkmcnt(0)\nv_readfirstlane_b32 s30, {tmp}\ns_cmp_ge_u32 s30, {n}\ns_cbranch_scc1 {D}')
        await_(c, n, tmp, sleep=0)
        reads()
        a(f's_waitcnt lgkmcnt(0)\n{D}:')
    def rnd(r): a(f'v_cvt_pk_bf16_f32 {r}, 0, {r}')
    def tag(r): a(f'v_and_or_b32 {r}, {r}, {vHi}, {sT}')
    def untag(regs, fine=False):
        for r in regs: a(f'v_and_b32 v{r}, {"-4" if fine else vHi}, v{r}')
    DPP = {1: 'quad_perm:[1,0,3,2]', 2: 'quad_perm:[2,3,0,1]', 'hm': 'row_half_mirror', 'm': 'row_mirror', 'r4': 'row_ror:4', 'r8': 'row_ror:8'}
    def allred(op, r, t, steps=(1, 2, 'hm', 'm', 16, 32)):
        for s in steps:
            if s in DPP: a(f'{op}_dpp {r}, {r}, {r} {DPP[s]} row_mask:0xf bank_mask:0xf')
            else: a(f'v_mov_b32 {t}, {r}\nv_permlane{s}_swap_b32 {r}, {t}\n{op} {r}, {r}, {t}')
    def scat4(b):
        a(f'v_permlane32_swap_b32 v{b}, v{b+2}\nv_permlane32_swap_b32 v{b+1}, v{b+3}\nv_pk_add_f32 {V(b,2)}, {V(b,2)}, {V(b+2,2)}')
        a(f'v_permlane16_swap_b32 v{b}, v{b+1}\nv_add_f32 v{b}, v{b}, v{b+1}')
    def setup_tags():
        a(f's_add_u32 {sE}, {sE}, 1\ns_and_b32 {sT}, {sE}, 0xff\ns_mul_i32 {sT2}, {sT}, 0x101\ns_mul_i32 {sT4}, {sT}, 0x1010101')
        a(f's_mov_b32 {sSelA}, 0x0c0c0400\ns_mov_b32 {sSelB}, 0x04000c0c\nv_mov_b32 {vHi}, 0xffffff00')
        a(f's_and_b32 {sPi}, s2, 0xf8')
    def gather(loads, tmp, sleep=0, full=False, thr=None, alt=None):
        L = a.lab('G'); D = a.lab('GD')
        his = []
        for d, w, vo, off in loads:
            if off & ~0xfff not in his: his.append(off & ~0xfff)
        for i, h in enumerate(his): a(f's_mov_b32 {SOFF(i)}, {h:#x}')
        if alt: a(f's_mov_b32 {SOFF(1)}, {his[0] + alt:#x}')
        def ld(d, w, vo, off):
            sfx = {1: 'dword', 2: 'dwordx2', 4: 'dwordx4'}[w]
            a(f'buffer_load_{sfx} {V(d, w)}, {vo}, {SRD_WS}, {SOFF(his.index(off & ~0xfff))} offen offset:{off & 0xfff} sc1')
        for x in loads: ld(*x)
        a(f's_mov_b32 {sSpin}, {spin}')
        a(f'{L}:')
        n = len(loads)
        for i, (d, w, vo, off) in enumerate(loads):
            a(f's_waitcnt vmcnt({n-1-i})')
            if w == 1: a(f'v_and_b32 {tmp}, 0xff, {V(d)}\nv_cmp_ne_u32 {MASK(i)}, {sT}, {tmp}')
            elif full:
                t2 = f'v{int(tmp[1:]) + 1}'
                a(f'v_perm_b32 {tmp}, {V(d+1)}, {V(d)}, {sSelA}\nv_perm_b32 {t2}, {V(d+3)}, {V(d+2)}, {sSelB}\nv_or_b32 {tmp}, {tmp}, {t2}')
                if full == 2: a(f'v_xor_b32 {tmp}, {sT4}, {tmp}\nv_and_b32 {tmp}, 0x03030303, {tmp}\nv_cmp_ne_u32 {MASK(i)}, 0, {tmp}')
                else: a(f'v_cmp_ne_u32 {MASK(i)}, {sT4}, {tmp}')
            else: a(f'v_perm_b32 {tmp}, {V(d+w-1)}, {V(d)}, {sSelA}\nv_cmp_ne_u32 {MASK(i)}, {sT2}, {tmp}')
        a(f's_or_b64 s[28:29], {MASK(0)}, {MASK(1 if n > 1 else 0)}')
        for i in range(2, n): a(f's_or_b64 s[28:29], s[28:29], {MASK(i)}')
        a(f's_cbranch_scc0 {D}')
        a(f's_sub_u32 {sSpin}, {sSpin}, 1\ns_cbranch_scc1 {D}')
        if sleep and thr is not None:
            S = a.lab('GN')
            a(f's_bcnt1_i32_b64 s30, {MASK(0)}')
            for i in range(1, n): a(f's_bcnt1_i32_b64 s31, {MASK(i)}\ns_add_u32 s30, s30, s31')
            a(f's_cmp_le_u32 s30, {thr}\ns_cbranch_scc1 {S}\ns_sleep {sleep}\n{S}:')
        elif sleep: a(f's_sleep {sleep}')
        if alt:
            a(f's_and_b32 s30, {sSpin}, 15\ns_cselect_b32 {SOFF(0)}, {his[0]:#x}, {SOFF(1)}')
        for i, x in enumerate(loads):
            S = a.lab('GS')
            a(f's_wqm_b64 exec, {MASK(i)}\ns_cbranch_execz {S}')
            ld(*x)
            a(f'{S}:')
        a(f's_mov_b64 exec, -1\ns_waitcnt vmcnt(0)\ns_branch {L}\n{D}:')
    def gather_p(loads, tmp, depth=3, sleep=1, full=False, thr=None, bsleep=0):
        L = a.lab('G'); D = a.lab('GD')
        his = []
        for d, w, vo, off in loads:
            if off & ~0xfff not in his: his.append(off & ~0xfff)
        for i, h in enumerate(his): a(f's_mov_b32 {SOFF(i)}, {h:#x}')
        n = len(loads)
        def ld(d, w, vo, off):
            a(f'buffer_load_dwordx4 {V(d, w)}, {vo}, {SRD_WS}, {SOFF(his.index(off & ~0xfff))} offen offset:{off & 0xfff} sc1')
        for x in loads: ld(*x)
        a(f's_mov_b32 {sSpin}, {spin}\ns_waitcnt vmcnt(0)')
        a(f'{L}:')
        for i, (d, w, vo, off) in enumerate(loads):
            if full:
                t2 = f'v{int(tmp[1:]) + 1}'
                a(f'v_perm_b32 {tmp}, {V(d+1)}, {V(d)}, {sSelA}\nv_perm_b32 {t2}, {V(d+3)}, {V(d+2)}, {sSelB}\nv_or_b32 {tmp}, {tmp}, {t2}')
                a(f'v_cmp_ne_u32 {MASK(i)}, {sT4}, {tmp}')
            else: a(f'v_perm_b32 {tmp}, {V(d+w-1)}, {V(d)}, {sSelA}\nv_cmp_ne_u32 {MASK(i)}, {sT2}, {tmp}')
        a(f's_or_b64 s[28:29], {MASK(0)}, {MASK(1 if n > 1 else 0)}')
        for i in range(2, n): a(f's_or_b64 s[28:29], s[28:29], {MASK(i)}')
        a(f's_cbranch_scc0 {D}')
        a(f's_sub_u32 {sSpin}, {sSpin}, 1\ns_cbranch_scc1 {D}')
        if thr is not None:
            S = a.lab('GN')
            a(f's_bcnt1_i32_b64 s30, {MASK(0)}')
            for i in range(1, n): a(f's_bcnt1_i32_b64 s31, {MASK(i)}\ns_add_u32 s30, s30, s31')
            a(f's_cmp_le_u32 s30, {thr}\ns_cbranch_scc1 {S}\ns_sleep {bsleep}\n{S}:')
        for i, x in enumerate(loads):
            a(f's_or_b32 s{70+2*i}, s{70+2*i}, 1\ns_wqm_b64 exec, {MASK(i)}')
            ld(*x)
        a('s_mov_b64 exec, -1')
        if sleep: a(f's_sleep {sleep}')
        a(f's_waitcnt vmcnt({n*depth})\ns_branch {L}\n{D}:\ns_waitcnt vmcnt(0)')
    def w_voff(dst, stride, t):
        a(f'v_lshrrev_b32 {t}, 3, v1\nv_mul_u32_u24 {dst}, {stride}, {t}')
        a(f'v_lshrrev_b32 {t}, 4, v1\nv_lshlrev_b32 {t}, 1, {t}\nv_xor_b32 {t}, {t}, v1\nv_and_b32 {t}, 7, {t}\nv_lshl_add_u32 {dst}, {t}, 4, {dst}')
    def w_traddr(dst, base, t, t2):
        a(f'v_lshrrev_b32 {t}, 2, v1\nv_lshlrev_b32 {dst}, 7, {t}')
        a(f'v_and_b32 {t}, 6, {t}')
        a(f'v_lshrrev_b32 {t2}, 1, v1\nv_and_b32 {t2}, 1, {t2}\nv_lshl_add_u32 {t2}, {sI}, 1, {t2}')
        a(f'v_xor_b32 {t}, {t}, {t2}\nv_lshl_add_u32 {dst}, {t}, 4, {dst}')
        a(f'v_and_b32 {t}, 1, v1\nv_lshl_add_u32 {dst}, {t}, 3, {dst}\nv_add_u32 {dst}, {base}, {dst}')
    def w_read(areg, addr, nks):
        for ks in range(nks):
            a(f'ds_read_b64_tr_b16 {V(areg+4*ks, 2)}, {addr} offset:{ks*4096}')
            a(f'ds_read_b64_tr_b16 {V(areg+4*ks+2, 2)}, {addr} offset:{ks*4096+2048}')
    def b_read(breg, addr, nks):
        for ks in range(nks):
            a(f'ds_read2_b64 {V(breg+4*ks, 4)}, {addr} offset0:{8*ks} offset1:{8*ks+4}')
    def w_mfma(d, areg, breg, nks, staged=False):
        for ks in range(nks):
            if staged: a(f's_waitcnt lgkmcnt({nks-1-ks})')
            a(f'v_mfma_f32_16x16x32_bf16 {V(d,4)}, {V(areg+4*ks,4)}, {V(breg+4*ks,4)}, {"0" if ks == 0 else V(d,4)}')
    def ln_scale(mean, var):
        rnd(var); rnd(mean)
        a(f'v_add_f32 {var}, {f2u(1e-5):#x}, {var}'); rnd(var)
        a(f'v_sqrt_f32 {var}, {var}'); rnd(var)
        a(f'v_rcp_f32 {var}, {var}')
    c0 = -2 * LOG2E * 0.7978845608028654; c1 = c0 * 0.044715
    def gelu_units(units, U, Z, NB):
        for s0 in range(0, len(units), NB):
            blk = list(enumerate(units[s0:s0+NB]))
            R2 = lambda base, k: V(base + 2*k, 2)
            def both(fn):
                for k, _ in blk:
                    fn(2*k); fn(2*k+1)
            for k, (first, last) in blk: a(first(R2(U, k)))
            for k, _ in blk: a(f'v_pk_mul_f32 {R2(Z,k)}, {R2(U,k)}, {R2(U,k)}')
            for k, _ in blk: a(f'v_pk_fma_f32 {R2(Z,k)}, {R2(Z,k)}, v[44:45], v[44:45] op_sel:[0,0,1] op_sel_hi:[1,0,1]')
            for k, _ in blk: a(f'v_pk_mul_f32 {R2(Z,k)}, {R2(Z,k)}, {R2(U,k)}')
            both(lambda r: a(f'v_exp_f32 {V(Z+r)}, {V(Z+r)}'))
            for k, _ in blk: a(f'v_pk_add_f32 {R2(Z,k)}, {R2(Z,k)}, 1.0 op_sel_hi:[1,0]')
            both(lambda r: a(f'v_rcp_f32 {V(Z+r)}, {V(Z+r)}'))
            for k, _ in blk: a(f'v_pk_mul_f32 {R2(U,k)}, {R2(U,k)}, {R2(Z,k)}')
            for k, (first, last) in blk: a(last(R2(U, k)))

    def st_reduce(b):
        untag(range(b, b + 3))
        scat4(b)
        allred('v_add_f32', f'v{b}', None, (2, 'r4', 'r8'))
    def st_publish(base):
        scat4(20)
        allred('v_add_f32', 'v20', None, (1, 2, 'hm'))
        tag('v20')
        setexec(0x0101010101010101)
        if dual: a(f'buffer_store_dword v20, v31, {SRD_WS}, {base} offen')
        a(f's_add_u32 {base}, {base}, {STB}\nbuffer_store_dword v20, v31, {SRD_WS}, {base} offen sc1')
        setexec(-1)
    def red_setup():
        a(f'v_lshrrev_b32 v9, 4, v1\nv_and_b32 v13, 7, v1\nv_lshl_add_u32 v30, v13, 2, v9\nv_lshl_add_u32 v30, {sPi}, 2, v30\nv_lshlrev_b32 v29, 1, v30\nv_lshlrev_b32 v30, 2, v30')
        a(f'v_lshrrev_b32 v11, 3, v1\nv_and_b32 v11, 1, v11\nv_cmp_eq_u32 s[100:101], 1, v11\nv_lshl_add_u32 v28, v11, 15, v30')
        a(f'v_lshlrev_b32 v31, 4, v11\nv_lshl_add_u32 v31, v9, 2, v31\nv_lshl_add_u32 v31, {sPi}, 2, v31\nv_lshlrev_b32 v5, 4, v1')
        a(f'v_lshl_add_u32 v6, v1, 4, {vM}')

    def wo_setup(j):
        a('v_lshrrev_b32 v11, 2, v1\nv_lshlrev_b32 v68, 9, v11\nv_and_b32 v74, 7, v11\nv_lshlrev_b32 v74, 1, v74')
        a(f'v_lshrrev_b32 v75, 1, v1\nv_and_b32 v75, 1, v75\nv_lshl_add_u32 v75, {sI}, 3, v75\nv_xor_b32 v74, v74, v75\nv_lshl_add_u32 v68, v74, 4, v68')
        a(f'v_and_b32 v74, 1, v1\nv_lshl_add_u32 v68, v74, 3, v68\nv_add_u32 v68, {WB if j == 0 else 16384}, v68')
        for i in range(1, 4): a(f'v_xor_b32 v{68+i}, {i << 5:#x}, v68')
        if j == 1:
            for i in range(4): a(f'v_mov_b32 v{84+i}, v{68+i}\nv_add_u32 v{88+i}, {2*RINGW}, v{68+i}')
        for r in range(202, 234): a(f'v_mov_b32 v{r}, 0')
        a(f'v_lshrrev_b32 v75, 4, v1\nv_lshl_add_u32 v72, v75, 3, {vM}\nv_add_u32 v72, {OV}, v72\nv_lshlrev_b32 v73, 4, v75\nv_lshl_add_u32 v73, v74, 6, v73')
        a('v_and_b32 v74, 2, v1\nv_lshl_add_u32 v73, v74, 12, v73')
        a('s_lshr_b32 s45, s33, 1\ns_lshr_b32 s30, s2, 6\ns_lshl_b32 s30, s30, 4\ns_add_u32 s45, s45, s30\ns_lshl_b32 s45, s45, 7')
        a(f's_and_b32 s30, s33, 1\ns_lshl_b32 s30, s30, 17\ns_add_u32 s45, s45, s30\ns_lshl_b32 s30, {sI}, 14\ns_add_u32 s45, s45, s30\ns_add_u32 s45, s45, {P4 + 0x10000*j}')
    def wo_finish():
        a('s_waitcnt lgkmcnt(0)\ns_barrier')
        for ct in range(4):
            setexec(0x0001000100010001 << ct)
            b_read(202 + 8*ct, 'v72', 2)
        setexec(-1)
        w_mfma(24, 120, 202, 8, staged=True)
        setexec(0x000f000f000f000f)
        for e in (0, 3): tag(V(24+e))
        a(f'buffer_store_dwordx4 v[24:27], v73, {SRD_WS}, s45 offen sc1')
        setexec(-1)

    a(f'{NAME}_kernel:')
    a('s_cmp_ge_u32 s2, 256\ns_cbranch_scc1 L_end')
    if lite: a('s_memrealtime s[34:35]')
    def sus(k):
        if su: a(f's_memrealtime s[{70+2*k}:{71+2*k}]')
    sus(0)
    if warm:
        a('s_getpc_b64 s[32:33]\nL_pc:')
        if warm == 2: a('s_lshl_b32 s30, s2, 3\ns_and_b32 s30, s30, 0x1c0\nv_xor_b32 v4, s30, v0\nv_cmp_gt_u32 vcc, 64, v4\ns_mov_b64 exec, vcc')
        a(f'v_lshlrev_b32 v4, 7, v0\nv_cmp_gt_u32 vcc, L_code_end-L_pc-4, v4\ns_and_saveexec_b64 s[28:29], vcc\ns_cbranch_execz L_nowarm')
        a('global_load_dword v254, v4, s[32:33]\nL_nowarm:\ns_mov_b64 exec, -1')
    a('s_load_dwordx16 s[36:51], s[0:1], 0\ns_load_dwordx8 s[52:59], s[0:1], 64\ns_load_dwordx4 s[60:63], s[0:1], 96\ns_load_dwordx2 s[64:65], s[0:1], 112')
    a('v_lshrrev_b32 v1, 6, v0\nv_readfirstlane_b32 s3, v1\nv_and_b32 v1, 63, v0')
    a(f'v_mov_b32 {vM}, {MISC}\nv_mov_b32 {vOne}, 1')
    if stamps: a('v_mov_b32 v255, 0')
    a(f's_and_b32 {sI}, s3, 3')
    a('s_cmp_lg_u32 s3, 7\ns_cbranch_scc1 L_noinit')
    a(f'v_lshl_add_u32 v27, v1, 2, {vM}\nv_mov_b32 v28, 0')
    setexec(0xffffffff); a(f'ds_write_b32 v27, v28 offset:{CNT}'); setexec(-1)
    a('L_noinit:')
    a('s_mov_b32 s6, 0x4000000\ns_mov_b32 s7, 0x20000\ns_mov_b32 s10, 0x4000000\ns_mov_b32 s11, 0x20000')
    a('s_mov_b32 s14, 0x10000000\ns_mov_b32 s15, 0x20000\ns_mov_b32 s18, 0x800000\ns_mov_b32 s19, 0x20000')
    a('s_mov_b32 s22, 0x800000\ns_mov_b32 s23, 0x20000\ns_mov_b32 s26, 0xc00000\ns_mov_b32 s27, 0x20000')
    w_voff('v236', 12288, 'v26')
    sus(1)
    a('s_waitcnt lgkmcnt(0)')
    sus(2)
    a(f's_load_dword {sE}, {sWS}, 12')
    for srd, p in ((24, 58), (16, 42), (4, 38), (8, 40), (12, 64), (20, 44)):
        a(f's_mov_b32 s{srd}, s{p}\ns_and_b32 s{srd+1}, s{p+1}, 0xffff')
    sus(3)
    a('s_barrier')
    sus(4)
    stamp(0)
    a('s_cmp_ge_u32 s3, 4\ns_cbranch_scc1 L_X')

    VOFF, KA, VA, Q, S, H = 4, 8, 16, 32, 64, 96
    PP, D1, D2, VS = 32, 96, 128, 160
    vMax, vSum = 'v224', 'v225'
    if aprio: a(f's_setprio {aprio}')
    seq = [('w1', i) for i in range(4)] + [('wq', i) for i in range(8)]
    seq += [('kv', i) for i in range(128)] + [('fill', k) for k in range(8)]
    slot_of = lambda gi: gi % RS if gi < 28 else gi - 28
    pos = {e: n for n, e in enumerate(seq)}
    NS = len(seq)
    Fbase = (lambda n: [f for (n0, f) in Fs if n0 <= n][-1]) if Fs else (lambda n: F)
    NV = pos[('kv', 127)]
    CTL = NV - TR + F + 4 if Fhi else NS + 1
    Fn = lambda n: Fhi if CTL <= n <= NV else Fbase(n)
    FI = Fn(0)
    def landed_at(k):
        n = k + 1
        while n < FI or n - Fn(n) < k: n += 1
        return n
    a(f's_and_b32 s30, s2, 7\ns_lshl_b32 s30, s30, 2\ns_add_u32 s30, s30, {sI}\ns_mul_i32 s46, s30, {32*12288}\ns_lshr_b32 s30, s2, 3\ns_lshl_b32 s30, s30, 7\ns_add_u32 s46, s46, s30')
    a(f's_lshl_b32 s58, {sI}, 12\ns_lshl_b32 s59, {sI}, 13')
    vorder = []
    for u in range(4): vorder += [4*u, 4*u+2, 4*u+1, 4*u+3]
    def issue(n):
        kind, i = seq[n]
        if kind == 'kv':
            gi, j = i // 4, i % 4
            if j == 0 or seq[n-1][0] != 'kv':
                grp = gi if gi < 16 else vorder[gi - 16]
                a(f's_add_u32 s39, {sBase}, {grp*16384}\ns_add_u32 m0, s38, {slot_of(gi)*4096}')
            a(f'buffer_load_dwordx4 v{VOFF+j}, {SRD_K if gi < 16 else SRD_V}, s39 offen offset:{j*1024}{nt} lds')
        else:
            srd, vo, so, stride, lb, sl = {'w1': (SRD_WM, 'v236', 's46', 12288, WA, 's58'), 'wq': (SRD_WQ, 'v237', 's47', 8192, WB, 's59')}[kind]
            a(f's_add_u32 s32, {so}, {8*i*stride}\ns_add_u32 m0, {sl}, {lb + i*1024}')
            a(f'buffer_load_dwordx4 {vo}, {srd}, s32 offen{wnt} lds')
    sus(5)
    for n in range(4): issue(n)
    sus(6)
    w_voff('v237', 8192, 'v26')
    a(f's_and_b32 s30, s2, 3\ns_lshl_b32 s30, s30, 2\ns_add_u32 s30, s30, {sI}\ns_lshl_b32 s47, s30, 19')
    a('s_lshr_b32 s30, s2, 2\ns_lshl_b32 s30, s30, 7\ns_add_u32 s47, s47, s30')
    for n in range(4, FI): issue(n)
    sus(7)
    stamp(16)
    a('v_lshrrev_b32 v24, 4, v1\nv_and_b32 v25, 15, v1')
    a('v_lshlrev_b32 v26, 1, v24\nv_xor_b32 v26, v26, v25\nv_lshlrev_b32 v26, 4, v26\nv_lshl_add_u32 v4, v24, 8, v26')
    for i in range(1, 4): a(f'v_xor_b32 v{VOFF+i}, {(8*(i&1) + (i>>1)) << 4:#x}, v4')
    a(f's_lshl_b32 {sBase}, s2, 18\ns_lshl_b32 s30, s3, 12\ns_add_u32 {sBase}, {sBase}, s30')
    a(f's_mul_i32 s38, s3, {RINGW}')
    def t_setup():
        a('v_and_b32 v26, 7, v25\nv_lshlrev_b32 v26, 1, v26\nv_lshrrev_b32 v27, 3, v25\nv_or_b32 v26, v26, v27')
        a('v_lshrrev_b32 v27, 1, v24\nv_xor_b32 v26, v26, v27\nv_lshlrev_b32 v26, 4, v26\nv_lshl_add_u32 v26, v25, 8, v26')
        a(f'v_and_b32 v27, 1, v24\nv_lshl_add_u32 v26, v27, 12, v26\nv_add_u32 v{KA}, s38, v26')
        for j in range(1, 8): a(f'v_xor_b32 v{KA+j}, {j << 5:#x}, v{KA}')
        a('v_lshrrev_b32 v27, 2, v1')
        a('v_and_b32 v26, 7, v27\nv_lshlrev_b32 v26, 1, v26\nv_lshrrev_b32 v28, 3, v27\nv_or_b32 v26, v26, v28')
        a('v_lshrrev_b32 v28, 1, v1\nv_and_b32 v28, 1, v28\nv_xor_b32 v26, v26, v28\nv_lshlrev_b32 v26, 4, v26\nv_lshl_add_u32 v26, v27, 8, v26')
        a(f'v_and_b32 v28, 1, v1\nv_lshl_add_u32 v26, v28, 3, v26\nv_add_u32 v{VA}, s38, v26')
        for t in range(1, 8): a(f'v_xor_b32 v{VA+t}, {t << 5:#x}, v{VA}')
    def t_setup2():
        if su:
            a('s_memrealtime s[92:93]\ns_waitcnt lgkmcnt(0)\nv_mov_b32 v40, 0')
            for k in range(8): a(f'v_writelane_b32 v40, s{70+2*k}, {k}')
            a(f'v_writelane_b32 v40, s92, 8\ns_lshl_b32 s30, s2, 10\ns_add_u32 s30, s30, {DBG + 0x10000}\nv_lshlrev_b32 v41, 2, v0')
            a(f'buffer_store_dword v40, v41, {SRD_WS}, s30 offen')
        for r in range(Q, Q + 32): a(f'v_mov_b32 v{r}, 0')
        a(f'v_mov_b32 {vMax}, 0xff800000\nv_mov_b32 {vSum}, 0')
        a(f's_mov_b32 s40, {f2u(SCALE):#x}\ns_mov_b32 s41, {f2u(LOG2E):#x}')
    def t_setup3():
        w_traddr('v28', 0, 'v26', 'v27')
        a('s_lshr_b32 s42, s2, 6')
        a('v_lshrrev_b32 v26, 5, v1\nv_lshlrev_b32 v27, 1, v26\nv_xor_b32 v27, v27, v1\nv_and_b32 v27, 31, v27\nv_lshlrev_b32 v27, 4, v27\nv_lshl_add_u32 v238, v26, 11, v27')
        for i in range(1, 4): a(f'v_xor_b32 v{238+i}, {i << 6:#x}, v238')
        a(f'v_add_u32 v29, {2*RINGW}, v28\nv_lshl_add_u32 v30, v24, 3, {vM}\nv_lshl_add_u32 v30, s42, 9, v30\nv_lshlrev_b32 v242, 4, v24')
        a('v_and_b32 v26, 7, v1\nv_mul_u32_u24 v26, 528, v26\nv_lshl_add_u32 v26, v24, 4, v26\nv_add_u32 v31, s38, v26')
        a('s_waitcnt lgkmcnt(0)')
        setup_tags()
    def t_readK(t, h):
        def f():
            for j in range(8): a(f'ds_read_b128 {V(H+32*h+4*j,4)}, v{KA+j} offset:{((2*t) % RS)*4096}')
            a('s_waitcnt lgkmcnt(0)')
        return f
    def t_waitq():
        stamp(1)
        await_(C_Q, 4, 'v26')
        stamp(2)
        a(f'v_and_b32 v26, 7, v1\nv_mul_u32_u24 v26, 272, v26\nv_lshrrev_b32 v27, 5, v1\nv_lshl_add_u32 v26, v27, 4, v26\nv_add_u32 v26, {MISC+QL}, v26')
        setexec(0xff0000ffff0000ff)
        for j in range(8): a(f'ds_read_b128 {V(Q+4*j,4)}, v26 offset:{32*j}')
        setexec(-1)
        a('s_waitcnt lgkmcnt(0)')
    def t_qk(t, h):
        def f():
            for j in range(8):
                a(f'v_mfma_f32_16x16x32_bf16 {V(S+4*t,4)}, {V(H+32*h+4*j,4)}, {V(Q+4*j,4)}, {"0" if j == 0 else V(S+4*t,4)}')
        return f
    def t_round(t):
        def f():
            for r in range(4): rnd(V(S+4*t+r))
            for r in range(4): a(f'v_mul_f32 {V(S+4*t+r)}, s40, {V(S+4*t+r)}')
            for r in range(4): rnd(V(S+4*t+r))
            a(f'v_max3_f32 {vMax}, {vMax}, {V(S+4*t)}, {V(S+4*t+1)}\nv_max3_f32 {vMax}, {vMax}, {V(S+4*t+2)}, {V(S+4*t+3)}')
        return f
    def t_max():
        allred('v_max_f32', vMax, 'v26', ('r8', 16, 32))
        a(f'v_mul_f32 {vMax}, s41, {vMax}')
    def t_exp(t):
        def f():
            for r in range(4): a(f'v_fma_f32 {V(S+4*t+r)}, {V(S+4*t+r)}, s41, -{vMax}')
            for r in range(4): a(f'v_exp_f32 {V(S+4*t+r)}, {V(S+4*t+r)}')
            a(f'v_cvt_pk_bf16_f32 {V(PP+2*t)}, {V(S+4*t)}, {V(S+4*t+1)}\nv_cvt_pk_bf16_f32 {V(PP+2*t+1)}, {V(S+4*t+2)}, {V(S+4*t+3)}')
            a(f'v_add_f32 v26, {V(S+4*t)}, {V(S+4*t+1)}\nv_add_f32 v27, {V(S+4*t+2)}, {V(S+4*t+3)}\nv_add_f32 v26, v26, v27\nv_add_f32 {vSum}, {vSum}, v26')
        return f
    def t_ml():
        allred('v_add_f32', vSum, 'v26', ('r8', 16, 32))
        a(f'v_lshl_add_u32 v26, v1, 2, {vM}\nv_lshl_add_u32 v26, s3, 6, v26')
        setexec(0xff)
        a(f'ds_write_b32 v26, {vMax} offset:{MLW}\nds_write_b32 v26, {vSum} offset:{MLW+32}')
        arrive(C_ML)
        stamp(3)
    def readV(p, half):
        slot = slot_of(16 + 2*p + half)
        for t in range(8):
            a(f'ds_read_b64_tr_b16 {V(VS+4*t+2*half,2)}, v{VA+t} offset:{slot*4096}')
    def pv(p, staged):
        u, which = p >> 1, p & 1
        Dd = D2 if which else D1
        for t in range(8):
            if staged: a(f's_waitcnt lgkmcnt({7-t})')
            a(f'v_mfma_f32_16x16x32_bf16 {V(Dd+4*t,4)}, {V(VS+4*t,4)}, {V(PP+4*u,4)}, {"0" if u == 0 else V(Dd+4*t,4)}')
    def t_pv(p):
        def f():
            readV(p, 0); readV(p, 1); pv(p, True)
        return f
    def writeD(which):
        setexec(0xff00ff00ff00ff00 if which else 0x00ff00ff00ff00ff)
        for t in range(8):
            a(f'ds_write_b128 v31, {V((D2 if which else D1)+4*t,4)} offset:{which*4352 + 64*t}')
        setexec(-1)
    def wg_stats(head, mreg, lreg):
        a(f'v_lshl_add_u32 v27, {head}, 2, {vM}')
        for w in range(4): a(f'ds_read_b32 v{mreg+w}, v27 offset:{MLW + 64*w}')
        if lreg:
            for w in range(4): a(f'ds_read_b32 v{lreg+w}, v27 offset:{MLW + 64*w + 32}')
        a('s_waitcnt lgkmcnt(0)')
        a(f'v_max3_f32 v26, v{mreg}, v{mreg+1}, v{mreg+2}\nv_max_f32 v26, v26, v{mreg+3}'); untag([26])
        for w in range(4): a(f'v_sub_f32 v{mreg+w}, v{mreg+w}, v26')
        for w in range(4): a(f'v_exp_f32 v{mreg+w}, v{mreg+w}')
    def t_mlpub():
        await_(C_ML, 4, 'v26')
        Ls = a.lab('MP')
        a(f's_cmp_lg_u32 s3, 0\ns_cbranch_scc1 {Ls}')
        a('v_and_b32 v72, 7, v1')
        wg_stats('v72', 64, 68)
        a(f'v_or_b32 v76, {sT}, v26\nv_mul_f32 v77, v64, v68\nv_fmac_f32 v77, v65, v69\nv_fmac_f32 v77, v66, v70\nv_fmac_f32 v77, v67, v71')
        tag('v77')
        a(f'v_mov_b32 v78, {sT}\nv_mov_b32 v79, {sT}\nv_lshlrev_b32 v72, 4, v72\ns_lshl_b32 s30, s2, 7\ns_add_u32 s30, s30, {ML}')
        setexec(0xff)
        a(f'buffer_store_dwordx4 v[76:79], v72, {SRD_WS}, s30 offen sc1')
        setexec(-1)
        a(f'{Ls}:')
    def t_fread():
        a('v_lshrrev_b32 v232, 5, v0')
        wg_stats('v232', 228, None)
        a('v_mul_u32_u24 v26, 528, v232\nv_and_b32 v27, 31, v0\nv_lshl_add_u32 v232, v27, 4, v26')
        a(f'v_add_u32 v233, {2*RINGW}, v232\nv_and_b32 v234, 15, v0\nv_lshlrev_b32 v234, 4, v234\nv_lshrrev_b32 v26, 4, v0\nv_lshl_add_u32 v234, v26, 14, v234')
        a(f's_lshr_b32 s45, s2, 6\ns_lshl_b32 s45, s45, 18\ns_and_b32 s30, s2, 63\ns_lshl_b32 s30, s30, 8\ns_add_u32 s45, s45, s30\ns_add_u32 s45, s45, {OB}')

    sched = {}
    def at(n, f): sched.setdefault(n, []).append(f)
    land = lambda t: landed_at(pos[('kv', 8*t + 7)])
    def reuse(t):
        later = [g for g in range(2*t + 2, 32) if slot_of(g) == slot_of(2*t)]
        return pos[('kv', 4*later[0])] if later else NS + 100
    at(landed_at(pos[('w1', 3)]), lambda: arrive(C_W1))
    at(landed_at(pos[('w1', 3)]) + 1, t_setup)
    at(landed_at(pos[('w1', 3)]) + 3, t_setup2)
    at(landed_at(pos[('wq', 7)]), lambda: arrive(C_WQ))
    at(landed_at(pos[('wq', 7)]) + 1, t_setup3)
    if T1: at(T1, lambda: arrive(C_T1))
    if T2: at(T2, lambda: arrive(C_T2))
    for t in range(4): at(land(t), t_readK(t, t))
    nq = pos[('kv', NQ)]
    assert nq >= land(3)
    at(nq, t_waitq)
    n = nq + 1
    free_h = {}
    for t in range(4):
        at(n, t_qk(t, t)); free_h[t] = n + 1
        at(n + 1, t_round(t))
        n += 2
    rd = {}
    for t in range(4, 8):
        rd[t] = max(free_h[t-4], land(t))
        assert rd[t] < reuse(t), (t, rd[t])
        at(rd[t], t_readK(t, t - 4))
    for t in range(4, 8):
        n = max(n, rd[t] + 1)
        at(n, t_qk(t, t - 4)); at(n + 1, t_round(t)); n += 2
    at(n, t_max); n += 1
    for t in range(8):
        at(n, t_exp(t))
        if t & 1: n += 1
    at(n, t_ml); at(n + MLP_AT, t_mlpub); at(n + MLP_AT + 4, t_fread); n += 1
    for p in range(7):
        m = max(n, land(8 + p))
        assert m < reuse(8 + p) and m < NS, (p, m)
        at(m, t_pv(p))
        n = m + 1
    at(n, lambda: (writeD(0), arrive(C_R1)))
    NV = pos[('kv', 127)]
    ACC = 208
    def red_half(hf, base):
        for w in range(4):
            a(f'ds_read_b128 {V(base+4*w,4)}, v{232 + (w >> 1)} offset:{(w & 1)*RINGW + hf*4352}')
        for w in range(4):
            a(f's_waitcnt lgkmcnt({3-w})')
            sel = w & 1; fp = V(228 + (w & 2), 2)
            for h2 in range(2):
                if w == 0 and hf == 0: a(f'v_pk_mul_f32 {V(ACC+2*h2,2)}, {V(base+2*h2,2)}, {fp} op_sel:[0,{sel}] op_sel_hi:[1,{sel}]')
                else: a(f'v_pk_fma_f32 {V(ACC+2*h2,2)}, {V(base+4*w+2*h2,2)}, {fp}, {V(ACC+2*h2,2)} op_sel:[0,{sel},0] op_sel_hi:[1,{sel},1]')
    def t_pre():
        a('v_and_b32 v27, 8, v1\nv_xor_b32 v27, 8, v27\nv_mul_u32_u24 v27, 544, v27\nv_add_u32 v31, v31, v27')
        await_(C_R1, 4, 'v26', sleep=0)
        red_half(0, 192)
    def t_final():
        stamp(4)
        readV(7, 1)
        def wr(t): a(f'ds_write_b128 v31, {V(D2+4*t,4)} offset:{4352 + 64*t}')
        for t in range(8):
            a(f's_waitcnt lgkmcnt({7 - t + max(0, t - 4)})')
            a(f'v_mfma_f32_16x16x32_bf16 {V(D2+4*t,4)}, {V(VS+4*t,4)}, {V(PP+12,4)}, {V(D2+4*t,4)}')
            if t >= 4: wr(t - 4)
        for t in range(4, 8): wr(t)
        arrive(C_RED)
        await_(C_RED, 4, 'v26', sleep=0)
        red_half(1, 192)
        for e in (0, 3): tag(V(ACC+e))
        a(f'buffer_store_dwordx4 {V(ACC,4)}, v234, {SRD_WS}, s45 offen sc1')
        arrive(C_PUB)
        stamp(5)
    def draw():
        Ls = a.lab('RK')
        a(f's_cmp_lg_u32 s3, 0\ns_cbranch_scc1 {Ls}')
        a(f's_lshl_b32 s30, s42, 12\ns_add_u32 s30, s30, {RK}\nv_mov_b32 v72, 1\nv_mov_b32 v73, 0')
        setexec(1)
        a(f'buffer_atomic_add v72, v73, {SRD_WS}, s30 offen sc0 sc1')
        setexec(-1)
        a(f'{Ls}:')
    def post(c):
        Ls = a.lab('RK')
        a(f's_cmp_lg_u32 s3, 0\ns_cbranch_scc1 {Ls}')
        setexec(1)
        a(f'v_add_u32 v72, 1, v72\nds_write_b32 {vM}, v72 offset:{CNT + 4*c}')
        setexec(-1)
        a(f'{Ls}:')
    at(NV - TR - 1, draw)
    assert TR >= 0
    at(landed_at(NV - TR), lambda: post(C_RANK))
    at(max(landed_at(pos[('kv', 123)]), n), lambda: readV(7, 0))
    nowait = set(range(landed_at(NV) + 1, min(landed_at(NV) + 1 + XTRA, NS)))
    n_final = max([landed_at(NV)] + list(nowait))
    assert n_final < NS
    at(n_final, t_final)
    at(landed_at(NV) - 1, t_pre)
    def t_mode():
        a(f'ds_read_b32 v26, {vM} offset:{CNT + 4*C_RANK}\ns_waitcnt lgkmcnt(0)\nv_readfirstlane_b32 s47, v26')
    if Fhi:
        at(CTL - 1, t_mode); at(CTL + 3, t_mode)
    for n in range(FI, NV + 1):
        a(f's_waitcnt vmcnt({Fn(n)-1})')
        if n >= CTL:
            Lg = a.lab('GO')
            a(f's_cmp_ge_u32 s47, {rth}\ns_cbranch_scc1 {Lg}\ns_waitcnt vmcnt({Flo-1})\n{Lg}:')
        issue(n)
        if n % 16 == 0: stamp(18 + n // 16)
        for f in sched.get(n, []): f()
    st0 = 1 if n_final == NS - 1 else 0
    LM, LN, LE0, LE1, LTD = a.lab('M'), a.lab('N'), a.lab('E0'), a.lab('E1'), a.lab('TD')
    PUBS = ['s44', 's47', 's58']
    def unit0(ld, extra={}):
        for n in range(NV + 1, NS):
            if n not in nowait: a(f's_waitcnt vmcnt({Fn(n)-1})')
            for f in extra.get(n - NV - 1, []): f()
            ld(n - NV - 1)
            for f in sched.get(n, []): f()
    def wo_ld(j):
        def f(i):
            a(f's_add_u32 s32, s44, {i*4096 + 512*j}')
            a(f's_add_u32 m0, s59, {WB + i*1024}' if j == 0 else f's_add_u32 m0, s38, {16384 + i*1024}')
            a(f'buffer_load_dwordx4 v{238 + i % 4}, {SRD_WO}, s32 offen{wnt} lds')
        return f
    def m2_ld(k):
        def f(i):
            a(f's_add_u32 s32, s46, {8*i*12288}\ns_add_u32 m0, s38, {16384 - 8192*k + i*1024}')
            a(f'buffer_load_dwordx4 v236, {SRD_WM}, s32 offen{wnt} lds')
        return f
    def m2_addr(k, none):
        a(f's_sub_u32 s43, s30, 33\ns_cmp_ge_u32 s43, 64\ns_cbranch_scc1 {none}')
        a(f's_lshl_b32 s30, s42, 2\ns_add_u32 s30, s30, {sI}\ns_mul_i32 s46, s30, {64*12288}\ns_lshl_b32 s30, s43, 7\ns_add_u32 s46, s46, s30\ns_add_u32 s46, s46, 4096')
        d = PUBS[k]
        a(f's_lshl_b32 {d}, s42, 14\ns_lshl_b32 s30, s43, 8\ns_add_u32 {d}, {d}, s30\ns_lshl_b32 s30, {sI}, 6\ns_add_u32 {d}, {d}, s30\ns_add_u32 {d}, {d}, {P3}')
    def m2_issue(k):
        for i in range(8):
            a(f's_waitcnt vmcnt({AF-1})')
            if k == 1 and i == T2AT + AF - 1: post(C_RANK3)
            if k == 1 and i == T2AT: draw()
            m2_ld(k)(i)
        assert T2AT + AF - 1 <= 7
    def m2_compute(k):
        arrive(C_M2)
        await_(C_M2, 4*(k+1), 'v6', sleep=0)
        for ks in range(8):
            for hf in range(2):
                a(f'ds_read_b64_tr_b16 {V(96+4*ks+2*hf,2)}, {"v28" if ks < 4 else "v29"} offset:{((ks >> 1) & 1)*RINGW + (ks & 1)*4096 + hf*2048 + 8192*(2-k)}')
        a('s_waitcnt lgkmcnt(0)')
        w_mfma(8 + 4*k, 96, 128, 8)
        for e in range(4): tag(V(8+4*k+e))
        setexec(0x0001000100010001)
        a(f'buffer_store_dwordx4 {V(8+4*k,4)}, v242, {SRD_WS}, {PUBS[k]} offen sc1')
        setexec(-1)
    assert 2 <= AF <= 8
    await_(C_RANK, 1, 'v26', sleep=0)
    a(f's_sub_u32 s33, s30, 1\ns_cmp_ge_u32 s33, 32\ns_cbranch_scc1 {LM}')
    a(f's_lshr_b32 s44, s33, 1\ns_lshl_b32 s30, s42, 4\ns_add_u32 s44, s44, s30\ns_lshl_b32 s44, s44, 17\ns_lshl_b32 s30, {sI}, 15\ns_add_u32 s44, s44, s30')
    a('s_and_b32 s30, s33, 1\ns_lshl_b32 s30, s30, 10\ns_add_u32 s44, s44, s30')
    unit0(wo_ld(0))
    for i in range(8):
        a(f's_waitcnt vmcnt({CF-1})')
        wo_ld(1)(i)
    arrive(C_MD)
    wo_setup(1)
    a('s_waitcnt vmcnt(0)')
    arrive(C_WO)
    await_(C_WO, 4, 'v4', sleep=0)
    for ct in range(4):
        for ks in range(2):
            for hf in range(2):
                a(f'ds_read_b64_tr_b16 {V(120+8*ct+4*ks+2*hf,2)}, v{84+4*ks+ct} offset:{hf*RINGW}')
    wo_finish()
    a(f's_branch {LTD}')
    a(f'{LM}:')
    m2_addr(0, LN)
    fl = Fn(NS - 1)
    assert fl - 1 + NV + 1 not in nowait
    unit0(m2_ld(0), {0: [draw], fl - 1: [lambda: post(C_RANK2)]})
    b_read(128, 'v30', 8)
    await_(C_PUB, 4, 'v6', sleep=0)
    await_(C_RANK2, 1, 'v4', sleep=0)
    m2_addr(1, LE0)
    m2_issue(1)
    m2_compute(0)
    await_(C_RANK3, 1, 'v4', sleep=0)
    m2_addr(2, LE1)
    m2_issue(2)
    m2_compute(1)
    a('s_waitcnt vmcnt(1)')
    m2_compute(2)
    a(f's_branch {LTD}\n{LE1}:\ns_waitcnt vmcnt(1)')
    m2_compute(1)
    a(f's_branch {LTD}\n{LE0}:\ns_waitcnt vmcnt({st0})')
    m2_compute(0)
    a(f's_branch {LTD}')
    a(f'{LN}:')
    for n in range(NV + 1, NS):
        for f in sched.get(n, []):
            a(f's_waitcnt vmcnt({max(0, NV - (n - Fn(n)))})')
            f()
    a(f'{LTD}:')
    arrive(C_AD)
    stamp(8)
    a(f's_and_b32 s30, s2, 7\ns_cmp_lg_u32 s30, {RX}\ns_cbranch_scc1 L_fin2')
    a('s_cmp_lg_u32 s3, 1\ns_cbranch_scc1 L_fin2')
    G = 100
    red_setup()
    a(f's_mov_b32 s40, {ST0}\ns_mov_b32 s41, {ST}\ns_lshl_b32 s42, {sPi}, 7\ns_add_u32 s42, s42, {TAB}')
    a(f'buffer_load_dword v120, v5, {SRD_WS}, s40 offen sc1\nbuffer_load_dword v121, v5, {SRD_WS}, s41 offen sc1\nbuffer_load_dword v122, v5, {SRD_WS}, s42 offen sc1')
    if pretouch == 2:
        a(f's_mov_b32 s42, {P4}\nv_lshlrev_b32 v12, 7, v1\nv_lshl_add_u32 v12, {sPi}, 10, v12\nbuffer_load_dword v123, v12, {SRD_WS}, s42 offen sc1')
    l3 = [(G + k, 1, 'v28', P3 + (k % 2)*16384 + (k // 2)*4096) for k in range(8)]
    n3 = 3 if gbl else 4
    gather(l3[:2*n3], 'v26', sleep=p3sleep)
    untag(range(G, G + 2*n3))
    for j in range(n3): a(f'v_add_f32 v{152+j}, v{G+2*j}, v{G+2*j+1}')
    for j in range(n3): allred('v_add_f32', f'v{152+j}', None, ('r8',))
    for j in range(n3): rnd(f'v{152+j}')
    a('v_add_f32 v154, 1.0, v154'); rnd('v154')
    a(f'ds_write_b128 v6, v[152:155] offset:{SM}')
    arrive(C_SM)
    a('v_cndmask_b32 v157, v154, v153, s[100:101]')
    a('v_cndmask_b32 v16, 1.0, v153, s[100:101]\nv_mul_f32 v20, v157, v16\nv_mul_f32 v21, v157, v154\nv_cndmask_b32 v22, v153, 0, s[100:101]\nv_mov_b32 v23, 0')
    a(f's_mov_b32 s41, {ST0}')
    st_publish('s41')
    stamp(10)
    if gbl:
        gather([(G + 8 + k, 1, 'v28', l3[6+k][3]) for k in range(2)], 'v26', sleep=p3sleep)
        untag([G + 8, G + 9])
        a(f'v_add_f32 v155, v{G+8}, v{G+9}')
        allred('v_add_f32', 'v155', None, ('r8',))
        rnd('v155')
        a(f'ds_write_b32 v6, v155 offset:{SM + 12}')
    gather([(G + 4, 4, 'v5', ST0 + (0 if dual else STB))], 'v26', full=True, sleep=2, alt=STB if dual else None)
    st_reduce(G + 4)
    a(f'v_and_b32 v13, 1, v1\nv_lshlrev_b32 v13, 4, v13\nv_lshl_add_u32 v13, v9, 2, v13\nv_add_u32 v13, {vM}, v13')
    setexec(0x0003000300030003)
    a(f'ds_write_b32 v13, v{G+4} offset:{SM + 1024}')
    arrive(C_TAB)
    stamp(11)
    a('s_branch L_fin2')

    a('L_X:')
    if xprio: a(f's_setprio {xprio}')
    XA, XB, XD, G = 32, 64, 96, 100
    a('v_and_b32 v10, 255, v0')
    a(f'v_lshlrev_b32 v11, 3, v10\nglobal_load_dwordx2 v[12:13], v11, {sC}')
    a(f'v_lshlrev_b32 v11, 5, v1\nglobal_load_dwordx4 v[16:19], v11, {sX}\nglobal_load_dwordx4 v[20:23], v11, {sX} offset:16')
    a('s_and_b32 s42, s2, 3\ns_lshr_b32 s43, s2, 2\ns_and_b32 s44, s2, 7\ns_lshr_b32 s45, s2, 3')
    a('v_lshrrev_b32 v9, 4, v1\nv_and_b32 v15, 15, v1')
    a(f'v_lshl_add_u32 v28, v15, 2, v9\nv_lshl_add_u32 v28, {sI}, 6, v28')
    a('v_lshl_add_u32 v11, s42, 8, v28\nv_lshlrev_b32 v11, 1, v11\nv_mov_b32 v14, 0')
    a(f'global_load_short_d16_hi v14, v11, {sX}')
    if tlb:
        Lt = a.lab('TL')
        a(f's_cmp_lg_u32 {sI}, 1\ns_cbranch_scc1 {Lt}')
        a('s_lshl_b32 s30, s2, 18\nv_mov_b32 v11, 0\ns_lshr_b32 s31, s2, 6\ns_lshl_b32 s32, s31, 21\ns_mul_i32 s31, s31, 0x300000\nv_lshlrev_b32 v24, 20, v1')
        setexec(1)
        a(f'buffer_load_dword v250, v11, {SRD_K}, s30 offen nt\nbuffer_load_dword v251, v11, {SRD_V}, s30 offen nt\nbuffer_load_dword v252, v11, {SRD_WO}, s32 offen nt')
        setexec(7)
        a(f'buffer_load_dword v253, v24, {SRD_WM}, s31 offen nt')
        setexec(-1)
        a(f'{Lt}:')
    Lz0 = a.lab('RZ')
    a(f's_and_b32 s30, s2, 63\ns_add_u32 s30, s30, {sI}\ns_cmp_lg_u32 s30, 0\ns_cbranch_scc1 {Lz0}')
    a(f's_lshl_b32 s30, s2, 6\ns_add_u32 s30, s30, {RK}\nv_lshlrev_b32 v11, 2, v1\nv_mov_b32 v24, 0')
    setexec(0xffffffff)
    a(f'buffer_store_dword v24, v11, {SRD_WS}, s30 offen sc1')
    setexec(-1)
    a(f's_waitcnt vmcnt(0)\n{Lz0}:')
    stamp(17)
    w_traddr('v6', WA, 'v11', 'v24')
    a(f'v_add_u32 v7, {(WB - WA) & 0xffffffff:#x}, v6')
    a(f'v_lshl_add_u32 v8, v9, 3, {vM}\nv_lshlrev_b32 v29, 4, v9')
    a('s_waitcnt vmcnt(3) lgkmcnt(0)')
    stamp(20)
    a(f's_mov_b32 s30, {f2u(-LOG2E):#x}')
    a('v_lshlrev_b32 v24, 16, v12\nv_and_b32 v25, 0xffff0000, v12\nv_lshlrev_b32 v26, 16, v13\nv_and_b32 v27, 0xffff0000, v13')
    for i in range(4): a(f'v_mul_f32 v{100+i}, s30, v{24+i}')
    for i in range(4): a(f'v_exp_f32 v{100+i}, v{100+i}')
    for i in range(4): a(f'v_add_f32 v{100+i}, 1.0, v{100+i}')
    for i in range(4): a(f'v_rcp_f32 v{100+i}, v{100+i}')
    for i in range(4): a(f'v_mul_f32 v{24+i}, v{24+i}, v{100+i}')
    a('v_cvt_pk_bf16_f32 v12, v24, v25\nv_cvt_pk_bf16_f32 v13, v26, v27')
    a(f'v_lshl_add_u32 v11, v10, 3, {vM}\nds_write_b64 v11, v[12:13] offset:{SC}')
    arrive(C_W1)
    setup_tags()
    a(f's_lshl_b32 s46, s44, 13\ns_lshl_b32 s30, s45, 8\ns_add_u32 s46, s46, s30\ns_lshl_b32 s30, {sI}, 6\ns_add_u32 s46, s46, s30\ns_add_u32 s46, s46, {P1}')
    stamp(1)
    await_(C_W1, 8, 'v11', sleep=0)
    stamp(22)
    w_read(XA, 'v6', 4)
    a(f'v_lshl_add_u32 v11, s44, 8, v8')
    b_read(XB, 'v11', 4)
    def publish(s_off, fine=False):
        for e in range(4):
            if fine: a(f'v_bfi_b32 {V(XD+e)}, 3, {sT}, {V(XD+e)}')
            else: tag(V(XD+e))
        setexec(0x0001000100010001)
        a(f'buffer_store_dwordx4 {V(XD,4)}, v29, {SRD_WS}, {s_off} offen sc1')
        setexec(-1)
    w_mfma(XD, XA, XB, 4, staged=True)
    publish('s46', True)
    stamp(2)
    a('s_waitcnt vmcnt(1)')
    for i in range(8):
        a(f'v_lshlrev_b32 v{100+2*i}, 16, v{16+i}\nv_and_b32 v{101+2*i}, 0xffff0000, v{16+i}')
    a('v_add_f32 v16, v100, v101')
    for i in range(2, 16): a(f'v_add_f32 v16, v16, v{100+i}')
    allred('v_add_f32', 'v16', 'v17')
    a(f'v_mul_f32 v16, {f2u(1/1024):#x}, v16\nv_mov_b32 v18, 0')
    for i in range(16): a(f'v_sub_f32 v17, v{100+i}, v16\nv_fmac_f32 v18, v17, v17')
    allred('v_add_f32', 'v18', 'v17')
    a(f'v_mul_f32 v18, {f2u(1/1024):#x}, v18')
    ln_scale('v16', 'v18')
    a('v_sub_f32 v14, v14, v16'); rnd('v14'); a('v_mul_f32 v14, v14, v18'); rnd('v14')
    stamp(23)
    await_(C_WQ, 4, 'v11')
    w_read(XA, 'v7', 8)
    a('s_waitcnt lgkmcnt(0)')
    stamp(3)
    a(f's_lshl_b32 s30, s42, 10\ns_lshl_b32 s31, {sI}, 8\ns_add_u32 s30, s30, s31\nv_lshl_add_u32 v12, v15, 4, s30\nv_lshl_add_u32 v12, v9, 13, v12')
    if T1: await_(C_T1, 2, 'v11', sleep=2)
    stamp(19)
    gather([(G + 4*i, 4, 'v12', P1 + (i & 1)*32768 + (i >> 1)*4096) for i in range(4)], 'v26', sleep=psleep, full=2)
    untag(range(G, G + 16), True)
    stamp(4)
    for hf in range(2):
        b = G + 8*hf
        a(f'v_pk_add_f32 {V(b,2)}, {V(b,2)}, {V(b+4,2)}\nv_pk_add_f32 {V(b+2,2)}, {V(b+2,2)}, {V(b+6,2)}')
        scat4(b); rnd(f'v{b}')
    a(f'v_add_f32 v{G+8}, 1.0, v{G+8}'); rnd(f'v{G+8}')
    a(f'v_mul_f32 v14, v14, v{G+8}'); rnd('v14')
    a(f'v_add_f32 v14, v14, v{G}'); rnd('v14')
    a(f'v_lshl_add_u32 v11, v28, 1, {vM}\nds_write_b16_d16_hi v11, v14 offset:{HV}')
    arrive(C_H)
    a(f's_lshl_b32 s47, s42, 14\ns_lshl_b32 s30, s43, 8\ns_add_u32 s47, s47, s30\ns_lshl_b32 s30, {sI}, 6\ns_add_u32 s47, s47, s30\ns_add_u32 s46, s47, {P2}')
    await_(C_H, 4, 'v11', sleep=0)
    a(f'v_add_u32 v11, {HV}, v8')
    b_read(XB, 'v11', 8)
    w_mfma(XD, XA, XB, 8, staged=True)
    publish('s46', True)
    stamp(5)
    a('v_lshlrev_b32 v12, 4, v1')
    a(f's_lshr_b32 s30, s2, 6\ns_lshl_b32 s30, s30, 12\ns_lshl_b32 s32, {sI}, 10\ns_add_u32 s30, s30, s32\nv_add_u32 v12, s30, v12')
    if T2: await_(C_T2, 2, 'v11', sleep=2)
    stamp(8)
    gather([(G + 4*i, 4, 'v12', P2 + i*16384) for i in range(4)], 'v26', sleep=psleep, full=2)
    untag(range(G, G + 16), True)
    for e in (0, 2):
        a(f'v_pk_add_f32 {V(G+e,2)}, {V(G+e,2)}, {V(G+4+e,2)}\nv_pk_add_f32 {V(G+8+e,2)}, {V(G+8+e,2)}, {V(G+12+e,2)}\nv_pk_add_f32 {V(G+e,2)}, {V(G+e,2)}, {V(G+8+e,2)}')
    a(f'v_cvt_pk_bf16_f32 v{G}, v{G}, v{G+1}\nv_cvt_pk_bf16_f32 v{G+1}, v{G+2}, v{G+3}')
    a(f's_mul_i32 s30, {sI}, 544\nv_lshrrev_b32 v11, 5, v1\nv_lshlrev_b32 v11, 4, v11\nv_lshl_add_u32 v11, v1, 3, v11\nv_add3_u32 v11, v11, {vM}, s30')
    a(f'ds_write_b64 v11, {V(G,2)} offset:{QL}')
    arrive(C_Q)
    if lite:
        Ll = a.lab('LI')
        a(f's_cmp_lg_u32 s3, 5\ns_cbranch_scc1 {Ll}\ns_lshl_b32 s30, s2, 7\ns_add_u32 s30, s30, {DBG}\nv_mov_b32 v11, 0\nv_mov_b32 v12, s34')
        setexec(1)
        a(f'buffer_store_dword v12, v11, {SRD_WS}, s30 offen')
        setexec(-1)
        a(f'{Ll}:')
    stamp(6)
    if xprio: a('s_setprio 0')
    CW, CB, C2 = 160, 174, 188
    a('v_lshlrev_b32 v11, 2, v10\nv_add_u32 v12, 0x1000, v11\nv_mov_b32 v17, 0\nv_mov_b32 v159, 0')
    for j, ptr in enumerate((sW1, sB1, sW2)):
        for i in range(7): a(f'global_load_dword v{G+7*j+i}, {"v11" if i < 4 else "v12"}, {ptr} offset:{(i % 4)*1024}')
    a(f'global_load_short_d16_hi v159, v17, {sB2}')
    a(f'v_mov_b32 v44, {f2u(c1):#x}\nv_mov_b32 v45, {f2u(c0):#x}')
    a(f'v_lshl_add_u32 v13, v9, 2, {vM}\nv_lshl_add_u32 v13, {sI}, 7, v13')
    a(f's_lshl_b32 s39, s2, 5\ns_and_b32 s40, s39, 0xfff\ns_add_u32 s40, s40, {E0 << 7}\ns_lshr_b32 s30, s39, 12\ns_lshl_b32 s30, s30, 15\ns_or_b32 s40, s40, s30\ns_lshl_b32 s40, s40, 16')
    a('s_mov_b32 s41, 0\ns_waitcnt vmcnt(0)')
    for j, base in enumerate((CW, CB, C2)):
        for i in range(7): a(f'v_lshlrev_b32 v{base+2*i}, 16, v{G+7*j+i}\nv_and_b32 v{base+2*i+1}, 0xffff0000, v{G+7*j+i}')
    def weights():
        a('s_lshr_b32 s30, s38, 4\ns_lshl_b32 s30, s30, 13\ns_lshr_b32 s31, s38, 1\ns_and_b32 s31, s31, 7\ns_lshl_b32 s31, s31, 4\ns_add_u32 s30, s30, s31\nv_lshl_add_u32 v12, v1, 7, s30')
        gather([(G, 4, 'v12', ML)], 'v26', sleep=psleep, full=True)
        untag([G, G + 1])
        a(f'v_mov_b32 v16, v{G}')
        allred('v_max_f32', 'v16', 'v11')
        a(f'v_sub_f32 v16, v{G}, v16\nv_exp_f32 v16, v16\nv_mul_f32 v17, v16, v{G+1}')
        allred('v_add_f32', 'v17', 'v11')
        a(f'v_rcp_f32 v17, v17\nv_and_b32 v12, 15, v1\nv_lshlrev_b32 v12, 4, v12\nv_lshl_add_u32 v12, v9, 2, v12\nv_add_u32 v12, {vM}, v12\nv_mul_f32 v16, v16, v17')
        a(f'ds_write_b32 v12, v16 offset:{WL}')
        arrive(C_WL)
    def early_touch():
        Le = a.lab('ET')
        a(f's_cmp_lg_u32 {sI}, 2\ns_cbranch_scc1 {Le}\ns_and_b32 s30, s2, 7\ns_cmp_lg_u32 s30, {RX}\ns_cbranch_scc1 {Le}')
        a(f'v_lshlrev_b32 v11, 7, v1\nv_lshl_add_u32 v11, {sPi}, 10, v11\ns_mov_b32 s30, {P4}\nbuffer_load_dword v250, v11, {SRD_WS}, s30 offen sc1')
        a(f'v_and_b32 v11, 15, v1\nv_lshlrev_b32 v11, 12, v11\nv_lshl_add_u32 v11, {sPi}, 4, v11\ns_mov_b32 s30, {P3}\nbuffer_load_dword v251, v11, {SRD_WS}, s30 offen sc1')
        a(f'v_lshlrev_b32 v11, 4, v1\ns_mov_b32 s30, {ST0}\ns_mov_b32 s31, {ST}\nbuffer_load_dword v252, v11, {SRD_WS}, s30 offen sc1\nbuffer_load_dword v253, v11, {SRD_WS}, s31 offen sc1')
        a(f'{Le}:')
    if ept == 2: early_touch()
    a('L_tab:')
    for e in range(4): a(f'v_mov_b32 v{40+e}, s40\ns_add_u32 s40, s40, 0x10000\nv_mov_b32 v{16+e}, 0')
    Lz = a.lab('TZ')
    a(f's_add_u32 s39, s39, 4\ns_cmp_lg_u32 s39, 4096\ns_cbranch_scc1 {Lz}\nv_mov_b32 v43, 0\n{Lz}:')
    units = []
    for i in range(14):
        sel = i & 1; pr = i & ~1
        for dp in range(2):
            units.append((lambda u, sel=sel, pr=pr, dp=dp: f'v_pk_fma_f32 {u}, {V(40+2*dp,2)}, {V(CW+pr,2)}, {V(CB+pr,2)} op_sel:[0,{sel},{sel}] op_sel_hi:[1,{sel},{sel}]',
                          lambda u, sel=sel, pr=pr, dp=dp: f'v_pk_fma_f32 {V(16+2*dp,2)}, {u}, {V(C2+pr,2)}, {V(16+2*dp,2)} op_sel:[0,{sel},0] op_sel_hi:[1,{sel},1]'))
    gelu_units(units, 48, 64, 4)
    scat4(16)
    allred('v_add_f32', 'v16', None, (1, 2, 'hm', 'm'))
    setexec(0x0001000100010001)
    a(f'ds_write_b32 v13, v16 offset:{YT}')
    setexec(-1)
    a('v_add_u32 v13, 16, v13\ns_add_u32 s41, s41, 1\ns_cmp_lt_u32 s41, 8\ns_cbranch_scc1 L_tab')
    arrive(C_YT)
    if ept == 1: early_touch()
    stamp(7)
    LX3, LXD, LXM, LXR = a.lab('X3'), a.lab('XD'), a.lab('XM'), a.lab('XR')
    a(f's_cmp_lg_u32 {sI}, 0\ns_cbranch_scc1 {LX3}')
    await_(C_YT, 4, 'v11')
    a(f'v_and_b32 v12, 7, v1\nv_lshlrev_b32 v12, 4, v12\nv_add_u32 v11, {vM}, v12')
    for w in range(4): a(f'ds_read_b128 {V(48+4*w,4)}, v11 offset:{YT + 128*w}')
    a(f's_lshl_b32 s30, s2, 7\ns_add_u32 s30, s30, {TAB}\ns_waitcnt lgkmcnt(0)')
    for e in (0, 2): a(f'v_pk_add_f32 {V(48+e,2)}, {V(48+e,2)}, {V(52+e,2)}\nv_pk_add_f32 {V(56+e,2)}, {V(56+e,2)}, {V(60+e,2)}\nv_pk_add_f32 {V(48+e,2)}, {V(48+e,2)}, {V(56+e,2)}')
    for e in range(4): rnd(V(48+e))
    for e in range(4): a(f'v_add_f32 v{48+e}, v{48+e}, v159')
    for e in range(4): rnd(V(48+e))
    for e in range(4): a(f'v_or_b32 v{48+e}, {sT}, v{48+e}')
    setexec(0xff)
    a(f'buffer_store_dwordx4 v[48:51], v12, {SRD_WS}, s30 offen sc1')
    setexec(-1)
    a(f'{LX3}:')
    await_(C_RANK, 1, 'v11', sleep=2)
    a(f's_sub_u32 s33, s30, 1\ns_cmp_ge_u32 s33, 32\ns_cbranch_scc1 {LXM}')
    a('s_lshr_b32 s38, s33, 1\ns_lshr_b32 s30, s2, 6\ns_lshl_b32 s30, s30, 4\ns_add_u32 s38, s38, s30')
    a(f's_cmp_lg_u32 {sI}, 3\ns_cbranch_scc1 {LXD}')
    weights()
    a(f'{LXD}:')
    stamp(9)
    a(f's_lshl_b32 s30, s38, 14\ns_lshl_b32 s32, {sI}, 6\ns_add_u32 s30, s30, s32')
    a('v_and_b32 v13, 3, v1\nv_lshl_add_u32 v12, v13, 4, s30\nv_lshrrev_b32 v11, 2, v1\nv_lshl_add_u32 v12, v11, 8, v12')
    a(f'v_lshlrev_b32 v13, 3, v13\nv_lshl_add_u32 v13, v9, 1, v13\nv_lshl_add_u32 v13, {sI}, 5, v13\nv_add_u32 v13, {vM}, v13')
    W = 80
    a(f'v_lshl_add_u32 v14, v11, 4, {vM}')
    wo_setup(0)
    LH, LHD, LHS = a.lab('H'), a.lab('HD'), a.lab('HS')
    for i in range(4): a(f's_mov_b32 {SOFF(i)}, {OB + 4096*i:#x}')
    def h1ld(i): a(f'buffer_load_dwordx4 {V(G+4*i,4)}, v12, {SRD_WS}, {SOFF(i)} offen sc1')
    await_(C_WL, 1, 'v11', sleep=1)
    a(f'ds_read_b128 {V(W,4)}, v14 offset:{WL}')
    await_(C_MD, 4, 'v11', sleep=1)
    stamp(10)
    for i in range(4): h1ld(i)
    await_(C_WO, 4, 'v11', sleep=0)
    for ct in range(4):
        for ks in range(2):
            for hf in range(2):
                a(f'ds_read_b64_tr_b16 {V(120+8*ct+4*ks+2*hf,2)}, v{68+ct} offset:{ks*16384 + hf*8192}')
    stamp(13)
    a(f's_mov_b32 {sSpin}, {spin}')
    a(f'{LH}:\ns_waitcnt vmcnt(0)')
    for i in range(4): a(f'v_perm_b32 v11, v{G+4*i+3}, v{G+4*i}, {sSelA}\nv_cmp_ne_u32 {MASK(i)}, {sT2}, v11')
    a(f's_bcnt1_i32_b64 s30, {MASK(0)}')
    for i in range(1, 4): a(f's_bcnt1_i32_b64 s31, {MASK(i)}\ns_add_u32 s30, s30, s31')
    a(f's_cmp_eq_u32 s30, 0\ns_cbranch_scc1 {LHD}')
    a(f's_sub_u32 {sSpin}, {sSpin}, 1\ns_cbranch_scc1 {LHD}')
    a(f's_cmp_le_u32 s30, {h1thr}\ns_cbranch_scc1 {LHS}\ns_sleep {h1sleep}\n{LHS}:')
    for i in range(4):
        Sk = a.lab('GS')
        a(f's_wqm_b64 exec, {MASK(i)}\ns_cbranch_execz {Sk}')
        h1ld(i)
        a(f'{Sk}:')
    a(f's_mov_b64 exec, -1\ns_branch {LH}\n{LHD}:')
    untag([G + 4*i + e for i in range(4) for e in (0, 3)])
    for e in (0, 2): a(f'v_pk_mul_f32 {V(G+e,2)}, {V(G+e,2)}, {V(W,2)} op_sel:[0,0] op_sel_hi:[1,0]')
    for i in range(1, 4):
        for e in (0, 2): a(f'v_pk_fma_f32 {V(G+e,2)}, {V(G+4*i+e,2)}, {V(W+(i&2),2)}, {V(G+e,2)} op_sel:[0,{i&1},0] op_sel_hi:[1,{i&1},1]')
    scat4(G)
    allred('v_add_f32', V(G), None, ('r4', 'r8'))
    rnd(V(G))
    setexec(0x000f000f000f000f)
    a(f'ds_write_b16_d16_hi v13, v{G} offset:{OV}')
    stamp(11)
    wo_finish()
    stamp(26)
    a(f'{LXM}:')
    a(f's_cmp_lg_u32 {sI}, 2\ns_cbranch_scc1 L_fin2\ns_and_b32 s30, s2, 7\ns_cmp_lg_u32 s30, {RX}\ns_cbranch_scc1 L_fin2')
    red_setup()
    await_(C_AD, 4, 'v11', sleep=2)
    a(f'v_mov_b32 v152, 0\nglobal_load_short_d16_hi v152, v29, {sX}')
    a(f'v_lshlrev_b32 v12, 4, v1\nv_lshl_add_u32 v12, {sPi}, 10, v12\nv_mov_b32 v46, {f2u(1/1024):#x}')
    a(f's_mov_b32 s40, {ST}\nv_mov_b32 v150, 4095\ns_mov_b32 s59, {TAB}')
    stamp(25)
    l4 = [(G + 4*i, 4, 'v12', P4 + i*1024) for i in range(8)]
    if smp4:
        gather(l4[:smp4], 'v11', sleep=1)
    if pd2 is None: gather(l4[smp4:], 'v11')
    else: gather_p(l4[smp4:], 'v11', depth=pd2, sleep=ps2)
    stamp(24)
    def p4_sum():
        untag([G + 4*i + e for i in range(8) for e in (0, 3)])
        for st in (4, 8, 16):
            for i in range(0, 32, 2*st):
                for e in (0, 2): a(f'v_pk_add_f32 {V(G+i+e,2)}, {V(G+i+e,2)}, {V(G+i+st+e,2)}')
        scat4(G)
        allred('v_add_f32', V(G), None, ('r8',))
        rnd(V(G))
    late_await(C_SM, 1, 'v11', lambda: a(f'ds_read_b128 v[140:143], v6 offset:{SM}'), p4_sum)
    a(f'v_mul_f32 v16, v{G}, v140\nv_cndmask_b32 v157, v142, v141, s[100:101]\nv_mov_b32 v23, 0'); rnd('v16'); a('v_add_f32 v16, v16, v152'); rnd('v16')
    a('v_mul_f32 v17, v16, v142')
    a('v_cndmask_b32 v18, v16, v17, s[100:101]\nv_cndmask_b32 v20, 1.0, v17, s[100:101]\nv_cndmask_b32 v21, v16, v142, s[100:101]')
    a('v_mul_f32 v20, v18, v20\nv_mul_f32 v21, v18, v21\nv_mul_f32 v22, v18, v157')
    st_publish('s40')
    stamp(21)
    gather([(G, 4, 'v5', ST + (0 if dual else STB))], 'v26', full=True, sleep=fsleep, alt=STB if dual else None)
    stamp(12)
    def ln1():
        st_reduce(G)
        for k, ln in enumerate((0, 16, 32, 1, 17, 33)): a(f'v_readlane_b32 s{38+k}, v{G}, {ln}')
        a('v_mul_f32 v24, s38, v46\nv_mul_f32 v25, s39, v46\nv_fma_f32 v25, -v24, v24, v25\nv_max_f32 v25, 0, v25')
        ln_scale('v24', 'v25')
    late_await(C_TAB, 1, 'v11', lambda: a(f'ds_read_b128 v[144:147], {vM} offset:{SM + 1024}\nds_read_b64 v[148:149], {vM} offset:{SM + 1040}\nds_read_b32 v143, v6 offset:{SM + 12}'), ln1)
    a('v_fma_f32 v26, -v24, v144, s40\nv_fma_f32 v28, -v24, v149, s43')
    a('v_mul_f32 v27, v24, v145\nv_fma_f32 v27, -2.0, s42, v27\nv_fma_f32 v27, v27, v24, s41')
    a('v_sub_f32 v40, v16, v24')
    a('v_fma_f32 v26, v26, v25, v146\nv_add_f32 v28, v28, v28\nv_fma_f32 v27, v27, v25, v28\nv_fma_f32 v27, v27, v25, v148')
    rnd('v40')
    a('v_mul_f32 v26, v26, v46\nv_mul_f32 v27, v27, v46\nv_mul_f32 v40, v40, v25\nv_fma_f32 v27, -v26, v26, v27')
    rnd('v40')
    a('v_max_f32 v27, 0, v27\nv_mul_f32 v40, v40, v142')
    rnd('v27'); rnd('v40'); rnd('v26')
    a(f'v_add_f32 v27, {f2u(1e-5):#x}, v27\nv_add_f32 v40, v40, v141'); rnd('v27'); rnd('v40')
    a('v_sqrt_f32 v27, v27\nv_sub_f32 v40, v40, v26'); rnd('v27'); rnd('v40')
    a('v_rcp_f32 v27, v27\nv_mul_f32 v40, v40, v27'); rnd('v40')
    a(f'v_bfe_u32 v41, v40, 16, 15\nv_lshrrev_b32 v43, 31, v40\nv_subrev_u32 v42, {E0 << 7}, v41\nv_cmp_eq_u32 vcc, 0, v41')
    a(f'v_cmp_lt_u32 s[38:39], v42, v47\nv_lshl_add_u32 v42, v43, 12, v42\nv_cndmask_b32 v42, v42, v47, vcc'.replace('v47', 'v150'))
    a(f'v_and_b32 v42, 0x1fff, v42\nv_lshlrev_b32 v42, 2, v42\nbuffer_load_dword v41, v42, {SRD_WS}, s59 offen sc1')
    a('s_or_b64 s[38:39], s[38:39], vcc\ns_waitcnt vmcnt(0)')
    a(f'v_and_b32 v42, 0xffff, v41\nv_and_b32 v41, 0xffff0000, v41\nv_cmp_ne_u32 vcc, {sT}, v42\ns_orn2_b64 s[38:39], vcc, s[38:39]\ns_cbranch_scc1 L_slow1')
    a('L_out:')
    a('v_mul_f32 v41, v41, v143'); rnd('v41'); a('v_add_f32 v41, v41, v16'); rnd('v41')
    setexec(0x00ff00ff00ff00ff)
    a(f'global_store_short_d16_hi v29, v41, {sOUT}')
    setexec(-1)
    stamp(14)
    if lite:
        a(f's_memrealtime s[34:35]\ns_lshl_b32 s30, s2, 7\ns_add_u32 s30, s30, {DBG + 64}\nv_mov_b32 v11, 0\ns_waitcnt lgkmcnt(0)\nv_mov_b32 v12, s34')
        setexec(1)
        a(f'buffer_store_dword v12, v11, {SRD_WS}, s30 offen')
        setexec(-1)
    a('L_fin:')
    a(f's_cmp_lg_u32 s2, {RX}\ns_cbranch_scc1 L_fin2')
    a(f'v_mov_b32 v7, {sE}\nv_mov_b32 v8, 0')
    setexec(1)
    a(f'global_store_dword v8, v7, {sWS} offset:12')
    setexec(-1)
    a('L_fin2:')
    if stamps:
        stamp(15)
        a('s_getreg_b32 s30, hwreg(HW_REG_XCC_ID)\nv_writelane_b32 v255, s30, 40')
        a(f's_lshl_b32 s30, s2, 11\ns_add_u32 s30, s30, {DBG}\nv_lshlrev_b32 v7, 2, v0')
        a(f'buffer_store_dword v255, v7, {SRD_WS}, s30 offen')
    a('L_end:\ns_endpgm')
    a('L_slow1:\ns_ff1_i32_b64 s40, s[38:39]\ns_bitset0_b64 s[38:39], s40\nv_readlane_b32 s41, v40, s40')
    a('v_lshlrev_b32 v11, 4, v1\nv_mov_b32 v18, 0\nv_mov_b32 v19, 0\nv_mov_b32 v42, s41\nv_mov_b32 v43, s41\ns_mov_b32 s42, 0')
    a('L_slow2:')
    for j, ptr in enumerate((sW1, sB1, sW2)): a(f'global_load_dwordx4 {V(G+4*j,4)}, v11, {ptr}')
    a('v_add_u32 v11, 0x400, v11\ns_waitcnt vmcnt(0)')
    for j in range(3):
        for i in range(4): a(f'v_lshlrev_b32 v{160+8*j+2*i}, 16, v{G+4*j+i}\nv_and_b32 v{161+8*j+2*i}, 0xffff0000, v{G+4*j+i}')
    gelu_units([(lambda u, i=i: f'v_pk_fma_f32 {u}, v[42:43], {V(160+2*i,2)}, {V(168+2*i,2)}',
                 lambda u, i=i: f'v_pk_fma_f32 v[18:19], {u}, {V(176+2*i,2)}, v[18:19]') for i in range(4)], 48, 64, 4)
    a('s_add_u32 s42, s42, 1\ns_cmp_lt_u32 s42, 7\ns_cbranch_scc1 L_slow2')
    a('v_add_f32 v18, v18, v19')
    allred('v_add_f32', 'v18', 'v19')
    rnd('v18'); a('v_add_f32 v18, v18, v159'); rnd('v18')
    a('v_readfirstlane_b32 s41, v18\ns_mov_b32 m0, s40\nv_writelane_b32 v41, s41, m0')
    a('s_cmp_lg_u64 s[38:39], 0\ns_cbranch_scc1 L_slow1\ns_branch L_out')
    a('L_code_end:')
    body = a.finish()
    out = HEADER + f'; @launch grid=(256,1,1) block=(512,1,1) lds={LDS_BYTES}\n'
    out += f'.amdgcn_target "amdgcn-amd-amdhsa--gfx950"\n.text\n.globl {NAME}_kernel\n.p2align 8\n.type {NAME}_kernel,@function\n'
    out += body
    out += f'''.section .rodata,"a"
.p2align 6
.amdhsa_kernel {NAME}_kernel
  .amdhsa_next_free_vgpr 256
  .amdhsa_next_free_sgpr 102
  .amdhsa_accum_offset 256
  .amdhsa_group_segment_fixed_size 0
  .amdhsa_kernarg_size 120
  .amdhsa_user_sgpr_count 2
  .amdhsa_user_sgpr_kernarg_segment_ptr 1
  .amdhsa_system_sgpr_workgroup_id_x 1
  .amdhsa_float_denorm_mode_32 3
.end_amdhsa_kernel
'''
    return out

if __name__ == '__main__':
    kw = {}
    for arg in sys.argv[2:]:
        k, v = arg.split('=')
        kw[k] = eval(v)
    open(sys.argv[1], 'w').write(gen(**kw))
```

```python
import sys, struct
from asmfw import Asm

NAME = 'adaLN_cond__gqa_block_cached__mixer_token_mlp__decode'

def f2u(x): return struct.unpack('<I', struct.pack('<f', x))[0]
LOG2E = 1.4426950408889634
SCALE = 128 ** -0.5

P1 = 0x10000; P2 = 0x20000; P3 = 0x30000; ML = 0x40000; ST0 = 0x50000; ST = 0x52000; STB = 0x1000
RK = 0x60000; TAB = 0x68000; P4 = 0x80000; OB = 0x100000; DBG = 0x200000
RS = 6; RINGW = RS * 4096
WB = 4 * RINGW; WA = WB + 32768; MISC = WA + 16384
SC = 0; QL = 2048; HV = 4352; OV = 4864; MLW = 5376; CNT = 5760; WL = 5888; YT = 6144; SM = 6656
LDS_BYTES = 163840
C_W1, C_WQ, C_H, C_Q, C_M2, C_ML, C_RED, C_WO, C_WOF, C_TICK, C_T1, C_T2, C_PUB, C_VI, C_WL, C_RANK, C_YT, C_TAB, C_OV, C_MD, C_SM, C_RANK2, C_RANK3, C_AD, C_R1, C_WQF = range(26)

HEADER = open('cdna_kernels/' + NAME + '.s.ref').read().split('; Override launch')[0]

def gen(F=6, NQ=60, k7=True, nt=' nt', wnt=' nt', stamps=False, warm=True, spin=1 << 18, psleep=16, xprio=3, aprio=1,
        T1=30, T2=56, exp='', pd1=None, ps1=1, h1sleep=6, h1thr=48, fsleep=1, Fs=None, TK=16, XTRA=0, h1m=1, NZ=16, AF=7, MLP_AT=7, dual=True, pretouch=1, RX=0, p3sleep=2, pd2=1, ps2=2, TR=12, T2AT=0, CF=5, ept=2, Fhi=None, Flo=None, rth=33, a1w=True, SPL=0, smp4=0, smp3=0, su=False, tlb=0, E0=101, TH=64, gbl=True):
    a = Asm()
    lite = stamps == 'lite'
    if lite: stamps = False
    SRD_K, SRD_V, SRD_WS, SRD_WQ, SRD_WO, SRD_WM = 's[4:7]', 's[8:11]', 's[12:15]', 's[16:19]', 's[20:23]', 's[24:27]'
    sX, sW1, sB1, sW2, sB2, sC, sOUT, sWS = 's[36:37]', 's[48:49]', 's[50:51]', 's[52:53]', 's[54:55]', 's[56:57]', 's[60:61]', 's[64:65]'
    sE, sI, sBase, sSpin = 's66', 's67', 's68', 's69'
    sT, sT2, sT4, sSelA, sSelB, sPi = 's86', 's87', 's88', 's89', 's90', 's91'
    MASK = lambda i: f's[{70+2*i}:{71+2*i}]'
    SOFF = lambda i: f's{92+i}'
    vM, vOne, vHi = 'v2', 'v3', 'v247'
    V = lambda i, n=1: f'v{i}' if n == 1 else f'v[{i}:{i+n-1}]'

    def stamp(i):
        if stamps:
            a(f's_memrealtime s[34:35]\ns_waitcnt lgkmcnt(0)\nv_writelane_b32 v255, s34, {i}')
    def setexec(mask):
        if mask == -1: a('s_mov_b64 exec, -1')
        elif mask < 64: a(f's_mov_b64 exec, {mask}')
        else: a(f's_mov_b32 exec_lo, {mask & 0xffffffff:#x}\ns_mov_b32 exec_hi, {mask >> 32:#x}')
    def arrive(c):
        a(f's_mov_b64 exec, 1\nds_add_u32 {vM}, {vOne} offset:{CNT + 4*c}\ns_mov_b64 exec, -1')
    def await_(c, n, tmp, sleep=1):
        L = a.lab('W'); D = a.lab('WD')
        a(f's_mov_b32 {sSpin}, {spin}')
        a(f'{L}:\nds_read_b32 {tmp}, {vM} offset:{CNT + 4*c}\ns_waitcnt lgkmcnt(0)\nv_readfirstlane_b32 s30, {tmp}')
        a(f's_cmp_ge_u32 s30, {n}\ns_cbranch_scc1 {D}')
        if sleep: a(f's_sleep {sleep}')
        a(f's_sub_u32 {sSpin}, {sSpin}, 1\ns_cbranch_scc0 {L}\n{D}:')
    def late_await(c, n, tmp, reads, work):
        D = a.lab('LA')
        a(f'ds_read_b32 {tmp}, {vM} offset:{CNT + 4*c}')
        reads()
        work()
        a(f's_waitcnt lgkmcnt(0)\nv_readfirstlane_b32 s30, {tmp}\ns_cmp_ge_u32 s30, {n}\ns_cbranch_scc1 {D}')
        await_(c, n, tmp, sleep=0)
        reads()
        a(f's_waitcnt lgkmcnt(0)\n{D}:')
    def rnd(r): a(f'v_cvt_pk_bf16_f32 {r}, 0, {r}')
    def tag(r): a(f'v_and_or_b32 {r}, {r}, {vHi}, {sT}')
    def untag(regs, fine=False):
        for r in regs: a(f'v_and_b32 v{r}, {"-4" if fine else vHi}, v{r}')
    DPP = {1: 'quad_perm:[1,0,3,2]', 2: 'quad_perm:[2,3,0,1]', 'hm': 'row_half_mirror', 'm': 'row_mirror', 'r4': 'row_ror:4', 'r8': 'row_ror:8'}
    def allred(op, r, t, steps=(1, 2, 'hm', 'm', 16, 32)):
        for s in steps:
            if s in DPP: a(f'{op}_dpp {r}, {r}, {r} {DPP[s]} row_mask:0xf bank_mask:0xf')
            else: a(f'v_mov_b32 {t}, {r}\nv_permlane{s}_swap_b32 {r}, {t}\n{op} {r}, {r}, {t}')
    def scat4(b):
        a(f'v_permlane32_swap_b32 v{b}, v{b+2}\nv_permlane32_swap_b32 v{b+1}, v{b+3}\nv_pk_add_f32 {V(b,2)}, {V(b,2)}, {V(b+2,2)}')
        a(f'v_permlane16_swap_b32 v{b}, v{b+1}\nv_add_f32 v{b}, v{b}, v{b+1}')
    def setup_tags():
        a(f's_add_u32 {sE}, {sE}, 1\ns_and_b32 {sT}, {sE}, 0xff\ns_mul_i32 {sT2}, {sT}, 0x101\ns_mul_i32 {sT4}, {sT}, 0x1010101')
        a(f's_mov_b32 {sSelA}, 0x0c0c0400\ns_mov_b32 {sSelB}, 0x04000c0c\nv_mov_b32 {vHi}, 0xffffff00')
        a(f's_and_b32 {sPi}, s2, 0xf8')
    def gather(loads, tmp, sleep=0, full=False, thr=None, alt=None):
        L = a.lab('G'); D = a.lab('GD')
        his = []
        for d, w, vo, off in loads:
            if off & ~0xfff not in his: his.append(off & ~0xfff)
        for i, h in enumerate(his): a(f's_mov_b32 {SOFF(i)}, {h:#x}')
        if alt: a(f's_mov_b32 {SOFF(1)}, {his[0] + alt:#x}')
        def ld(d, w, vo, off):
            sfx = {1: 'dword', 2: 'dwordx2', 4: 'dwordx4'}[w]
            a(f'buffer_load_{sfx} {V(d, w)}, {vo}, {SRD_WS}, {SOFF(his.index(off & ~0xfff))} offen offset:{off & 0xfff} sc1')
        for x in loads: ld(*x)
        a(f's_mov_b32 {sSpin}, {spin}')
        a(f'{L}:')
        n = len(loads)
        for i, (d, w, vo, off) in enumerate(loads):
            a(f's_waitcnt vmcnt({n-1-i})')
            if w == 1: a(f'v_and_b32 {tmp}, 0xff, {V(d)}\nv_cmp_ne_u32 {MASK(i)}, {sT}, {tmp}')
            elif full:
                t2 = f'v{int(tmp[1:]) + 1}'
                a(f'v_perm_b32 {tmp}, {V(d+1)}, {V(d)}, {sSelA}\nv_perm_b32 {t2}, {V(d+3)}, {V(d+2)}, {sSelB}\nv_or_b32 {tmp}, {tmp}, {t2}')
                if full == 2: a(f'v_xor_b32 {tmp}, {sT4}, {tmp}\nv_and_b32 {tmp}, 0x03030303, {tmp}\nv_cmp_ne_u32 {MASK(i)}, 0, {tmp}')
                else: a(f'v_cmp_ne_u32 {MASK(i)}, {sT4}, {tmp}')
            else: a(f'v_perm_b32 {tmp}, {V(d+w-1)}, {V(d)}, {sSelA}\nv_cmp_ne_u32 {MASK(i)}, {sT2}, {tmp}')
        a(f's_or_b64 s[28:29], {MASK(0)}, {MASK(1 if n > 1 else 0)}')
        for i in range(2, n): a(f's_or_b64 s[28:29], s[28:29], {MASK(i)}')
        a(f's_cbranch_scc0 {D}')
        a(f's_sub_u32 {sSpin}, {sSpin}, 1\ns_cbranch_scc1 {D}')
        if sleep and thr is not None:
            S = a.lab('GN')
            a(f's_bcnt1_i32_b64 s30, {MASK(0)}')
            for i in range(1, n): a(f's_bcnt1_i32_b64 s31, {MASK(i)}\ns_add_u32 s30, s30, s31')
            a(f's_cmp_le_u32 s30, {thr}\ns_cbranch_scc1 {S}\ns_sleep {sleep}\n{S}:')
        elif sleep: a(f's_sleep {sleep}')
        if alt:
            a(f's_and_b32 s30, {sSpin}, 15\ns_cselect_b32 {SOFF(0)}, {his[0]:#x}, {SOFF(1)}')
        for i, x in enumerate(loads):
            S = a.lab('GS')
            a(f's_wqm_b64 exec, {MASK(i)}\ns_cbranch_execz {S}')
            ld(*x)
            a(f'{S}:')
        a(f's_mov_b64 exec, -1\ns_waitcnt vmcnt(0)\ns_branch {L}\n{D}:')
    def gather_p(loads, tmp, depth=3, sleep=1, full=False, thr=None, bsleep=0):
        L = a.lab('G'); D = a.lab('GD')
        his = []
        for d, w, vo, off in loads:
            if off & ~0xfff not in his: his.append(off & ~0xfff)
        for i, h in enumerate(his): a(f's_mov_b32 {SOFF(i)}, {h:#x}')
        n = len(loads)
        def ld(d, w, vo, off):
            a(f'buffer_load_dwordx4 {V(d, w)}, {vo}, {SRD_WS}, {SOFF(his.index(off & ~0xfff))} offen offset:{off & 0xfff} sc1')
        for x in loads: ld(*x)
        a(f's_mov_b32 {sSpin}, {spin}\ns_waitcnt vmcnt(0)')
        a(f'{L}:')
        for i, (d, w, vo, off) in enumerate(loads):
            if full:
                t2 = f'v{int(tmp[1:]) + 1}'
                a(f'v_perm_b32 {tmp}, {V(d+1)}, {V(d)}, {sSelA}\nv_perm_b32 {t2}, {V(d+3)}, {V(d+2)}, {sSelB}\nv_or_b32 {tmp}, {tmp}, {t2}')
                a(f'v_cmp_ne_u32 {MASK(i)}, {sT4}, {tmp}')
            else: a(f'v_perm_b32 {tmp}, {V(d+w-1)}, {V(d)}, {sSelA}\nv_cmp_ne_u32 {MASK(i)}, {sT2}, {tmp}')
        a(f's_or_b64 s[28:29], {MASK(0)}, {MASK(1 if n > 1 else 0)}')
        for i in range(2, n): a(f's_or_b64 s[28:29], s[28:29], {MASK(i)}')
        a(f's_cbranch_scc0 {D}')
        a(f's_sub_u32 {sSpin}, {sSpin}, 1\ns_cbranch_scc1 {D}')
        if thr is not None:
            S = a.lab('GN')
            a(f's_bcnt1_i32_b64 s30, {MASK(0)}')
            for i in range(1, n): a(f's_bcnt1_i32_b64 s31, {MASK(i)}\ns_add_u32 s30, s30, s31')
            a(f's_cmp_le_u32 s30, {thr}\ns_cbranch_scc1 {S}\ns_sleep {bsleep}\n{S}:')
        for i, x in enumerate(loads):
            a(f's_or_b32 s{70+2*i}, s{70+2*i}, 1\ns_wqm_b64 exec, {MASK(i)}')
            ld(*x)
        a('s_mov_b64 exec, -1')
        if sleep: a(f's_sleep {sleep}')
        a(f's_waitcnt vmcnt({n*depth})\ns_branch {L}\n{D}:\ns_waitcnt vmcnt(0)')
    def w_voff(dst, stride, t):
        a(f'v_lshrrev_b32 {t}, 3, v1\nv_mul_u32_u24 {dst}, {stride}, {t}')
        a(f'v_lshrrev_b32 {t}, 4, v1\nv_lshlrev_b32 {t}, 1, {t}\nv_xor_b32 {t}, {t}, v1\nv_and_b32 {t}, 7, {t}\nv_lshl_add_u32 {dst}, {t}, 4, {dst}')
    def w_traddr(dst, base, t, t2):
        a(f'v_lshrrev_b32 {t}, 2, v1\nv_lshlrev_b32 {dst}, 7, {t}')
        a(f'v_and_b32 {t}, 6, {t}')
        a(f'v_lshrrev_b32 {t2}, 1, v1\nv_and_b32 {t2}, 1, {t2}\nv_lshl_add_u32 {t2}, {sI}, 1, {t2}')
        a(f'v_xor_b32 {t}, {t}, {t2}\nv_lshl_add_u32 {dst}, {t}, 4, {dst}')
        a(f'v_and_b32 {t}, 1, v1\nv_lshl_add_u32 {dst}, {t}, 3, {dst}\nv_add_u32 {dst}, {base}, {dst}')
    def w_read(areg, addr, nks):
        for ks in range(nks):
            a(f'ds_read_b64_tr_b16 {V(areg+4*ks, 2)}, {addr} offset:{ks*4096}')
            a(f'ds_read_b64_tr_b16 {V(areg+4*ks+2, 2)}, {addr} offset:{ks*4096+2048}')
    def b_read(breg, addr, nks):
        for ks in range(nks):
            a(f'ds_read2_b64 {V(breg+4*ks, 4)}, {addr} offset0:{8*ks} offset1:{8*ks+4}')
    def w_mfma(d, areg, breg, nks, staged=False):
        for ks in range(nks):
            if staged: a(f's_waitcnt lgkmcnt({nks-1-ks})')
            a(f'v_mfma_f32_16x16x32_bf16 {V(d,4)}, {V(areg+4*ks,4)}, {V(breg+4*ks,4)}, {"0" if ks == 0 else V(d,4)}')
    def ln_scale(mean, var):
        rnd(var); rnd(mean)
        a(f'v_add_f32 {var}, {f2u(1e-5):#x}, {var}'); rnd(var)
        a(f'v_sqrt_f32 {var}, {var}'); rnd(var)
        a(f'v_rcp_f32 {var}, {var}')
    c0 = -2 * LOG2E * 0.7978845608028654; c1 = c0 * 0.044715
    def gelu_units(units, U, Z, NB):
        for s0 in range(0, len(units), NB):
            blk = list(enumerate(units[s0:s0+NB]))
            R2 = lambda base, k: V(base + 2*k, 2)
            def both(fn):
                for k, _ in blk:
                    fn(2*k); fn(2*k+1)
            for k, (first, last) in blk: a(first(R2(U, k)))
            for k, _ in blk: a(f'v_pk_mul_f32 {R2(Z,k)}, {R2(U,k)}, {R2(U,k)}')
            for k, _ in blk: a(f'v_pk_fma_f32 {R2(Z,k)}, {R2(Z,k)}, v[44:45], v[44:45] op_sel:[0,0,1] op_sel_hi:[1,0,1]')
            for k, _ in blk: a(f'v_pk_mul_f32 {R2(Z,k)}, {R2(Z,k)}, {R2(U,k)}')
            both(lambda r: a(f'v_exp_f32 {V(Z+r)}, {V(Z+r)}'))
            for k, _ in blk: a(f'v_pk_add_f32 {R2(Z,k)}, {R2(Z,k)}, 1.0 op_sel_hi:[1,0]')
            both(lambda r: a(f'v_rcp_f32 {V(Z+r)}, {V(Z+r)}'))
            for k, _ in blk: a(f'v_pk_mul_f32 {R2(U,k)}, {R2(U,k)}, {R2(Z,k)}')
            for k, (first, last) in blk: a(last(R2(U, k)))

    def st_reduce(b):
        untag(range(b, b + 3))
        scat4(b)
        allred('v_add_f32', f'v{b}', None, (2, 'r4', 'r8'))
    def st_publish(base):
        scat4(20)
        allred('v_add_f32', 'v20', None, (1, 2, 'hm'))
        tag('v20')
        setexec(0x0101010101010101)
        if dual: a(f'buffer_store_dword v20, v31, {SRD_WS}, {base} offen')
        a(f's_add_u32 {base}, {base}, {STB}\nbuffer_store_dword v20, v31, {SRD_WS}, {base} offen sc1')
        setexec(-1)
    def red_setup():
        a(f'v_lshrrev_b32 v9, 4, v1\nv_and_b32 v13, 7, v1\nv_lshl_add_u32 v30, v13, 2, v9\nv_lshl_add_u32 v30, {sPi}, 2, v30\nv_lshlrev_b32 v29, 1, v30\nv_lshlrev_b32 v30, 2, v30')
        a(f'v_lshrrev_b32 v11, 3, v1\nv_and_b32 v11, 1, v11\nv_cmp_eq_u32 s[100:101], 1, v11\nv_lshl_add_u32 v28, v11, 15, v30')
        a(f'v_lshlrev_b32 v31, 4, v11\nv_lshl_add_u32 v31, v9, 2, v31\nv_lshl_add_u32 v31, {sPi}, 2, v31\nv_lshlrev_b32 v5, 4, v1')
        a(f'v_lshl_add_u32 v6, v1, 4, {vM}')

    def wo_setup(j):
        a('v_lshrrev_b32 v11, 2, v1\nv_lshlrev_b32 v68, 9, v11\nv_and_b32 v74, 7, v11\nv_lshlrev_b32 v74, 1, v74')
        a(f'v_lshrrev_b32 v75, 1, v1\nv_and_b32 v75, 1, v75\nv_lshl_add_u32 v75, {sI}, 3, v75\nv_xor_b32 v74, v74, v75\nv_lshl_add_u32 v68, v74, 4, v68')
        a(f'v_and_b32 v74, 1, v1\nv_lshl_add_u32 v68, v74, 3, v68\nv_add_u32 v68, {WB if j == 0 else 16384}, v68')
        for i in range(1, 4): a(f'v_xor_b32 v{68+i}, {i << 5:#x}, v68')
        if j == 1:
            for i in range(4): a(f'v_mov_b32 v{84+i}, v{68+i}\nv_add_u32 v{88+i}, {2*RINGW}, v{68+i}')
        for r in range(202, 234): a(f'v_mov_b32 v{r}, 0')
        a(f'v_lshrrev_b32 v75, 4, v1\nv_lshl_add_u32 v72, v75, 3, {vM}\nv_add_u32 v72, {OV}, v72\nv_lshlrev_b32 v73, 4, v75\nv_lshl_add_u32 v73, v74, 6, v73')
        a('v_and_b32 v74, 2, v1\nv_lshl_add_u32 v73, v74, 12, v73')
        a('s_lshr_b32 s45, s33, 1\ns_lshr_b32 s30, s2, 6\ns_lshl_b32 s30, s30, 4\ns_add_u32 s45, s45, s30\ns_lshl_b32 s45, s45, 7')
        a(f's_and_b32 s30, s33, 1\ns_lshl_b32 s30, s30, 17\ns_add_u32 s45, s45, s30\ns_lshl_b32 s30, {sI}, 14\ns_add_u32 s45, s45, s30\ns_add_u32 s45, s45, {P4 + 0x10000*j}')
    def wo_finish():
        a('s_waitcnt lgkmcnt(0)\ns_barrier')
        for ct in range(4):
            setexec(0x0001000100010001 << ct)
            b_read(202 + 8*ct, 'v72', 2)
        setexec(-1)
        w_mfma(24, 120, 202, 8, staged=True)
        setexec(0x000f000f000f000f)
        for e in (0, 3): tag(V(24+e))
        a(f'buffer_store_dwordx4 v[24:27], v73, {SRD_WS}, s45 offen sc1')
        setexec(-1)

    a(f'{NAME}_kernel:')
    a('s_cmp_ge_u32 s2, 256\ns_cbranch_scc1 L_end')
    if lite: a('s_memrealtime s[34:35]')
    def sus(k):
        if su: a(f's_memrealtime s[{70+2*k}:{71+2*k}]')
    sus(0)
    a('s_load_dwordx2 s[24:25], s[0:1], 88\ns_load_dwordx2 s[16:17], s[0:1], 24\ns_load_dwordx16 s[36:51], s[0:1], 0')
    a('s_load_dwordx8 s[52:59], s[0:1], 64\ns_load_dwordx4 s[60:63], s[0:1], 96\ns_load_dwordx2 s[64:65], s[0:1], 112')
    if warm:
        a('s_getpc_b64 s[32:33]\nL_pc:')
        if warm == 2: a('v_xor_b32 v4, 0x100, v0\nv_lshlrev_b32 v4, 7, v4')
        else: a('v_lshlrev_b32 v4, 7, v0')
        a(f'v_cmp_gt_u32 vcc, L_code_end-L_pc-4, v4\ns_and_saveexec_b64 s[28:29], vcc\ns_cbranch_execz L_nowarm')
        a('global_load_dword v254, v4, s[32:33]\nL_nowarm:\ns_mov_b64 exec, -1')
    a('v_lshrrev_b32 v1, 6, v0\nv_readfirstlane_b32 s3, v1\nv_and_b32 v1, 63, v0')
    w_voff('v236', 12288, 'v26')
    a(f's_and_b32 s30, s2, 7\ns_lshl_b32 s30, s30, 3\ns_add_u32 s30, s30, s3\ns_mul_i32 s32, s30, {16*12288}\ns_lshr_b32 s30, s2, 3\ns_lshl_b32 s30, s30, 7\ns_add_u32 s32, s32, s30')
    a(f's_lshl_b32 s31, s3, 11\ns_add_u32 m0, s31, {WA}\ns_mov_b32 s26, 0xc00000\ns_mov_b32 s27, 0x20000\ns_add_u32 s33, s32, {8*12288 - 1024}')
    sus(1)
    a('s_waitcnt lgkmcnt(0)')
    sus(2)
    a(f'buffer_load_dwordx4 v236, {SRD_WM}, s32 offen{wnt} lds\nbuffer_load_dwordx4 v236, {SRD_WM}, s33 offen offset:1024{wnt} lds')
    sus(3)
    a(f's_and_b32 {sI}, s3, 3\ns_mov_b32 s18, 0x800000\ns_mov_b32 s19, 0x20000')
    def common2(x):
        a(f'v_mov_b32 {vM}, {MISC}\nv_mov_b32 {vOne}, 1')
        if stamps: a('v_mov_b32 v255, 0')
        a('s_mov_b32 s6, 0x4000000\ns_mov_b32 s7, 0x20000\ns_mov_b32 s10, 0x4000000\ns_mov_b32 s11, 0x20000')
        a('s_mov_b32 s14, 0x10000000\ns_mov_b32 s15, 0x20000\ns_mov_b32 s22, 0x800000\ns_mov_b32 s23, 0x20000')
        for srd, p in ((4, 38), (8, 40), (12, 64), (20, 44)):
            a(f's_mov_b64 s[{srd}:{srd+1}], s[{p}:{p+1}]')
    a('s_cmp_ge_u32 s3, 4\ns_cbranch_scc1 L_X')

    VOFF, KA, VA, Q, S, H = 4, 8, 16, 32, 64, 96
    PP, D1, D2, VS = 32, 96, 128, 160
    vMax, vSum = 'v224', 'v225'
    if aprio: a(f's_setprio {aprio}')
    seq = [('w1', i) for i in range(2)] + [('wq', i) for i in range(8)]
    seq += [('kv', i) for i in range(128)] + [('fill', k) for k in range(8)]
    if k7:
        pair_slot = [0, 2, 4, 0, 2, 4, 0, 6] + [2, 4, 0, 2, 0, 2, 0, 2]
        slot_of = lambda gi: pair_slot[gi >> 1] + (gi & 1)
    else:
        slot_of = lambda gi: gi % RS if gi < 28 else gi - 28
    pos = {e: n for n, e in enumerate(seq)}
    NS = len(seq)
    Fbase = (lambda n: [f for (n0, f) in Fs if n0 <= n][-1]) if Fs else (lambda n: F)
    NV = pos[('kv', 127)]
    CTL = NV - TR + F + 4 if Fhi else NS + 1
    Fn = lambda n: Fhi if CTL <= n <= NV else Fbase(n)
    FI = Fn(0)
    def landed_at(k):
        n = k + 1
        while n < FI or n - Fn(n) < k: n += 1
        return n
    a(f's_lshl_b32 s59, {sI}, 13')
    vorder = []
    for u in range(4): vorder += [4*u, 4*u+2, 4*u+1, 4*u+3]
    def issue(n):
        kind, i = seq[n]
        if kind == 'kv':
            gi, j = i // 4, i % 4
            if j == 0 or seq[n-1][0] != 'kv':
                grp = gi if gi < 16 else vorder[gi - 16]
                a(f's_add_u32 s39, {sBase}, {grp*16384}')
                a(f's_add_u32 m0, s38, {slot_of(gi)*4096}' if slot_of(gi) < RS else f's_add_u32 m0, s59, {WB + (slot_of(gi) - RS)*4096}')
            a(f'buffer_load_dwordx4 v{VOFF+j}, {SRD_K if gi < 16 else SRD_V}, s39 offen offset:{j*1024}{nt} lds')
        else:
            srd, vo, so, stride, lb, sl = {'wq': (SRD_WQ, 'v237', 's47', 8192, WB, 's59')}[kind]
            a(f's_add_u32 s32, {so}, {8*i*stride}\ns_add_u32 m0, {sl}, {lb + i*1024}')
            a(f'buffer_load_dwordx4 {vo}, {srd}, s32 offen{wnt} lds')
    w_voff('v237', 8192, 'v26')
    a(f's_and_b32 s30, s2, 3\ns_lshl_b32 s30, s30, 2\ns_add_u32 s30, s30, {sI}\ns_lshl_b32 s47, s30, 19')
    a('s_lshr_b32 s30, s2, 2\ns_lshl_b32 s30, s30, 7\ns_add_u32 s47, s47, s30')
    sus(4)
    for n in range(2, FI): issue(n)
    sus(5)
    common2(False)
    a('s_cmp_lg_u32 s3, 3\ns_cbranch_scc1 L_noinit')
    a(f'v_lshl_add_u32 v27, v1, 2, {vM}\nv_mov_b32 v28, 0')
    setexec(0xffffffff); a(f'ds_write_b32 v27, v28 offset:{CNT}'); setexec(-1)
    a('s_waitcnt lgkmcnt(0)\nL_noinit:')
    sus(6)
    a(f's_barrier\ns_load_dword {sE}, {sWS}, 12')
    sus(7)
    stamp(0)
    stamp(16)
    a('v_lshrrev_b32 v24, 4, v1\nv_and_b32 v25, 15, v1')
    a('v_lshlrev_b32 v26, 1, v24\nv_xor_b32 v26, v26, v25\nv_lshlrev_b32 v26, 4, v26\nv_lshl_add_u32 v4, v24, 8, v26')
    for i in range(1, 4): a(f'v_xor_b32 v{VOFF+i}, {(8*(i&1) + (i>>1)) << 4:#x}, v4')
    a(f's_lshl_b32 {sBase}, s2, 18\ns_lshl_b32 s30, s3, 12\ns_add_u32 {sBase}, {sBase}, s30')
    a(f's_mul_i32 s38, s3, {RINGW}')
    def t_setup():
        a('v_and_b32 v26, 7, v25\nv_lshlrev_b32 v26, 1, v26\nv_lshrrev_b32 v27, 3, v25\nv_or_b32 v26, v26, v27')
        a('v_lshrrev_b32 v27, 1, v24\nv_xor_b32 v26, v26, v27\nv_lshlrev_b32 v26, 4, v26\nv_lshl_add_u32 v26, v25, 8, v26')
        a(f'v_and_b32 v27, 1, v24\nv_lshl_add_u32 v26, v27, 12, v26\nv_add_u32 v{KA}, s38, v26')
        for j in range(1, 8): a(f'v_xor_b32 v{KA+j}, {j << 5:#x}, v{KA}')
        a('v_lshrrev_b32 v27, 2, v1')
        a('v_and_b32 v26, 7, v27\nv_lshlrev_b32 v26, 1, v26\nv_lshrrev_b32 v28, 3, v27\nv_or_b32 v26, v26, v28')
        a('v_lshrrev_b32 v28, 1, v1\nv_and_b32 v28, 1, v28\nv_xor_b32 v26, v26, v28\nv_lshlrev_b32 v26, 4, v26\nv_lshl_add_u32 v26, v27, 8, v26')
        a(f'v_and_b32 v28, 1, v1\nv_lshl_add_u32 v26, v28, 3, v26\nv_add_u32 v{VA}, s38, v26')
        for t in range(1, 8): a(f'v_xor_b32 v{VA+t}, {t << 5:#x}, v{VA}')
    def t_setup2():
        if su:
            a('s_memrealtime s[92:93]\ns_waitcnt lgkmcnt(0)\nv_mov_b32 v40, 0')
            for k in range(8): a(f'v_writelane_b32 v40, s{70+2*k}, {k}')
            a(f'v_writelane_b32 v40, s92, 8\ns_lshl_b32 s30, s2, 10\ns_add_u32 s30, s30, {DBG + 0x10000}\nv_lshlrev_b32 v41, 2, v0')
            a(f'buffer_store_dword v40, v41, {SRD_WS}, s30 offen')
        for r in range(Q, Q + 32): a(f'v_mov_b32 v{r}, 0')
        a(f'v_mov_b32 {vMax}, 0xff800000\nv_mov_b32 {vSum}, 0')
        a(f's_mov_b32 s40, {f2u(SCALE):#x}\ns_mov_b32 s41, {f2u(LOG2E):#x}')
    def t_setup3():
        w_traddr('v28', 0, 'v26', 'v27')
        a('s_lshr_b32 s42, s2, 6')
        a('v_lshrrev_b32 v26, 5, v1\nv_lshlrev_b32 v27, 1, v26\nv_xor_b32 v27, v27, v1\nv_and_b32 v27, 31, v27\nv_lshlrev_b32 v27, 4, v27\nv_lshl_add_u32 v238, v26, 11, v27')
        for i in range(1, 4): a(f'v_xor_b32 v{238+i}, {i << 6:#x}, v238')
        a(f'v_add_u32 v29, {2*RINGW}, v28\nv_lshl_add_u32 v30, v24, 3, {vM}\nv_lshl_add_u32 v30, s42, 9, v30\nv_lshlrev_b32 v242, 4, v24')
        a('v_and_b32 v26, 7, v1\nv_mul_u32_u24 v26, 528, v26\nv_lshl_add_u32 v26, v24, 4, v26\nv_add_u32 v31, s38, v26')
        a('s_waitcnt lgkmcnt(0)')
        setup_tags()
    def t_readK(t, h):
        def f():
            if slot_of(2*t) >= RS:
                a(f's_sub_u32 s30, s59, s38\ns_add_u32 s30, s30, {WB}')
                for j in range(8): a(f'v_add_u32 v{KA+j}, s30, v{KA+j}')
            for j in range(8): a(f'ds_read_b128 {V(H+32*h+4*j,4)}, v{KA+j} offset:{(slot_of(2*t) % RS)*4096}')
            a('s_waitcnt lgkmcnt(0)')
        return f
    def t_waitq():
        stamp(1)
        await_(C_Q, 4, 'v26')
        stamp(2)
        a(f'v_and_b32 v26, 7, v1\nv_mul_u32_u24 v26, 272, v26\nv_lshrrev_b32 v27, 5, v1\nv_lshl_add_u32 v26, v27, 4, v26\nv_add_u32 v26, {MISC+QL}, v26')
        setexec(0xff0000ffff0000ff)
        for j in range(8): a(f'ds_read_b128 {V(Q+4*j,4)}, v26 offset:{32*j}')
        setexec(-1)
        a('s_waitcnt lgkmcnt(0)')
    def t_qk(t, h):
        def f():
            for j in range(8):
                a(f'v_mfma_f32_16x16x32_bf16 {V(S+4*t,4)}, {V(H+32*h+4*j,4)}, {V(Q+4*j,4)}, {"0" if j == 0 else V(S+4*t,4)}')
        return f
    def t_round(t):
        def f():
            for r in range(4): rnd(V(S+4*t+r))
            for r in range(4): a(f'v_mul_f32 {V(S+4*t+r)}, s40, {V(S+4*t+r)}')
            for r in range(4): rnd(V(S+4*t+r))
            a(f'v_max3_f32 {vMax}, {vMax}, {V(S+4*t)}, {V(S+4*t+1)}\nv_max3_f32 {vMax}, {vMax}, {V(S+4*t+2)}, {V(S+4*t+3)}')
        return f
    def t_max():
        allred('v_max_f32', vMax, 'v26', ('r8', 16, 32))
        a(f'v_mul_f32 {vMax}, s41, {vMax}')
    def t_exp(t):
        def f():
            for r in range(4): a(f'v_fma_f32 {V(S+4*t+r)}, {V(S+4*t+r)}, s41, -{vMax}')
            for r in range(4): a(f'v_exp_f32 {V(S+4*t+r)}, {V(S+4*t+r)}')
            a(f'v_cvt_pk_bf16_f32 {V(PP+2*t)}, {V(S+4*t)}, {V(S+4*t+1)}\nv_cvt_pk_bf16_f32 {V(PP+2*t+1)}, {V(S+4*t+2)}, {V(S+4*t+3)}')
            a(f'v_add_f32 v26, {V(S+4*t)}, {V(S+4*t+1)}\nv_add_f32 v27, {V(S+4*t+2)}, {V(S+4*t+3)}\nv_add_f32 v26, v26, v27\nv_add_f32 {vSum}, {vSum}, v26')
        return f
    def t_ml():
        allred('v_add_f32', vSum, 'v26', ('r8', 16, 32))
        a(f'v_lshl_add_u32 v26, v1, 2, {vM}\nv_lshl_add_u32 v26, s3, 6, v26')
        setexec(0xff)
        a(f'ds_write_b32 v26, {vMax} offset:{MLW}\nds_write_b32 v26, {vSum} offset:{MLW+32}')
        arrive(C_ML)
        stamp(3)
    def readV(p, half):
        slot = slot_of(16 + 2*p + half)
        for t in range(8):
            a(f'ds_read_b64_tr_b16 {V(VS+4*t+2*half,2)}, v{VA+t} offset:{slot*4096}')
    def pv(p, staged):
        u, which = p >> 1, p & 1
        Dd = D2 if which else D1
        for t in range(8):
            if staged: a(f's_waitcnt lgkmcnt({7-t})')
            a(f'v_mfma_f32_16x16x32_bf16 {V(Dd+4*t,4)}, {V(VS+4*t,4)}, {V(PP+4*u,4)}, {"0" if u == 0 else V(Dd+4*t,4)}')
    def t_pv(p):
        def f():
            readV(p, 0); readV(p, 1); pv(p, True)
        return f
    def writeD(which):
        setexec(0xff00ff00ff00ff00 if which else 0x00ff00ff00ff00ff)
        for t in range(8):
            a(f'ds_write_b128 v31, {V((D2 if which else D1)+4*t,4)} offset:{which*4352 + 64*t}')
        setexec(-1)
    def wg_stats(head, mreg, lreg):
        a(f'v_lshl_add_u32 v27, {head}, 2, {vM}')
        for w in range(4): a(f'ds_read_b32 v{mreg+w}, v27 offset:{MLW + 64*w}')
        if lreg:
            for w in range(4): a(f'ds_read_b32 v{lreg+w}, v27 offset:{MLW + 64*w + 32}')
        a('s_waitcnt lgkmcnt(0)')
        a(f'v_max3_f32 v26, v{mreg}, v{mreg+1}, v{mreg+2}\nv_max_f32 v26, v26, v{mreg+3}'); untag([26])
        for w in range(4): a(f'v_sub_f32 v{mreg+w}, v{mreg+w}, v26')
        for w in range(4): a(f'v_exp_f32 v{mreg+w}, v{mreg+w}')
    def t_mlpub():
        await_(C_ML, 4, 'v26')
        Ls = a.lab('MP')
        a(f's_cmp_lg_u32 s3, 0\ns_cbranch_scc1 {Ls}')
        a('v_and_b32 v72, 7, v1')
        wg_stats('v72', 64, 68)
        a(f'v_or_b32 v76, {sT}, v26\nv_mul_f32 v77, v64, v68\nv_fmac_f32 v77, v65, v69\nv_fmac_f32 v77, v66, v70\nv_fmac_f32 v77, v67, v71')
        tag('v77')
        a(f'v_mov_b32 v78, {sT}\nv_mov_b32 v79, {sT}\nv_lshlrev_b32 v72, 4, v72\ns_lshl_b32 s30, s2, 7\ns_add_u32 s30, s30, {ML}')
        setexec(0xff)
        a(f'buffer_store_dwordx4 v[76:79], v72, {SRD_WS}, s30 offen sc1')
        setexec(-1)
        a(f'{Ls}:')
    def t_fread():
        a('v_lshrrev_b32 v232, 5, v0')
        wg_stats('v232', 228, None)
        a('v_mul_u32_u24 v26, 528, v232\nv_and_b32 v27, 31, v0\nv_lshl_add_u32 v232, v27, 4, v26')
        a(f'v_add_u32 v233, {2*RINGW}, v232\nv_and_b32 v234, 15, v0\nv_lshlrev_b32 v234, 4, v234\nv_lshrrev_b32 v26, 4, v0\nv_lshl_add_u32 v234, v26, 14, v234')
        a(f's_lshr_b32 s45, s2, 6\ns_lshl_b32 s45, s45, 18\ns_and_b32 s30, s2, 63\ns_lshl_b32 s30, s30, 8\ns_add_u32 s45, s45, s30\ns_add_u32 s45, s45, {OB}')

    sched = {}
    def at(n, f): sched.setdefault(n, []).append(f)
    land = lambda t: landed_at(pos[('kv', 8*t + 7)])
    def reuse(t):
        later = [g for g in range(2*t + 2, 32) if slot_of(g) == slot_of(2*t)]
        return pos[('kv', 4*later[0])] if later else NS + 100
    at(landed_at(pos[('w1', 1)]), lambda: arrive(C_W1))
    at(landed_at(pos[('w1', 1)]) + 1, t_setup)
    at(landed_at(pos[('w1', 1)]) + 3, t_setup2)
    at(landed_at(pos[('wq', 7)]), lambda: arrive(C_WQ))
    at(landed_at(pos[('wq', 7)]) + 1, t_setup3)
    if T1: at(T1, lambda: arrive(C_T1))
    if T2: at(T2, lambda: arrive(C_T2))
    for t in range(4): at(land(t), t_readK(t, t))
    nq = pos[('kv', NQ)]
    assert nq >= land(3)
    at(nq, t_waitq)
    n = nq + 1
    free_h = {}
    step = 1 if k7 else 2
    if k7: at(pos[('kv', 56)] - 1, lambda: await_(C_WQF, 4, 'v26'))
    for t in range(4):
        at(n, t_qk(t, t)); free_h[t] = n + 1
        at(n + 1, t_round(t))
        n += step
    rd = {}
    for t in range(4, 8):
        rd[t] = max(free_h[t-4], land(t), rd.get(t-1, 0))
        assert rd[t] < reuse(t), (t, rd[t])
        at(rd[t], t_readK(t, t - 4))
    for t in range(4, 8):
        n = max(n, rd[t] + 1)
        at(n, t_qk(t, t - 4)); at(n + 1, t_round(t)); n += step
    n += 2 - step
    at(n, t_max); n += 1
    for t in range(8):
        at(n, t_exp(t))
        if t & 1: n += 1
    at(n, t_ml); at(n + MLP_AT, t_mlpub); at(n + MLP_AT + 4, t_fread); n += 1
    for p in range(7):
        m = max(n, land(8 + p))
        assert m < reuse(8 + p) and m < NS, (p, m)
        at(m, t_pv(p))
        n = m + 1
    at(n, lambda: (writeD(0), arrive(C_R1)))
    NV = pos[('kv', 127)]
    ACC = 208
    def red_half(hf, base):
        for w in range(4):
            a(f'ds_read_b128 {V(base+4*w,4)}, v{232 + (w >> 1)} offset:{(w & 1)*RINGW + hf*4352}')
        for w in range(4):
            a(f's_waitcnt lgkmcnt({3-w})')
            sel = w & 1; fp = V(228 + (w & 2), 2)
            for h2 in range(2):
                if w == 0 and hf == 0: a(f'v_pk_mul_f32 {V(ACC+2*h2,2)}, {V(base+2*h2,2)}, {fp} op_sel:[0,{sel}] op_sel_hi:[1,{sel}]')
                else: a(f'v_pk_fma_f32 {V(ACC+2*h2,2)}, {V(base+4*w+2*h2,2)}, {fp}, {V(ACC+2*h2,2)} op_sel:[0,{sel},0] op_sel_hi:[1,{sel},1]')
    def t_pre():
        a('v_and_b32 v27, 8, v1\nv_xor_b32 v27, 8, v27\nv_mul_u32_u24 v27, 544, v27\nv_add_u32 v31, v31, v27')
        await_(C_R1, 4, 'v26', sleep=0)
        red_half(0, 192)
    def t_final():
        stamp(4)
        readV(7, 1)
        def wr(t): a(f'ds_write_b128 v31, {V(D2+4*t,4)} offset:{4352 + 64*t}')
        for t in range(8):
            a(f's_waitcnt lgkmcnt({7 - t + max(0, t - 4)})')
            a(f'v_mfma_f32_16x16x32_bf16 {V(D2+4*t,4)}, {V(VS+4*t,4)}, {V(PP+12,4)}, {V(D2+4*t,4)}')
            if t >= 4: wr(t - 4)
        for t in range(4, 8): wr(t)
        arrive(C_RED)
        await_(C_RED, 4, 'v26', sleep=0)
        red_half(1, 192)
        for e in (0, 3): tag(V(ACC+e))
        a(f'buffer_store_dwordx4 {V(ACC,4)}, v234, {SRD_WS}, s45 offen sc1')
        arrive(C_PUB)
        stamp(5)
    def draw():
        Ls = a.lab('RK')
        a(f's_cmp_lg_u32 s3, 0\ns_cbranch_scc1 {Ls}')
        a(f's_lshl_b32 s30, s42, 12\ns_add_u32 s30, s30, {RK}\nv_mov_b32 v72, 1\nv_mov_b32 v73, 0')
        setexec(1)
        a(f'buffer_atomic_add v72, v73, {SRD_WS}, s30 offen sc0 sc1')
        setexec(-1)
        a(f'{Ls}:')
    def post(c):
        Ls = a.lab('RK')
        a(f's_cmp_lg_u32 s3, 0\ns_cbranch_scc1 {Ls}')
        setexec(1)
        a(f'v_add_u32 v72, 1, v72\nds_write_b32 {vM}, v72 offset:{CNT + 4*c}')
        setexec(-1)
        a(f'{Ls}:')
    at(NV - TR - 1, draw)
    assert TR >= 0
    at(landed_at(NV - TR), lambda: post(C_RANK))
    at(max(landed_at(pos[('kv', 123)]), n), lambda: readV(7, 0))
    nowait = set(range(landed_at(NV) + 1, min(landed_at(NV) + 1 + XTRA, NS)))
    n_final = max([landed_at(NV)] + list(nowait))
    assert n_final < NS
    at(n_final, t_final)
    at(landed_at(NV) - 1, t_pre)
    def t_mode():
        a(f'ds_read_b32 v26, {vM} offset:{CNT + 4*C_RANK}\ns_waitcnt lgkmcnt(0)\nv_readfirstlane_b32 s47, v26')
    if Fhi:
        at(CTL - 1, t_mode); at(CTL + 3, t_mode)
    for n in range(FI, NV + 1):
        a(f's_waitcnt vmcnt({Fn(n)-1})')
        if n >= CTL:
            Lg = a.lab('GO')
            a(f's_cmp_ge_u32 s47, {rth}\ns_cbranch_scc1 {Lg}\ns_waitcnt vmcnt({Flo-1})\n{Lg}:')
        issue(n)
        if n % 16 == 0: stamp(18 + n // 16)
        for f in sched.get(n, []): f()
    st0 = 1 if n_final == NS - 1 else 0
    LM, LN, LE0, LE1, LTD = a.lab('M'), a.lab('N'), a.lab('E0'), a.lab('E1'), a.lab('TD')
    PUBS = ['s44', 's47', 's58']
    def unit0(ld, extra={}):
        for n in range(NV + 1, NS):
            if n not in nowait: a(f's_waitcnt vmcnt({Fn(n)-1})')
            for f in extra.get(n - NV - 1, []): f()
            ld(n - NV - 1)
            for f in sched.get(n, []): f()
    def wo_ld(j):
        def f(i):
            a(f's_add_u32 s32, s44, {i*4096 + 512*j}')
            a(f's_add_u32 m0, s59, {WB + i*1024}' if j == 0 else f's_add_u32 m0, s38, {16384 + i*1024}')
            a(f'buffer_load_dwordx4 v{238 + i % 4}, {SRD_WO}, s32 offen{wnt} lds')
        return f
    def m2_ld(k):
        def f(i):
            a(f's_add_u32 s32, s46, {8*i*12288}\ns_add_u32 m0, s38, {16384 - 8192*k + i*1024}')
            a(f'buffer_load_dwordx4 v236, {SRD_WM}, s32 offen{wnt} lds')
        return f
    def m2_addr(k, none):
        a(f's_sub_u32 s43, s30, 33\ns_cmp_ge_u32 s43, 64\ns_cbranch_scc1 {none}')
        a(f's_lshl_b32 s30, s42, 2\ns_add_u32 s30, s30, {sI}\ns_mul_i32 s46, s30, {64*12288}\ns_lshl_b32 s30, s43, 7\ns_add_u32 s46, s46, s30\ns_add_u32 s46, s46, 4096')
        d = PUBS[k]
        a(f's_lshl_b32 {d}, s42, 14\ns_lshl_b32 s30, s43, 8\ns_add_u32 {d}, {d}, s30\ns_lshl_b32 s30, {sI}, 6\ns_add_u32 {d}, {d}, s30\ns_add_u32 {d}, {d}, {P3}')
    def m2_issue(k):
        for i in range(8):
            a(f's_waitcnt vmcnt({AF-1})')
            if k == 1 and i == T2AT + AF - 1: post(C_RANK3)
            if k == 1 and i == T2AT: draw()
            m2_ld(k)(i)
        assert T2AT + AF - 1 <= 7
    def m2_compute(k):
        arrive(C_M2)
        await_(C_M2, 4*(k+1), 'v6', sleep=0)
        for ks in range(8):
            for hf in range(2):
                a(f'ds_read_b64_tr_b16 {V(96+4*ks+2*hf,2)}, {"v28" if ks < 4 else "v29"} offset:{((ks >> 1) & 1)*RINGW + (ks & 1)*4096 + hf*2048 + 8192*(2-k)}')
        a('s_waitcnt lgkmcnt(0)')
        w_mfma(8 + 4*k, 96, 128, 8)
        for e in range(4): tag(V(8+4*k+e))
        setexec(0x0001000100010001)
        a(f'buffer_store_dwordx4 {V(8+4*k,4)}, v242, {SRD_WS}, {PUBS[k]} offen sc1')
        setexec(-1)
    assert 2 <= AF <= 8
    await_(C_RANK, 1, 'v26', sleep=0)
    a(f's_sub_u32 s33, s30, 1\ns_cmp_ge_u32 s33, 32\ns_cbranch_scc1 {LM}')
    a(f's_lshr_b32 s44, s33, 1\ns_lshl_b32 s30, s42, 4\ns_add_u32 s44, s44, s30\ns_lshl_b32 s44, s44, 17\ns_lshl_b32 s30, {sI}, 15\ns_add_u32 s44, s44, s30')
    a('s_and_b32 s30, s33, 1\ns_lshl_b32 s30, s30, 10\ns_add_u32 s44, s44, s30')
    unit0(wo_ld(0))
    for i in range(8):
        a(f's_waitcnt vmcnt({CF-1})')
        wo_ld(1)(i)
    arrive(C_MD)
    wo_setup(1)
    a('s_waitcnt vmcnt(0)')
    arrive(C_WO)
    await_(C_WO, 4, 'v4', sleep=0)
    for ct in range(4):
        for ks in range(2):
            for hf in range(2):
                a(f'ds_read_b64_tr_b16 {V(120+8*ct+4*ks+2*hf,2)}, v{84+4*ks+ct} offset:{hf*RINGW}')
    wo_finish()
    a(f's_branch {LTD}')
    a(f'{LM}:')
    m2_addr(0, LN)
    fl = Fn(NS - 1)
    assert fl - 1 + NV + 1 not in nowait
    unit0(m2_ld(0), {0: [draw], fl - 1: [lambda: post(C_RANK2)]})
    b_read(128, 'v30', 8)
    await_(C_PUB, 4, 'v6', sleep=0)
    await_(C_RANK2, 1, 'v4', sleep=0)
    m2_addr(1, LE0)
    m2_issue(1)
    m2_compute(0)
    await_(C_RANK3, 1, 'v4', sleep=0)
    m2_addr(2, LE1)
    m2_issue(2)
    m2_compute(1)
    a('s_waitcnt vmcnt(1)')
    m2_compute(2)
    a(f's_branch {LTD}\n{LE1}:\ns_waitcnt vmcnt(1)')
    m2_compute(1)
    a(f's_branch {LTD}\n{LE0}:\ns_waitcnt vmcnt({st0})')
    m2_compute(0)
    a(f's_branch {LTD}')
    a(f'{LN}:')
    for n in range(NV + 1, NS):
        for f in sched.get(n, []):
            a(f's_waitcnt vmcnt({max(0, NV - (n - Fn(n)))})')
            f()
    a(f'{LTD}:')
    arrive(C_AD)
    stamp(8)
    a(f's_and_b32 s30, s2, 7\ns_cmp_lg_u32 s30, {RX}\ns_cbranch_scc1 L_fin2')
    a('s_cmp_lg_u32 s3, 1\ns_cbranch_scc1 L_fin2')
    G = 100
    red_setup()
    a(f's_mov_b32 s40, {ST0}\ns_mov_b32 s41, {ST}\ns_lshl_b32 s42, {sPi}, 7\ns_add_u32 s42, s42, {TAB}')
    a(f'buffer_load_dword v120, v5, {SRD_WS}, s40 offen sc1\nbuffer_load_dword v121, v5, {SRD_WS}, s41 offen sc1\nbuffer_load_dword v122, v5, {SRD_WS}, s42 offen sc1')
    if pretouch == 2:
        a(f's_mov_b32 s42, {P4}\nv_lshlrev_b32 v12, 7, v1\nv_lshl_add_u32 v12, {sPi}, 10, v12\nbuffer_load_dword v123, v12, {SRD_WS}, s42 offen sc1')
    l3 = [(G + k, 1, 'v28', P3 + (k % 2)*16384 + (k // 2)*4096) for k in range(8)]
    n3 = 3 if gbl else 4
    gather(l3[:2*n3], 'v26', sleep=p3sleep)
    untag(range(G, G + 2*n3))
    for j in range(n3): a(f'v_add_f32 v{152+j}, v{G+2*j}, v{G+2*j+1}')
    for j in range(n3): allred('v_add_f32', f'v{152+j}', None, ('r8',))
    for j in range(n3): rnd(f'v{152+j}')
    a('v_add_f32 v154, 1.0, v154'); rnd('v154')
    a(f'ds_write_b128 v6, v[152:155] offset:{SM}')
    arrive(C_SM)
    a('v_cndmask_b32 v157, v154, v153, s[100:101]')
    a('v_cndmask_b32 v16, 1.0, v153, s[100:101]\nv_mul_f32 v20, v157, v16\nv_mul_f32 v21, v157, v154\nv_cndmask_b32 v22, v153, 0, s[100:101]\nv_mov_b32 v23, 0')
    a(f's_mov_b32 s41, {ST0}')
    st_publish('s41')
    stamp(10)
    if gbl:
        gather([(G + 8 + k, 1, 'v28', l3[6+k][3]) for k in range(2)], 'v26', sleep=p3sleep)
        untag([G + 8, G + 9])
        a(f'v_add_f32 v155, v{G+8}, v{G+9}')
        allred('v_add_f32', 'v155', None, ('r8',))
        rnd('v155')
        a(f'ds_write_b32 v6, v155 offset:{SM + 12}')
    gather([(G + 4, 4, 'v5', ST0 + (0 if dual else STB))], 'v26', full=True, sleep=2, alt=STB if dual else None)
    st_reduce(G + 4)
    a(f'v_and_b32 v13, 1, v1\nv_lshlrev_b32 v13, 4, v13\nv_lshl_add_u32 v13, v9, 2, v13\nv_add_u32 v13, {vM}, v13')
    setexec(0x0003000300030003)
    a(f'ds_write_b32 v13, v{G+4} offset:{SM + 1024}')
    arrive(C_TAB)
    stamp(11)
    a('s_branch L_fin2')

    a('L_X:')
    if xprio: a(f's_setprio {xprio}')
    XA, XB, XD, G = 32, 64, 96, 100
    a('v_and_b32 v10, 255, v0')
    a(f'v_lshlrev_b32 v11, 3, v10\nglobal_load_dwordx2 v[12:13], v11, {sC}')
    a(f'v_lshlrev_b32 v11, 5, v1\nglobal_load_dwordx4 v[16:19], v11, {sX}\nglobal_load_dwordx4 v[20:23], v11, {sX} offset:16')
    a('s_and_b32 s42, s2, 3\ns_lshr_b32 s43, s2, 2\ns_and_b32 s44, s2, 7\ns_lshr_b32 s45, s2, 3')
    a('v_lshrrev_b32 v9, 4, v1\nv_and_b32 v15, 15, v1')
    a(f'v_lshl_add_u32 v28, v15, 2, v9\nv_lshl_add_u32 v28, {sI}, 6, v28')
    a('v_lshl_add_u32 v11, s42, 8, v28\nv_lshlrev_b32 v11, 1, v11\nv_mov_b32 v14, 0')
    a(f'global_load_short_d16_hi v14, v11, {sX}')
    a(f's_load_dword {sE}, {sWS}, 12')
    common2(True)
    a('s_barrier')
    stamp(0)
    if tlb:
        Lt = a.lab('TL')
        a(f's_cmp_lg_u32 {sI}, 1\ns_cbranch_scc1 {Lt}')
        a('s_lshl_b32 s30, s2, 18\nv_mov_b32 v11, 0\ns_lshr_b32 s31, s2, 6\ns_lshl_b32 s32, s31, 21\ns_mul_i32 s31, s31, 0x300000\nv_lshlrev_b32 v24, 20, v1')
        setexec(1)
        a(f'buffer_load_dword v250, v11, {SRD_K}, s30 offen nt\nbuffer_load_dword v251, v11, {SRD_V}, s30 offen nt\nbuffer_load_dword v252, v11, {SRD_WO}, s32 offen nt')
        setexec(7)
        a(f'buffer_load_dword v253, v24, {SRD_WM}, s31 offen nt')
        setexec(-1)
        a(f'{Lt}:')
    Lz0 = a.lab('RZ')
    a(f's_and_b32 s30, s2, 63\ns_add_u32 s30, s30, {sI}\ns_cmp_lg_u32 s30, 0\ns_cbranch_scc1 {Lz0}')
    a(f's_lshl_b32 s30, s2, 6\ns_add_u32 s30, s30, {RK}\nv_lshlrev_b32 v11, 2, v1\nv_mov_b32 v24, 0')
    setexec(0xffffffff)
    a(f'buffer_store_dword v24, v11, {SRD_WS}, s30 offen sc1')
    setexec(-1)
    a(f's_waitcnt vmcnt(0)\n{Lz0}:')
    stamp(17)
    w_traddr('v6', WA, 'v11', 'v24')
    a(f'v_add_u32 v7, {(WB - WA) & 0xffffffff:#x}, v6')
    a(f'v_lshl_add_u32 v8, v9, 3, {vM}\nv_lshlrev_b32 v29, 4, v9')
    a('s_waitcnt vmcnt(3) lgkmcnt(0)')
    stamp(20)
    a(f's_mov_b32 s30, {f2u(-LOG2E):#x}')
    a('v_lshlrev_b32 v24, 16, v12\nv_and_b32 v25, 0xffff0000, v12\nv_lshlrev_b32 v26, 16, v13\nv_and_b32 v27, 0xffff0000, v13')
    for i in range(4): a(f'v_mul_f32 v{100+i}, s30, v{24+i}')
    for i in range(4): a(f'v_exp_f32 v{100+i}, v{100+i}')
    for i in range(4): a(f'v_add_f32 v{100+i}, 1.0, v{100+i}')
    for i in range(4): a(f'v_rcp_f32 v{100+i}, v{100+i}')
    for i in range(4): a(f'v_mul_f32 v{24+i}, v{24+i}, v{100+i}')
    a('v_cvt_pk_bf16_f32 v12, v24, v25\nv_cvt_pk_bf16_f32 v13, v26, v27')
    a(f'v_lshl_add_u32 v11, v10, 3, {vM}\nds_write_b64 v11, v[12:13] offset:{SC}')
    arrive(C_W1)
    setup_tags()
    a(f's_lshl_b32 s46, s44, 13\ns_lshl_b32 s30, s45, 8\ns_add_u32 s46, s46, s30\ns_lshl_b32 s30, {sI}, 6\ns_add_u32 s46, s46, s30\ns_add_u32 s46, s46, {P1}')
    stamp(1)
    await_(C_W1, 8, 'v11', sleep=0)
    stamp(22)
    w_read(XA, 'v6', 4)
    a(f'v_lshl_add_u32 v11, s44, 8, v8')
    b_read(XB, 'v11', 4)
    def publish(s_off, fine=False):
        for e in range(4):
            if fine: a(f'v_bfi_b32 {V(XD+e)}, 3, {sT}, {V(XD+e)}')
            else: tag(V(XD+e))
        setexec(0x0001000100010001)
        a(f'buffer_store_dwordx4 {V(XD,4)}, v29, {SRD_WS}, {s_off} offen sc1')
        setexec(-1)
    w_mfma(XD, XA, XB, 4, staged=True)
    publish('s46', True)
    stamp(2)
    a('s_waitcnt vmcnt(1)')
    for i in range(8):
        a(f'v_lshlrev_b32 v{100+2*i}, 16, v{16+i}\nv_and_b32 v{101+2*i}, 0xffff0000, v{16+i}')
    a('v_add_f32 v16, v100, v101')
    for i in range(2, 16): a(f'v_add_f32 v16, v16, v{100+i}')
    allred('v_add_f32', 'v16', 'v17')
    a(f'v_mul_f32 v16, {f2u(1/1024):#x}, v16\nv_mov_b32 v18, 0')
    for i in range(16): a(f'v_sub_f32 v17, v{100+i}, v16\nv_fmac_f32 v18, v17, v17')
    allred('v_add_f32', 'v18', 'v17')
    a(f'v_mul_f32 v18, {f2u(1/1024):#x}, v18')
    ln_scale('v16', 'v18')
    a('v_sub_f32 v14, v14, v16'); rnd('v14'); a('v_mul_f32 v14, v14, v18'); rnd('v14')
    stamp(23)
    await_(C_WQ, 4, 'v11')
    w_read(XA, 'v7', 8)
    a('s_waitcnt lgkmcnt(0)')
    arrive(C_WQF)
    stamp(3)
    a(f's_lshl_b32 s30, s42, 10\ns_lshl_b32 s31, {sI}, 8\ns_add_u32 s30, s30, s31\nv_lshl_add_u32 v12, v15, 4, s30\nv_lshl_add_u32 v12, v9, 13, v12')
    if T1: await_(C_T1, 2, 'v11', sleep=2)
    stamp(19)
    gather([(G + 4*i, 4, 'v12', P1 + (i & 1)*32768 + (i >> 1)*4096) for i in range(1 if 'smallg' in exp else 4)], 'v26', sleep=psleep, full=2)
    untag(range(G, G + 16), True)
    stamp(4)
    for hf in range(2):
        b = G + 8*hf
        a(f'v_pk_add_f32 {V(b,2)}, {V(b,2)}, {V(b+4,2)}\nv_pk_add_f32 {V(b+2,2)}, {V(b+2,2)}, {V(b+6,2)}')
        scat4(b); rnd(f'v{b}')
    a(f'v_add_f32 v{G+8}, 1.0, v{G+8}'); rnd(f'v{G+8}')
    a(f'v_mul_f32 v14, v14, v{G+8}'); rnd('v14')
    a(f'v_add_f32 v14, v14, v{G}'); rnd('v14')
    a(f'v_lshl_add_u32 v11, v28, 1, {vM}\nds_write_b16_d16_hi v11, v14 offset:{HV}')
    arrive(C_H)
    a(f's_lshl_b32 s47, s42, 14\ns_lshl_b32 s30, s43, 8\ns_add_u32 s47, s47, s30\ns_lshl_b32 s30, {sI}, 6\ns_add_u32 s47, s47, s30\ns_add_u32 s46, s47, {P2}')
    await_(C_H, 4, 'v11', sleep=0)
    a(f'v_add_u32 v11, {HV}, v8')
    b_read(XB, 'v11', 8)
    w_mfma(XD, XA, XB, 8, staged=True)
    publish('s46', True)
    stamp(5)
    a('v_lshlrev_b32 v12, 4, v1')
    a(f's_lshr_b32 s30, s2, 6\ns_lshl_b32 s30, s30, 12\ns_lshl_b32 s32, {sI}, 10\ns_add_u32 s30, s30, s32\nv_add_u32 v12, s30, v12')
    if T2: await_(C_T2, 2, 'v11', sleep=2)
    stamp(8)
    gather([(G + 4*i, 4, 'v12', P2 + i*16384) for i in range(1 if 'smallg' in exp else 4)], 'v26', sleep=psleep, full=2)
    untag(range(G, G + 16), True)
    for e in (0, 2):
        a(f'v_pk_add_f32 {V(G+e,2)}, {V(G+e,2)}, {V(G+4+e,2)}\nv_pk_add_f32 {V(G+8+e,2)}, {V(G+8+e,2)}, {V(G+12+e,2)}\nv_pk_add_f32 {V(G+e,2)}, {V(G+e,2)}, {V(G+8+e,2)}')
    a(f'v_cvt_pk_bf16_f32 v{G}, v{G}, v{G+1}\nv_cvt_pk_bf16_f32 v{G+1}, v{G+2}, v{G+3}')
    a(f's_mul_i32 s30, {sI}, 544\nv_lshrrev_b32 v11, 5, v1\nv_lshlrev_b32 v11, 4, v11\nv_lshl_add_u32 v11, v1, 3, v11\nv_add3_u32 v11, v11, {vM}, s30')
    a(f'ds_write_b64 v11, {V(G,2)} offset:{QL}')
    arrive(C_Q)
    if lite:
        Ll = a.lab('LI')
        a(f's_cmp_lg_u32 s3, 5\ns_cbranch_scc1 {Ll}\ns_lshl_b32 s30, s2, 7\ns_add_u32 s30, s30, {DBG}\nv_mov_b32 v11, 0\nv_mov_b32 v12, s34')
        setexec(1)
        a(f'buffer_store_dword v12, v11, {SRD_WS}, s30 offen')
        setexec(-1)
        a(f'{Ll}:')
    stamp(6)
    if xprio: a('s_setprio 0')
    CW, CB, C2 = 160, 174, 188
    a('v_lshlrev_b32 v11, 2, v10\nv_add_u32 v12, 0x1000, v11\nv_mov_b32 v17, 0\nv_mov_b32 v159, 0')
    for j, ptr in enumerate((sW1, sB1, sW2)):
        for i in range(0 if 'nocoef' in exp else 7): a(f'global_load_dword v{G+7*j+i}, {"v11" if i < 4 else "v12"}, {ptr} offset:{(i % 4)*1024}')
    a(f'global_load_short_d16_hi v159, v17, {sB2}')
    a(f'v_mov_b32 v44, {f2u(c1):#x}\nv_mov_b32 v45, {f2u(c0):#x}')
    a(f'v_lshl_add_u32 v13, v9, 2, {vM}\nv_lshl_add_u32 v13, {sI}, 7, v13')
    a(f's_lshl_b32 s39, s2, 5\ns_and_b32 s40, s39, 0xfff\ns_add_u32 s40, s40, {E0 << 7}\ns_lshr_b32 s30, s39, 12\ns_lshl_b32 s30, s30, 15\ns_or_b32 s40, s40, s30\ns_lshl_b32 s40, s40, 16')
    a('s_mov_b32 s41, 0\ns_waitcnt vmcnt(0)')
    for j, base in enumerate((CW, CB, C2)):
        for i in range(7): a(f'v_lshlrev_b32 v{base+2*i}, 16, v{G+7*j+i}\nv_and_b32 v{base+2*i+1}, 0xffff0000, v{G+7*j+i}')
    def weights():
        a('s_lshr_b32 s30, s38, 4\ns_lshl_b32 s30, s30, 13\ns_lshr_b32 s31, s38, 1\ns_and_b32 s31, s31, 7\ns_lshl_b32 s31, s31, 4\ns_add_u32 s30, s30, s31\nv_lshl_add_u32 v12, v1, 7, s30')
        gather([(G, 4, 'v12', ML)], 'v26', sleep=psleep, full=True)
        untag([G, G + 1])
        a(f'v_mov_b32 v16, v{G}')
        allred('v_max_f32', 'v16', 'v11')
        a(f'v_sub_f32 v16, v{G}, v16\nv_exp_f32 v16, v16\nv_mul_f32 v17, v16, v{G+1}')
        allred('v_add_f32', 'v17', 'v11')
        a(f'v_rcp_f32 v17, v17\nv_and_b32 v12, 15, v1\nv_lshlrev_b32 v12, 4, v12\nv_lshl_add_u32 v12, v9, 2, v12\nv_add_u32 v12, {vM}, v12\nv_mul_f32 v16, v16, v17')
        a(f'ds_write_b32 v12, v16 offset:{WL}')
        arrive(C_WL)
    def early_touch():
        Le = a.lab('ET')
        a(f's_cmp_lg_u32 {sI}, 2\ns_cbranch_scc1 {Le}\ns_and_b32 s30, s2, 7\ns_cmp_lg_u32 s30, {RX}\ns_cbranch_scc1 {Le}')
        a(f'v_lshlrev_b32 v11, 7, v1\nv_lshl_add_u32 v11, {sPi}, 10, v11\ns_mov_b32 s30, {P4}\nbuffer_load_dword v250, v11, {SRD_WS}, s30 offen sc1')
        a(f'v_and_b32 v11, 15, v1\nv_lshlrev_b32 v11, 12, v11\nv_lshl_add_u32 v11, {sPi}, 4, v11\ns_mov_b32 s30, {P3}\nbuffer_load_dword v251, v11, {SRD_WS}, s30 offen sc1')
        a(f'v_lshlrev_b32 v11, 4, v1\ns_mov_b32 s30, {ST0}\ns_mov_b32 s31, {ST}\nbuffer_load_dword v252, v11, {SRD_WS}, s30 offen sc1\nbuffer_load_dword v253, v11, {SRD_WS}, s31 offen sc1')
        a(f'{Le}:')
    if ept == 2: early_touch()
    a('L_tab:')
    for e in range(4): a(f'v_mov_b32 v{40+e}, s40\ns_add_u32 s40, s40, 0x10000\nv_mov_b32 v{16+e}, 0')
    Lz = a.lab('TZ')
    a(f's_add_u32 s39, s39, 4\ns_cmp_lg_u32 s39, 4096\ns_cbranch_scc1 {Lz}\nv_mov_b32 v43, 0\n{Lz}:')
    units = []
    for i in range(14):
        sel = i & 1; pr = i & ~1
        for dp in range(2):
            units.append((lambda u, sel=sel, pr=pr, dp=dp: f'v_pk_fma_f32 {u}, {V(40+2*dp,2)}, {V(CW+pr,2)}, {V(CB+pr,2)} op_sel:[0,{sel},{sel}] op_sel_hi:[1,{sel},{sel}]',
                          lambda u, sel=sel, pr=pr, dp=dp: f'v_pk_fma_f32 {V(16+2*dp,2)}, {u}, {V(C2+pr,2)}, {V(16+2*dp,2)} op_sel:[0,{sel},0] op_sel_hi:[1,{sel},1]'))
    gelu_units(units, 48, 64, 4)
    scat4(16)
    allred('v_add_f32', 'v16', None, (1, 2, 'hm', 'm'))
    setexec(0x0001000100010001)
    a(f'ds_write_b32 v13, v16 offset:{YT}')
    setexec(-1)
    a('v_add_u32 v13, 16, v13\ns_add_u32 s41, s41, 1\ns_cmp_lt_u32 s41, ' + ('1' if 'notab' in exp else '8') + '\ns_cbranch_scc1 L_tab')
    arrive(C_YT)
    if ept == 1: early_touch()
    stamp(7)
    LX3, LXD, LXM, LXR = a.lab('X3'), a.lab('XD'), a.lab('XM'), a.lab('XR')
    a(f's_cmp_lg_u32 {sI}, 0\ns_cbranch_scc1 {LX3}')
    await_(C_YT, 4, 'v11')
    a(f'v_and_b32 v12, 7, v1\nv_lshlrev_b32 v12, 4, v12\nv_add_u32 v11, {vM}, v12')
    for w in range(4): a(f'ds_read_b128 {V(48+4*w,4)}, v11 offset:{YT + 128*w}')
    a(f's_lshl_b32 s30, s2, 7\ns_add_u32 s30, s30, {TAB}\ns_waitcnt lgkmcnt(0)')
    for e in (0, 2): a(f'v_pk_add_f32 {V(48+e,2)}, {V(48+e,2)}, {V(52+e,2)}\nv_pk_add_f32 {V(56+e,2)}, {V(56+e,2)}, {V(60+e,2)}\nv_pk_add_f32 {V(48+e,2)}, {V(48+e,2)}, {V(56+e,2)}')
    for e in range(4): rnd(V(48+e))
    for e in range(4): a(f'v_add_f32 v{48+e}, v{48+e}, v159')
    for e in range(4): rnd(V(48+e))
    for e in range(4): a(f'v_or_b32 v{48+e}, {sT}, v{48+e}')
    setexec(0xff)
    a(f'buffer_store_dwordx4 v[48:51], v12, {SRD_WS}, s30 offen sc1')
    setexec(-1)
    a(f'{LX3}:')
    await_(C_RANK, 1, 'v11', sleep=2)
    a(f's_sub_u32 s33, s30, 1\ns_cmp_ge_u32 s33, 32\ns_cbranch_scc1 {LXM}')
    a('s_lshr_b32 s38, s33, 1\ns_lshr_b32 s30, s2, 6\ns_lshl_b32 s30, s30, 4\ns_add_u32 s38, s38, s30')
    a(f's_cmp_lg_u32 {sI}, 3\ns_cbranch_scc1 {LXD}')
    weights()
    a(f'{LXD}:')
    stamp(9)
    a(f's_lshl_b32 s30, s38, 14\ns_lshl_b32 s32, {sI}, 6\ns_add_u32 s30, s30, s32')
    a('v_and_b32 v13, 3, v1\nv_lshl_add_u32 v12, v13, 4, s30\nv_lshrrev_b32 v11, 2, v1\nv_lshl_add_u32 v12, v11, 8, v12')
    a(f'v_lshlrev_b32 v13, 3, v13\nv_lshl_add_u32 v13, v9, 1, v13\nv_lshl_add_u32 v13, {sI}, 5, v13\nv_add_u32 v13, {vM}, v13')
    W = 80
    a(f'v_lshl_add_u32 v14, v11, 4, {vM}')
    wo_setup(0)
    LH, LHD, LHS = a.lab('H'), a.lab('HD'), a.lab('HS')
    for i in range(4): a(f's_mov_b32 {SOFF(i)}, {OB + 4096*i:#x}')
    def h1ld(i): a(f'buffer_load_dwordx4 {V(G+4*i,4)}, v12, {SRD_WS}, {SOFF(i)} offen sc1')
    await_(C_WL, 1, 'v11', sleep=1)
    a(f'ds_read_b128 {V(W,4)}, v14 offset:{WL}')
    if pd1 is not None:
        await_(C_WO, 4, 'v11', sleep=1)
        for ct in range(4):
            for ks in range(2):
                for hf in range(2):
                    a(f'ds_read_b64_tr_b16 {V(120+8*ct+4*ks+2*hf,2)}, v{68+ct} offset:{ks*16384 + hf*8192}')
        stamp(10)
        gather_p([(G + 4*i, 4, 'v12', OB + 4096*i) for i in range(4)], 'v11', depth=pd1, sleep=ps1, thr=h1thr, bsleep=h1sleep)
    else:
        await_(C_MD, 4, 'v11', sleep=1)
        stamp(10)
        for i in range(4): h1ld(i)
        await_(C_WO, 4, 'v11', sleep=0)
        for ct in range(4):
            for ks in range(2):
                for hf in range(2):
                    a(f'ds_read_b64_tr_b16 {V(120+8*ct+4*ks+2*hf,2)}, v{68+ct} offset:{ks*16384 + hf*8192}')
        stamp(13)
        a(f's_mov_b32 {sSpin}, {spin}')
        a(f'{LH}:\ns_waitcnt vmcnt(0)')
        for i in range(4): a(f'v_perm_b32 v11, v{G+4*i+3}, v{G+4*i}, {sSelA}\nv_cmp_ne_u32 {MASK(i)}, {sT2}, v11')
        a(f's_bcnt1_i32_b64 s30, {MASK(0)}')
        for i in range(1, 4): a(f's_bcnt1_i32_b64 s31, {MASK(i)}\ns_add_u32 s30, s30, s31')
        a(f's_cmp_eq_u32 s30, 0\ns_cbranch_scc1 {LHD}')
        a(f's_sub_u32 {sSpin}, {sSpin}, 1\ns_cbranch_scc1 {LHD}')
        a(f's_cmp_le_u32 s30, {h1thr}\ns_cbranch_scc1 {LHS}\ns_sleep {h1sleep}\n{LHS}:')
        for i in range(4):
            Sk = a.lab('GS')
            a(f's_wqm_b64 exec, {MASK(i)}\ns_cbranch_execz {Sk}')
            h1ld(i)
            a(f'{Sk}:')
        a(f's_mov_b64 exec, -1\ns_branch {LH}\n{LHD}:')
    untag([G + 4*i + e for i in range(4) for e in (0, 3)])
    for e in (0, 2): a(f'v_pk_mul_f32 {V(G+e,2)}, {V(G+e,2)}, {V(W,2)} op_sel:[0,0] op_sel_hi:[1,0]')
    for i in range(1, 4):
        for e in (0, 2): a(f'v_pk_fma_f32 {V(G+e,2)}, {V(G+4*i+e,2)}, {V(W+(i&2),2)}, {V(G+e,2)} op_sel:[0,{i&1},0] op_sel_hi:[1,{i&1},1]')
    scat4(G)
    allred('v_add_f32', V(G), None, ('r4', 'r8'))
    rnd(V(G))
    setexec(0x000f000f000f000f)
    a(f'ds_write_b16_d16_hi v13, v{G} offset:{OV}')
    stamp(11)
    wo_finish()
    stamp(26)
    a(f'{LXM}:')
    a(f's_cmp_lg_u32 {sI}, 2\ns_cbranch_scc1 L_fin2\ns_and_b32 s30, s2, 7\ns_cmp_lg_u32 s30, {RX}\ns_cbranch_scc1 L_fin2')
    red_setup()
    await_(C_AD, 4, 'v11', sleep=2)
    a(f'v_mov_b32 v152, 0\nglobal_load_short_d16_hi v152, v29, {sX}')
    a(f'v_lshlrev_b32 v12, 4, v1\nv_lshl_add_u32 v12, {sPi}, 10, v12\nv_mov_b32 v46, {f2u(1/1024):#x}')
    a(f's_mov_b32 s40, {ST}\nv_mov_b32 v150, 4095\ns_mov_b32 s59, {TAB}')
    stamp(25)
    l4 = [(G + 4*i, 4, 'v12', P4 + i*1024) for i in range(8)]
    if smp4:
        gather(l4[:smp4], 'v11', sleep=1)
    if pd2 is None: gather(l4[smp4:], 'v11')
    else: gather_p(l4[smp4:], 'v11', depth=pd2, sleep=ps2)
    stamp(24)
    def p4_sum():
        untag([G + 4*i + e for i in range(8) for e in (0, 3)])
        for st in (4, 8, 16):
            for i in range(0, 32, 2*st):
                for e in (0, 2): a(f'v_pk_add_f32 {V(G+i+e,2)}, {V(G+i+e,2)}, {V(G+i+st+e,2)}')
        scat4(G)
        allred('v_add_f32', V(G), None, ('r8',))
        rnd(V(G))
    late_await(C_SM, 1, 'v11', lambda: a(f'ds_read_b128 v[140:143], v6 offset:{SM}'), p4_sum)
    a(f'v_mul_f32 v16, v{G}, v140\nv_cndmask_b32 v157, v142, v141, s[100:101]\nv_mov_b32 v23, 0'); rnd('v16'); a('v_add_f32 v16, v16, v152'); rnd('v16')
    a('v_mul_f32 v17, v16, v142')
    a('v_cndmask_b32 v18, v16, v17, s[100:101]\nv_cndmask_b32 v20, 1.0, v17, s[100:101]\nv_cndmask_b32 v21, v16, v142, s[100:101]')
    a('v_mul_f32 v20, v18, v20\nv_mul_f32 v21, v18, v21\nv_mul_f32 v22, v18, v157')
    st_publish('s40')
    stamp(21)
    gather([(G, 4, 'v5', ST + (0 if dual else STB))], 'v26', full=True, sleep=fsleep, alt=STB if dual else None)
    stamp(12)
    def ln1():
        st_reduce(G)
        for k, ln in enumerate((0, 16, 32, 1, 17, 33)): a(f'v_readlane_b32 s{38+k}, v{G}, {ln}')
        a('v_mul_f32 v24, s38, v46\nv_mul_f32 v25, s39, v46\nv_fma_f32 v25, -v24, v24, v25\nv_max_f32 v25, 0, v25')
        ln_scale('v24', 'v25')
    late_await(C_TAB, 1, 'v11', lambda: a(f'ds_read_b128 v[144:147], {vM} offset:{SM + 1024}\nds_read_b64 v[148:149], {vM} offset:{SM + 1040}\nds_read_b32 v143, v6 offset:{SM + 12}'), ln1)
    a('v_fma_f32 v26, -v24, v144, s40\nv_fma_f32 v28, -v24, v149, s43')
    a('v_mul_f32 v27, v24, v145\nv_fma_f32 v27, -2.0, s42, v27\nv_fma_f32 v27, v27, v24, s41')
    a('v_sub_f32 v40, v16, v24')
    a('v_fma_f32 v26, v26, v25, v146\nv_add_f32 v28, v28, v28\nv_fma_f32 v27, v27, v25, v28\nv_fma_f32 v27, v27, v25, v148')
    rnd('v40')
    a('v_mul_f32 v26, v26, v46\nv_mul_f32 v27, v27, v46\nv_mul_f32 v40, v40, v25\nv_fma_f32 v27, -v26, v26, v27')
    rnd('v40')
    a('v_max_f32 v27, 0, v27\nv_mul_f32 v40, v40, v142')
    rnd('v27'); rnd('v40'); rnd('v26')
    a(f'v_add_f32 v27, {f2u(1e-5):#x}, v27\nv_add_f32 v40, v40, v141'); rnd('v27'); rnd('v40')
    a('v_sqrt_f32 v27, v27\nv_sub_f32 v40, v40, v26'); rnd('v27'); rnd('v40')
    a('v_rcp_f32 v27, v27\nv_mul_f32 v40, v40, v27'); rnd('v40')
    a(f'v_bfe_u32 v41, v40, 16, 15\nv_lshrrev_b32 v43, 31, v40\nv_subrev_u32 v42, {E0 << 7}, v41\nv_cmp_eq_u32 vcc, 0, v41')
    a(f'v_cmp_lt_u32 s[38:39], v42, v47\nv_lshl_add_u32 v42, v43, 12, v42\nv_cndmask_b32 v42, v42, v47, vcc'.replace('v47', 'v150'))
    a(f'v_and_b32 v42, 0x1fff, v42\nv_lshlrev_b32 v42, 2, v42\nbuffer_load_dword v41, v42, {SRD_WS}, s59 offen sc1')
    a('s_or_b64 s[38:39], s[38:39], vcc\ns_waitcnt vmcnt(0)')
    a(f'v_and_b32 v42, 0xffff, v41\nv_and_b32 v41, 0xffff0000, v41\nv_cmp_ne_u32 vcc, {sT}, v42\ns_orn2_b64 s[38:39], vcc, s[38:39]\ns_cbranch_scc1 L_slow1')
    a('L_out:')
    a('v_mul_f32 v41, v41, v143'); rnd('v41'); a('v_add_f32 v41, v41, v16'); rnd('v41')
    setexec(0x00ff00ff00ff00ff)
    a(f'global_store_short_d16_hi v29, v41, {sOUT}')
    setexec(-1)
    stamp(14)
    if lite:
        a(f's_memrealtime s[34:35]\ns_lshl_b32 s30, s2, 7\ns_add_u32 s30, s30, {DBG + 64}\nv_mov_b32 v11, 0\ns_waitcnt lgkmcnt(0)\nv_mov_b32 v12, s34')
        setexec(1)
        a(f'buffer_store_dword v12, v11, {SRD_WS}, s30 offen')
        setexec(-1)
    a('L_fin:')
    a(f's_cmp_lg_u32 s2, {RX}\ns_cbranch_scc1 L_fin2')
    a(f'v_mov_b32 v7, {sE}\nv_mov_b32 v8, 0')
    setexec(1)
    a(f'global_store_dword v8, v7, {sWS} offset:12')
    setexec(-1)
    a('L_fin2:')
    if stamps:
        stamp(15)
        a('s_getreg_b32 s30, hwreg(HW_REG_XCC_ID)\nv_writelane_b32 v255, s30, 40')
        a(f's_lshl_b32 s30, s2, 11\ns_add_u32 s30, s30, {DBG}\nv_lshlrev_b32 v7, 2, v0')
        a(f'buffer_store_dword v255, v7, {SRD_WS}, s30 offen')
    a('L_end:\ns_endpgm')
    a('L_slow1:\ns_ff1_i32_b64 s40, s[38:39]\ns_bitset0_b64 s[38:39], s40\nv_readlane_b32 s41, v40, s40')
    a('v_lshlrev_b32 v11, 4, v1\nv_mov_b32 v18, 0\nv_mov_b32 v19, 0\nv_mov_b32 v42, s41\nv_mov_b32 v43, s41\ns_mov_b32 s42, 0')
    a('L_slow2:')
    for j, ptr in enumerate((sW1, sB1, sW2)): a(f'global_load_dwordx4 {V(G+4*j,4)}, v11, {ptr}')
    a('v_add_u32 v11, 0x400, v11\ns_waitcnt vmcnt(0)')
    for j in range(3):
        for i in range(4): a(f'v_lshlrev_b32 v{160+8*j+2*i}, 16, v{G+4*j+i}\nv_and_b32 v{161+8*j+2*i}, 0xffff0000, v{G+4*j+i}')
    gelu_units([(lambda u, i=i: f'v_pk_fma_f32 {u}, v[42:43], {V(160+2*i,2)}, {V(168+2*i,2)}',
                 lambda u, i=i: f'v_pk_fma_f32 v[18:19], {u}, {V(176+2*i,2)}, v[18:19]') for i in range(4)], 48, 64, 4)
    a('s_add_u32 s42, s42, 1\ns_cmp_lt_u32 s42, 7\ns_cbranch_scc1 L_slow2')
    a('v_add_f32 v18, v18, v19')
    allred('v_add_f32', 'v18', 'v19')
    rnd('v18'); a('v_add_f32 v18, v18, v159'); rnd('v18')
    a('v_readfirstlane_b32 s41, v18\ns_mov_b32 m0, s40\nv_writelane_b32 v41, s41, m0')
    a('s_cmp_lg_u64 s[38:39], 0\ns_cbranch_scc1 L_slow1\ns_branch L_out')
    a('L_code_end:')
    body = a.finish()
    out = HEADER + f'; @launch grid=(256,1,1) block=(512,1,1) lds={LDS_BYTES}\n'
    out += f'.amdgcn_target "amdgcn-amd-amdhsa--gfx950"\n.text\n.globl {NAME}_kernel\n.p2align 8\n.type {NAME}_kernel,@function\n'
    out += body
    out += f'''.section .rodata,"a"
.p2align 6
.amdhsa_kernel {NAME}_kernel
  .amdhsa_next_free_vgpr 256
  .amdhsa_next_free_sgpr 102
  .amdhsa_accum_offset 256
  .amdhsa_group_segment_fixed_size 0
  .amdhsa_kernarg_size 120
  .amdhsa_user_sgpr_count 2
  .amdhsa_user_sgpr_kernarg_segment_ptr 1
  .amdhsa_system_sgpr_workgroup_id_x 1
  .amdhsa_float_denorm_mode_32 3
.end_amdhsa_kernel
'''
    return out

if __name__ == '__main__':
    kw = {}
    for arg in sys.argv[2:]:
        k, v = arg.split('=')
        kw[k] = eval(v)
    open(sys.argv[1], 'w').write(gen(**kw))
```

```python
import sys, struct
from asmfw import Asm

NAME = 'adaLN_cond__gqa_block_cached__mixer_token_mlp__decode'

def f2u(x): return struct.unpack('<I', struct.pack('<f', x))[0]
LOG2E = 1.4426950408889634
SCALE = 128 ** -0.5

P1 = 0x10000; P2 = 0x20000; P3 = 0x30000; ML = 0x40000; ST0 = 0x50000; ST = 0x52000; STB = 0x1000
RK = 0x60000; TAB = 0x68000; P4 = 0x80000; OB = 0x100000; DBG = 0x200000
RS = 6; RINGW = RS * 4096
WB = 4 * RINGW; WA = WB + 32768; MISC = WA + 16384
SC = 0; QL = 2048; HV = 4352; OV = 4864; MLW = 5376; CNT = 5760; WL = 5888; YT = 6144; SM = 6656
LDS_BYTES = 163840
C_W1, C_WQ, C_H, C_Q, C_M2, C_ML, C_RED, C_WO, C_WOF, C_TICK, C_T1, C_T2, C_PUB, C_VI, C_WL, C_RANK, C_YT, C_TAB, C_OV, C_MD, C_SM, C_RANK2, C_RANK3, C_AD, C_R1, C_WQF = range(26)

HEADER = open('cdna_kernels/' + NAME + '.s.ref').read().split('; Override launch')[0]

def gen(F=6, NQ=60, k7=True, nt=' nt', wnt=' nt', stamps=False, warm=3, spf='', xbar=1, spin=1 << 19, psleep=16, xprio=3, aprio=1,
        T1=30, T2=56, exp='', fastpro=False, trim=False, obt=0, obf=' sc1', p12f=' sc1', h1late=0, otouch=False, osc='', UC=3, UM=None, EX=0, pd1=None, ps1=1, h1sleep=6, h1thr=48, fsleep=1, Fs=((0, 6), (120, 7)), TK=16, XTRA=0, h1m=1, NZ=16, AF=7, MLP_AT=7, dual=True, pretouch=1, RX=0, p3sleep=2, pd2=1, ps2=2, TR=14, T2AT=0, CF=8, ept=2, Fhi=None, Flo=None, rth=33, a1w=True, SPL=0, smp4=0, smp3=0, su=False, tlb=0, E0=101, TH=64, gbl=True):
    a = Asm()
    lite = stamps == 'lite'
    if lite: stamps = False
    SRD_K, SRD_V, SRD_WS, SRD_WQ, SRD_WO, SRD_WM = 's[4:7]', 's[8:11]', 's[12:15]', 's[16:19]', 's[20:23]', 's[24:27]'
    sX, sW1, sB1, sW2, sB2, sC, sOUT, sWS = 's[36:37]', 's[48:49]', 's[50:51]', 's[52:53]', 's[54:55]', 's[56:57]', 's[60:61]', 's[64:65]'
    sE, sI, sBase, sSpin = 's66', 's67', 's68', 's69'
    sT, sT2, sT4, sSelA, sSelB, sPi = 's86', 's87', 's88', 's89', 's90', 's91'
    MASK = lambda i: f's[{70+2*i}:{71+2*i}]'
    SOFF = lambda i: f's{92+i}'
    vM, vOne, vHi = 'v2', 'v3', 'v247'
    V = lambda i, n=1: f'v{i}' if n == 1 else f'v[{i}:{i+n-1}]'

    def stamp(i):
        if stamps:
            a(f's_memrealtime s[34:35]\ns_waitcnt lgkmcnt(0)\nv_writelane_b32 v255, s34, {i}')
    def setexec(mask):
        if mask == -1: a('s_mov_b64 exec, -1')
        elif mask < 64: a(f's_mov_b64 exec, {mask}')
        else: a(f's_mov_b32 exec_lo, {mask & 0xffffffff:#x}\ns_mov_b32 exec_hi, {mask >> 32:#x}')
    def arrive(c):
        a(f's_mov_b64 exec, 1\nds_add_u32 {vM}, {vOne} offset:{CNT + 4*c}\ns_mov_b64 exec, -1')
    def await_(c, n, tmp, sleep=1):
        L = a.lab('W'); D = a.lab('WD')
        a(f's_mov_b32 {sSpin}, {spin}')
        a(f'{L}:\nds_read_b32 {tmp}, {vM} offset:{CNT + 4*c}\ns_waitcnt lgkmcnt(0)\nv_readfirstlane_b32 s30, {tmp}')
        a(f's_cmp_ge_u32 s30, {n}\ns_cbranch_scc1 {D}')
        if sleep: a(f's_sleep {sleep}')
        a(f's_sub_u32 {sSpin}, {sSpin}, 1\ns_cbranch_scc0 {L}\n{D}:')
    def late_await(c, n, tmp, reads, work):
        D = a.lab('LA')
        a(f'ds_read_b32 {tmp}, {vM} offset:{CNT + 4*c}')
        reads()
        work()
        a(f's_waitcnt lgkmcnt(0)\nv_readfirstlane_b32 s30, {tmp}\ns_cmp_ge_u32 s30, {n}\ns_cbranch_scc1 {D}')
        await_(c, n, tmp, sleep=0)
        reads()
        a(f's_waitcnt lgkmcnt(0)\n{D}:')
    def rnd(r): a(f'v_cvt_pk_bf16_f32 {r}, 0, {r}')
    def tag(r): a(f'v_and_or_b32 {r}, {r}, {vHi}, {sT}')
    def untag(regs, fine=False):
        for r in regs: a(f'v_and_b32 v{r}, {"-4" if fine else vHi}, v{r}')
    DPP = {1: 'quad_perm:[1,0,3,2]', 2: 'quad_perm:[2,3,0,1]', 'hm': 'row_half_mirror', 'm': 'row_mirror', 'r4': 'row_ror:4', 'r8': 'row_ror:8'}
    def allred(op, r, t, steps=(1, 2, 'hm', 'm', 16, 32)):
        for s in steps:
            if s in DPP: a(f'{op}_dpp {r}, {r}, {r} {DPP[s]} row_mask:0xf bank_mask:0xf')
            else: a(f'v_mov_b32 {t}, {r}\nv_permlane{s}_swap_b32 {r}, {t}\n{op} {r}, {r}, {t}')
    def scat4(b):
        a(f'v_permlane32_swap_b32 v{b}, v{b+2}\nv_permlane32_swap_b32 v{b+1}, v{b+3}\nv_pk_add_f32 {V(b,2)}, {V(b,2)}, {V(b+2,2)}')
        a(f'v_permlane16_swap_b32 v{b}, v{b+1}\nv_add_f32 v{b}, v{b}, v{b+1}')
    def setup_tags():
        a(f's_add_u32 {sE}, {sE}, 1\ns_and_b32 {sT}, {sE}, 0xff\ns_mul_i32 {sT2}, {sT}, 0x101\ns_mul_i32 {sT4}, {sT}, 0x1010101')
        a(f's_mov_b32 {sSelA}, 0x0c0c0400\ns_mov_b32 {sSelB}, 0x04000c0c\nv_mov_b32 {vHi}, 0xffffff00')
        a(f's_and_b32 {sPi}, s2, 0xf8')
    def gather(loads, tmp, sleep=0, full=False, thr=None, alt=None):
        L = a.lab('G'); D = a.lab('GD')
        his = []
        for d, w, vo, off in loads:
            if off & ~0xfff not in his: his.append(off & ~0xfff)
        for i, h in enumerate(his): a(f's_mov_b32 {SOFF(i)}, {h:#x}')
        if alt: a(f's_mov_b32 {SOFF(1)}, {his[0] + alt:#x}')
        def ld(d, w, vo, off):
            sfx = {1: 'dword', 2: 'dwordx2', 4: 'dwordx4'}[w]
            a(f'buffer_load_{sfx} {V(d, w)}, {vo}, {SRD_WS}, {SOFF(his.index(off & ~0xfff))} offen offset:{off & 0xfff} sc1')
        for x in loads: ld(*x)
        a(f's_mov_b32 {sSpin}, {spin}')
        a(f'{L}:')
        n = len(loads)
        for i, (d, w, vo, off) in enumerate(loads):
            a(f's_waitcnt vmcnt({n-1-i})')
            if w == 1: a(f'v_and_b32 {tmp}, 0xff, {V(d)}\nv_cmp_ne_u32 {MASK(i)}, {sT}, {tmp}')
            elif full:
                t2 = f'v{int(tmp[1:]) + 1}'
                a(f'v_perm_b32 {tmp}, {V(d+1)}, {V(d)}, {sSelA}\nv_perm_b32 {t2}, {V(d+3)}, {V(d+2)}, {sSelB}\nv_or_b32 {tmp}, {tmp}, {t2}')
                if full == 2: a(f'v_xor_b32 {tmp}, {sT4}, {tmp}\nv_and_b32 {tmp}, 0x03030303, {tmp}\nv_cmp_ne_u32 {MASK(i)}, 0, {tmp}')
                else: a(f'v_cmp_ne_u32 {MASK(i)}, {sT4}, {tmp}')
            else: a(f'v_perm_b32 {tmp}, {V(d+w-1)}, {V(d)}, {sSelA}\nv_cmp_ne_u32 {MASK(i)}, {sT2}, {tmp}')
        a(f's_or_b64 s[28:29], {MASK(0)}, {MASK(1 if n > 1 else 0)}')
        for i in range(2, n): a(f's_or_b64 s[28:29], s[28:29], {MASK(i)}')
        a(f's_cbranch_scc0 {D}')
        a(f's_sub_u32 {sSpin}, {sSpin}, 1\ns_cbranch_scc1 {D}')
        if sleep and thr is not None:
            S = a.lab('GN')
            a(f's_bcnt1_i32_b64 s30, {MASK(0)}')
            for i in range(1, n): a(f's_bcnt1_i32_b64 s31, {MASK(i)}\ns_add_u32 s30, s30, s31')
            a(f's_cmp_le_u32 s30, {thr}\ns_cbranch_scc1 {S}\ns_sleep {sleep}\n{S}:')
        elif sleep: a(f's_sleep {sleep}')
        if alt:
            a(f's_and_b32 s30, {sSpin}, 15\ns_cselect_b32 {SOFF(0)}, {his[0]:#x}, {SOFF(1)}')
        for i, x in enumerate(loads):
            S = a.lab('GS')
            a(f's_wqm_b64 exec, {MASK(i)}\ns_cbranch_execz {S}')
            ld(*x)
            a(f'{S}:')
        a(f's_mov_b64 exec, -1\ns_waitcnt vmcnt(0)\ns_branch {L}\n{D}:')
    def gather_p(loads, tmp, depth=3, sleep=1, full=False, thr=None, bsleep=0):
        L = a.lab('G'); D = a.lab('GD')
        his = []
        for d, w, vo, off in loads:
            if off & ~0xfff not in his: his.append(off & ~0xfff)
        for i, h in enumerate(his): a(f's_mov_b32 {SOFF(i)}, {h:#x}')
        n = len(loads)
        def ld(d, w, vo, off):
            a(f'buffer_load_dwordx4 {V(d, w)}, {vo}, {SRD_WS}, {SOFF(his.index(off & ~0xfff))} offen offset:{off & 0xfff} sc1')
        for x in loads: ld(*x)
        a(f's_mov_b32 {sSpin}, {spin}\ns_waitcnt vmcnt(0)')
        a(f'{L}:')
        for i, (d, w, vo, off) in enumerate(loads):
            if full:
                t2 = f'v{int(tmp[1:]) + 1}'
                a(f'v_perm_b32 {tmp}, {V(d+1)}, {V(d)}, {sSelA}\nv_perm_b32 {t2}, {V(d+3)}, {V(d+2)}, {sSelB}\nv_or_b32 {tmp}, {tmp}, {t2}')
                a(f'v_cmp_ne_u32 {MASK(i)}, {sT4}, {tmp}')
            else: a(f'v_perm_b32 {tmp}, {V(d+w-1)}, {V(d)}, {sSelA}\nv_cmp_ne_u32 {MASK(i)}, {sT2}, {tmp}')
        a(f's_or_b64 s[28:29], {MASK(0)}, {MASK(1 if n > 1 else 0)}')
        for i in range(2, n): a(f's_or_b64 s[28:29], s[28:29], {MASK(i)}')
        a(f's_cbranch_scc0 {D}')
        a(f's_sub_u32 {sSpin}, {sSpin}, 1\ns_cbranch_scc1 {D}')
        if thr is not None:
            S = a.lab('GN')
            a(f's_bcnt1_i32_b64 s30, {MASK(0)}')
            for i in range(1, n): a(f's_bcnt1_i32_b64 s31, {MASK(i)}\ns_add_u32 s30, s30, s31')
            a(f's_cmp_le_u32 s30, {thr}\ns_cbranch_scc1 {S}\ns_sleep {bsleep}\n{S}:')
        for i, x in enumerate(loads):
            a(f's_or_b32 s{70+2*i}, s{70+2*i}, 1\ns_wqm_b64 exec, {MASK(i)}')
            ld(*x)
        a('s_mov_b64 exec, -1')
        if sleep: a(f's_sleep {sleep}')
        a(f's_waitcnt vmcnt({n*depth})\ns_branch {L}\n{D}:\ns_waitcnt vmcnt(0)')
    def w_voff(dst, stride, t):
        a(f'v_lshrrev_b32 {t}, 3, v1\nv_mul_u32_u24 {dst}, {stride}, {t}')
        a(f'v_lshrrev_b32 {t}, 4, v1\nv_lshlrev_b32 {t}, 1, {t}\nv_xor_b32 {t}, {t}, v1\nv_and_b32 {t}, 7, {t}\nv_lshl_add_u32 {dst}, {t}, 4, {dst}')
    def w_traddr(dst, base, t, t2):
        a(f'v_lshrrev_b32 {t}, 2, v1\nv_lshlrev_b32 {dst}, 7, {t}')
        a(f'v_and_b32 {t}, 6, {t}')
        a(f'v_lshrrev_b32 {t2}, 1, v1\nv_and_b32 {t2}, 1, {t2}\nv_lshl_add_u32 {t2}, {sI}, 1, {t2}')
        a(f'v_xor_b32 {t}, {t}, {t2}\nv_lshl_add_u32 {dst}, {t}, 4, {dst}')
        a(f'v_and_b32 {t}, 1, v1\nv_lshl_add_u32 {dst}, {t}, 3, {dst}\nv_add_u32 {dst}, {base}, {dst}')
    def w_read(areg, addr, nks):
        for ks in range(nks):
            a(f'ds_read_b64_tr_b16 {V(areg+4*ks, 2)}, {addr} offset:{ks*4096}')
            a(f'ds_read_b64_tr_b16 {V(areg+4*ks+2, 2)}, {addr} offset:{ks*4096+2048}')
    def b_read(breg, addr, nks):
        for ks in range(nks):
            a(f'ds_read2_b64 {V(breg+4*ks, 4)}, {addr} offset0:{8*ks} offset1:{8*ks+4}')
    def w_mfma(d, areg, breg, nks, staged=False):
        for ks in range(nks):
            if staged: a(f's_waitcnt lgkmcnt({nks-1-ks})')
            a(f'v_mfma_f32_16x16x32_bf16 {V(d,4)}, {V(areg+4*ks,4)}, {V(breg+4*ks,4)}, {"0" if ks == 0 else V(d,4)}')
    def ln_scale(mean, var):
        rnd(var); rnd(mean)
        a(f'v_add_f32 {var}, {f2u(1e-5):#x}, {var}'); rnd(var)
        a(f'v_sqrt_f32 {var}, {var}'); rnd(var)
        a(f'v_rcp_f32 {var}, {var}')
    c0 = -2 * LOG2E * 0.7978845608028654; c1 = c0 * 0.044715
    def gelu_units(units, U, Z, NB):
        for s0 in range(0, len(units), NB):
            blk = list(enumerate(units[s0:s0+NB]))
            R2 = lambda base, k: V(base + 2*k, 2)
            def both(fn):
                for k, _ in blk:
                    fn(2*k); fn(2*k+1)
            for k, (first, last) in blk: a(first(R2(U, k)))
            for k, _ in blk: a(f'v_pk_mul_f32 {R2(Z,k)}, {R2(U,k)}, {R2(U,k)}')
            for k, _ in blk: a(f'v_pk_fma_f32 {R2(Z,k)}, {R2(Z,k)}, v[44:45], v[44:45] op_sel:[0,0,1] op_sel_hi:[1,0,1]')
            for k, _ in blk: a(f'v_pk_mul_f32 {R2(Z,k)}, {R2(Z,k)}, {R2(U,k)}')
            both(lambda r: a(f'v_exp_f32 {V(Z+r)}, {V(Z+r)}'))
            for k, _ in blk: a(f'v_pk_add_f32 {R2(Z,k)}, {R2(Z,k)}, 1.0 op_sel_hi:[1,0]')
            both(lambda r: a(f'v_rcp_f32 {V(Z+r)}, {V(Z+r)}'))
            for k, _ in blk: a(f'v_pk_mul_f32 {R2(U,k)}, {R2(U,k)}, {R2(Z,k)}')
            for k, (first, last) in blk: a(last(R2(U, k)))

    def st_reduce(b):
        untag(range(b, b + 3))
        scat4(b)
        allred('v_add_f32', f'v{b}', None, (2, 'r4', 'r8'))
    def st_publish(base):
        scat4(20)
        allred('v_add_f32', 'v20', None, (1, 2, 'hm'))
        tag('v20')
        setexec(0x0101010101010101)
        if dual: a(f'buffer_store_dword v20, v31, {SRD_WS}, {base} offen')
        a(f's_add_u32 {base}, {base}, {STB}\nbuffer_store_dword v20, v31, {SRD_WS}, {base} offen sc1')
        setexec(-1)
    def red_setup():
        a(f'v_lshrrev_b32 v9, 4, v1\nv_and_b32 v13, 7, v1\nv_lshl_add_u32 v30, v13, 2, v9\nv_lshl_add_u32 v30, {sPi}, 2, v30\nv_lshlrev_b32 v29, 1, v30\nv_lshlrev_b32 v30, 2, v30')
        a(f'v_lshrrev_b32 v11, 3, v1\nv_and_b32 v11, 1, v11\nv_cmp_eq_u32 s[100:101], 1, v11\nv_lshl_add_u32 v28, v11, 15, v30')
        a(f'v_lshlrev_b32 v31, 4, v11\nv_lshl_add_u32 v31, v9, 2, v31\nv_lshl_add_u32 v31, {sPi}, 2, v31\nv_lshlrev_b32 v5, 4, v1')
        a(f'v_lshl_add_u32 v6, v1, 4, {vM}')

    def wo_setup(j):
        a('v_lshrrev_b32 v11, 2, v1\nv_lshlrev_b32 v68, 9, v11\nv_and_b32 v74, 7, v11\nv_lshlrev_b32 v74, 1, v74')
        a(f'v_lshrrev_b32 v75, 1, v1\nv_and_b32 v75, 1, v75\nv_lshl_add_u32 v75, {sI}, 3, v75\nv_xor_b32 v74, v74, v75\nv_lshl_add_u32 v68, v74, 4, v68')
        a(f'v_and_b32 v74, 1, v1\nv_lshl_add_u32 v68, v74, 3, v68\nv_add_u32 v68, {WB if j == 0 else 16384}, v68')
        for i in range(1, 4): a(f'v_xor_b32 v{68+i}, {i << 5:#x}, v68')
        if j == 1:
            for i in range(4): a(f'v_mov_b32 v{84+i}, v{68+i}\nv_add_u32 v{88+i}, {2*RINGW}, v{68+i}')
        for r in range(202, 234): a(f'v_mov_b32 v{r}, 0')
        a(f'v_lshrrev_b32 v75, 4, v1\nv_lshl_add_u32 v72, v75, 3, {vM}\nv_add_u32 v72, {OV}, v72\nv_lshlrev_b32 v73, 4, v75\nv_lshl_add_u32 v73, v74, 6, v73')
        a('v_and_b32 v74, 2, v1\nv_lshl_add_u32 v73, v74, 12, v73')
        a('s_lshr_b32 s45, s33, 1\ns_lshr_b32 s30, s2, 6\ns_lshl_b32 s30, s30, 4\ns_add_u32 s45, s45, s30\ns_lshl_b32 s45, s45, 7')
        a(f's_and_b32 s30, s33, 1\ns_lshl_b32 s30, s30, 17\ns_add_u32 s45, s45, s30\ns_lshl_b32 s30, {sI}, 14\ns_add_u32 s45, s45, s30\ns_add_u32 s45, s45, {P4 + 0x10000*j}')
    def wo_finish():
        a('s_waitcnt lgkmcnt(0)\ns_barrier')
        for ct in range(4):
            setexec(0x0001000100010001 << ct)
            b_read(202 + 8*ct, 'v72', 2)
        setexec(-1)
        w_mfma(24, 120, 202, 8, staged=True)
        setexec(0x000f000f000f000f)
        for e in (0, 3): tag(V(24+e))
        a(f'buffer_store_dwordx4 v[24:27], v73, {SRD_WS}, s45 offen sc1')
        setexec(-1)

    a(f'{NAME}_kernel:')
    def sus(k):
        if su: a(f's_memrealtime s[{70+2*k}:{71+2*k}]')
    def warm_code():
        a('s_getpc_b64 s[32:33]\nL_pc:')
        a(f'v_lshlrev_b32 v4, 7, v0\nv_cmp_gt_u32 vcc, L_code_end-L_pc-4, v4\ns_and_saveexec_b64 s[28:29], vcc\ns_cbranch_execz L_nowarm')
        a('global_load_dword v254, v4, s[32:33]\nL_nowarm:\ns_mov_b64 exec, -1')
    if fastpro:
        a('s_lshr_b32 s30, s2, 8\ns_cbranch_scc1 L_end\ns_load_dwordx2 s[24:25], s[0:1], 88')
        a('v_readfirstlane_b32 s3, v0\nv_lshrrev_b32 v26, 3, v0\ns_and_b32 s30, s2, 7\nv_and_b32 v27, 6, v26\nv_lshl_add_u32 v26, s30, 7, v26')
        a('v_xor_b32 v27, v27, v0\ns_andn2_b32 s31, s2, 7\nv_and_b32 v27, 7, v27\nv_mul_u32_u24 v26, 12288, v26\nv_or_b32 v27, s31, v27')
        a(f's_lshl_b32 s31, s3, 4\nv_lshl_add_u32 v26, v27, 4, v26\ns_add_u32 m0, s31, {WA}\nv_add_u32 v27, {64*12288}, v26')
        a(f's_waitcnt lgkmcnt(0)\nglobal_load_lds_dwordx4 v26, s[24:25]{wnt}\ns_add_u32 m0, s31, {WA + 8192}\nglobal_load_lds_dwordx4 v27, s[24:25]{wnt}')
        if lite: a('s_memrealtime s[34:35]')
        a('s_load_dwordx2 s[16:17], s[0:1], 24\ns_load_dwordx16 s[36:51], s[0:1], 0')
        a('s_load_dwordx8 s[52:59], s[0:1], 64\ns_load_dwordx4 s[60:63], s[0:1], 96\ns_load_dwordx2 s[64:65], s[0:1], 112')
        if warm is True: warm_code()
        a('s_lshr_b32 s3, s3, 6\nv_and_b32 v1, 63, v0\ns_mov_b32 s26, 0xc00000\ns_mov_b32 s27, 0x20000')
        w_voff('v236', 12288, 'v26')
        a('s_waitcnt lgkmcnt(0)')
    else:
        a('s_cmp_ge_u32 s2, 256\ns_cbranch_scc1 L_end')
        if lite: a('s_memrealtime s[34:35]')
        def sus(k):
            if su: a(f's_memrealtime s[{70+2*k}:{71+2*k}]')
        sus(0)
        a('s_load_dwordx2 s[24:25], s[0:1], 88\ns_load_dwordx2 s[16:17], s[0:1], 24\ns_load_dwordx16 s[36:51], s[0:1], 0')
        a('s_load_dwordx8 s[52:59], s[0:1], 64\ns_load_dwordx4 s[60:63], s[0:1], 96\ns_load_dwordx2 s[64:65], s[0:1], 112')
        if warm is True:
            a('s_getpc_b64 s[32:33]\nL_pc:')
            if warm == 2: a('v_xor_b32 v4, 0x100, v0\nv_lshlrev_b32 v4, 7, v4')
            else: a('v_lshlrev_b32 v4, 7, v0')
            a(f'v_cmp_gt_u32 vcc, L_code_end-L_pc-4, v4\ns_and_saveexec_b64 s[28:29], vcc\ns_cbranch_execz L_nowarm')
            a('global_load_dword v254, v4, s[32:33]\nL_nowarm:\ns_mov_b64 exec, -1')
        a('v_lshrrev_b32 v1, 6, v0\nv_readfirstlane_b32 s3, v1\nv_and_b32 v1, 63, v0')
        w_voff('v236', 12288, 'v26')
        a(f's_and_b32 s30, s2, 7\ns_lshl_b32 s30, s30, 3\ns_add_u32 s30, s30, s3\ns_mul_i32 s32, s30, {16*12288}\ns_lshr_b32 s30, s2, 3\ns_lshl_b32 s30, s30, 7\ns_add_u32 s32, s32, s30')
        a(f's_lshl_b32 s31, s3, 11\ns_add_u32 m0, s31, {WA}\ns_mov_b32 s26, 0xc00000\ns_mov_b32 s27, 0x20000\ns_add_u32 s33, s32, {8*12288 - 1024}')
        sus(1)
        a('s_waitcnt lgkmcnt(0)')
        sus(2)
        a(f'buffer_load_dwordx4 v236, {SRD_WM}, s32 offen{wnt} lds\nbuffer_load_dwordx4 v236, {SRD_WM}, s33 offen offset:1024{wnt} lds')
        sus(3)
    a(f's_mov_b64 s[20:21], s[44:45]\ns_and_b32 {sI}, s3, 3\ns_mov_b32 s18, 0x800000\ns_mov_b32 s19, 0x20000')
    def common2(x):
        a(f'v_mov_b32 {vM}, {MISC}\nv_mov_b32 {vOne}, 1')
        if stamps: a('v_mov_b32 v255, 0')
        a('s_mov_b32 s6, 0x4000000\ns_mov_b32 s7, 0x20000\ns_mov_b32 s10, 0x4000000\ns_mov_b32 s11, 0x20000')
        a('s_mov_b32 s14, 0x10000000\ns_mov_b32 s15, 0x20000\ns_mov_b32 s22, 0x800000\ns_mov_b32 s23, 0x20000')
        for srd, p in ((4, 38), (8, 40), (12, 64)):
            a(f's_mov_b64 s[{srd}:{srd+1}], s[{p}:{p+1}]')
    if xbar == 1: a('s_cmp_lt_u32 s3, 4\ns_cbranch_scc1 L_A\ns_barrier\ns_branch L_X\nL_A:')
    elif xbar == 2:
        a('s_cmp_lt_u32 s3, 4\ns_cbranch_scc1 L_A')
        a(f'v_lshlrev_b32 v27, 2, v1\nv_add_u32 v27, {MISC}, v27\nv_mov_b32 v28, 0')
        setexec(0xffffffff); a(f'ds_write_b32 v27, v28 offset:{CNT}'); setexec(-1)
        a('s_waitcnt lgkmcnt(0)\ns_barrier\ns_branch L_X\nL_A:')
    else: a('s_cmp_ge_u32 s3, 4\ns_cbranch_scc1 L_X')

    VOFF, KA, VA, Q, S, H = 4, 8, 16, 32, 64, 96
    PP, D1, D2, VS = 32, 96, 128, 160
    vMax, vSum = 'v224', 'v225'
    if aprio: a(f's_setprio {aprio}')
    seq = [('w1', i) for i in range(2)] + [('wq', i) for i in range(8)]
    seq += [('kv', i) for i in range(128)] + [('fill', k) for k in range(8)]
    if k7:
        pair_slot = [0, 2, 4, 0, 2, 4, 0, 6] + [2, 4, 0, 2, 0, 2, 0, 2]
        slot_of = lambda gi: pair_slot[gi >> 1] + (gi & 1)
    else:
        slot_of = lambda gi: gi % RS if gi < 28 else gi - 28
    pos = {e: n for n, e in enumerate(seq)}
    NS = len(seq)
    Fbase = (lambda n: [f for (n0, f) in Fs if n0 <= n][-1]) if Fs else (lambda n: F)
    NV = pos[('kv', 127)]
    CTL = NV - TR + F + 4 if Fhi else NS + 1
    Fn = lambda n: Fhi if CTL <= n <= NV else Fbase(n)
    FI = Fn(0)
    def landed_at(k):
        n = k + 1
        while n < FI or n - Fn(n) < k: n += 1
        return n
    a(f's_lshl_b32 s59, {sI}, 13')
    vorder = []
    for u in range(4): vorder += [4*u, 4*u+2, 4*u+1, 4*u+3]
    def issue(n):
        kind, i = seq[n]
        if kind == 'kv':
            gi, j = i // 4, i % 4
            if j == 0 or seq[n-1][0] != 'kv':
                grp = gi if gi < 16 else vorder[gi - 16]
                a(f's_add_u32 s39, {sBase}, {grp*16384}')
                a(f's_add_u32 m0, s38, {slot_of(gi)*4096}' if slot_of(gi) < RS else f's_add_u32 m0, s59, {WB + (slot_of(gi) - RS)*4096}')
            a(f'buffer_load_dwordx4 v{VOFF+j}, {SRD_K if gi < 16 else SRD_V}, s39 offen offset:{j*1024}{nt} lds')
        else:
            srd, vo, so, stride, lb, sl = {'wq': (SRD_WQ, 'v237', 's47', 8192, WB, 's59')}[kind]
            a(f's_add_u32 s32, {so}, {8*i*stride}\ns_add_u32 m0, {sl}, {lb + i*1024}')
            a(f'buffer_load_dwordx4 {vo}, {srd}, s32 offen{wnt} lds')
    w_voff('v237', 8192, 'v26')
    a(f's_and_b32 s30, s2, 3\ns_lshl_b32 s30, s30, 2\ns_add_u32 s30, s30, {sI}\ns_lshl_b32 s47, s30, 19')
    a('s_lshr_b32 s30, s2, 2\ns_lshl_b32 s30, s30, 7\ns_add_u32 s47, s47, s30')
    sus(4)
    for n in range(2, FI): issue(n)
    sus(5)
    if xbar == 2:
        a('s_barrier')
        common2(False)
        a(f's_load_dword {sE}, {sWS}, 12')
    else:
        common2(False)
        a('s_cmp_lg_u32 s3, 3\ns_cbranch_scc1 L_noinit')
        a(f'v_lshl_add_u32 v27, v1, 2, {vM}\nv_mov_b32 v28, 0')
        setexec(0xffffffff); a(f'ds_write_b32 v27, v28 offset:{CNT}'); setexec(-1)
        a('s_waitcnt lgkmcnt(0)\nL_noinit:')
        sus(6)
        a(f's_barrier\ns_load_dword {sE}, {sWS}, 12')
    sus(7)
    stamp(0)
    stamp(16)
    a('v_lshrrev_b32 v24, 4, v1\nv_and_b32 v25, 15, v1')
    a('v_lshlrev_b32 v26, 1, v24\nv_xor_b32 v26, v26, v25\nv_lshlrev_b32 v26, 4, v26\nv_lshl_add_u32 v4, v24, 8, v26')
    for i in range(1, 4): a(f'v_xor_b32 v{VOFF+i}, {(8*(i&1) + (i>>1)) << 4:#x}, v4')
    a(f's_lshl_b32 {sBase}, s2, 18\ns_lshl_b32 s30, s3, 12\ns_add_u32 {sBase}, {sBase}, s30')
    a(f's_mul_i32 s38, s3, {RINGW}')
    def t_setup():
        a('v_and_b32 v26, 7, v25\nv_lshlrev_b32 v26, 1, v26\nv_lshrrev_b32 v27, 3, v25\nv_or_b32 v26, v26, v27')
        a('v_lshrrev_b32 v27, 1, v24\nv_xor_b32 v26, v26, v27\nv_lshlrev_b32 v26, 4, v26\nv_lshl_add_u32 v26, v25, 8, v26')
        a(f'v_and_b32 v27, 1, v24\nv_lshl_add_u32 v26, v27, 12, v26\nv_add_u32 v{KA}, s38, v26')
        for j in range(1, 8): a(f'v_xor_b32 v{KA+j}, {j << 5:#x}, v{KA}')
        a('v_lshrrev_b32 v27, 2, v1')
        a('v_and_b32 v26, 7, v27\nv_lshlrev_b32 v26, 1, v26\nv_lshrrev_b32 v28, 3, v27\nv_or_b32 v26, v26, v28')
        a('v_lshrrev_b32 v28, 1, v1\nv_and_b32 v28, 1, v28\nv_xor_b32 v26, v26, v28\nv_lshlrev_b32 v26, 4, v26\nv_lshl_add_u32 v26, v27, 8, v26')
        a(f'v_and_b32 v28, 1, v1\nv_lshl_add_u32 v26, v28, 3, v26\nv_add_u32 v{VA}, s38, v26')
        for t in range(1, 8): a(f'v_xor_b32 v{VA+t}, {t << 5:#x}, v{VA}')
    def t_setup2():
        if su:
            a('s_memrealtime s[92:93]\ns_waitcnt lgkmcnt(0)\nv_mov_b32 v40, 0')
            for k in range(8): a(f'v_writelane_b32 v40, s{70+2*k}, {k}')
            a(f'v_writelane_b32 v40, s92, 8\ns_lshl_b32 s30, s2, 10\ns_add_u32 s30, s30, {DBG + 0x10000}\nv_lshlrev_b32 v41, 2, v0')
            a(f'buffer_store_dword v40, v41, {SRD_WS}, s30 offen')
        for r in range(Q, Q + 32): a(f'v_mov_b32 v{r}, 0')
        a(f'v_mov_b32 {vMax}, 0xff800000\nv_mov_b32 {vSum}, 0')
        a(f's_mov_b32 s40, {f2u(SCALE):#x}\ns_mov_b32 s41, {f2u(LOG2E):#x}')
    def t_setup3():
        w_traddr('v28', 0, 'v26', 'v27')
        a('s_lshr_b32 s42, s2, 6')
        a('v_lshrrev_b32 v26, 5, v1\nv_lshlrev_b32 v27, 1, v26\nv_xor_b32 v27, v27, v1\nv_and_b32 v27, 31, v27\nv_lshlrev_b32 v27, 4, v27\nv_lshl_add_u32 v238, v26, 11, v27')
        for i in range(1, 4): a(f'v_xor_b32 v{238+i}, {i << 6:#x}, v238')
        a(f'v_add_u32 v29, {2*RINGW}, v28\nv_lshl_add_u32 v30, v24, 3, {vM}\nv_lshl_add_u32 v30, s42, 9, v30\nv_lshlrev_b32 v242, 4, v24')
        a('v_and_b32 v26, 7, v1\nv_mul_u32_u24 v26, 528, v26\nv_lshl_add_u32 v26, v24, 4, v26\nv_add_u32 v31, s38, v26')
        a('s_waitcnt lgkmcnt(0)')
        setup_tags()
    def t_readK(t, h):
        def f():
            if slot_of(2*t) >= RS:
                a(f's_sub_u32 s30, s59, s38\ns_add_u32 s30, s30, {WB}')
                for j in range(8): a(f'v_add_u32 v{KA+j}, s30, v{KA+j}')
            for j in range(8): a(f'ds_read_b128 {V(H+32*h+4*j,4)}, v{KA+j} offset:{(slot_of(2*t) % RS)*4096}')
            a('s_waitcnt lgkmcnt(0)')
        return f
    def t_waitq():
        stamp(1)
        await_(C_Q, 4, 'v26')
        stamp(2)
        a(f'v_and_b32 v26, 7, v1\nv_mul_u32_u24 v26, 272, v26\nv_lshrrev_b32 v27, 5, v1\nv_lshl_add_u32 v26, v27, 4, v26\nv_add_u32 v26, {MISC+QL}, v26')
        setexec(0xff0000ffff0000ff)
        for j in range(8): a(f'ds_read_b128 {V(Q+4*j,4)}, v26 offset:{32*j}')
        setexec(-1)
        a('s_waitcnt lgkmcnt(0)')
    def t_qk(t, h):
        def f():
            for j in range(8):
                a(f'v_mfma_f32_16x16x32_bf16 {V(S+4*t,4)}, {V(H+32*h+4*j,4)}, {V(Q+4*j,4)}, {"0" if j == 0 else V(S+4*t,4)}')
        return f
    def t_round(t):
        def f():
            for r in range(4): rnd(V(S+4*t+r))
            for r in range(4): a(f'v_mul_f32 {V(S+4*t+r)}, s40, {V(S+4*t+r)}')
            for r in range(4): rnd(V(S+4*t+r))
            a(f'v_max3_f32 {vMax}, {vMax}, {V(S+4*t)}, {V(S+4*t+1)}\nv_max3_f32 {vMax}, {vMax}, {V(S+4*t+2)}, {V(S+4*t+3)}')
        return f
    def t_max():
        allred('v_max_f32', vMax, 'v26', ('r8', 16, 32))
        a(f'v_mul_f32 {vMax}, s41, {vMax}')
    def t_exp(t):
        def f():
            for r in range(4): a(f'v_fma_f32 {V(S+4*t+r)}, {V(S+4*t+r)}, s41, -{vMax}')
            for r in range(4): a(f'v_exp_f32 {V(S+4*t+r)}, {V(S+4*t+r)}')
            a(f'v_cvt_pk_bf16_f32 {V(PP+2*t)}, {V(S+4*t)}, {V(S+4*t+1)}\nv_cvt_pk_bf16_f32 {V(PP+2*t+1)}, {V(S+4*t+2)}, {V(S+4*t+3)}')
            a(f'v_add_f32 v26, {V(S+4*t)}, {V(S+4*t+1)}\nv_add_f32 v27, {V(S+4*t+2)}, {V(S+4*t+3)}\nv_add_f32 v26, v26, v27\nv_add_f32 {vSum}, {vSum}, v26')
        return f
    def t_ml():
        allred('v_add_f32', vSum, 'v26', ('r8', 16, 32))
        a(f'v_lshl_add_u32 v26, v1, 2, {vM}\nv_lshl_add_u32 v26, s3, 6, v26')
        setexec(0xff)
        a(f'ds_write_b32 v26, {vMax} offset:{MLW}\nds_write_b32 v26, {vSum} offset:{MLW+32}')
        arrive(C_ML)
        stamp(3)
    def readV(p, half):
        slot = slot_of(16 + 2*p + half)
        for t in range(8):
            a(f'ds_read_b64_tr_b16 {V(VS+4*t+2*half,2)}, v{VA+t} offset:{slot*4096}')
    def pv(p, staged):
        u, which = p >> 1, p & 1
        Dd = D2 if which else D1
        for t in range(8):
            if staged: a(f's_waitcnt lgkmcnt({7-t})')
            a(f'v_mfma_f32_16x16x32_bf16 {V(Dd+4*t,4)}, {V(VS+4*t,4)}, {V(PP+4*u,4)}, {"0" if u == 0 else V(Dd+4*t,4)}')
    def t_pv(p):
        def f():
            readV(p, 0); readV(p, 1); pv(p, True)
        return f
    def writeD(which):
        setexec(0xff00ff00ff00ff00 if which else 0x00ff00ff00ff00ff)
        for t in range(8):
            a(f'ds_write_b128 v31, {V((D2 if which else D1)+4*t,4)} offset:{which*4352 + 64*t}')
        setexec(-1)
    def wg_stats(head, mreg, lreg):
        a(f'v_lshl_add_u32 v27, {head}, 2, {vM}')
        for w in range(4): a(f'ds_read_b32 v{mreg+w}, v27 offset:{MLW + 64*w}')
        if lreg:
            for w in range(4): a(f'ds_read_b32 v{lreg+w}, v27 offset:{MLW + 64*w + 32}')
        a('s_waitcnt lgkmcnt(0)')
        a(f'v_max3_f32 v26, v{mreg}, v{mreg+1}, v{mreg+2}\nv_max_f32 v26, v26, v{mreg+3}'); untag([26])
        for w in range(4): a(f'v_sub_f32 v{mreg+w}, v{mreg+w}, v26')
        for w in range(4): a(f'v_exp_f32 v{mreg+w}, v{mreg+w}')
    def t_mlpub():
        await_(C_ML, 4, 'v26')
        Ls = a.lab('MP')
        a(f's_cmp_lg_u32 s3, 0\ns_cbranch_scc1 {Ls}')
        a('v_and_b32 v72, 7, v1')
        wg_stats('v72', 64, 68)
        a(f'v_or_b32 v76, {sT}, v26\nv_mul_f32 v77, v64, v68\nv_fmac_f32 v77, v65, v69\nv_fmac_f32 v77, v66, v70\nv_fmac_f32 v77, v67, v71')
        tag('v77')
        a(f'v_mov_b32 v78, {sT}\nv_mov_b32 v79, {sT}\nv_lshlrev_b32 v72, 4, v72\ns_lshl_b32 s30, s2, 7\ns_add_u32 s30, s30, {ML}')
        setexec(0xff)
        a(f'buffer_store_dwordx4 v[76:79], v72, {SRD_WS}, s30 offen sc1')
        setexec(-1)
        a(f'{Ls}:')
    def t_fread():
        a('v_lshrrev_b32 v232, 5, v0')
        wg_stats('v232', 228, None)
        a('v_mul_u32_u24 v26, 528, v232\nv_and_b32 v27, 31, v0\nv_lshl_add_u32 v232, v27, 4, v26')
        a(f'v_add_u32 v233, {2*RINGW}, v232\nv_and_b32 v234, 15, v0\nv_lshlrev_b32 v234, 4, v234\nv_lshrrev_b32 v26, 4, v0\nv_lshl_add_u32 v234, v26, 14, v234')
        a(f's_lshr_b32 s45, s2, 6\ns_lshl_b32 s45, s45, 18\ns_and_b32 s30, s2, 63\ns_lshl_b32 s30, s30, 8\ns_add_u32 s45, s45, s30\ns_add_u32 s45, s45, {OB}')

    sched = {}
    def at(n, f): sched.setdefault(n, []).append(f)
    land = lambda t: landed_at(pos[('kv', 8*t + 7)])
    def reuse(t):
        later = [g for g in range(2*t + 2, 32) if slot_of(g) == slot_of(2*t)]
        return pos[('kv', 4*later[0])] if later else NS + 100
    at(landed_at(pos[('w1', 1)]), lambda: arrive(C_W1))
    at(landed_at(pos[('w1', 1)]) + 1, t_setup)
    at(landed_at(pos[('w1', 1)]) + 3, t_setup2)
    at(landed_at(pos[('wq', 7)]), lambda: arrive(C_WQ))
    at(landed_at(pos[('wq', 7)]) + 1, t_setup3)
    if T1: at(T1, lambda: arrive(C_T1))
    if T2: at(T2, lambda: arrive(C_T2))
    for t in range(4): at(land(t), t_readK(t, t))
    nq = pos[('kv', NQ)]
    assert nq >= land(3)
    at(nq, t_waitq)
    n = nq + 1
    free_h = {}
    step = 1 if k7 else 2
    if k7: at(pos[('kv', 56)] - 1, lambda: await_(C_WQF, 4, 'v26'))
    for t in range(4):
        at(n, t_qk(t, t)); free_h[t] = n + 1
        at(n + 1, t_round(t))
        n += step
    rd = {}
    for t in range(4, 8):
        rd[t] = max(free_h[t-4], land(t), rd.get(t-1, 0))
        assert rd[t] < reuse(t), (t, rd[t])
        at(rd[t], t_readK(t, t - 4))
    for t in range(4, 8):
        n = max(n, rd[t] + 1)
        at(n, t_qk(t, t - 4)); at(n + 1, t_round(t)); n += step
    n += 2 - step
    at(n, t_max); n += 1
    for t in range(8):
        at(n, t_exp(t))
        if t & 1: n += 1
    at(n, t_ml); at(n + MLP_AT, t_mlpub); at(n + MLP_AT + 4, t_fread); n += 1
    for p in range(7):
        m = max(n, land(8 + p))
        assert m < reuse(8 + p) and m < NS, (p, m)
        at(m, t_pv(p))
        n = m + 1
    at(n, lambda: (writeD(0), arrive(C_R1)))
    NV = pos[('kv', 127)]
    ACC = 208
    def red_half(hf, base):
        for w in range(4):
            a(f'ds_read_b128 {V(base+4*w,4)}, v{232 + (w >> 1)} offset:{(w & 1)*RINGW + hf*4352}')
        for w in range(4):
            a(f's_waitcnt lgkmcnt({3-w})')
            sel = w & 1; fp = V(228 + (w & 2), 2)
            for h2 in range(2):
                if w == 0 and hf == 0: a(f'v_pk_mul_f32 {V(ACC+2*h2,2)}, {V(base+2*h2,2)}, {fp} op_sel:[0,{sel}] op_sel_hi:[1,{sel}]')
                else: a(f'v_pk_fma_f32 {V(ACC+2*h2,2)}, {V(base+4*w+2*h2,2)}, {fp}, {V(ACC+2*h2,2)} op_sel:[0,{sel},0] op_sel_hi:[1,{sel},1]')
    def t_pre():
        a('v_and_b32 v27, 8, v1\nv_xor_b32 v27, 8, v27\nv_mul_u32_u24 v27, 544, v27\nv_add_u32 v31, v31, v27')
        await_(C_R1, 4, 'v26', sleep=0)
        red_half(0, 192)
    def t_final():
        stamp(4)
        readV(7, 1)
        def wr(t): a(f'ds_write_b128 v31, {V(D2+4*t,4)} offset:{4352 + 64*t}')
        for t in range(8):
            a(f's_waitcnt lgkmcnt({7 - t + max(0, t - 4)})')
            a(f'v_mfma_f32_16x16x32_bf16 {V(D2+4*t,4)}, {V(VS+4*t,4)}, {V(PP+12,4)}, {V(D2+4*t,4)}')
            if t >= 4: wr(t - 4)
        for t in range(4, 8): wr(t)
        arrive(C_RED)
        await_(C_RED, 4, 'v26', sleep=0)
        red_half(1, 192)
        for e in (0, 3): tag(V(ACC+e))
        if 'halfob' in exp: setexec(0x00ff00ff00ff00ff)
        a(f'buffer_store_dwordx4 {V(ACC,4)}, v234, {SRD_WS}, s45 offen{obf}')
        arrive(C_PUB)
        stamp(5)
    def draw():
        Ls = a.lab('RK')
        a(f's_cmp_lg_u32 s3, 0\ns_cbranch_scc1 {Ls}')
        a(f's_lshl_b32 s30, s42, 12\ns_add_u32 s30, s30, {RK}\nv_mov_b32 v72, 1\nv_mov_b32 v73, 0')
        setexec(1)
        a(f'buffer_atomic_add v72, v73, {SRD_WS}, s30 offen sc0 sc1')
        setexec(-1)
        a(f'{Ls}:')
    def post(c):
        Ls = a.lab('RK')
        a(f's_cmp_lg_u32 s3, 0\ns_cbranch_scc1 {Ls}')
        setexec(1)
        a(f'v_add_u32 v72, 1, v72\nds_write_b32 {vM}, v72 offset:{CNT + 4*c}')
        setexec(-1)
        a(f'{Ls}:')
    at(NV - TR - 1, draw)
    assert TR >= 0
    at(landed_at(NV - TR), lambda: post(C_RANK))
    assert max(sched) <= NV
    def tail_tasks(Fu):
        t = {}
        t.setdefault(max(0, Fu - 5), []).append(lambda: readV(7, 0))
        t.setdefault(max(0, Fu - 2), []).append(t_pre)
        t.setdefault(Fu - 1, []).append(t_final)
        return t
    def t_mode():
        a(f'ds_read_b32 v26, {vM} offset:{CNT + 4*C_RANK}\ns_waitcnt lgkmcnt(0)\nv_readfirstlane_b32 s47, v26')
    if Fhi:
        at(CTL - 1, t_mode); at(CTL + 3, t_mode)
    for n in range(FI, NV + 1):
        a(f's_waitcnt vmcnt({Fn(n)-1})')
        if n >= CTL:
            Lg = a.lab('GO')
            a(f's_cmp_ge_u32 s47, {rth}\ns_cbranch_scc1 {Lg}\ns_waitcnt vmcnt({Flo-1})\n{Lg}:')
        issue(n)
        if n % 16 == 0: stamp(18 + n // 16)
        for f in sched.get(n, []): f()
    UC = UC or F; UM = UM or F
    st0 = 1 if UM == 8 else 0
    LM, LN, LE0, LE1, LTD = a.lab('M'), a.lab('N'), a.lab('E0'), a.lab('E1'), a.lab('TD')
    PUBS = ['s44', 's47', 's58']
    def unit0(ld, Fu, extra={}):
        tt = tail_tasks(Fu)
        for j in range(8):
            a(f's_waitcnt vmcnt({Fu-1})')
            for f in extra.get(j, []): f()
            ld(j)
            for f in tt.get(j, []): f()
    def wo_ld(j):
        def f(i):
            a(f's_add_u32 s32, s44, {i*4096 + 512*j}')
            a(f's_add_u32 m0, s59, {WB + i*1024}' if j == 0 else f's_add_u32 m0, s38, {16384 + i*1024}')
            a(f'buffer_load_dwordx4 v{238 + i % 4}, {SRD_WO}, s32 offen{wnt} lds')
        return f
    def m2_ld(k):
        def f(i):
            a(f's_add_u32 s32, s46, {8*i*12288}\ns_add_u32 m0, s38, {16384 - 8192*k + i*1024}')
            a(f'buffer_load_dwordx4 v236, {SRD_WM}, s32 offen{wnt} lds')
        return f
    def m2_addr(k, none):
        if none: a(f's_sub_u32 s43, s30, {33 - EX}\ns_cmp_ge_u32 s43, 64\ns_cbranch_scc1 {none}')
        a(f's_lshl_b32 s30, s42, 2\ns_add_u32 s30, s30, {sI}\ns_mul_i32 s46, s30, {64*12288}\ns_lshl_b32 s30, s43, 7\ns_add_u32 s46, s46, s30\ns_add_u32 s46, s46, 4096')
        d = PUBS[k]
        a(f's_lshl_b32 {d}, s42, 14\ns_lshl_b32 s30, s43, 8\ns_add_u32 {d}, {d}, s30\ns_lshl_b32 s30, {sI}, 6\ns_add_u32 {d}, {d}, s30\ns_add_u32 {d}, {d}, {P3}')
    def m2_issue(k):
        for i in range(8):
            a(f's_waitcnt vmcnt({AF-1})')
            if k == 1 and i == T2AT + AF - 1: post(C_RANK3)
            if k == 1 and i == T2AT: draw()
            m2_ld(k)(i)
        assert T2AT + AF - 1 <= 7
    def m2_compute(k, cnt=None):
        arrive(C_M2)
        await_(C_M2, cnt or 4*(k+1), 'v6', sleep=0)
        for ks in range(8):
            for hf in range(2):
                a(f'ds_read_b64_tr_b16 {V(96+4*ks+2*hf,2)}, {"v28" if ks < 4 else "v29"} offset:{((ks >> 1) & 1)*RINGW + (ks & 1)*4096 + hf*2048 + 8192*(2-k)}')
        a('s_waitcnt lgkmcnt(0)')
        w_mfma(8 + 4*k, 96, 128, 8)
        for e in range(4): tag(V(8+4*k+e))
        setexec(0x0001000100010001)
        a(f'buffer_store_dwordx4 {V(8+4*k,4)}, v242, {SRD_WS}, {PUBS[k]} offen sc1')
        setexec(-1)
    assert 2 <= AF <= 8
    await_(C_RANK, 1, 'v26', sleep=0)
    a(f's_sub_u32 s33, s30, 1\ns_cmp_ge_u32 s33, 32\ns_cbranch_scc1 {LM}')
    a(f's_lshr_b32 s44, s33, 1\ns_lshl_b32 s30, s42, 4\ns_add_u32 s44, s44, s30\ns_lshl_b32 s44, s44, 17\ns_lshl_b32 s30, {sI}, 15\ns_add_u32 s44, s44, s30')
    a('s_and_b32 s30, s33, 1\ns_lshl_b32 s30, s30, 10\ns_add_u32 s44, s44, s30')
    unit0(wo_ld(0), UC)
    for i in range(8):
        a(f's_waitcnt vmcnt({CF-1})')
        wo_ld(1)(i)
    if EX:
        LX0, LX1 = a.lab('CX'), a.lab('CY')
        a(f's_cmp_ge_u32 s33, {EX}\ns_cbranch_scc1 {LX0}\ns_mov_b32 s43, s33')
        m2_addr(1, None)
        b_read(128, 'v30', 8)
        await_(C_PUB, 4, 'v6', sleep=0)
        for i in range(8):
            a(f's_waitcnt vmcnt({min(CF, 8)-1})')
            m2_ld(1)(i)
        arrive(C_MD)
        arrive(C_WO)
        a('s_waitcnt vmcnt(0)')
        m2_compute(1, 4)
        wo_setup(1)
        a(f's_branch {LX1}\n{LX0}:')
    arrive(C_MD)
    wo_setup(1)
    a('s_waitcnt vmcnt(0)')
    arrive(C_WO)
    if EX: a(f'{LX1}:')
    await_(C_WO, 4, 'v4', sleep=0)
    for ct in range(4):
        for ks in range(2):
            for hf in range(2):
                a(f'ds_read_b64_tr_b16 {V(120+8*ct+4*ks+2*hf,2)}, v{84+4*ks+ct} offset:{hf*RINGW}')
    wo_finish()
    a(f's_branch {LTD}')
    a(f'{LM}:')
    m2_addr(0, LN)
    unit0(m2_ld(0), UM, {0: [draw], UM - 1: [lambda: post(C_RANK2)]})
    b_read(128, 'v30', 8)
    await_(C_PUB, 4, 'v6', sleep=0)
    await_(C_RANK2, 1, 'v4', sleep=0)
    m2_addr(1, LE0)
    m2_issue(1)
    m2_compute(0)
    await_(C_RANK3, 1, 'v4', sleep=0)
    m2_addr(2, LE1)
    m2_issue(2)
    m2_compute(1)
    a('s_waitcnt vmcnt(1)')
    m2_compute(2)
    a(f's_branch {LTD}\n{LE1}:\ns_waitcnt vmcnt(1)')
    m2_compute(1)
    a(f's_branch {LTD}\n{LE0}:\ns_waitcnt vmcnt({st0})')
    m2_compute(0)
    a(f's_branch {LTD}')
    a(f'{LN}:')
    a('s_waitcnt vmcnt(4)')
    readV(7, 0); t_pre()
    a('s_waitcnt vmcnt(0)')
    t_final()
    a(f'{LTD}:')
    arrive(C_AD)
    stamp(8)
    a(f's_and_b32 s30, s2, 7\ns_cmp_lg_u32 s30, {RX}\ns_cbranch_scc1 L_fin2')
    a('s_cmp_lg_u32 s3, 1\ns_cbranch_scc1 L_fin2')
    G = 100
    red_setup()
    a(f's_mov_b32 s40, {ST0}\ns_mov_b32 s41, {ST}\ns_lshl_b32 s42, {sPi}, 7\ns_add_u32 s42, s42, {TAB}')
    a(f'buffer_load_dword v120, v5, {SRD_WS}, s40 offen sc1\nbuffer_load_dword v121, v5, {SRD_WS}, s41 offen sc1\nbuffer_load_dword v122, v5, {SRD_WS}, s42 offen sc1')
    if pretouch == 2:
        a(f's_mov_b32 s42, {P4}\nv_lshlrev_b32 v12, 7, v1\nv_lshl_add_u32 v12, {sPi}, 10, v12\nbuffer_load_dword v123, v12, {SRD_WS}, s42 offen sc1')
    l3 = [(G + k, 1, 'v28', P3 + (k % 2)*16384 + (k // 2)*4096) for k in range(8)]
    n3 = 3 if gbl else 4
    gather(l3[:2*n3], 'v26', sleep=p3sleep)
    untag(range(G, G + 2*n3))
    for j in range(n3): a(f'v_add_f32 v{152+j}, v{G+2*j}, v{G+2*j+1}')
    for j in range(n3): allred('v_add_f32', f'v{152+j}', None, ('r8',))
    for j in range(n3): rnd(f'v{152+j}')
    a('v_add_f32 v154, 1.0, v154'); rnd('v154')
    a(f'ds_write_b128 v6, v[152:155] offset:{SM}')
    arrive(C_SM)
    a('v_cndmask_b32 v157, v154, v153, s[100:101]')
    a('v_cndmask_b32 v16, 1.0, v153, s[100:101]\nv_mul_f32 v20, v157, v16\nv_mul_f32 v21, v157, v154\nv_cndmask_b32 v22, v153, 0, s[100:101]\nv_mov_b32 v23, 0')
    a(f's_mov_b32 s41, {ST0}')
    st_publish('s41')
    stamp(10)
    if gbl:
        gather([(G + 8 + k, 1, 'v28', l3[6+k][3]) for k in range(2)], 'v26', sleep=p3sleep)
        untag([G + 8, G + 9])
        a(f'v_add_f32 v155, v{G+8}, v{G+9}')
        allred('v_add_f32', 'v155', None, ('r8',))
        rnd('v155')
        a(f'ds_write_b32 v6, v155 offset:{SM + 12}')
    gather([(G + 4, 4, 'v5', ST0 + (0 if dual else STB))], 'v26', full=True, sleep=2, alt=STB if dual else None)
    st_reduce(G + 4)
    a(f'v_and_b32 v13, 1, v1\nv_lshlrev_b32 v13, 4, v13\nv_lshl_add_u32 v13, v9, 2, v13\nv_add_u32 v13, {vM}, v13')
    setexec(0x0003000300030003)
    a(f'ds_write_b32 v13, v{G+4} offset:{SM + 1024}')
    arrive(C_TAB)
    stamp(11)
    a('s_branch L_fin2')

    a('L_X:')
    if xprio: a(f's_setprio {xprio}')
    XA, XB, XD, G = 32, 64, 96, 100
    a('v_and_b32 v10, 255, v0')
    def s_touch(base, off_code, offs):
        lo, hi = base[2:-1].split(':')
        a(off_code)
        a(f's_add_u32 s32, s{lo}, s30\ns_addc_u32 s33, s{hi}, 0')
        for i, o in enumerate(offs): a(f's_load_dword s{70 + i % 16}, s[32:33], {o:#x}')
    if 'x' in spf:
        s_touch(sC, f's_lshl_b32 s30, {sI}, 9', [128*i for i in range(4)])
        s_touch(sX, f's_lshl_b32 s30, {sI}, 9', [128*i for i in range(4)])
        a('s_waitcnt lgkmcnt(0)')
    a(f'v_lshlrev_b32 v11, 3, v10\nglobal_load_dwordx2 v[12:13], v11, {sC}')
    a(f'v_lshlrev_b32 v11, 5, v1\nglobal_load_dwordx4 v[16:19], v11, {sX}\nglobal_load_dwordx4 v[20:23], v11, {sX} offset:16')
    a('s_and_b32 s42, s2, 3\ns_lshr_b32 s43, s2, 2\ns_and_b32 s44, s2, 7\ns_lshr_b32 s45, s2, 3')
    a('v_lshrrev_b32 v9, 4, v1\nv_and_b32 v15, 15, v1')
    a(f'v_lshl_add_u32 v28, v15, 2, v9\nv_lshl_add_u32 v28, {sI}, 6, v28')
    a('v_lshl_add_u32 v11, s42, 8, v28\nv_lshlrev_b32 v11, 1, v11\nv_mov_b32 v14, 0')
    a(f'global_load_short_d16_hi v14, v11, {sX}')
    a(f's_load_dword {sE}, {sWS}, 12')
    if warm == 3:
        a(f's_getpc_b64 s[32:33]\nL_pc:\ns_sub_u32 s32, s32, L_pc-{NAME}_kernel\ns_subb_u32 s33, s33, 0')
        a(f's_bfe_u32 s30, s2, 0x30003\ns_lshl_b32 s30, s30, 2\ns_add_u32 s30, s30, {sI}\ns_lshl_b32 s30, s30, 10\ns_min_u32 s30, s30, L_code_end-{NAME}_kernel-1024')
        a('s_add_u32 s32, s32, s30\ns_addc_u32 s33, s33, 0')
        for i in range(8): a(f's_load_dword s{70+i}, s[32:33], {128*i}')
    common2(True)
    if not xbar: a('s_barrier')
    stamp(0)
    if tlb:
        Lt = a.lab('TL')
        a(f's_cmp_lg_u32 {sI}, 1\ns_cbranch_scc1 {Lt}')
        a('s_lshl_b32 s30, s2, 18\nv_mov_b32 v11, 0\ns_lshr_b32 s31, s2, 6\ns_lshl_b32 s32, s31, 21\ns_mul_i32 s31, s31, 0x300000\nv_lshlrev_b32 v24, 20, v1')
        setexec(1)
        a(f'buffer_load_dword v250, v11, {SRD_K}, s30 offen nt\nbuffer_load_dword v251, v11, {SRD_V}, s30 offen nt\nbuffer_load_dword v252, v11, {SRD_WO}, s32 offen nt')
        setexec(7)
        a(f'buffer_load_dword v253, v24, {SRD_WM}, s31 offen nt')
        setexec(-1)
        a(f'{Lt}:')
    Lz0 = a.lab('RZ')
    a(f's_and_b32 s30, s2, 63\ns_add_u32 s30, s30, {sI}\ns_cmp_lg_u32 s30, 0\ns_cbranch_scc1 {Lz0}')
    a(f's_lshl_b32 s30, s2, 6\ns_add_u32 s30, s30, {RK}\nv_lshlrev_b32 v11, 2, v1\nv_mov_b32 v24, 0')
    setexec(0xffffffff)
    a(f'buffer_store_dword v24, v11, {SRD_WS}, s30 offen sc1')
    setexec(-1)
    a(f's_waitcnt vmcnt(0)\n{Lz0}:')
    stamp(17)
    w_traddr('v6', WA, 'v11', 'v24')
    a(f'v_add_u32 v7, {(WB - WA) & 0xffffffff:#x}, v6')
    a(f'v_lshl_add_u32 v8, v9, 3, {vM}\nv_lshlrev_b32 v29, 4, v9')
    a('s_waitcnt vmcnt(3) lgkmcnt(0)')
    stamp(20)
    a(f's_mov_b32 s30, {f2u(-LOG2E):#x}')
    a('v_lshlrev_b32 v24, 16, v12\nv_and_b32 v25, 0xffff0000, v12\nv_lshlrev_b32 v26, 16, v13\nv_and_b32 v27, 0xffff0000, v13')
    for i in range(4): a(f'v_mul_f32 v{100+i}, s30, v{24+i}')
    for i in range(4): a(f'v_exp_f32 v{100+i}, v{100+i}')
    for i in range(4): a(f'v_add_f32 v{100+i}, 1.0, v{100+i}')
    for i in range(4): a(f'v_rcp_f32 v{100+i}, v{100+i}')
    for i in range(4): a(f'v_mul_f32 v{24+i}, v{24+i}, v{100+i}')
    a('v_cvt_pk_bf16_f32 v12, v24, v25\nv_cvt_pk_bf16_f32 v13, v26, v27')
    a(f'v_lshl_add_u32 v11, v10, 3, {vM}\nds_write_b64 v11, v[12:13] offset:{SC}')
    arrive(C_W1)
    setup_tags()
    a(f's_lshl_b32 s46, s44, 13\ns_lshl_b32 s30, s45, 8\ns_add_u32 s46, s46, s30\ns_lshl_b32 s30, {sI}, 6\ns_add_u32 s46, s46, s30\ns_add_u32 s46, s46, {P1}')
    stamp(1)
    await_(C_W1, 8, 'v11', sleep=0)
    stamp(22)
    w_read(XA, 'v6', 4)
    a(f'v_lshl_add_u32 v11, s44, 8, v8')
    b_read(XB, 'v11', 4)
    def publish(s_off, fine=False):
        for e in range(4):
            if fine: a(f'v_bfi_b32 {V(XD+e)}, 3, {sT}, {V(XD+e)}')
            else: tag(V(XD+e))
        setexec(0x0001000100010001)
        a(f'buffer_store_dwordx4 {V(XD,4)}, v29, {SRD_WS}, {s_off} offen{p12f}')
        setexec(-1)
    w_mfma(XD, XA, XB, 4, staged=True)
    publish('s46', True)
    stamp(2)
    a('s_waitcnt vmcnt(1)')
    for i in range(8):
        a(f'v_lshlrev_b32 v{100+2*i}, 16, v{16+i}\nv_and_b32 v{101+2*i}, 0xffff0000, v{16+i}')
    a('v_add_f32 v16, v100, v101')
    for i in range(2, 16): a(f'v_add_f32 v16, v16, v{100+i}')
    allred('v_add_f32', 'v16', 'v17')
    a(f'v_mul_f32 v16, {f2u(1/1024):#x}, v16\nv_mov_b32 v18, 0')
    for i in range(16): a(f'v_sub_f32 v17, v{100+i}, v16\nv_fmac_f32 v18, v17, v17')
    allred('v_add_f32', 'v18', 'v17')
    a(f'v_mul_f32 v18, {f2u(1/1024):#x}, v18')
    ln_scale('v16', 'v18')
    a('v_sub_f32 v14, v14, v16'); rnd('v14'); a('v_mul_f32 v14, v14, v18'); rnd('v14')
    stamp(23)
    await_(C_WQ, 4, 'v11')
    w_read(XA, 'v7', 8)
    a('s_waitcnt lgkmcnt(0)')
    arrive(C_WQF)
    stamp(3)
    a(f's_lshl_b32 s30, s42, 10\ns_lshl_b32 s31, {sI}, 8\ns_add_u32 s30, s30, s31\nv_lshl_add_u32 v12, v15, 4, s30\nv_lshl_add_u32 v12, v9, 13, v12')
    if T1: await_(C_T1, 2, 'v11', sleep=2)
    if 'h' in spf:
        s_touch(sWS, f's_lshl_b32 s30, s42, 10\ns_lshl_b32 s31, {sI}, 8\ns_add_u32 s30, s30, s31', [P1 + p*4096 + 128*l for p in range(16) for l in range(2)])
        a('s_waitcnt lgkmcnt(0)')
    stamp(19)
    gather([(G + 4*i, 4, 'v12', P1 + (i & 1)*32768 + (i >> 1)*4096) for i in range(1 if 'smallg' in exp else 4)], 'v26', sleep=psleep, full=2)
    untag(range(G, G + 16), True)
    stamp(4)
    for hf in range(2):
        b = G + 8*hf
        a(f'v_pk_add_f32 {V(b,2)}, {V(b,2)}, {V(b+4,2)}\nv_pk_add_f32 {V(b+2,2)}, {V(b+2,2)}, {V(b+6,2)}')
        scat4(b); rnd(f'v{b}')
    a(f'v_add_f32 v{G+8}, 1.0, v{G+8}'); rnd(f'v{G+8}')
    a(f'v_mul_f32 v14, v14, v{G+8}'); rnd('v14')
    a(f'v_add_f32 v14, v14, v{G}'); rnd('v14')
    a(f'v_lshl_add_u32 v11, v28, 1, {vM}\nds_write_b16_d16_hi v11, v14 offset:{HV}')
    arrive(C_H)
    a(f's_lshl_b32 s47, s42, 14\ns_lshl_b32 s30, s43, 8\ns_add_u32 s47, s47, s30\ns_lshl_b32 s30, {sI}, 6\ns_add_u32 s47, s47, s30\ns_add_u32 s46, s47, {P2}')
    await_(C_H, 4, 'v11', sleep=0)
    a(f'v_add_u32 v11, {HV}, v8')
    b_read(XB, 'v11', 8)
    w_mfma(XD, XA, XB, 8, staged=True)
    publish('s46', True)
    stamp(5)
    a('v_lshlrev_b32 v12, 4, v1')
    a(f's_lshr_b32 s30, s2, 6\ns_lshl_b32 s30, s30, 12\ns_lshl_b32 s32, {sI}, 10\ns_add_u32 s30, s30, s32\nv_add_u32 v12, s30, v12')
    if T2: await_(C_T2, 2, 'v11', sleep=2)
    if 'q' in spf:
        s_touch(sWS, f's_lshr_b32 s30, s2, 6\ns_lshl_b32 s30, s30, 12\ns_lshl_b32 s31, {sI}, 10\ns_add_u32 s30, s30, s31', [P2 + p*16384 + 128*l for p in range(4) for l in range(8)])
        a('s_waitcnt lgkmcnt(0)')
    stamp(8)
    gather([(G + 4*i, 4, 'v12', P2 + i*16384) for i in range(1 if 'smallg' in exp else 4)], 'v26', sleep=psleep, full=2)
    untag(range(G, G + 16), True)
    for e in (0, 2):
        a(f'v_pk_add_f32 {V(G+e,2)}, {V(G+e,2)}, {V(G+4+e,2)}\nv_pk_add_f32 {V(G+8+e,2)}, {V(G+8+e,2)}, {V(G+12+e,2)}\nv_pk_add_f32 {V(G+e,2)}, {V(G+e,2)}, {V(G+8+e,2)}')
    a(f'v_cvt_pk_bf16_f32 v{G}, v{G}, v{G+1}\nv_cvt_pk_bf16_f32 v{G+1}, v{G+2}, v{G+3}')
    a(f's_mul_i32 s30, {sI}, 544\nv_lshrrev_b32 v11, 5, v1\nv_lshlrev_b32 v11, 4, v11\nv_lshl_add_u32 v11, v1, 3, v11\nv_add3_u32 v11, v11, {vM}, s30')
    a(f'ds_write_b64 v11, {V(G,2)} offset:{QL}')
    arrive(C_Q)
    if lite:
        Ll = a.lab('LI')
        a(f's_cmp_lg_u32 s3, 5\ns_cbranch_scc1 {Ll}\ns_lshl_b32 s30, s2, 7\ns_add_u32 s30, s30, {DBG}\nv_mov_b32 v11, 0\nv_mov_b32 v12, s34\ns_getreg_b32 s31, hwreg(HW_REG_XCC_ID)\nv_mov_b32 v24, s31')
        setexec(1)
        a(f'buffer_store_dword v12, v11, {SRD_WS}, s30 offen\nbuffer_store_dword v24, v11, {SRD_WS}, s30 offen offset:4')
        setexec(-1)
        a(f'{Ll}:')
    stamp(6)
    if xprio: a('s_setprio 0')
    CW, CB, C2 = 160, 174, 188
    a('v_lshlrev_b32 v11, 2, v10\nv_add_u32 v12, 0x1000, v11\nv_mov_b32 v17, 0\nv_mov_b32 v159, 0')
    for j, ptr in enumerate((sW1, sB1, sW2)):
        for i in range(0 if 'nocoef' in exp else 7): a(f'global_load_dword v{G+7*j+i}, {"v11" if i < 4 else "v12"}, {ptr} offset:{(i % 4)*1024}')
    a(f'global_load_short_d16_hi v159, v17, {sB2}')
    a(f'v_mov_b32 v44, {f2u(c1):#x}\nv_mov_b32 v45, {f2u(c0):#x}')
    a(f'v_lshl_add_u32 v13, v9, 2, {vM}\nv_lshl_add_u32 v13, {sI}, 7, v13')
    a(f's_lshl_b32 s39, s2, 5\ns_and_b32 s40, s39, 0xfff\ns_add_u32 s40, s40, {E0 << 7}\ns_lshr_b32 s30, s39, 12\ns_lshl_b32 s30, s30, 15\ns_or_b32 s40, s40, s30\ns_lshl_b32 s40, s40, 16')
    a('s_mov_b32 s41, 0\ns_waitcnt vmcnt(0)')
    for j, base in enumerate((CW, CB, C2)):
        for i in range(7): a(f'v_lshlrev_b32 v{base+2*i}, 16, v{G+7*j+i}\nv_and_b32 v{base+2*i+1}, 0xffff0000, v{G+7*j+i}')
    def weights():
        a('s_lshr_b32 s30, s38, 4\ns_lshl_b32 s30, s30, 13\ns_lshr_b32 s31, s38, 1\ns_and_b32 s31, s31, 7\ns_lshl_b32 s31, s31, 4\ns_add_u32 s30, s30, s31\nv_lshl_add_u32 v12, v1, 7, s30')
        gather([(G, 4, 'v12', ML)], 'v26', sleep=psleep, full=True)
        untag([G, G + 1])
        a(f'v_mov_b32 v16, v{G}')
        allred('v_max_f32', 'v16', 'v11')
        a(f'v_sub_f32 v16, v{G}, v16\nv_exp_f32 v16, v16\nv_mul_f32 v17, v16, v{G+1}')
        allred('v_add_f32', 'v17', 'v11')
        a(f'v_rcp_f32 v17, v17\nv_and_b32 v12, 15, v1\nv_lshlrev_b32 v12, 4, v12\nv_lshl_add_u32 v12, v9, 2, v12\nv_add_u32 v12, {vM}, v12\nv_mul_f32 v16, v16, v17')
        a(f'ds_write_b32 v12, v16 offset:{WL}')
        arrive(C_WL)
    def early_touch():
        Le = a.lab('ET')
        a(f's_cmp_lg_u32 {sI}, 2\ns_cbranch_scc1 {Le}\ns_and_b32 s30, s2, 7\ns_cmp_lg_u32 s30, {RX}\ns_cbranch_scc1 {Le}')
        a(f'v_lshlrev_b32 v11, 7, v1\nv_lshl_add_u32 v11, {sPi}, 10, v11\ns_mov_b32 s30, {P4}\nbuffer_load_dword v250, v11, {SRD_WS}, s30 offen sc1')
        a(f'v_and_b32 v11, 15, v1\nv_lshlrev_b32 v11, 12, v11\nv_lshl_add_u32 v11, {sPi}, 4, v11\ns_mov_b32 s30, {P3}\nbuffer_load_dword v251, v11, {SRD_WS}, s30 offen sc1')
        a(f'v_lshlrev_b32 v11, 4, v1\ns_mov_b32 s30, {ST0}\ns_mov_b32 s31, {ST}\nbuffer_load_dword v252, v11, {SRD_WS}, s30 offen sc1\nbuffer_load_dword v253, v11, {SRD_WS}, s31 offen sc1')
        a(f'{Le}:')
    if ept == 2: early_touch()
    if obt:
        Lo = a.lab('OT')
        a(f's_cmp_lg_u32 {sI}, 1\ns_cbranch_scc1 {Lo}')
        a('v_lshrrev_b32 v11, 1, v1\nv_lshlrev_b32 v11, 14, v11\nv_and_b32 v12, 1, v1\nv_lshl_add_u32 v11, v12, 7, v11')
        a(f's_lshr_b32 s30, s2, 6\ns_lshl_b32 s30, s30, 18\ns_and_b32 s31, s2, 63\ns_lshl_b32 s31, s31, 8\ns_add_u32 s30, s30, s31\ns_add_u32 s30, s30, {OB}')
        setexec(0xffffffff)
        a(f'buffer_load_dword v250, v11, {SRD_WS}, s30 offen sc1')
        setexec(-1)
        a(f'{Lo}:')
    a('L_tab:')
    for e in range(4): a(f'v_mov_b32 v{40+e}, s40\ns_add_u32 s40, s40, 0x10000\nv_mov_b32 v{16+e}, 0')
    Lz = a.lab('TZ')
    a(f's_add_u32 s39, s39, 4\ns_cmp_lg_u32 s39, 4096\ns_cbranch_scc1 {Lz}\nv_mov_b32 v43, 0\n{Lz}:')
    units = []
    for i in range(14):
        sel = i & 1; pr = i & ~1
        for dp in range(2):
            units.append((lambda u, sel=sel, pr=pr, dp=dp: f'v_pk_fma_f32 {u}, {V(40+2*dp,2)}, {V(CW+pr,2)}, {V(CB+pr,2)} op_sel:[0,{sel},{sel}] op_sel_hi:[1,{sel},{sel}]',
                          lambda u, sel=sel, pr=pr, dp=dp: f'v_pk_fma_f32 {V(16+2*dp,2)}, {u}, {V(C2+pr,2)}, {V(16+2*dp,2)} op_sel:[0,{sel},0] op_sel_hi:[1,{sel},1]'))
    gelu_units(units, 48, 64, 4)
    scat4(16)
    allred('v_add_f32', 'v16', None, (1, 2, 'hm', 'm'))
    setexec(0x0001000100010001)
    a(f'ds_write_b32 v13, v16 offset:{YT}')
    setexec(-1)
    a('v_add_u32 v13, 16, v13\ns_add_u32 s41, s41, 1\ns_cmp_lt_u32 s41, ' + ('1' if 'notab' in exp else '8') + '\ns_cbranch_scc1 L_tab')
    arrive(C_YT)
    if ept == 1: early_touch()
    stamp(7)
    LX3, LXD, LXM, LXR = a.lab('X3'), a.lab('XD'), a.lab('XM'), a.lab('XR')
    a(f's_cmp_lg_u32 {sI}, 0\ns_cbranch_scc1 {LX3}')
    await_(C_YT, 4, 'v11')
    a(f'v_and_b32 v12, 7, v1\nv_lshlrev_b32 v12, 4, v12\nv_add_u32 v11, {vM}, v12')
    for w in range(4): a(f'ds_read_b128 {V(48+4*w,4)}, v11 offset:{YT + 128*w}')
    a(f's_lshl_b32 s30, s2, 7\ns_add_u32 s30, s30, {TAB}\ns_waitcnt lgkmcnt(0)')
    for e in (0, 2): a(f'v_pk_add_f32 {V(48+e,2)}, {V(48+e,2)}, {V(52+e,2)}\nv_pk_add_f32 {V(56+e,2)}, {V(56+e,2)}, {V(60+e,2)}\nv_pk_add_f32 {V(48+e,2)}, {V(48+e,2)}, {V(56+e,2)}')
    for e in range(4): rnd(V(48+e))
    for e in range(4): a(f'v_add_f32 v{48+e}, v{48+e}, v159')
    for e in range(4): rnd(V(48+e))
    for e in range(4): a(f'v_or_b32 v{48+e}, {sT}, v{48+e}')
    setexec(0xff)
    a(f'buffer_store_dwordx4 v[48:51], v12, {SRD_WS}, s30 offen sc1')
    setexec(-1)
    a(f'{LX3}:')
    await_(C_RANK, 1, 'v11', sleep=2)
    a(f's_sub_u32 s33, s30, 1\ns_cmp_ge_u32 s33, 32\ns_cbranch_scc1 {LXM}')
    a('s_lshr_b32 s38, s33, 1\ns_lshr_b32 s30, s2, 6\ns_lshl_b32 s30, s30, 4\ns_add_u32 s38, s38, s30')
    a(f's_cmp_lg_u32 {sI}, 3\ns_cbranch_scc1 {LXD}')
    weights()
    a(f'{LXD}:')
    stamp(9)
    a(f's_lshl_b32 s30, s38, 14\ns_lshl_b32 s32, {sI}, 6')
    if 'halfob' in exp: a('s_and_b32 s32, s32, 64')
    if 'single' in exp: a('s_and_b32 s32, s32, 64\ns_and_b32 s31, s33, 1\ns_lshl_b32 s31, s31, 7\ns_add_u32 s32, s32, s31')
    a('s_add_u32 s30, s30, s32')
    a('v_and_b32 v13, 3, v1\nv_lshl_add_u32 v12, v13, 4, s30\nv_lshrrev_b32 v11, 2, v1\nv_lshl_add_u32 v12, v11, 8, v12')
    a(f'v_lshlrev_b32 v13, 3, v13\nv_lshl_add_u32 v13, v9, 1, v13\nv_lshl_add_u32 v13, {sI}, 5, v13\nv_add_u32 v13, {vM}, v13')
    W = 80
    a(f'v_lshl_add_u32 v14, v11, 4, {vM}')
    wo_setup(0)
    LH, LHD, LHS = a.lab('H'), a.lab('HD'), a.lab('HS')
    for i in range(4): a(f's_mov_b32 {SOFF(i)}, {OB + 4096*i:#x}')
    def h1ld(i): a(f'buffer_load_dwordx4 {V(G+4*i,4)}, v12, {SRD_WS}, {SOFF(i)} offen sc1')
    await_(C_WL, 1, 'v11', sleep=1)
    a(f'ds_read_b128 {V(W,4)}, v14 offset:{WL}')
    if pd1 is not None:
        await_(C_WO, 4, 'v11', sleep=1)
        for ct in range(4):
            for ks in range(2):
                for hf in range(2):
                    a(f'ds_read_b64_tr_b16 {V(120+8*ct+4*ks+2*hf,2)}, v{68+ct} offset:{ks*16384 + hf*8192}')
        stamp(10)
        gather_p([(G + 4*i, 4, 'v12', OB + 4096*i) for i in range(4)], 'v11', depth=pd1, sleep=ps1, thr=h1thr, bsleep=h1sleep)
    else:
        await_(C_MD, 4, 'v11', sleep=1)
        stamp(10)
        for i in range(4): h1ld(i)
        await_(C_WO, 4, 'v11', sleep=0)
        for ct in range(4):
            for ks in range(2):
                for hf in range(2):
                    a(f'ds_read_b64_tr_b16 {V(120+8*ct+4*ks+2*hf,2)}, v{68+ct} offset:{ks*16384 + hf*8192}')
        stamp(13)
        a(f's_mov_b32 {sSpin}, {spin}')
        a(f'{LH}:\ns_waitcnt vmcnt(0)')
        for i in range(4): a(f'v_perm_b32 v11, v{G+4*i+3}, v{G+4*i}, {sSelA}\nv_cmp_ne_u32 {MASK(i)}, {sT2}, v11')
        a(f's_bcnt1_i32_b64 s30, {MASK(0)}')
        for i in range(1, 4): a(f's_bcnt1_i32_b64 s31, {MASK(i)}\ns_add_u32 s30, s30, s31')
        a(f's_cmp_eq_u32 s30, 0\ns_cbranch_scc1 {LHD}')
        a(f's_sub_u32 {sSpin}, {sSpin}, 1\ns_cbranch_scc1 {LHD}')
        a(f's_cmp_le_u32 s30, {h1thr}\ns_cbranch_scc1 {LHS}\ns_sleep {h1sleep}\n{LHS}:')
        for i in range(4):
            Sk = a.lab('GS')
            a(f's_wqm_b64 exec, {MASK(i)}\ns_cbranch_execz {Sk}')
            h1ld(i)
            a(f'{Sk}:')
        a(f's_mov_b64 exec, -1\ns_branch {LH}\n{LHD}:')
    untag([G + 4*i + e for i in range(4) for e in (0, 3)])
    for e in (0, 2): a(f'v_pk_mul_f32 {V(G+e,2)}, {V(G+e,2)}, {V(W,2)} op_sel:[0,0] op_sel_hi:[1,0]')
    for i in range(1, 4):
        for e in (0, 2): a(f'v_pk_fma_f32 {V(G+e,2)}, {V(G+4*i+e,2)}, {V(W+(i&2),2)}, {V(G+e,2)} op_sel:[0,{i&1},0] op_sel_hi:[1,{i&1},1]')
    scat4(G)
    allred('v_add_f32', V(G), None, ('r4', 'r8'))
    rnd(V(G))
    setexec(0x000f000f000f000f)
    a(f'ds_write_b16_d16_hi v13, v{G} offset:{OV}')
    stamp(11)
    wo_finish()
    stamp(26)
    a(f'{LXM}:')
    a(f's_cmp_lg_u32 {sI}, 2\ns_cbranch_scc1 L_fin2\ns_and_b32 s30, s2, 7\ns_cmp_lg_u32 s30, {RX}\ns_cbranch_scc1 L_fin2')
    red_setup()
    await_(C_AD, 4, 'v11', sleep=2)
    a(f'v_mov_b32 v152, 0\nglobal_load_short_d16_hi v152, v29, {sX}')
    if otouch: a(f'global_load_ushort v250, v29, {sOUT}')
    a(f'v_lshlrev_b32 v12, 4, v1\nv_lshl_add_u32 v12, {sPi}, 10, v12\nv_mov_b32 v46, {f2u(1/1024):#x}')
    a(f's_mov_b32 s40, {ST}\nv_mov_b32 v150, 4095\ns_mov_b32 s59, {TAB}')
    stamp(25)
    l4 = [(G + 4*i, 4, 'v12', P4 + i*1024) for i in range(8)]
    if smp4:
        gather(l4[:smp4], 'v11', sleep=1)
    if pd2 is None: gather(l4[smp4:], 'v11')
    else: gather_p(l4[smp4:], 'v11', depth=pd2, sleep=ps2)
    stamp(24)
    def p4_sum():
        untag([G + 4*i + e for i in range(8) for e in (0, 3)])
        for st in (4, 8, 16):
            for i in range(0, 32, 2*st):
                for e in (0, 2): a(f'v_pk_add_f32 {V(G+i+e,2)}, {V(G+i+e,2)}, {V(G+i+st+e,2)}')
        scat4(G)
        allred('v_add_f32', V(G), None, ('r8',))
        rnd(V(G))
    late_await(C_SM, 1, 'v11', lambda: a(f'ds_read_b128 v[140:143], v6 offset:{SM}'), p4_sum)
    a(f'v_mul_f32 v16, v{G}, v140\nv_cndmask_b32 v157, v142, v141, s[100:101]\nv_mov_b32 v23, 0'); rnd('v16'); a('v_add_f32 v16, v16, v152'); rnd('v16')
    a('v_mul_f32 v17, v16, v142')
    a('v_cndmask_b32 v18, v16, v17, s[100:101]\nv_cndmask_b32 v20, 1.0, v17, s[100:101]\nv_cndmask_b32 v21, v16, v142, s[100:101]')
    a('v_mul_f32 v20, v18, v20\nv_mul_f32 v21, v18, v21\nv_mul_f32 v22, v18, v157')
    st_publish('s40')
    stamp(21)
    gather([(G, 4, 'v5', ST + (0 if dual else STB))], 'v26', full=True, sleep=fsleep, alt=STB if dual else None)
    stamp(12)
    def ln1():
        st_reduce(G)
        for k, ln in enumerate((0, 16, 32, 1, 17, 33)): a(f'v_readlane_b32 s{38+k}, v{G}, {ln}')
        a('v_mul_f32 v24, s38, v46\nv_mul_f32 v25, s39, v46\nv_fma_f32 v25, -v24, v24, v25\nv_max_f32 v25, 0, v25')
        if trim: a(f'v_add_f32 v25, {f2u(1e-5):#x}, v25\nv_rsq_f32 v25, v25')
        else: ln_scale('v24', 'v25')
    late_await(C_TAB, 1, 'v11', lambda: a(f'ds_read_b128 v[144:147], {vM} offset:{SM + 1024}\nds_read_b64 v[148:149], {vM} offset:{SM + 1040}\nds_read_b32 v143, v6 offset:{SM + 12}'), ln1)
    a('v_fma_f32 v26, -v24, v144, s40\nv_fma_f32 v28, -v24, v149, s43')
    a('v_mul_f32 v27, v24, v145\nv_fma_f32 v27, -2.0, s42, v27\nv_fma_f32 v27, v27, v24, s41')
    if trim:
        a('v_sub_f32 v40, v16, v24\nv_fma_f32 v26, v26, v25, v146\nv_add_f32 v28, v28, v28\nv_mul_f32 v40, v40, v142\nv_fma_f32 v27, v27, v25, v28')
        a('v_mul_f32 v26, v26, v46\nv_fma_f32 v27, v27, v25, v148\nv_fma_f32 v40, v40, v25, v141\nv_mul_f32 v27, v27, v46\nv_fma_f32 v27, -v26, v26, v27')
        a(f'v_max_f32 v27, 0, v27\nv_sub_f32 v40, v40, v26\nv_add_f32 v27, {f2u(1e-5):#x}, v27\nv_rsq_f32 v27, v27\nv_mul_f32 v40, v40, v27'); rnd('v40')
    else:
        a('v_sub_f32 v40, v16, v24')
        a('v_fma_f32 v26, v26, v25, v146\nv_add_f32 v28, v28, v28\nv_fma_f32 v27, v27, v25, v28\nv_fma_f32 v27, v27, v25, v148')
        rnd('v40')
        a('v_mul_f32 v26, v26, v46\nv_mul_f32 v27, v27, v46\nv_mul_f32 v40, v40, v25\nv_fma_f32 v27, -v26, v26, v27')
        rnd('v40')
        a('v_max_f32 v27, 0, v27\nv_mul_f32 v40, v40, v142')
        rnd('v27'); rnd('v40'); rnd('v26')
        a(f'v_add_f32 v27, {f2u(1e-5):#x}, v27\nv_add_f32 v40, v40, v141'); rnd('v27'); rnd('v40')
        a('v_sqrt_f32 v27, v27\nv_sub_f32 v40, v40, v26'); rnd('v27'); rnd('v40')
        a('v_rcp_f32 v27, v27\nv_mul_f32 v40, v40, v27'); rnd('v40')
    a(f'v_bfe_u32 v41, v40, 16, 15\nv_lshrrev_b32 v43, 31, v40\nv_subrev_u32 v42, {E0 << 7}, v41\nv_cmp_eq_u32 vcc, 0, v41')
    a(f'v_cmp_lt_u32 s[38:39], v42, v47\nv_lshl_add_u32 v42, v43, 12, v42\nv_cndmask_b32 v42, v42, v47, vcc'.replace('v47', 'v150'))
    a(f'v_and_b32 v42, 0x1fff, v42\nv_lshlrev_b32 v42, 2, v42\nbuffer_load_dword v41, v42, {SRD_WS}, s59 offen sc1')
    a('s_or_b64 s[38:39], s[38:39], vcc\ns_waitcnt vmcnt(0)')
    a(f'v_and_b32 v42, 0xffff, v41\nv_and_b32 v41, 0xffff0000, v41\nv_cmp_ne_u32 vcc, {sT}, v42\ns_orn2_b64 s[38:39], vcc, s[38:39]\ns_cbranch_scc1 L_slow1')
    a('L_out:')
    a('v_mul_f32 v41, v41, v143'); rnd('v41'); a('v_add_f32 v41, v41, v16'); rnd('v41')
    setexec(0x00ff00ff00ff00ff)
    a(f'global_store_short_d16_hi v29, v41, {sOUT}{osc}')
    setexec(-1)
    stamp(14)
    if lite:
        a(f's_memrealtime s[34:35]\ns_lshl_b32 s30, s2, 7\ns_add_u32 s30, s30, {DBG + 64}\nv_mov_b32 v11, 0\ns_waitcnt lgkmcnt(0)\nv_mov_b32 v12, s34')
        setexec(1)
        a(f'buffer_store_dword v12, v11, {SRD_WS}, s30 offen')
        setexec(-1)
    a('L_fin:')
    a(f's_cmp_lg_u32 s2, {RX}\ns_cbranch_scc1 L_fin2')
    a(f'v_mov_b32 v7, {sE}\nv_mov_b32 v8, 0')
    setexec(1)
    a(f'global_store_dword v8, v7, {sWS} offset:12')
    setexec(-1)
    a('L_fin2:')
    if stamps:
        stamp(15)
        a('s_getreg_b32 s30, hwreg(HW_REG_XCC_ID)\nv_writelane_b32 v255, s30, 40')
        a(f's_lshl_b32 s30, s2, 11\ns_add_u32 s30, s30, {DBG}\nv_lshlrev_b32 v7, 2, v0')
        a(f'buffer_store_dword v255, v7, {SRD_WS}, s30 offen')
    a('L_end:\ns_endpgm')
    a('L_slow1:\ns_ff1_i32_b64 s40, s[38:39]\ns_bitset0_b64 s[38:39], s40\nv_readlane_b32 s41, v40, s40')
    a('v_lshlrev_b32 v11, 4, v1\nv_mov_b32 v18, 0\nv_mov_b32 v19, 0\nv_mov_b32 v42, s41\nv_mov_b32 v43, s41\ns_mov_b32 s42, 0')
    a('L_slow2:')
    for j, ptr in enumerate((sW1, sB1, sW2)): a(f'global_load_dwordx4 {V(G+4*j,4)}, v11, {ptr}')
    a('v_add_u32 v11, 0x400, v11\ns_waitcnt vmcnt(0)')
    for j in range(3):
        for i in range(4): a(f'v_lshlrev_b32 v{160+8*j+2*i}, 16, v{G+4*j+i}\nv_and_b32 v{161+8*j+2*i}, 0xffff0000, v{G+4*j+i}')
    gelu_units([(lambda u, i=i: f'v_pk_fma_f32 {u}, v[42:43], {V(160+2*i,2)}, {V(168+2*i,2)}',
                 lambda u, i=i: f'v_pk_fma_f32 v[18:19], {u}, {V(176+2*i,2)}, v[18:19]') for i in range(4)], 48, 64, 4)
    a('s_add_u32 s42, s42, 1\ns_cmp_lt_u32 s42, 7\ns_cbranch_scc1 L_slow2')
    a('v_add_f32 v18, v18, v19')
    allred('v_add_f32', 'v18', 'v19')
    rnd('v18'); a('v_add_f32 v18, v18, v159'); rnd('v18')
    a('v_readfirstlane_b32 s41, v18\ns_mov_b32 m0, s40\nv_writelane_b32 v41, s41, m0')
    a('s_cmp_lg_u64 s[38:39], 0\ns_cbranch_scc1 L_slow1\ns_branch L_out')
    a('L_code_end:')
    body = a.finish()
    out = HEADER + f'; @launch grid=(256,1,1) block=(512,1,1) lds={LDS_BYTES}\n'
    out += f'.amdgcn_target "amdgcn-amd-amdhsa--gfx950"\n.text\n.globl {NAME}_kernel\n.p2align 8\n.type {NAME}_kernel,@function\n'
    out += body
    out += f'''.section .rodata,"a"
.p2align 6
.amdhsa_kernel {NAME}_kernel
  .amdhsa_next_free_vgpr 256
  .amdhsa_next_free_sgpr 102
  .amdhsa_accum_offset 256
  .amdhsa_group_segment_fixed_size 0
  .amdhsa_kernarg_size 120
  .amdhsa_user_sgpr_count 2
  .amdhsa_user_sgpr_kernarg_segment_ptr 1
  .amdhsa_system_sgpr_workgroup_id_x 1
  .amdhsa_float_denorm_mode_32 3
.end_amdhsa_kernel
'''
    return out

if __name__ == '__main__':
    kw = {}
    for arg in sys.argv[2:]:
        k, v = arg.split('=')
        kw[k] = eval(v)
    open(sys.argv[1], 'w').write(gen(**kw))
```

```python
import sys, struct
from asmfw import Asm

NAME = 'adaLN_cond__gqa_block_cached__mixer_token_mlp__decode'

def f2u(x): return struct.unpack('<I', struct.pack('<f', x))[0]
LOG2E = 1.4426950408889634
SCALE = 128 ** -0.5

P1 = 0x10000; P2 = 0x20000; P3 = 0x30000; ML = 0x40000; ST0 = 0x50000; ST = 0x52000; STB = 0x1000
RK = 0x60000; TAB = 0x68000; P4 = 0x80000; OB = 0x100000; DBG = 0x200000
RS = 6; RINGW = RS * 4096
WB = 4 * RINGW; WA = WB + 32768; MISC = WA + 16384
SC = 0; QL = 2048; HV = 4352; OV = 4864; MLW = 5376; CNT = 5760; WL = 5888; YT = 6144; SM = 6656
LDS_BYTES = 163840
C_W1, C_WQ, C_H, C_Q, C_M2, C_ML, C_RED, C_WO, C_WOF, C_TICK, C_T1, C_T2, C_PUB, C_VI, C_WL, C_RANK, C_YT, C_TAB, C_OV, C_MD, C_SM, C_RANK2, C_RANK3, C_AD, C_R1, C_WQF, C_GB = range(27)

HEADER = open('cdna_kernels/' + NAME + '.s.ref').read().split('; Override launch')[0]

DOC = r'''; ---------------------------------------------------------------------------------------------------------------
; One persistent launch, 256 workgroups (one per CU) of 8 waves.  b = workgroup id, kv group g = b>>6.
; ---------------------------------------------------------------------------------------------------------------
'''

def gen(F=6, NQ=60, k7=True, nt=' nt', wnt=' nt', stamps=False, warm=3, spf='', xbar=1, spin=1 << 19, psleep=16, xprio=3, aprio=1,
        T1=30, T2=56, exp='', xs=0, xlate=False, TS=0, UC2=6, gb2=2, tight=0, lazy=True, fastpro=False, trim=False, obt=0, obf=' sc1', p12f=' sc1', h1late=0, otouch=False, osc='', UC=3, UM=None, EX=0, pd1=None, ps1=1, h1sleep=6, h1thr=48, fsleep=0, Fs=((0, 6), (120, 7)), TK=16, XTRA=0, h1m=1, NZ=16, AF=7, MLP_AT=7, dual=True, pretouch=1, RX=0, p3sleep=2, pd2=1, ps2=2, TR=14, T2AT=0, CF=8, ept=2, Fhi=None, Flo=None, rth=33, a1w=True, SPL=0, smp4=0, smp3=0, su=False, tlb=0, E0=101, TH=64, gbl=True):
    a = Asm()
    lite = stamps == 'lite'
    if lite: stamps = False
    SRD_K, SRD_V, SRD_WS, SRD_WQ, SRD_WO, SRD_WM = 's[4:7]', 's[8:11]', 's[12:15]', 's[16:19]', 's[20:23]', 's[24:27]'
    sX, sW1, sB1, sW2, sB2, sC, sOUT, sWS = 's[36:37]', 's[48:49]', 's[50:51]', 's[52:53]', 's[54:55]', 's[56:57]', 's[60:61]', 's[64:65]'
    sE, sI, sBase, sSpin = 's66', 's67', 's68', 's69'
    sT, sT2, sT4, sSelA, sSelB, sPi = 's86', 's87', 's88', 's89', 's90', 's91'
    MASK = lambda i: f's[{70+2*i}:{71+2*i}]'
    SOFF = lambda i: f's{92+i}'
    vM, vOne, vHi = 'v2', 'v3', 'v247'
    V = lambda i, n=1: f'v{i}' if n == 1 else f'v[{i}:{i+n-1}]'

    def stamp(i):
        if stamps:
            a(f's_memrealtime s[34:35]\ns_waitcnt lgkmcnt(0)\nv_writelane_b32 v255, s34, {i}')
    def setexec(mask):
        if mask == -1: a('s_mov_b64 exec, -1')
        elif mask < 64: a(f's_mov_b64 exec, {mask}')
        else: a(f's_mov_b32 exec_lo, {mask & 0xffffffff:#x}\ns_mov_b32 exec_hi, {mask >> 32:#x}')
    def arrive(c):
        a(f's_mov_b64 exec, 1\nds_add_u32 {vM}, {vOne} offset:{CNT + 4*c}\ns_mov_b64 exec, -1')
    def await_(c, n, tmp, sleep=1):
        L = a.lab('W'); D = a.lab('WD')
        a(f's_mov_b32 {sSpin}, {spin}')
        a(f'{L}:\nds_read_b32 {tmp}, {vM} offset:{CNT + 4*c}\ns_waitcnt lgkmcnt(0)\nv_readfirstlane_b32 s30, {tmp}')
        a(f's_cmp_ge_u32 s30, {n}\ns_cbranch_scc1 {D}')
        if sleep: a(f's_sleep {sleep}')
        a(f's_sub_u32 {sSpin}, {sSpin}, 1\ns_cbranch_scc0 {L}\n{D}:')
    def late_await(c, n, tmp, reads, work):
        D = a.lab('LA')
        a(f'ds_read_b32 {tmp}, {vM} offset:{CNT + 4*c}')
        reads()
        work()
        a(f's_waitcnt lgkmcnt(0)\nv_readfirstlane_b32 s30, {tmp}\ns_cmp_ge_u32 s30, {n}\ns_cbranch_scc1 {D}')
        await_(c, n, tmp, sleep=0)
        reads()
        a(f's_waitcnt lgkmcnt(0)\n{D}:')
    def rnd(r): a(f'v_cvt_pk_bf16_f32 {r}, 0, {r}')
    def tag(r): a(f'v_and_or_b32 {r}, {r}, {vHi}, {sT}')
    def untag(regs, fine=False):
        for r in regs: a(f'v_and_b32 v{r}, {"-4" if fine else vHi}, v{r}')
    DPP = {1: 'quad_perm:[1,0,3,2]', 2: 'quad_perm:[2,3,0,1]', 'hm': 'row_half_mirror', 'm': 'row_mirror', 'r4': 'row_ror:4', 'r8': 'row_ror:8'}
    def allred(op, r, t, steps=(1, 2, 'hm', 'm', 16, 32)):
        for s in steps:
            if s in DPP: a(f'{op}_dpp {r}, {r}, {r} {DPP[s]} row_mask:0xf bank_mask:0xf')
            else: a(f'v_mov_b32 {t}, {r}\nv_permlane{s}_swap_b32 {r}, {t}\n{op} {r}, {r}, {t}')
    def scat4(b):
        a(f'v_permlane32_swap_b32 v{b}, v{b+2}\nv_permlane32_swap_b32 v{b+1}, v{b+3}\nv_pk_add_f32 {V(b,2)}, {V(b,2)}, {V(b+2,2)}')
        a(f'v_permlane16_swap_b32 v{b}, v{b+1}\nv_add_f32 v{b}, v{b}, v{b+1}')
    def setup_tags():
        a(f's_add_u32 {sE}, {sE}, 1\ns_and_b32 {sT}, {sE}, 0xff\ns_mul_i32 {sT2}, {sT}, 0x101\ns_mul_i32 {sT4}, {sT}, 0x1010101')
        a(f's_mov_b32 {sSelA}, 0x0c0c0400\ns_mov_b32 {sSelB}, 0x04000c0c\nv_mov_b32 {vHi}, 0xffffff00')
        a(f's_and_b32 {sPi}, s2, 0xf8')
    def gather(loads, tmp, sleep=0, full=False, thr=None, alt=None):
        L = a.lab('G'); D = a.lab('GD')
        his = []
        for d, w, vo, off in loads:
            if off & ~0xfff not in his: his.append(off & ~0xfff)
        for i, h in enumerate(his): a(f's_mov_b32 {SOFF(i)}, {h:#x}')
        if alt: a(f's_mov_b32 {SOFF(1)}, {his[0] + alt:#x}')
        def ld(d, w, vo, off):
            sfx = {1: 'dword', 2: 'dwordx2', 4: 'dwordx4'}[w]
            a(f'buffer_load_{sfx} {V(d, w)}, {vo}, {SRD_WS}, {SOFF(his.index(off & ~0xfff))} offen offset:{off & 0xfff} sc1')
        for x in loads: ld(*x)
        a(f's_mov_b32 {sSpin}, {spin}')
        a(f'{L}:')
        n = len(loads)
        for i, (d, w, vo, off) in enumerate(loads):
            a(f's_waitcnt vmcnt({n-1-i})')
            if w == 1: a(f'v_and_b32 {tmp}, 0xff, {V(d)}\nv_cmp_ne_u32 {MASK(i)}, {sT}, {tmp}')
            elif full:
                t2 = f'v{int(tmp[1:]) + 1}'
                a(f'v_perm_b32 {tmp}, {V(d+1)}, {V(d)}, {sSelA}\nv_perm_b32 {t2}, {V(d+3)}, {V(d+2)}, {sSelB}\nv_or_b32 {tmp}, {tmp}, {t2}')
                if full == 2: a(f'v_xor_b32 {tmp}, {sT4}, {tmp}\nv_and_b32 {tmp}, 0x03030303, {tmp}\nv_cmp_ne_u32 {MASK(i)}, 0, {tmp}')
                else: a(f'v_cmp_ne_u32 {MASK(i)}, {sT4}, {tmp}')
            else: a(f'v_perm_b32 {tmp}, {V(d+w-1)}, {V(d)}, {sSelA}\nv_cmp_ne_u32 {MASK(i)}, {sT2}, {tmp}')
        a(f's_or_b64 s[28:29], {MASK(0)}, {MASK(1 if n > 1 else 0)}')
        for i in range(2, n): a(f's_or_b64 s[28:29], s[28:29], {MASK(i)}')
        a(f's_cbranch_scc0 {D}')
        a(f's_sub_u32 {sSpin}, {sSpin}, 1\ns_cbranch_scc1 {D}')
        if sleep and thr is not None:
            S = a.lab('GN')
            a(f's_bcnt1_i32_b64 s30, {MASK(0)}')
            for i in range(1, n): a(f's_bcnt1_i32_b64 s31, {MASK(i)}\ns_add_u32 s30, s30, s31')
            a(f's_cmp_le_u32 s30, {thr}\ns_cbranch_scc1 {S}\ns_sleep {sleep}\n{S}:')
        elif sleep: a(f's_sleep {sleep}')
        if alt:
            a(f's_and_b32 s30, {sSpin}, 15\ns_cselect_b32 {SOFF(0)}, {his[0]:#x}, {SOFF(1)}')
            if lazy:
                Lz = a.lab('LZ')
                a(f's_cmp_lg_u32 s30, 2\ns_cbranch_scc1 {Lz}')
                setexec(0x0101010101010101)
                a(f'buffer_store_dword v20, v31, {SRD_WS}, {SOFF(1)} offen sc1\n{Lz}:')
        for i, x in enumerate(loads):
            S = a.lab('GS')
            a(f's_wqm_b64 exec, {MASK(i)}\ns_cbranch_execz {S}')
            ld(*x)
            a(f'{S}:')
        a(f's_mov_b64 exec, -1\ns_waitcnt vmcnt(0)\ns_branch {L}\n{D}:')
        if alt and lazy:
            Lz = a.lab('LZ')
            a(f'v_cmp_ne_u32 vcc, v151, v{loads[0][0] + 3}\ns_cbranch_vccz {Lz}')
            setexec(0x0101010101010101)
            a(f'buffer_store_dword v20, v31, {SRD_WS}, {SOFF(1)} offen sc1\ns_mov_b64 exec, -1\n{Lz}:')
    def gather_p(loads, tmp, depth=3, sleep=1, full=False, thr=None, bsleep=0):
        L = a.lab('G'); D = a.lab('GD')
        his = []
        for d, w, vo, off in loads:
            if off & ~0xfff not in his: his.append(off & ~0xfff)
        for i, h in enumerate(his): a(f's_mov_b32 {SOFF(i)}, {h:#x}')
        n = len(loads)
        def ld(d, w, vo, off):
            a(f'buffer_load_dwordx4 {V(d, w)}, {vo}, {SRD_WS}, {SOFF(his.index(off & ~0xfff))} offen offset:{off & 0xfff} sc1')
        for x in loads: ld(*x)
        a(f's_mov_b32 {sSpin}, {spin}\ns_waitcnt vmcnt(0)')
        a(f'{L}:')
        for i, (d, w, vo, off) in enumerate(loads):
            if full:
                t2 = f'v{int(tmp[1:]) + 1}'
                a(f'v_perm_b32 {tmp}, {V(d+1)}, {V(d)}, {sSelA}\nv_perm_b32 {t2}, {V(d+3)}, {V(d+2)}, {sSelB}\nv_or_b32 {tmp}, {tmp}, {t2}')
                a(f'v_cmp_ne_u32 {MASK(i)}, {sT4}, {tmp}')
            else: a(f'v_perm_b32 {tmp}, {V(d+w-1)}, {V(d)}, {sSelA}\nv_cmp_ne_u32 {MASK(i)}, {sT2}, {tmp}')
        a(f's_or_b64 s[28:29], {MASK(0)}, {MASK(1 if n > 1 else 0)}')
        for i in range(2, n): a(f's_or_b64 s[28:29], s[28:29], {MASK(i)}')
        a(f's_cbranch_scc0 {D}')
        a(f's_sub_u32 {sSpin}, {sSpin}, 1\ns_cbranch_scc1 {D}')
        if thr is not None:
            S = a.lab('GN')
            a(f's_bcnt1_i32_b64 s30, {MASK(0)}')
            for i in range(1, n): a(f's_bcnt1_i32_b64 s31, {MASK(i)}\ns_add_u32 s30, s30, s31')
            a(f's_cmp_le_u32 s30, {thr}\ns_cbranch_scc1 {S}\ns_sleep {bsleep}\n{S}:')
        for i, x in enumerate(loads):
            a(f's_or_b32 s{70+2*i}, s{70+2*i}, 1\ns_wqm_b64 exec, {MASK(i)}')
            ld(*x)
        a('s_mov_b64 exec, -1')
        if sleep: a(f's_sleep {sleep}')
        a(f's_waitcnt vmcnt({n*depth})\ns_branch {L}\n{D}:\ns_waitcnt vmcnt(0)')
    def gather_t(loads, tmp, done, issue_first=True, thr=None, bsleep=0):
        L = a.lab('G'); D = a.lab('GD')
        his = []
        for d, w, vo, off in loads:
            if off & ~0xfff not in his: his.append(off & ~0xfff)
        def ld(d, w, vo, off):
            a(f'buffer_load_dwordx4 {V(d, w)}, {vo}, {SRD_WS}, {SOFF(his.index(off & ~0xfff))} offen offset:{off & 0xfff} sc1')
        if issue_first:
            for i, h in enumerate(his): a(f's_mov_b32 {SOFF(i)}, {h:#x}')
            for x in loads: ld(*x)
        n = len(loads)
        a(f's_mov_b32 {sSpin}, {spin}\ns_mov_b32 s29, {(1 << n) - 1}')
        a(f'{L}:\ns_mov_b32 s28, 0\ns_waitcnt vmcnt(0)')
        for i, (d, w, vo, off) in enumerate(loads):
            S, R = a.lab('GS'), a.lab('GR')
            a(f's_bitcmp0_b32 s29, {i}\ns_cbranch_scc1 {S}')
            a(f'v_perm_b32 {tmp}, {V(d+3)}, {V(d)}, {sSelA}\nv_cmp_ne_u32 vcc, {sT2}, {tmp}\ns_cbranch_vccnz {R}')
            done(i)
            a(f's_bitset0_b32 s29, {i}\ns_branch {S}\n{R}:')
            if thr is not None: a('s_bcnt1_i32_b64 s31, vcc\ns_add_u32 s28, s28, s31')
            a('s_wqm_b64 exec, vcc')
            ld(d, w, vo, off)
            a(f's_mov_b64 exec, -1\n{S}:')
        a(f's_cmp_eq_u32 s29, 0\ns_cbranch_scc1 {D}')
        if thr is not None:
            S = a.lab('GN')
            a(f's_cmp_le_u32 s28, {thr}\ns_cbranch_scc1 {S}\ns_sleep {bsleep}\n{S}:')
        a(f's_sub_u32 {sSpin}, {sSpin}, 1\ns_cbranch_scc0 {L}\ns_waitcnt vmcnt(0)\n{D}:')
    def w_voff(dst, stride, t):
        a(f'v_lshrrev_b32 {t}, 3, v1\nv_mul_u32_u24 {dst}, {stride}, {t}')
        a(f'v_lshrrev_b32 {t}, 4, v1\nv_lshlrev_b32 {t}, 1, {t}\nv_xor_b32 {t}, {t}, v1\nv_and_b32 {t}, 7, {t}\nv_lshl_add_u32 {dst}, {t}, 4, {dst}')
    def w_traddr(dst, base, t, t2):
        a(f'v_lshrrev_b32 {t}, 2, v1\nv_lshlrev_b32 {dst}, 7, {t}')
        a(f'v_and_b32 {t}, 6, {t}')
        a(f'v_lshrrev_b32 {t2}, 1, v1\nv_and_b32 {t2}, 1, {t2}\nv_lshl_add_u32 {t2}, {sI}, 1, {t2}')
        a(f'v_xor_b32 {t}, {t}, {t2}\nv_lshl_add_u32 {dst}, {t}, 4, {dst}')
        a(f'v_and_b32 {t}, 1, v1\nv_lshl_add_u32 {dst}, {t}, 3, {dst}\nv_add_u32 {dst}, {base}, {dst}')
    def w_read(areg, addr, nks):
        for ks in range(nks):
            a(f'ds_read_b64_tr_b16 {V(areg+4*ks, 2)}, {addr} offset:{ks*4096}')
            a(f'ds_read_b64_tr_b16 {V(areg+4*ks+2, 2)}, {addr} offset:{ks*4096+2048}')
    def b_read(breg, addr, nks):
        for ks in range(nks):
            a(f'ds_read2_b64 {V(breg+4*ks, 4)}, {addr} offset0:{8*ks} offset1:{8*ks+4}')
    def w_mfma(d, areg, breg, nks, staged=False):
        for ks in range(nks):
            if staged: a(f's_waitcnt lgkmcnt({nks-1-ks})')
            a(f'v_mfma_f32_16x16x32_bf16 {V(d,4)}, {V(areg+4*ks,4)}, {V(breg+4*ks,4)}, {"0" if ks == 0 else V(d,4)}')
    def ln_scale(mean, var):
        rnd(var); rnd(mean)
        a(f'v_add_f32 {var}, {f2u(1e-5):#x}, {var}'); rnd(var)
        a(f'v_sqrt_f32 {var}, {var}'); rnd(var)
        a(f'v_rcp_f32 {var}, {var}')
    c0 = -2 * LOG2E * 0.7978845608028654; c1 = c0 * 0.044715
    def gelu_units(units, U, Z, NB):
        for s0 in range(0, len(units), NB):
            blk = list(enumerate(units[s0:s0+NB]))
            R2 = lambda base, k: V(base + 2*k, 2)
            def both(fn):
                for k, _ in blk:
                    fn(2*k); fn(2*k+1)
            for k, (first, last) in blk: a(first(R2(U, k)))
            for k, _ in blk: a(f'v_pk_mul_f32 {R2(Z,k)}, {R2(U,k)}, {R2(U,k)}')
            for k, _ in blk: a(f'v_pk_fma_f32 {R2(Z,k)}, {R2(Z,k)}, v[44:45], v[44:45] op_sel:[0,0,1] op_sel_hi:[1,0,1]')
            for k, _ in blk: a(f'v_pk_mul_f32 {R2(Z,k)}, {R2(Z,k)}, {R2(U,k)}')
            both(lambda r: a(f'v_exp_f32 {V(Z+r)}, {V(Z+r)}'))
            for k, _ in blk: a(f'v_pk_add_f32 {R2(Z,k)}, {R2(Z,k)}, 1.0 op_sel_hi:[1,0]')
            both(lambda r: a(f'v_rcp_f32 {V(Z+r)}, {V(Z+r)}'))
            for k, _ in blk: a(f'v_pk_mul_f32 {R2(U,k)}, {R2(U,k)}, {R2(Z,k)}')
            for k, (first, last) in blk: a(last(R2(U, k)))

    def st_reduce(b):
        untag(range(b, b + 3))
        scat4(b)
        allred('v_add_f32', f'v{b}', None, (2, 'r4', 'r8'))
    def st_publish(base):
        scat4(20)
        allred('v_add_f32', 'v20', None, (1, 2, 'hm'))
        tag('v20')
        setexec(0x0101010101010101)
        if dual: a(f'buffer_store_dword v20, v31, {SRD_WS}, {base} offen')
        if not lazy: a(f's_add_u32 {base}, {base}, {STB}\nbuffer_store_dword v20, v31, {SRD_WS}, {base} offen sc1')
        setexec(-1)
    def red_setup():
        a(f'v_lshrrev_b32 v9, 4, v1\nv_and_b32 v13, 7, v1\nv_lshl_add_u32 v30, v13, 2, v9\nv_lshl_add_u32 v30, {sPi}, 2, v30\nv_lshlrev_b32 v29, 1, v30\nv_lshlrev_b32 v30, 2, v30')
        a(f'v_lshrrev_b32 v11, 3, v1\nv_and_b32 v11, 1, v11\nv_cmp_eq_u32 s[100:101], 1, v11\nv_lshl_add_u32 v28, v11, 15, v30')
        a(f'v_lshlrev_b32 v31, 4, v11\nv_lshl_add_u32 v31, v9, 2, v31\nv_lshl_add_u32 v31, {sPi}, 2, v31\nv_lshlrev_b32 v5, 4, v1')
        a(f'v_lshl_add_u32 v6, v1, 4, {vM}')
        a(f's_getreg_b32 s30, hwreg(HW_REG_XCC_ID)\ns_and_b32 s30, s30, 15\nv_cvt_f32_u32 v151, s30\nv_mul_f32 v158, {f2u(1/32):#x}, v151\nv_or_b32 v151, {sT}, v151')

    def wo_setup(j):
        a('v_lshrrev_b32 v11, 2, v1\nv_lshlrev_b32 v68, 9, v11\nv_and_b32 v74, 7, v11\nv_lshlrev_b32 v74, 1, v74')
        a(f'v_lshrrev_b32 v75, 1, v1\nv_and_b32 v75, 1, v75\nv_lshl_add_u32 v75, {sI}, 3, v75\nv_xor_b32 v74, v74, v75\nv_lshl_add_u32 v68, v74, 4, v68')
        a(f'v_and_b32 v74, 1, v1\nv_lshl_add_u32 v68, v74, 3, v68\nv_add_u32 v68, {WB if j == 0 else 16384}, v68')
        for i in range(1, 4): a(f'v_xor_b32 v{68+i}, {i << 5:#x}, v68')
        if j == 1:
            for i in range(4): a(f'v_mov_b32 v{84+i}, v{68+i}\nv_add_u32 v{88+i}, {2*RINGW}, v{68+i}')
        for r in range(202, 234): a(f'v_mov_b32 v{r}, 0')
        a(f'v_lshrrev_b32 v75, 4, v1\nv_lshl_add_u32 v72, v75, 3, {vM}\nv_add_u32 v72, {OV}, v72\nv_lshlrev_b32 v73, 4, v75\nv_lshl_add_u32 v73, v74, 6, v73')
        a('v_and_b32 v74, 2, v1\nv_lshl_add_u32 v73, v74, 12, v73')
        a('s_lshr_b32 s45, s33, 1\ns_lshr_b32 s30, s2, 6\ns_lshl_b32 s30, s30, 4\ns_add_u32 s45, s45, s30\ns_lshl_b32 s45, s45, 7')
        a(f's_and_b32 s30, s33, 1\ns_lshl_b32 s30, s30, 17\ns_add_u32 s45, s45, s30\ns_lshl_b32 s30, {sI}, 14\ns_add_u32 s45, s45, s30\ns_add_u32 s45, s45, {P4 + 0x10000*j}')
    def wo_finish():
        a('s_waitcnt lgkmcnt(0)\ns_barrier')
        for ct in range(4):
            setexec(0x0001000100010001 << ct)
            b_read(202 + 8*ct, 'v72', 2)
        setexec(-1)
        w_mfma(24, 120, 202, 8, staged=True)
        setexec(0x000f000f000f000f)
        for e in (0, 3): tag(V(24+e))
        a(f'buffer_store_dwordx4 v[24:27], v73, {SRD_WS}, s45 offen sc1')
        setexec(-1)

    a(f'{NAME}_kernel:')
    def sus(k):
        if su: a(f's_memrealtime s[{70+2*k}:{71+2*k}]')
    def warm_code():
        a('s_getpc_b64 s[32:33]\nL_pc:')
        a(f'v_lshlrev_b32 v4, 7, v0\nv_cmp_gt_u32 vcc, L_code_end-L_pc-4, v4\ns_and_saveexec_b64 s[28:29], vcc\ns_cbranch_execz L_nowarm')
        a('global_load_dword v254, v4, s[32:33]\nL_nowarm:\ns_mov_b64 exec, -1')
    if fastpro:
        a('s_lshr_b32 s30, s2, 8\ns_cbranch_scc1 L_end\ns_load_dwordx2 s[24:25], s[0:1], 88')
        a('v_readfirstlane_b32 s3, v0\nv_lshrrev_b32 v26, 3, v0\ns_and_b32 s30, s2, 7\nv_and_b32 v27, 6, v26\nv_lshl_add_u32 v26, s30, 7, v26')
        a('v_xor_b32 v27, v27, v0\ns_andn2_b32 s31, s2, 7\nv_and_b32 v27, 7, v27\nv_mul_u32_u24 v26, 12288, v26\nv_or_b32 v27, s31, v27')
        a(f's_lshl_b32 s31, s3, 4\nv_lshl_add_u32 v26, v27, 4, v26\ns_add_u32 m0, s31, {WA}\nv_add_u32 v27, {64*12288}, v26')
        a(f's_waitcnt lgkmcnt(0)\nglobal_load_lds_dwordx4 v26, s[24:25]{wnt}\ns_add_u32 m0, s31, {WA + 8192}\nglobal_load_lds_dwordx4 v27, s[24:25]{wnt}')
        if lite: a('s_memrealtime s[34:35]')
        a('s_load_dwordx2 s[16:17], s[0:1], 24\ns_load_dwordx16 s[36:51], s[0:1], 0')
        a('s_load_dwordx8 s[52:59], s[0:1], 64\ns_load_dwordx4 s[60:63], s[0:1], 96\ns_load_dwordx2 s[64:65], s[0:1], 112')
        if warm is True: warm_code()
        a('s_lshr_b32 s3, s3, 6\nv_and_b32 v1, 63, v0\ns_mov_b32 s26, 0xc00000\ns_mov_b32 s27, 0x20000')
        w_voff('v236', 12288, 'v26')
        a('s_waitcnt lgkmcnt(0)')
    else:
        a('s_cmp_ge_u32 s2, 256\ns_cbranch_scc1 L_end')
        if lite: a('s_memrealtime s[34:35]')
        def sus(k):
            if su: a(f's_memrealtime s[{70+2*k}:{71+2*k}]')
        sus(0)
        a('s_load_dwordx2 s[24:25], s[0:1], 88\ns_load_dwordx2 s[16:17], s[0:1], 24\ns_load_dwordx16 s[36:51], s[0:1], 0')
        a('s_load_dwordx8 s[52:59], s[0:1], 64\ns_load_dwordx4 s[60:63], s[0:1], 96\ns_load_dwordx2 s[64:65], s[0:1], 112')
        if warm is True:
            a('s_getpc_b64 s[32:33]\nL_pc:')
            if warm == 2: a('v_xor_b32 v4, 0x100, v0\nv_lshlrev_b32 v4, 7, v4')
            else: a('v_lshlrev_b32 v4, 7, v0')
            a(f'v_cmp_gt_u32 vcc, L_code_end-L_pc-4, v4\ns_and_saveexec_b64 s[28:29], vcc\ns_cbranch_execz L_nowarm')
            a('global_load_dword v254, v4, s[32:33]\nL_nowarm:\ns_mov_b64 exec, -1')
        a('v_lshrrev_b32 v1, 6, v0\nv_readfirstlane_b32 s3, v1\nv_and_b32 v1, 63, v0')
        w_voff('v236', 12288, 'v26')
        a(f's_and_b32 s30, s2, 7\ns_lshl_b32 s30, s30, 3\ns_add_u32 s30, s30, s3\ns_mul_i32 s32, s30, {16*12288}\ns_lshr_b32 s30, s2, 3\ns_lshl_b32 s30, s30, 7\ns_add_u32 s32, s32, s30')
        a(f's_lshl_b32 s31, s3, 11\ns_add_u32 m0, s31, {WA}\ns_mov_b32 s26, 0xc00000\ns_mov_b32 s27, 0x20000\ns_add_u32 s33, s32, {8*12288 - 1024}')
        sus(1)
        a('s_waitcnt lgkmcnt(0)')
        sus(2)
        a(f'buffer_load_dwordx4 v236, {SRD_WM}, s32 offen{wnt} lds\nbuffer_load_dwordx4 v236, {SRD_WM}, s33 offen offset:1024{wnt} lds')
        sus(3)
    a(f's_mov_b64 s[20:21], s[44:45]\ns_and_b32 {sI}, s3, 3\ns_mov_b32 s18, 0x800000\ns_mov_b32 s19, 0x20000')
    def common2(x):
        a(f'v_mov_b32 {vM}, {MISC}\nv_mov_b32 {vOne}, 1')
        if stamps: a('v_mov_b32 v255, 0')
        a('s_mov_b32 s6, 0x4000000\ns_mov_b32 s7, 0x20000\ns_mov_b32 s10, 0x4000000\ns_mov_b32 s11, 0x20000')
        a('s_mov_b32 s14, 0x10000000\ns_mov_b32 s15, 0x20000\ns_mov_b32 s22, 0x800000\ns_mov_b32 s23, 0x20000')
        for srd, p in ((4, 38), (8, 40), (12, 64)):
            a(f's_mov_b64 s[{srd}:{srd+1}], s[{p}:{p+1}]')
    if xbar == 1: a('s_cmp_lt_u32 s3, 4\ns_cbranch_scc1 L_A\ns_barrier\ns_branch L_X\nL_A:')
    elif xbar == 2:
        a('s_cmp_lt_u32 s3, 4\ns_cbranch_scc1 L_A')
        a(f'v_lshlrev_b32 v27, 2, v1\nv_add_u32 v27, {MISC}, v27\nv_mov_b32 v28, 0')
        setexec(0xffffffff); a(f'ds_write_b32 v27, v28 offset:{CNT}'); setexec(-1)
        a('s_waitcnt lgkmcnt(0)\ns_barrier\ns_branch L_X\nL_A:')
    else: a('s_cmp_ge_u32 s3, 4\ns_cbranch_scc1 L_X')

    VOFF, KA, VA, Q, S, H = 4, 8, 16, 32, 64, 96
    PP, D1, D2, VS = 32, 96, 128, 160
    vMax, vSum = 'v224', 'v225'
    a('; ==== A waves')
    if aprio: a(f's_setprio {aprio}')
    seq = [('w1', i) for i in range(2)] + [('wq', i) for i in range(8)]
    seq += [('kv', i) for i in range(128)] + [('fill', k) for k in range(8)]
    if k7:
        pair_slot = [0, 2, 4, 0, 2, 4, 0, 6] + [2, 0, 4, 0, 2, 4, 0, 2]
        slot_of = lambda gi: pair_slot[gi >> 1] + (gi & 1)
    else:
        slot_of = lambda gi: gi % RS if gi < 28 else gi - 28
    pos = {e: n for n, e in enumerate(seq)}
    NS = len(seq)
    Fbase = (lambda n: [f for (n0, f) in Fs if n0 <= n][-1]) if Fs else (lambda n: F)
    NV = pos[('kv', 127)]
    CTL = NV - TR + F + 4 if Fhi else NS + 1
    Fn = lambda n: Fhi if CTL <= n <= NV else Fbase(n)
    FI = Fn(0)
    def landed_at(k):
        n = k + 1
        while n < FI or n - Fn(n) < k: n += 1
        return n
    a(f's_lshl_b32 s59, {sI}, 13')
    vorder = []
    for u in range(4): vorder += [4*u, 4*u+2, 4*u+1, 4*u+3]
    def issue(n):
        kind, i = seq[n]
        if kind == 'kv':
            gi, j = i // 4, i % 4
            if j == 0 or seq[n-1][0] != 'kv':
                grp = gi if gi < 16 else vorder[gi - 16]
                a(f's_add_u32 s39, {sBase}, {grp*16384}')
                a(f's_add_u32 m0, s38, {slot_of(gi)*4096}' if slot_of(gi) < RS else f's_add_u32 m0, s59, {WB + (slot_of(gi) - RS)*4096}')
            a(f'buffer_load_dwordx4 v{VOFF+j}, {SRD_K if gi < 16 else SRD_V}, s39 offen offset:{j*1024}{nt} lds')
        else:
            srd, vo, so, stride, lb, sl = {'wq': (SRD_WQ, 'v237', 's47', 8192, WB, 's59')}[kind]
            a(f's_add_u32 s32, {so}, {8*i*stride}\ns_add_u32 m0, {sl}, {lb + i*1024}')
            a(f'buffer_load_dwordx4 {vo}, {srd}, s32 offen{wnt} lds')
    w_voff('v237', 8192, 'v26')
    a(f's_and_b32 s30, s2, 3\ns_lshl_b32 s30, s30, 2\ns_add_u32 s30, s30, {sI}\ns_lshl_b32 s47, s30, 19')
    a('s_lshr_b32 s30, s2, 2\ns_lshl_b32 s30, s30, 7\ns_add_u32 s47, s47, s30')
    sus(4)
    for n in range(2, FI): issue(n)
    sus(5)
    if xbar == 2:
        a('s_barrier')
        common2(False)
        a(f's_load_dword {sE}, {sWS}, 12')
    else:
        common2(False)
        a('s_cmp_lg_u32 s3, 3\ns_cbranch_scc1 L_noinit')
        a(f'v_lshl_add_u32 v27, v1, 2, {vM}\nv_mov_b32 v28, 0')
        setexec(0xffffffff); a(f'ds_write_b32 v27, v28 offset:{CNT}'); setexec(-1)
        a('s_waitcnt lgkmcnt(0)\nL_noinit:')
        sus(6)
        a(f's_barrier\ns_load_dword {sE}, {sWS}, 12')
    sus(7)
    stamp(0)
    stamp(16)
    a('v_lshrrev_b32 v24, 4, v1\nv_and_b32 v25, 15, v1')
    a('v_lshlrev_b32 v26, 1, v24\nv_xor_b32 v26, v26, v25\nv_lshlrev_b32 v26, 4, v26\nv_lshl_add_u32 v4, v24, 8, v26')
    for i in range(1, 4): a(f'v_xor_b32 v{VOFF+i}, {(8*(i&1) + (i>>1)) << 4:#x}, v4')
    a(f's_lshl_b32 {sBase}, s2, 18\ns_lshl_b32 s30, s3, 12\ns_add_u32 {sBase}, {sBase}, s30')
    a(f's_mul_i32 s38, s3, {RINGW}')
    def t_setup():
        a('; LDS read addresses of K fragments (v8-15) and transposed V fragments (v16-23)')
        a('v_and_b32 v26, 7, v25\nv_lshlrev_b32 v26, 1, v26\nv_lshrrev_b32 v27, 3, v25\nv_or_b32 v26, v26, v27')
        a('v_lshrrev_b32 v27, 1, v24\nv_xor_b32 v26, v26, v27\nv_lshlrev_b32 v26, 4, v26\nv_lshl_add_u32 v26, v25, 8, v26')
        a(f'v_and_b32 v27, 1, v24\nv_lshl_add_u32 v26, v27, 12, v26\nv_add_u32 v{KA}, s38, v26')
        for j in range(1, 8): a(f'v_xor_b32 v{KA+j}, {j << 5:#x}, v{KA}')
        a('v_lshrrev_b32 v27, 2, v1')
        a('v_and_b32 v26, 7, v27\nv_lshlrev_b32 v26, 1, v26\nv_lshrrev_b32 v28, 3, v27\nv_or_b32 v26, v26, v28')
        a('v_lshrrev_b32 v28, 1, v1\nv_and_b32 v28, 1, v28\nv_xor_b32 v26, v26, v28\nv_lshlrev_b32 v26, 4, v26\nv_lshl_add_u32 v26, v27, 8, v26')
        a(f'v_and_b32 v28, 1, v1\nv_lshl_add_u32 v26, v28, 3, v26\nv_add_u32 v{VA}, s38, v26')
        for t in range(1, 8): a(f'v_xor_b32 v{VA+t}, {t << 5:#x}, v{VA}')
    def t_setup2():
        if su:
            a('s_memrealtime s[92:93]\ns_waitcnt lgkmcnt(0)\nv_mov_b32 v40, 0')
            for k in range(8): a(f'v_writelane_b32 v40, s{70+2*k}, {k}')
            a(f'v_writelane_b32 v40, s92, 8\ns_lshl_b32 s30, s2, 10\ns_add_u32 s30, s30, {DBG + 0x10000}\nv_lshlrev_b32 v41, 2, v0')
            a(f'buffer_store_dword v40, v41, {SRD_WS}, s30 offen')
        for r in range(Q, Q + 32): a(f'v_mov_b32 v{r}, 0')
        a(f'v_mov_b32 {vMax}, 0xff800000\nv_mov_b32 {vSum}, 0')
        a(f's_mov_b32 s40, {f2u(SCALE):#x}\ns_mov_b32 s41, {f2u(LOG2E):#x}')
    def t_setup3():
        w_traddr('v28', 0, 'v26', 'v27')
        a('s_lshr_b32 s42, s2, 6')
        a('v_lshrrev_b32 v26, 5, v1\nv_lshlrev_b32 v27, 1, v26\nv_xor_b32 v27, v27, v1\nv_and_b32 v27, 31, v27\nv_lshlrev_b32 v27, 4, v27\nv_lshl_add_u32 v238, v26, 11, v27')
        for i in range(1, 4): a(f'v_xor_b32 v{238+i}, {i << 6:#x}, v238')
        a(f'v_add_u32 v29, {2*RINGW}, v28\nv_lshl_add_u32 v30, v24, 3, {vM}\nv_lshl_add_u32 v30, s42, 9, v30\nv_lshlrev_b32 v242, 4, v24')
        a('v_and_b32 v26, 7, v1\nv_mul_u32_u24 v26, 528, v26\nv_lshl_add_u32 v26, v24, 4, v26\nv_add_u32 v31, s38, v26')
        a('s_waitcnt lgkmcnt(0)')
        setup_tags()
    def t_readK(t, h):
        def f():
            a('; K tile -> registers')
            if slot_of(2*t) >= RS:
                a(f's_sub_u32 s30, s59, s38\ns_add_u32 s30, s30, {WB}')
                for j in range(8): a(f'v_add_u32 v{KA+j}, s30, v{KA+j}')
            for j in range(8): a(f'ds_read_b128 {V(H+32*h+4*j,4)}, v{KA+j} offset:{(slot_of(2*t) % RS)*4096}')
            a('s_waitcnt lgkmcnt(0)')
        return f
    def t_waitq():
        a('; wait for q, block-diagonal Q operands')
        stamp(1)
        await_(C_Q, 4, 'v26')
        stamp(2)
        a(f'v_and_b32 v26, 7, v1\nv_mul_u32_u24 v26, 272, v26\nv_lshrrev_b32 v27, 5, v1\nv_lshl_add_u32 v26, v27, 4, v26\nv_add_u32 v26, {MISC+QL}, v26')
        setexec(0xff0000ffff0000ff)
        for j in range(8): a(f'ds_read_b128 {V(Q+4*j,4)}, v26 offset:{32*j}')
        setexec(-1)
        a('s_waitcnt lgkmcnt(0)')
    def t_qk(t, h):
        def f():
            a('; scores of 32 keys x 8 heads')
            for j in range(8):
                a(f'v_mfma_f32_16x16x32_bf16 {V(S+4*t,4)}, {V(H+32*h+4*j,4)}, {V(Q+4*j,4)}, {"0" if j == 0 else V(S+4*t,4)}')
        return f
    def t_round(t):
        def f():
            a('; bf16 rounding, scale, bf16 rounding, running maximum')
            for r in range(4): rnd(V(S+4*t+r))
            for r in range(4): a(f'v_mul_f32 {V(S+4*t+r)}, s40, {V(S+4*t+r)}')
            for r in range(4): rnd(V(S+4*t+r))
            a(f'v_max3_f32 {vMax}, {vMax}, {V(S+4*t)}, {V(S+4*t+1)}\nv_max3_f32 {vMax}, {vMax}, {V(S+4*t+2)}, {V(S+4*t+3)}')
        return f
    def t_max():
        allred('v_max_f32', vMax, 'v26', ('r8', 16, 32))
        a(f'v_mul_f32 {vMax}, s41, {vMax}')
    def t_exp(t):
        def f():
            a('; exp, packed probabilities, running sum')
            for r in range(4): a(f'v_fma_f32 {V(S+4*t+r)}, {V(S+4*t+r)}, s41, -{vMax}')
            for r in range(4): a(f'v_exp_f32 {V(S+4*t+r)}, {V(S+4*t+r)}')
            a(f'v_cvt_pk_bf16_f32 {V(PP+2*t)}, {V(S+4*t)}, {V(S+4*t+1)}\nv_cvt_pk_bf16_f32 {V(PP+2*t+1)}, {V(S+4*t+2)}, {V(S+4*t+3)}')
            a(f'v_add_f32 v26, {V(S+4*t)}, {V(S+4*t+1)}\nv_add_f32 v27, {V(S+4*t+2)}, {V(S+4*t+3)}\nv_add_f32 v26, v26, v27\nv_add_f32 {vSum}, {vSum}, v26')
        return f
    def t_ml():
        allred('v_add_f32', vSum, 'v26', ('r8', 16, 32))
        a(f'v_lshl_add_u32 v26, v1, 2, {vM}\nv_lshl_add_u32 v26, s3, 6, v26')
        setexec(0xff)
        a(f'ds_write_b32 v26, {vMax} offset:{MLW}\nds_write_b32 v26, {vSum} offset:{MLW+32}')
        arrive(C_ML)
        stamp(3)
    def readV(p, half):
        slot = slot_of(16 + 2*p + half)
        for t in range(8):
            a(f'ds_read_b64_tr_b16 {V(VS+4*t+2*half,2)}, v{VA+t} offset:{slot*4096}')
    def pv(p, staged):
        u, which = p >> 1, p & 1
        Dd = D2 if which else D1
        for t in range(8):
            if staged: a(f's_waitcnt lgkmcnt({7-t})')
            a(f'v_mfma_f32_16x16x32_bf16 {V(Dd+4*t,4)}, {V(VS+4*t,4)}, {V(PP+4*u,4)}, {"0" if u == 0 else V(Dd+4*t,4)}')
    def t_pv(p):
        def f():
            a('; PV of two 16-key groups')
            readV(p, 0); readV(p, 1); pv(p, True)
        return f
    def writeD(which):
        setexec(0xff00ff00ff00ff00 if which else 0x00ff00ff00ff00ff)
        for t in range(8):
            a(f'ds_write_b128 v31, {V((D2 if which else D1)+4*t,4)} offset:{which*4352 + 64*t}')
        setexec(-1)
    def wg_stats(head, mreg, lreg):
        a(f'v_lshl_add_u32 v27, {head}, 2, {vM}')
        for w in range(4): a(f'ds_read_b32 v{mreg+w}, v27 offset:{MLW + 64*w}')
        if lreg:
            for w in range(4): a(f'ds_read_b32 v{lreg+w}, v27 offset:{MLW + 64*w + 32}')
        a('s_waitcnt lgkmcnt(0)')
        a(f'v_max3_f32 v26, v{mreg}, v{mreg+1}, v{mreg+2}\nv_max_f32 v26, v26, v{mreg+3}'); untag([26])
        for w in range(4): a(f'v_sub_f32 v{mreg+w}, v{mreg+w}, v26')
        for w in range(4): a(f'v_exp_f32 v{mreg+w}, v{mreg+w}')
    def t_mlpub():
        a('; workgroup maximum / sum record (wave 0)')
        await_(C_ML, 4, 'v26')
        Ls = a.lab('MP')
        a(f's_cmp_lg_u32 s3, 0\ns_cbranch_scc1 {Ls}')
        a('v_and_b32 v72, 7, v1')
        wg_stats('v72', 64, 68)
        a(f'v_or_b32 v76, {sT}, v26\nv_mul_f32 v77, v64, v68\nv_fmac_f32 v77, v65, v69\nv_fmac_f32 v77, v66, v70\nv_fmac_f32 v77, v67, v71')
        tag('v77')
        a(f'v_mov_b32 v78, {sT}\nv_mov_b32 v79, {sT}\nv_lshlrev_b32 v72, 4, v72\ns_lshl_b32 s30, s2, 7\ns_add_u32 s30, s30, {ML}')
        setexec(0xff)
        a(f'buffer_store_dwordx4 v[76:79], v72, {SRD_WS}, s30 offen sc1')
        setexec(-1)
        a(f'{Ls}:')
    def t_fread():
        a('; rescale factors of the four waves, addresses of the final reduction')
        a('v_lshrrev_b32 v232, 5, v0')
        wg_stats('v232', 228, None)
        a('v_mul_u32_u24 v26, 528, v232\nv_and_b32 v27, 31, v0\nv_lshl_add_u32 v232, v27, 4, v26')
        a(f'v_add_u32 v233, {2*RINGW}, v232\nv_and_b32 v234, 15, v0\nv_lshlrev_b32 v234, 4, v234\nv_lshrrev_b32 v26, 4, v0\nv_lshl_add_u32 v234, v26, 14, v234')
        a(f's_lshr_b32 s45, s2, 6\ns_lshl_b32 s45, s45, 18\ns_and_b32 s30, s2, 63\ns_lshl_b32 s30, s30, 8\ns_add_u32 s45, s45, s30\ns_add_u32 s45, s45, {OB}')

    sched = {}
    def at(n, f): sched.setdefault(n, []).append(f)
    land = lambda t: landed_at(pos[('kv', 8*t + 7)])
    def reuse(t):
        later = [g for g in range(2*t + 2, 32) if slot_of(g) == slot_of(2*t)]
        return pos[('kv', 4*later[0])] if later else NS + 100
    at(landed_at(pos[('w1', 1)]), lambda: arrive(C_W1))
    at(landed_at(pos[('w1', 1)]) + 1, t_setup)
    at(landed_at(pos[('w1', 1)]) + 3, t_setup2)
    at(landed_at(pos[('wq', 7)]), lambda: arrive(C_WQ))
    at(landed_at(pos[('wq', 7)]) + 1, t_setup3)
    if T1: at(T1, lambda: arrive(C_T1))
    if T2: at(T2, lambda: arrive(C_T2))
    for t in range(4): at(land(t), t_readK(t, t))
    nq = pos[('kv', NQ)]
    assert nq >= land(3)
    at(nq, t_waitq)
    n = nq + 1
    free_h = {}
    step = 1 if k7 else 2
    if k7: at(pos[('kv', 56)] - 1, lambda: await_(C_WQF, 4, 'v26'))
    for t in range(4):
        at(n, t_qk(t, t)); free_h[t] = n + 1
        at(n + 1, t_round(t))
        n += step
    rd = {}
    for t in range(4, 8):
        rd[t] = max(free_h[t-4], land(t), rd.get(t-1, 0))
        assert rd[t] < reuse(t), (t, rd[t])
        at(rd[t], t_readK(t, t - 4))
    for t in range(4, 8):
        n = max(n, rd[t] + 1)
        at(n, t_qk(t, t - 4)); at(n + 1, t_round(t)); n += step
    n += 2 - step
    at(n, t_max); n += 1
    for t in range(8):
        at(n, t_exp(t))
        if t & 1: n += 1
    at(n, t_ml); at(n + MLP_AT, t_mlpub); at(n + MLP_AT + 4, t_fread); n += 1
    NV = pos[('kv', 127)]
    late = []
    t_d1 = lambda: (writeD(0), arrive(C_R1))
    for p in range(7):
        m = max(n, land(8 + p))
        assert m < reuse(8 + p), (p, m)
        if m <= NV: at(m, t_pv(p))
        else: late.append((pos[('kv', 64 + 8*p + 7)], t_pv(p)))
        n = m + 1
    if n <= NV: at(n, t_d1)
    else: late.append((pos[('kv', 119)], t_d1))
    ACC = 208
    def red_half(hf, base):
        for w in range(4):
            a(f'ds_read_b128 {V(base+4*w,4)}, v{232 + (w >> 1)} offset:{(w & 1)*RINGW + hf*4352}')
        for w in range(4):
            a(f's_waitcnt lgkmcnt({3-w})')
            sel = w & 1; fp = V(228 + (w & 2), 2)
            for h2 in range(2):
                if w == 0 and hf == 0: a(f'v_pk_mul_f32 {V(ACC+2*h2,2)}, {V(base+2*h2,2)}, {fp} op_sel:[0,{sel}] op_sel_hi:[1,{sel}]')
                else: a(f'v_pk_fma_f32 {V(ACC+2*h2,2)}, {V(base+4*w+2*h2,2)}, {fp}, {V(ACC+2*h2,2)} op_sel:[0,{sel},0] op_sel_hi:[1,{sel},1]')
    def t_pre():
        a('v_and_b32 v27, 8, v1\nv_xor_b32 v27, 8, v27\nv_mul_u32_u24 v27, 544, v27\nv_add_u32 v31, v31, v27')
        await_(C_R1, 4, 'v26', sleep=0)
        red_half(0, 192)
    def t_final():
        a('; last PV step, reduction over the waves, publish the partial output')
        stamp(4)
        readV(7, 1)
        def wr(t): a(f'ds_write_b128 v31, {V(D2+4*t,4)} offset:{4352 + 64*t}')
        for t in range(8):
            a(f's_waitcnt lgkmcnt({7 - t + max(0, t - 4)})')
            a(f'v_mfma_f32_16x16x32_bf16 {V(D2+4*t,4)}, {V(VS+4*t,4)}, {V(PP+12,4)}, {V(D2+4*t,4)}')
            if t >= 4: wr(t - 4)
        for t in range(4, 8): wr(t)
        arrive(C_RED)
        await_(C_RED, 4, 'v26', sleep=0)
        red_half(1, 192)
        for e in (0, 3): tag(V(ACC+e))
        if 'halfob' in exp: setexec(0x00ff00ff00ff00ff)
        a(f'buffer_store_dwordx4 {V(ACC,4)}, v234, {SRD_WS}, s45 offen{obf}')
        arrive(C_PUB)
        stamp(5)
    def draw():
        Ls = a.lab('RK')
        a(f's_cmp_lg_u32 s3, 0\ns_cbranch_scc1 {Ls}')
        a(f's_lshl_b32 s30, s42, 12\ns_add_u32 s30, s30, {RK}\nv_mov_b32 v72, 1\nv_mov_b32 v73, 0')
        setexec(1)
        a(f'buffer_atomic_add v72, v73, {SRD_WS}, s30 offen sc0 sc1')
        setexec(-1)
        a(f'{Ls}:')
    def post(c):
        Ls = a.lab('RK')
        a(f's_cmp_lg_u32 s3, 0\ns_cbranch_scc1 {Ls}')
        setexec(1)
        a(f'v_add_u32 v72, 1, v72\nds_write_b32 {vM}, v72 offset:{CNT + 4*c}')
        setexec(-1)
        a(f'{Ls}:')
    at(NV - TR - 1, draw)
    assert TR >= 0
    at(landed_at(NV - TR), lambda: post(C_RANK))
    assert max(sched) <= NV
    def t_mode():
        a(f'ds_read_b32 v26, {vM} offset:{CNT + 4*C_RANK}\ns_waitcnt lgkmcnt(0)\nv_readfirstlane_b32 s47, v26')
    if Fhi:
        at(CTL - 1, t_mode); at(CTL + 3, t_mode)
    for n in range(FI, NV + 1):
        a(f's_waitcnt vmcnt({Fn(n)-1})')
        if n >= CTL:
            Lg = a.lab('GO')
            a(f's_cmp_ge_u32 s47, {rth}\ns_cbranch_scc1 {Lg}\ns_waitcnt vmcnt({Flo-1})\n{Lg}:')
        issue(n)
        if n % 16 == 0: stamp(18 + n // 16)
        for f in sched.get(n, []): f()
    UC = UC or F; UM = UM or F
    st0 = 1 if UM == 8 else 0
    LM, LN, LE0, LE1, LTD = a.lab('M'), a.lab('N'), a.lab('E0'), a.lab('E1'), a.lab('TD')
    PUBS = ['s44', 's47', 's58']
    def unit0(ld, Fu, extra={}):
        ev = [(k, 1, i, f) for i, (k, f) in enumerate(late + [(NV - 4, lambda: readV(7, 0)), (NV - 1, t_pre), (NV, t_final)])]
        if ld: ev += [(NV + 1 + j - Fu, 0, j, None) for j in range(8)]
        issued = NV + 1; done = -1
        for k, kind, j, f in sorted(ev, key=lambda e: e[:3]):
            if k > done:
                a(f's_waitcnt vmcnt({issued - 1 - k})'); done = k
            if kind: f()
            else:
                for g in extra.get(j, []): g()
                ld(j); issued += 1
    def wo_ld(j):
        def f(i):
            a(f's_add_u32 s32, s44, {i*4096 + 512*j}')
            a(f's_add_u32 m0, s59, {WB + i*1024}' if j == 0 else f's_add_u32 m0, s38, {16384 + i*1024}')
            a(f'buffer_load_dwordx4 v{238 + i % 4}, {SRD_WO}, s32 offen{wnt} lds')
        return f
    def m2_ld(k):
        def f(i):
            if 'lin2' in exp:
                a(f's_lshl_b32 s32, s42, 6\ns_add_u32 s32, s32, s43\ns_lshl_b32 s32, s32, 2\ns_add_u32 s32, s32, {sI}\ns_mul_i32 s32, s32, 12288\ns_add_u32 s32, s32, {4096 + i*1024}')
                a(f's_add_u32 m0, s38, {16384 - 8192*k + i*1024}\nv_lshlrev_b32 v237, 4, v1\nbuffer_load_dwordx4 v237, {SRD_WM}, s32 offen{wnt} lds')
                return
            if 'seg512' in exp:
                a(f's_lshr_b32 s32, s43, 4\ns_lshl_b32 s30, s42, 2\ns_add_u32 s32, s32, s30\ns_lshl_b32 s32, s32, 2\ns_add_u32 s32, s32, {sI}\ns_mul_i32 s32, s32, {16*12288}')
                a(f's_and_b32 s30, s43, 15\ns_lshl_b32 s30, s30, 9\ns_add_u32 s32, s32, s30\ns_add_u32 s32, s32, {4096 + 2*i*12288}')
                a(f's_add_u32 m0, s38, {16384 - 8192*k + i*1024}\nv_lshrrev_b32 v237, 5, v1\nv_mul_u32_u24 v237, {12288 - 512}, v237\nv_lshl_add_u32 v237, v1, 4, v237\nbuffer_load_dwordx4 v237, {SRD_WM}, s32 offen{wnt} lds')
                return
            a(f's_add_u32 s32, s46, {8*i*12288}\ns_add_u32 m0, s38, {16384 - 8192*k + i*1024}')
            a(f'buffer_load_dwordx4 v236, {SRD_WM}, s32 offen{wnt} lds')
        return f
    def m2_addr(k, none):
        if none: a(f's_sub_u32 s43, s30, {33 - EX}\ns_cmp_ge_u32 s43, 64\ns_cbranch_scc1 {none}')
        a(f's_lshl_b32 s30, s42, 2\ns_add_u32 s30, s30, {sI}\ns_mul_i32 s46, s30, {64*12288}\ns_lshl_b32 s30, s43, 7\ns_add_u32 s46, s46, s30\ns_add_u32 s46, s46, 4096')
        d = PUBS[k]
        a(f's_lshl_b32 {d}, s42, 14\ns_lshl_b32 s30, s43, 8\ns_add_u32 {d}, {d}, s30\ns_lshl_b32 s30, {sI}, 6\ns_add_u32 {d}, {d}, s30\ns_add_u32 {d}, {d}, {P3}')
    def m2_issue(k):
        for i in range(8):
            a(f's_waitcnt vmcnt({AF-1})')
            if k == 1 and i == T2AT + AF - 1: post(C_RANK3)
            if k == 1 and i == T2AT: draw()
            m2_ld(k)(i)
        assert T2AT + AF - 1 <= 7
    def m2_compute(k, cnt=None):
        arrive(C_M2)
        await_(C_M2, cnt or 4*(k+1), 'v6', sleep=0)
        for ks in range(8):
            for hf in range(2):
                a(f'ds_read_b64_tr_b16 {V(96+4*ks+2*hf,2)}, {"v28" if ks < 4 else "v29"} offset:{((ks >> 1) & 1)*RINGW + (ks & 1)*4096 + hf*2048 + 8192*(2-k)}')
        a('s_waitcnt lgkmcnt(0)')
        w_mfma(8 + 4*k, 96, 128, 8)
        for e in range(4): tag(V(8+4*k+e))
        setexec(0x0001000100010001)
        a(f'buffer_store_dwordx4 {V(8+4*k,4)}, v242, {SRD_WS}, {PUBS[k]} offen sc1')
        setexec(-1)
    assert 2 <= AF <= 8
    await_(C_RANK, 1, 'v26', sleep=0)
    a(f's_sub_u32 s33, s30, 1\ns_cmp_ge_u32 s33, 32\ns_cbranch_scc1 {LM}')
    a(f's_lshr_b32 s44, s33, 1\ns_lshl_b32 s30, s42, 4\ns_add_u32 s44, s44, s30\ns_lshl_b32 s44, s44, 17\ns_lshl_b32 s30, {sI}, 15\ns_add_u32 s44, s44, s30')
    a('s_and_b32 s30, s33, 1\ns_lshl_b32 s30, s30, 10\ns_add_u32 s44, s44, s30')
    if TS:
        L2, L3 = a.lab('C2'), a.lab('C3')
        a(f's_cmp_ge_u32 s33, {TS}\ns_cbranch_scc1 {L2}')
        unit0(wo_ld(0), UC)
        a(f's_branch {L3}\n{L2}:')
        unit0(wo_ld(0), UC2)
        a(f'{L3}:')
    else: unit0(wo_ld(0), UC)
    for i in range(8):
        a(f's_waitcnt vmcnt({CF-1})')
        wo_ld(1)(i)
    if EX:
        LX0, LX1 = a.lab('CX'), a.lab('CY')
        a(f's_cmp_ge_u32 s33, {EX}\ns_cbranch_scc1 {LX0}\ns_mov_b32 s43, s33')
        m2_addr(1, None)
        b_read(128, 'v30', 8)
        await_(C_PUB, 4, 'v6', sleep=0)
        for i in range(8):
            a(f's_waitcnt vmcnt({min(CF, 8)-1})')
            m2_ld(1)(i)
        arrive(C_MD)
        arrive(C_WO)
        a('s_waitcnt vmcnt(0)')
        m2_compute(1, 4)
        wo_setup(1)
        a(f's_branch {LX1}\n{LX0}:')
    arrive(C_MD)
    wo_setup(1)
    a('s_waitcnt vmcnt(0)')
    arrive(C_WO)
    if EX: a(f'{LX1}:')
    await_(C_WO, 4, 'v4', sleep=0)
    for ct in range(4):
        for ks in range(2):
            for hf in range(2):
                a(f'ds_read_b64_tr_b16 {V(120+8*ct+4*ks+2*hf,2)}, v{84+4*ks+ct} offset:{hf*RINGW}')
    wo_finish()
    a(f's_branch {LTD}')
    a(f'{LM}:')
    m2_addr(0, LN)
    unit0(m2_ld(0), UM, {0: [draw], UM - 1: [lambda: post(C_RANK2)]})
    b_read(128, 'v30', 8)
    await_(C_PUB, 4, 'v6', sleep=0)
    await_(C_RANK2, 1, 'v4', sleep=0)
    m2_addr(1, LE0)
    m2_issue(1)
    m2_compute(0)
    await_(C_RANK3, 1, 'v4', sleep=0)
    m2_addr(2, LE1)
    m2_issue(2)
    m2_compute(1)
    a('s_waitcnt vmcnt(1)')
    m2_compute(2)
    a(f's_branch {LTD}\n{LE1}:\ns_waitcnt vmcnt(1)')
    m2_compute(1)
    a(f's_branch {LTD}\n{LE0}:\ns_waitcnt vmcnt({st0})')
    m2_compute(0)
    a(f's_branch {LTD}')
    a(f'{LN}:')
    unit0(None, 0)
    a(f'{LTD}:')
    arrive(C_AD)
    stamp(8)
    a(f's_and_b32 s30, s2, 7\ns_cmp_lg_u32 s30, {RX}\ns_cbranch_scc1 L_fin2')
    G = 100
    def gb_part():
        gather([(G + 8 + k, 1, 'v28', P3 + k*16384 + 3*4096) for k in range(2)], 'v26', sleep=p3sleep)
        untag([G + 8, G + 9])
        a(f'v_add_f32 v155, v{G+8}, v{G+9}')
        allred('v_add_f32', 'v155', None, ('r8',))
        rnd('v155')
        a(f'ds_write_b32 v6, v155 offset:{SM + 1152}')
        arrive(C_GB)
        stamp(12)
    if gb2 == 2:
        Lg = a.lab('GB')
        a(f's_cmp_lg_u32 s3, 2\ns_cbranch_scc1 {Lg}')
        red_setup()
        gb_part()
        a(f's_branch L_fin2\n{Lg}:')
    a('s_cmp_lg_u32 s3, 1\ns_cbranch_scc1 L_fin2')
    red_setup()
    a(f's_mov_b32 s40, {ST0}\ns_mov_b32 s41, {ST}\ns_lshl_b32 s42, {sPi}, 7\ns_add_u32 s42, s42, {TAB}')
    a(f'buffer_load_dword v120, v5, {SRD_WS}, s40 offen sc1\nbuffer_load_dword v121, v5, {SRD_WS}, s41 offen sc1\nbuffer_load_dword v122, v5, {SRD_WS}, s42 offen sc1')
    if pretouch == 2:
        a(f's_mov_b32 s42, {P4}\nv_lshlrev_b32 v12, 7, v1\nv_lshl_add_u32 v12, {sPi}, 10, v12\nbuffer_load_dword v123, v12, {SRD_WS}, s42 offen sc1')
    l3 = [(G + k, 1, 'v28', P3 + (k % 2)*16384 + (k // 2)*4096) for k in range(8)]
    n3 = 3 if gbl else 4
    gather(l3[:2*n3], 'v26', sleep=p3sleep)
    untag(range(G, G + 2*n3))
    for j in range(n3): a(f'v_add_f32 v{152+j}, v{G+2*j}, v{G+2*j+1}')
    for j in range(n3): allred('v_add_f32', f'v{152+j}', None, ('r8',))
    for j in range(n3): rnd(f'v{152+j}')
    a('v_add_f32 v154, 1.0, v154'); rnd('v154')
    a(f'ds_write_b128 v6, v[152:155] offset:{SM}')
    arrive(C_SM)
    a('v_cndmask_b32 v157, v154, v153, s[100:101]')
    a('v_cndmask_b32 v16, 1.0, v153, s[100:101]\nv_mul_f32 v20, v157, v16\nv_mul_f32 v21, v157, v154\nv_cndmask_b32 v22, v153, 0, s[100:101]\nv_mov_b32 v23, v158')
    a(f's_mov_b32 s41, {ST0}')
    st_publish('s41')
    stamp(10)
    if not gb2: gb_part()
    gather([(G + 4, 4, 'v5', ST0 + (0 if dual else STB))], 'v26', full=True, sleep=2, alt=STB if dual else None)
    st_reduce(G + 4)
    a(f'v_and_b32 v13, 1, v1\nv_lshlrev_b32 v13, 4, v13\nv_lshl_add_u32 v13, v9, 2, v13\nv_add_u32 v13, {vM}, v13')
    setexec(0x0003000300030003)
    a(f'ds_write_b32 v13, v{G+4} offset:{SM + 1024}')
    arrive(C_TAB)
    stamp(11)
    if gb2 == 1: gb_part()
    a('s_branch L_fin2')

    a('L_X:')
    a('; ==== X waves')
    if xprio: a(f's_setprio {xprio}')
    XA, XB, XD, G = 32, 64, 96, 100
    a('v_and_b32 v10, 255, v0')
    def s_touch(base, off_code, offs):
        lo, hi = base[2:-1].split(':')
        a(off_code)
        a(f's_add_u32 s32, s{lo}, s30\ns_addc_u32 s33, s{hi}, 0')
        for i, o in enumerate(offs): a(f's_load_dword s{70 + i % 16}, s[32:33], {o:#x}')
    if 'x' in spf:
        s_touch(sC, f's_lshl_b32 s30, {sI}, 9', [128*i for i in range(4)])
        s_touch(sX, f's_lshl_b32 s30, {sI}, 9', [128*i for i in range(4)])
        a('s_waitcnt lgkmcnt(0)')
    a(f'v_lshlrev_b32 v11, 3, v10\nglobal_load_dwordx2 v[12:13], v11, {sC}')
    xld = lambda: a(f'v_lshlrev_b32 v11, 5, v1\nglobal_load_dwordx4 v[16:19], v11, {sX}\nglobal_load_dwordx4 v[20:23], v11, {sX} offset:16')
    if not xlate: xld()
    a('s_and_b32 s42, s2, 3\ns_lshr_b32 s43, s2, 2\ns_and_b32 s44, s2, 7\ns_lshr_b32 s45, s2, 3')
    a('v_lshrrev_b32 v9, 4, v1\nv_and_b32 v15, 15, v1')
    a(f'v_lshl_add_u32 v28, v15, 2, v9\nv_lshl_add_u32 v28, {sI}, 6, v28')
    a('v_lshl_add_u32 v11, s42, 8, v28\nv_lshlrev_b32 v11, 1, v11\nv_mov_b32 v14, 0')
    a(f'global_load_short_d16_hi v14, v11, {sX}')
    a(f's_load_dword {sE}, {sWS}, 12')
    if warm == 3:
        a(f's_getpc_b64 s[32:33]\nL_pc:\ns_sub_u32 s32, s32, L_pc-{NAME}_kernel\ns_subb_u32 s33, s33, 0')
        a(f's_bfe_u32 s30, s2, 0x30003\ns_lshl_b32 s30, s30, 2\ns_add_u32 s30, s30, {sI}\ns_lshl_b32 s30, s30, 10\ns_min_u32 s30, s30, L_code_end-{NAME}_kernel-1024')
        a('s_add_u32 s32, s32, s30\ns_addc_u32 s33, s33, 0')
        for i in range(8): a(f's_load_dword s{70+i}, s[32:33], {128*i}')
    common2(True)
    if not xbar: a('s_barrier')
    stamp(0)
    if tlb:
        Lt = a.lab('TL')
        a(f's_cmp_lg_u32 {sI}, 1\ns_cbranch_scc1 {Lt}')
        a('s_lshl_b32 s30, s2, 18\nv_mov_b32 v11, 0\ns_lshr_b32 s31, s2, 6\ns_lshl_b32 s32, s31, 21\ns_mul_i32 s31, s31, 0x300000\nv_lshlrev_b32 v24, 20, v1')
        setexec(1)
        a(f'buffer_load_dword v250, v11, {SRD_K}, s30 offen nt\nbuffer_load_dword v251, v11, {SRD_V}, s30 offen nt\nbuffer_load_dword v252, v11, {SRD_WO}, s32 offen nt')
        setexec(7)
        a(f'buffer_load_dword v253, v24, {SRD_WM}, s31 offen nt')
        setexec(-1)
        a(f'{Lt}:')
    Lz0 = a.lab('RZ')
    a(f's_and_b32 s30, s2, 63\ns_add_u32 s30, s30, {sI}\ns_cmp_lg_u32 s30, 0\ns_cbranch_scc1 {Lz0}')
    a(f's_lshl_b32 s30, s2, 6\ns_add_u32 s30, s30, {RK}\nv_lshlrev_b32 v11, 2, v1\nv_mov_b32 v24, 0')
    setexec(0xffffffff)
    a(f'buffer_store_dword v24, v11, {SRD_WS}, s30 offen sc1')
    setexec(-1)
    a(f's_waitcnt vmcnt(0)\n{Lz0}:')
    stamp(17)
    w_traddr('v6', WA, 'v11', 'v24')
    a(f'v_add_u32 v7, {(WB - WA) & 0xffffffff:#x}, v6')
    a(f'v_lshl_add_u32 v8, v9, 3, {vM}\nv_lshlrev_b32 v29, 4, v9')
    a(f's_waitcnt vmcnt({1 if xlate else 3}) lgkmcnt(0)')
    stamp(20)
    a(f's_mov_b32 s30, {f2u(-LOG2E):#x}')
    a('v_lshlrev_b32 v24, 16, v12\nv_and_b32 v25, 0xffff0000, v12\nv_lshlrev_b32 v26, 16, v13\nv_and_b32 v27, 0xffff0000, v13')
    for i in range(4): a(f'v_mul_f32 v{100+i}, s30, v{24+i}')
    for i in range(4): a(f'v_exp_f32 v{100+i}, v{100+i}')
    for i in range(4): a(f'v_add_f32 v{100+i}, 1.0, v{100+i}')
    for i in range(4): a(f'v_rcp_f32 v{100+i}, v{100+i}')
    for i in range(4): a(f'v_mul_f32 v{24+i}, v{24+i}, v{100+i}')
    a('v_cvt_pk_bf16_f32 v12, v24, v25\nv_cvt_pk_bf16_f32 v13, v26, v27')
    a(f'v_lshl_add_u32 v11, v10, 3, {vM}\nds_write_b64 v11, v[12:13] offset:{SC}')
    arrive(C_W1)
    setup_tags()
    a(f's_lshl_b32 s46, s44, 13\ns_lshl_b32 s30, s45, 8\ns_add_u32 s46, s46, s30\ns_lshl_b32 s30, {sI}, 6\ns_add_u32 s46, s46, s30\ns_add_u32 s46, s46, {P1}')
    stamp(1)
    await_(C_W1, 8, 'v11', sleep=1 if xs else 0)
    stamp(22)
    w_read(XA, 'v6', 4)
    a(f'v_lshl_add_u32 v11, s44, 8, v8')
    b_read(XB, 'v11', 4)
    def publish(s_off, fine=False):
        for e in range(4):
            if fine: a(f'v_bfi_b32 {V(XD+e)}, 3, {sT}, {V(XD+e)}')
            else: tag(V(XD+e))
        setexec(0x0001000100010001)
        if 'nop12' not in exp: a(f'buffer_store_dwordx4 {V(XD,4)}, v29, {SRD_WS}, {s_off} offen{p12f}')
        setexec(-1)
    w_mfma(XD, XA, XB, 4, staged=True)
    publish('s46', True)
    stamp(2)
    if xlate: xld()
    a(f's_waitcnt vmcnt({0 if xlate else 1})')
    for i in range(8):
        a(f'v_lshlrev_b32 v{100+2*i}, 16, v{16+i}\nv_and_b32 v{101+2*i}, 0xffff0000, v{16+i}')
    a('v_add_f32 v16, v100, v101')
    for i in range(2, 16): a(f'v_add_f32 v16, v16, v{100+i}')
    allred('v_add_f32', 'v16', 'v17')
    a(f'v_mul_f32 v16, {f2u(1/1024):#x}, v16\nv_mov_b32 v18, 0')
    for i in range(16): a(f'v_sub_f32 v17, v{100+i}, v16\nv_fmac_f32 v18, v17, v17')
    allred('v_add_f32', 'v18', 'v17')
    a(f'v_mul_f32 v18, {f2u(1/1024):#x}, v18')
    ln_scale('v16', 'v18')
    a('v_sub_f32 v14, v14, v16'); rnd('v14'); a('v_mul_f32 v14, v14, v18'); rnd('v14')
    stamp(23)
    await_(C_WQ, 4, 'v11', sleep=1 + xs)
    w_read(XA, 'v7', 8)
    a('s_waitcnt lgkmcnt(0)')
    arrive(C_WQF)
    stamp(3)
    a(f's_lshl_b32 s30, s42, 10\ns_lshl_b32 s31, {sI}, 8\ns_add_u32 s30, s30, s31\nv_lshl_add_u32 v12, v15, 4, s30\nv_lshl_add_u32 v12, v9, 13, v12')
    if T1: await_(C_T1, 2, 'v11', sleep=2 + xs)
    if 'h' in spf:
        s_touch(sWS, f's_lshl_b32 s30, s42, 10\ns_lshl_b32 s31, {sI}, 8\ns_add_u32 s30, s30, s31', [P1 + p*4096 + 128*l for p in range(16) for l in range(2)])
        a('s_waitcnt lgkmcnt(0)')
    stamp(19)
    if 'nog' not in exp: gather([(G + 4*i, 4, 'v12', P1 + (i & 1)*32768 + (i >> 1)*4096) for i in range(1 if 'smallg' in exp else 4)], 'v26', sleep=psleep, full=2)
    untag(range(G, G + 16), True)
    stamp(4)
    for hf in range(2):
        b = G + 8*hf
        a(f'v_pk_add_f32 {V(b,2)}, {V(b,2)}, {V(b+4,2)}\nv_pk_add_f32 {V(b+2,2)}, {V(b+2,2)}, {V(b+6,2)}')
        scat4(b); rnd(f'v{b}')
    a(f'v_add_f32 v{G+8}, 1.0, v{G+8}'); rnd(f'v{G+8}')
    a(f'v_mul_f32 v14, v14, v{G+8}'); rnd('v14')
    a(f'v_add_f32 v14, v14, v{G}'); rnd('v14')
    a(f'v_lshl_add_u32 v11, v28, 1, {vM}\nds_write_b16_d16_hi v11, v14 offset:{HV}')
    arrive(C_H)
    a(f's_lshl_b32 s47, s42, 14\ns_lshl_b32 s30, s43, 8\ns_add_u32 s47, s47, s30\ns_lshl_b32 s30, {sI}, 6\ns_add_u32 s47, s47, s30\ns_add_u32 s46, s47, {P2}')
    await_(C_H, 4, 'v11', sleep=1 if xs else 0)
    a(f'v_add_u32 v11, {HV}, v8')
    b_read(XB, 'v11', 8)
    w_mfma(XD, XA, XB, 8, staged=True)
    publish('s46', True)
    stamp(5)
    a('v_lshlrev_b32 v12, 4, v1')
    a(f's_lshr_b32 s30, s2, 6\ns_lshl_b32 s30, s30, 12\ns_lshl_b32 s32, {sI}, 10\ns_add_u32 s30, s30, s32\nv_add_u32 v12, s30, v12')
    if T2: await_(C_T2, 2, 'v11', sleep=2 + xs)
    if 'q' in spf:
        s_touch(sWS, f's_lshr_b32 s30, s2, 6\ns_lshl_b32 s30, s30, 12\ns_lshl_b32 s31, {sI}, 10\ns_add_u32 s30, s30, s31', [P2 + p*16384 + 128*l for p in range(4) for l in range(8)])
        a('s_waitcnt lgkmcnt(0)')
    stamp(8)
    if 'nog' not in exp: gather([(G + 4*i, 4, 'v12', P2 + i*16384) for i in range(1 if 'smallg' in exp else 4)], 'v26', sleep=psleep, full=2)
    untag(range(G, G + 16), True)
    for e in (0, 2):
        a(f'v_pk_add_f32 {V(G+e,2)}, {V(G+e,2)}, {V(G+4+e,2)}\nv_pk_add_f32 {V(G+8+e,2)}, {V(G+8+e,2)}, {V(G+12+e,2)}\nv_pk_add_f32 {V(G+e,2)}, {V(G+e,2)}, {V(G+8+e,2)}')
    a(f'v_cvt_pk_bf16_f32 v{G}, v{G}, v{G+1}\nv_cvt_pk_bf16_f32 v{G+1}, v{G+2}, v{G+3}')
    a(f's_mul_i32 s30, {sI}, 544\nv_lshrrev_b32 v11, 5, v1\nv_lshlrev_b32 v11, 4, v11\nv_lshl_add_u32 v11, v1, 3, v11\nv_add3_u32 v11, v11, {vM}, s30')
    a(f'ds_write_b64 v11, {V(G,2)} offset:{QL}')
    arrive(C_Q)
    if lite:
        Ll = a.lab('LI')
        a(f's_cmp_lg_u32 s3, 5\ns_cbranch_scc1 {Ll}\ns_lshl_b32 s30, s2, 7\ns_add_u32 s30, s30, {DBG}\nv_mov_b32 v11, 0\nv_mov_b32 v12, s34\ns_getreg_b32 s31, hwreg(HW_REG_XCC_ID)\nv_mov_b32 v24, s31')
        setexec(1)
        a(f'buffer_store_dword v12, v11, {SRD_WS}, s30 offen\nbuffer_store_dword v24, v11, {SRD_WS}, s30 offen offset:4')
        setexec(-1)
        a(f'{Ll}:')
    stamp(6)
    if xprio: a('s_setprio 0')
    CW, CB, C2 = 160, 174, 188
    a('v_lshlrev_b32 v11, 2, v10\nv_add_u32 v12, 0x1000, v11\nv_mov_b32 v17, 0\nv_mov_b32 v159, 0')
    for j, ptr in enumerate((sW1, sB1, sW2)):
        for i in range(0 if 'nocoef' in exp else 7): a(f'global_load_dword v{G+7*j+i}, {"v11" if i < 4 else "v12"}, {ptr} offset:{(i % 4)*1024}')
    a(f'global_load_short_d16_hi v159, v17, {sB2}')
    a(f'v_mov_b32 v44, {f2u(c1):#x}\nv_mov_b32 v45, {f2u(c0):#x}')
    a(f'v_lshl_add_u32 v13, v9, 2, {vM}\nv_lshl_add_u32 v13, {sI}, 7, v13')
    a(f's_lshl_b32 s39, s2, 5\ns_and_b32 s40, s39, 0xfff\ns_add_u32 s40, s40, {E0 << 7}\ns_lshr_b32 s30, s39, 12\ns_lshl_b32 s30, s30, 15\ns_or_b32 s40, s40, s30\ns_lshl_b32 s40, s40, 16')
    a('s_mov_b32 s41, 0\ns_waitcnt vmcnt(0)')
    for j, base in enumerate((CW, CB, C2)):
        for i in range(7): a(f'v_lshlrev_b32 v{base+2*i}, 16, v{G+7*j+i}\nv_and_b32 v{base+2*i+1}, 0xffff0000, v{G+7*j+i}')
    def weights():
        a('s_lshr_b32 s30, s38, 4\ns_lshl_b32 s30, s30, 13\ns_lshr_b32 s31, s38, 1\ns_and_b32 s31, s31, 7\ns_lshl_b32 s31, s31, 4\ns_add_u32 s30, s30, s31\nv_lshl_add_u32 v12, v1, 7, s30')
        gather([(G, 4, 'v12', ML)], 'v26', sleep=psleep, full=True)
        untag([G, G + 1])
        a(f'v_mov_b32 v16, v{G}')
        allred('v_max_f32', 'v16', 'v11')
        a(f'v_sub_f32 v16, v{G}, v16\nv_exp_f32 v16, v16\nv_mul_f32 v17, v16, v{G+1}')
        allred('v_add_f32', 'v17', 'v11')
        a(f'v_rcp_f32 v17, v17\nv_and_b32 v12, 15, v1\nv_lshlrev_b32 v12, 4, v12\nv_lshl_add_u32 v12, v9, 2, v12\nv_add_u32 v12, {vM}, v12\nv_mul_f32 v16, v16, v17')
        a(f'ds_write_b32 v12, v16 offset:{WL}')
        arrive(C_WL)
    def early_touch():
        Le = a.lab('ET')
        a(f's_cmp_lg_u32 {sI}, 2\ns_cbranch_scc1 {Le}\ns_and_b32 s30, s2, 7\ns_cmp_lg_u32 s30, {RX}\ns_cbranch_scc1 {Le}')
        a(f'v_lshlrev_b32 v11, 7, v1\nv_lshl_add_u32 v11, {sPi}, 10, v11\ns_mov_b32 s30, {P4}\nbuffer_load_dword v250, v11, {SRD_WS}, s30 offen sc1')
        a(f'v_and_b32 v11, 15, v1\nv_lshlrev_b32 v11, 12, v11\nv_lshl_add_u32 v11, {sPi}, 4, v11\ns_mov_b32 s30, {P3}\nbuffer_load_dword v251, v11, {SRD_WS}, s30 offen sc1')
        a(f'v_lshlrev_b32 v11, 4, v1\ns_mov_b32 s30, {ST0}\ns_mov_b32 s31, {ST}\nbuffer_load_dword v252, v11, {SRD_WS}, s30 offen sc1\nbuffer_load_dword v253, v11, {SRD_WS}, s31 offen sc1')
        a(f'{Le}:')
    if ept == 2: early_touch()
    if obt:
        Lo = a.lab('OT')
        a(f's_cmp_lg_u32 {sI}, 1\ns_cbranch_scc1 {Lo}')
        a('v_lshrrev_b32 v11, 1, v1\nv_lshlrev_b32 v11, 14, v11\nv_and_b32 v12, 1, v1\nv_lshl_add_u32 v11, v12, 7, v11')
        a(f's_lshr_b32 s30, s2, 6\ns_lshl_b32 s30, s30, 18\ns_and_b32 s31, s2, 63\ns_lshl_b32 s31, s31, 8\ns_add_u32 s30, s30, s31\ns_add_u32 s30, s30, {OB}')
        setexec(0xffffffff)
        a(f'buffer_load_dword v250, v11, {SRD_WS}, s30 offen sc1')
        setexec(-1)
        a(f'{Lo}:')
    a('L_tab:')
    for e in range(4): a(f'v_mov_b32 v{40+e}, s40\ns_add_u32 s40, s40, 0x10000\nv_mov_b32 v{16+e}, 0')
    Lz = a.lab('TZ')
    a(f's_add_u32 s39, s39, 4\ns_cmp_lg_u32 s39, 4096\ns_cbranch_scc1 {Lz}\nv_mov_b32 v43, 0\n{Lz}:')
    units = []
    for i in range(14):
        sel = i & 1; pr = i & ~1
        for dp in range(2):
            units.append((lambda u, sel=sel, pr=pr, dp=dp: f'v_pk_fma_f32 {u}, {V(40+2*dp,2)}, {V(CW+pr,2)}, {V(CB+pr,2)} op_sel:[0,{sel},{sel}] op_sel_hi:[1,{sel},{sel}]',
                          lambda u, sel=sel, pr=pr, dp=dp: f'v_pk_fma_f32 {V(16+2*dp,2)}, {u}, {V(C2+pr,2)}, {V(16+2*dp,2)} op_sel:[0,{sel},0] op_sel_hi:[1,{sel},1]'))
    gelu_units(units, 48, 64, 4)
    scat4(16)
    allred('v_add_f32', 'v16', None, (1, 2, 'hm', 'm'))
    setexec(0x0001000100010001)
    a(f'ds_write_b32 v13, v16 offset:{YT}')
    setexec(-1)
    a('v_add_u32 v13, 16, v13\ns_add_u32 s41, s41, 1\ns_cmp_lt_u32 s41, ' + ('1' if 'notab' in exp else '8') + '\ns_cbranch_scc1 L_tab')
    arrive(C_YT)
    if ept == 1: early_touch()
    stamp(7)
    LX3, LXD, LXM, LXR = a.lab('X3'), a.lab('XD'), a.lab('XM'), a.lab('XR')
    a(f's_cmp_lg_u32 {sI}, 0\ns_cbranch_scc1 {LX3}')
    await_(C_YT, 4, 'v11')
    a(f'v_and_b32 v12, 7, v1\nv_lshlrev_b32 v12, 4, v12\nv_add_u32 v11, {vM}, v12')
    for w in range(4): a(f'ds_read_b128 {V(48+4*w,4)}, v11 offset:{YT + 128*w}')
    a(f's_lshl_b32 s30, s2, 7\ns_add_u32 s30, s30, {TAB}\ns_waitcnt lgkmcnt(0)')
    for e in (0, 2): a(f'v_pk_add_f32 {V(48+e,2)}, {V(48+e,2)}, {V(52+e,2)}\nv_pk_add_f32 {V(56+e,2)}, {V(56+e,2)}, {V(60+e,2)}\nv_pk_add_f32 {V(48+e,2)}, {V(48+e,2)}, {V(56+e,2)}')
    for e in range(4): rnd(V(48+e))
    for e in range(4): a(f'v_add_f32 v{48+e}, v{48+e}, v159')
    for e in range(4): rnd(V(48+e))
    for e in range(4): a(f'v_or_b32 v{48+e}, {sT}, v{48+e}')
    setexec(0xff)
    a(f'buffer_store_dwordx4 v[48:51], v12, {SRD_WS}, s30 offen sc1')
    setexec(-1)
    a(f'{LX3}:')
    await_(C_RANK, 1, 'v11', sleep=2)
    a(f's_sub_u32 s33, s30, 1\ns_cmp_ge_u32 s33, 32\ns_cbranch_scc1 {LXM}')
    a('s_lshr_b32 s38, s33, 1\ns_lshr_b32 s30, s2, 6\ns_lshl_b32 s30, s30, 4\ns_add_u32 s38, s38, s30')
    a(f's_cmp_lg_u32 {sI}, 3\ns_cbranch_scc1 {LXD}')
    weights()
    a(f'{LXD}:')
    stamp(9)
    a(f's_lshl_b32 s30, s38, 14\ns_lshl_b32 s32, {sI}, 6')
    if 'halfob' in exp: a('s_and_b32 s32, s32, 64')
    if 'single' in exp: a('s_and_b32 s32, s32, 64\ns_and_b32 s31, s33, 1\ns_lshl_b32 s31, s31, 7\ns_add_u32 s32, s32, s31')
    a('s_add_u32 s30, s30, s32')
    a('v_and_b32 v13, 3, v1\nv_lshl_add_u32 v12, v13, 4, s30\nv_lshrrev_b32 v11, 2, v1\nv_lshl_add_u32 v12, v11, 8, v12')
    a(f'v_lshlrev_b32 v13, 3, v13\nv_lshl_add_u32 v13, v9, 1, v13\nv_lshl_add_u32 v13, {sI}, 5, v13\nv_add_u32 v13, {vM}, v13')
    W = 80
    a(f'v_lshl_add_u32 v14, v11, 4, {vM}')
    wo_setup(0)
    LH, LHD, LHS = a.lab('H'), a.lab('HD'), a.lab('HS')
    for i in range(4): a(f's_mov_b32 {SOFF(i)}, {OB + 4096*i:#x}')
    def h1ld(i): a(f'buffer_load_dwordx4 {V(G+4*i,4)}, v12, {SRD_WS}, {SOFF(i)} offen sc1')
    await_(C_WL, 1, 'v11', sleep=1)
    a(f'ds_read_b128 {V(W,4)}, v14 offset:{WL}')
    if pd1 is not None:
        await_(C_WO, 4, 'v11', sleep=1)
        for ct in range(4):
            for ks in range(2):
                for hf in range(2):
                    a(f'ds_read_b64_tr_b16 {V(120+8*ct+4*ks+2*hf,2)}, v{68+ct} offset:{ks*16384 + hf*8192}')
        stamp(10)
        gather_p([(G + 4*i, 4, 'v12', OB + 4096*i) for i in range(4)], 'v11', depth=pd1, sleep=ps1, thr=h1thr, bsleep=h1sleep)
    else:
        await_(C_MD, 4, 'v11', sleep=1)
        stamp(10)
        for i in range(4): h1ld(i)
        await_(C_WO, 4, 'v11', sleep=0)
        for ct in range(4):
            for ks in range(2):
                for hf in range(2):
                    a(f'ds_read_b64_tr_b16 {V(120+8*ct+4*ks+2*hf,2)}, v{68+ct} offset:{ks*16384 + hf*8192}')
        stamp(13)
        if tight & 1:
            def h1done(i):
                untag([G + 4*i, G + 4*i + 3])
                for e in (0, 2): a(f'v_pk_mul_f32 {V(G+4*i+e,2)}, {V(G+4*i+e,2)}, {V(W+(i&2),2)} op_sel:[0,{i&1}] op_sel_hi:[1,{i&1}]')
            gather_t([(G + 4*i, 4, 'v12', OB + 4096*i) for i in range(4)], 'v11', h1done, issue_first=False, thr=h1thr, bsleep=h1sleep)
        else:
            a(f's_mov_b32 {sSpin}, {spin}')
            a(f'{LH}:\ns_waitcnt vmcnt(0)')
            for i in range(4): a(f'v_perm_b32 v11, v{G+4*i+3}, v{G+4*i}, {sSelA}\nv_cmp_ne_u32 {MASK(i)}, {sT2}, v11')
            a(f's_bcnt1_i32_b64 s30, {MASK(0)}')
            for i in range(1, 4): a(f's_bcnt1_i32_b64 s31, {MASK(i)}\ns_add_u32 s30, s30, s31')
            a(f's_cmp_eq_u32 s30, 0\ns_cbranch_scc1 {LHD}')
            a(f's_sub_u32 {sSpin}, {sSpin}, 1\ns_cbranch_scc1 {LHD}')
            a(f's_cmp_le_u32 s30, {h1thr}\ns_cbranch_scc1 {LHS}\ns_sleep {h1sleep}\n{LHS}:')
            for i in range(4):
                Sk = a.lab('GS')
                a(f's_wqm_b64 exec, {MASK(i)}\ns_cbranch_execz {Sk}')
                h1ld(i)
                a(f'{Sk}:')
            a(f's_mov_b64 exec, -1\ns_branch {LH}\n{LHD}:')
    if tight & 1:
        for e in (0, 2): a(f'v_pk_add_f32 {V(G+e,2)}, {V(G+e,2)}, {V(G+4+e,2)}\nv_pk_add_f32 {V(G+8+e,2)}, {V(G+8+e,2)}, {V(G+12+e,2)}')
        for e in (0, 2): a(f'v_pk_add_f32 {V(G+e,2)}, {V(G+e,2)}, {V(G+8+e,2)}')
    else:
        untag([G + 4*i + e for i in range(4) for e in (0, 3)])
        for e in (0, 2): a(f'v_pk_mul_f32 {V(G+e,2)}, {V(G+e,2)}, {V(W,2)} op_sel:[0,0] op_sel_hi:[1,0]')
        for i in range(1, 4):
            for e in (0, 2): a(f'v_pk_fma_f32 {V(G+e,2)}, {V(G+4*i+e,2)}, {V(W+(i&2),2)}, {V(G+e,2)} op_sel:[0,{i&1},0] op_sel_hi:[1,{i&1},1]')
    scat4(G)
    allred('v_add_f32', V(G), None, ('r4', 'r8'))
    rnd(V(G))
    setexec(0x000f000f000f000f)
    a(f'ds_write_b16_d16_hi v13, v{G} offset:{OV}')
    stamp(11)
    wo_finish()
    stamp(26)
    a(f'{LXM}:')
    a(f's_cmp_lg_u32 {sI}, 2\ns_cbranch_scc1 L_fin2\ns_and_b32 s30, s2, 7\ns_cmp_lg_u32 s30, {RX}\ns_cbranch_scc1 L_fin2')
    red_setup()
    await_(C_AD, 4, 'v11', sleep=2)
    a(f'v_mov_b32 v152, 0\nglobal_load_short_d16_hi v152, v29, {sX}')
    if otouch: a(f'global_load_ushort v250, v29, {sOUT}')
    a(f'v_lshlrev_b32 v12, 4, v1\nv_lshl_add_u32 v12, {sPi}, 10, v12\nv_mov_b32 v46, {f2u(1/1024):#x}')
    a(f's_mov_b32 s40, {ST}\nv_mov_b32 v150, 4095\ns_mov_b32 s59, {TAB}')
    stamp(25)
    l4 = [(G + 4*i, 4, 'v12', P4 + i*1024) for i in range(8)]
    if smp4:
        gather(l4[:smp4], 'v11', sleep=1)
    if tight & 2: gather_t(l4, 'v11', lambda i: untag([G + 4*i, G + 4*i + 3]))
    elif pd2 is None: gather(l4[smp4:], 'v11')
    else: gather_p(l4[smp4:], 'v11', depth=pd2, sleep=ps2)
    stamp(24)
    def p4_sum():
        if not tight & 2: untag([G + 4*i + e for i in range(8) for e in (0, 3)])
        for st in (4, 8, 16):
            for i in range(0, 32, 2*st):
                for e in (0, 2): a(f'v_pk_add_f32 {V(G+i+e,2)}, {V(G+i+e,2)}, {V(G+i+st+e,2)}')
        scat4(G)
        allred('v_add_f32', V(G), None, ('r8',))
        rnd(V(G))
    late_await(C_SM, 1, 'v11', lambda: a(f'ds_read_b128 v[140:143], v6 offset:{SM}'), p4_sum)
    a(f'v_mul_f32 v16, v{G}, v140\nv_cndmask_b32 v157, v142, v141, s[100:101]\nv_mov_b32 v23, v158'); rnd('v16'); a('v_add_f32 v16, v16, v152'); rnd('v16')
    a('v_mul_f32 v17, v16, v142')
    a('v_cndmask_b32 v18, v16, v17, s[100:101]\nv_cndmask_b32 v20, 1.0, v17, s[100:101]\nv_cndmask_b32 v21, v16, v142, s[100:101]')
    a('v_mul_f32 v20, v18, v20\nv_mul_f32 v21, v18, v21\nv_mul_f32 v22, v18, v157')
    st_publish('s40')
    stamp(21)
    gather([(G, 4, 'v5', ST + (0 if dual else STB))], 'v26', full=True, sleep=fsleep, alt=STB if dual else None)
    stamp(12)
    def ln1():
        st_reduce(G)
        for k, ln in enumerate((0, 16, 32, 1, 17, 33)): a(f'v_readlane_b32 s{38+k}, v{G}, {ln}')
        a('v_mul_f32 v24, s38, v46\nv_mul_f32 v25, s39, v46\nv_fma_f32 v25, -v24, v24, v25\nv_max_f32 v25, 0, v25')
        if trim: a(f'v_add_f32 v25, {f2u(1e-5):#x}, v25\nv_rsq_f32 v25, v25')
        else: ln_scale('v24', 'v25')
    late_await(C_TAB, 1, 'v11', lambda: a(f'ds_read_b128 v[144:147], {vM} offset:{SM + 1024}\nds_read_b64 v[148:149], {vM} offset:{SM + 1040}'), ln1)
    a('v_fma_f32 v26, -v24, v144, s40\nv_fma_f32 v28, -v24, v149, s43')
    a('v_mul_f32 v27, v24, v145\nv_fma_f32 v27, -2.0, s42, v27\nv_fma_f32 v27, v27, v24, s41')
    if trim:
        a('v_sub_f32 v40, v16, v24\nv_fma_f32 v26, v26, v25, v146\nv_add_f32 v28, v28, v28\nv_mul_f32 v40, v40, v142\nv_fma_f32 v27, v27, v25, v28')
        a('v_mul_f32 v26, v26, v46\nv_fma_f32 v27, v27, v25, v148\nv_fma_f32 v40, v40, v25, v141\nv_mul_f32 v27, v27, v46\nv_fma_f32 v27, -v26, v26, v27')
        a(f'v_max_f32 v27, 0, v27\nv_sub_f32 v40, v40, v26\nv_add_f32 v27, {f2u(1e-5):#x}, v27\nv_rsq_f32 v27, v27\nv_mul_f32 v40, v40, v27'); rnd('v40')
    else:
        a('v_sub_f32 v40, v16, v24')
        a('v_fma_f32 v26, v26, v25, v146\nv_add_f32 v28, v28, v28\nv_fma_f32 v27, v27, v25, v28\nv_fma_f32 v27, v27, v25, v148')
        rnd('v40')
        a('v_mul_f32 v26, v26, v46\nv_mul_f32 v27, v27, v46\nv_mul_f32 v40, v40, v25\nv_fma_f32 v27, -v26, v26, v27')
        rnd('v40')
        a('v_max_f32 v27, 0, v27\nv_mul_f32 v40, v40, v142')
        rnd('v27'); rnd('v40'); rnd('v26')
        a(f'v_add_f32 v27, {f2u(1e-5):#x}, v27\nv_add_f32 v40, v40, v141'); rnd('v27'); rnd('v40')
        a('v_sqrt_f32 v27, v27\nv_sub_f32 v40, v40, v26'); rnd('v27'); rnd('v40')
        a('v_rcp_f32 v27, v27\nv_mul_f32 v40, v40, v27'); rnd('v40')
    a(f'v_bfe_u32 v41, v40, 16, 15\nv_lshrrev_b32 v43, 31, v40\nv_subrev_u32 v42, {E0 << 7}, v41\nv_cmp_eq_u32 vcc, 0, v41')
    a(f'v_cmp_lt_u32 s[38:39], v42, v47\nv_lshl_add_u32 v42, v43, 12, v42\nv_cndmask_b32 v42, v42, v47, vcc'.replace('v47', 'v150'))
    a(f'v_and_b32 v42, 0x1fff, v42\nv_lshlrev_b32 v42, 2, v42\nbuffer_load_dword v41, v42, {SRD_WS}, s59 offen sc1')
    late_await(C_GB, 1, 'v11', lambda: a(f'ds_read_b32 v143, v6 offset:{SM + 1152}'), lambda: a('s_or_b64 s[38:39], s[38:39], vcc'))
    a('s_waitcnt vmcnt(0)')
    a(f'v_and_b32 v42, 0xffff, v41\nv_and_b32 v41, 0xffff0000, v41\nv_cmp_ne_u32 vcc, {sT}, v42\ns_orn2_b64 s[38:39], vcc, s[38:39]\ns_cbranch_scc1 L_slow1')
    a('L_out:')
    a('v_mul_f32 v41, v41, v143'); rnd('v41'); a('v_add_f32 v41, v41, v16'); rnd('v41')
    setexec(0x00ff00ff00ff00ff)
    a(f'global_store_short_d16_hi v29, v41, {sOUT}{osc}')
    setexec(-1)
    stamp(14)
    if lite:
        a(f's_memrealtime s[34:35]\ns_lshl_b32 s30, s2, 7\ns_add_u32 s30, s30, {DBG + 64}\nv_mov_b32 v11, 0\ns_waitcnt lgkmcnt(0)\nv_mov_b32 v12, s34')
        setexec(1)
        a(f'buffer_store_dword v12, v11, {SRD_WS}, s30 offen')
        setexec(-1)
    a('L_fin:')
    a(f's_cmp_lg_u32 s2, {RX}\ns_cbranch_scc1 L_fin2')
    a(f'v_mov_b32 v7, {sE}\nv_mov_b32 v8, 0')
    setexec(1)
    a(f'global_store_dword v8, v7, {sWS} offset:12')
    setexec(-1)
    a('L_fin2:')
    if stamps:
        stamp(15)
        a('s_getreg_b32 s30, hwreg(HW_REG_XCC_ID)\nv_writelane_b32 v255, s30, 40')
        a(f's_lshl_b32 s30, s2, 11\ns_add_u32 s30, s30, {DBG}\nv_lshlrev_b32 v7, 2, v0')
        a(f'buffer_store_dword v255, v7, {SRD_WS}, s30 offen')
    a('L_end:\ns_endpgm')
    a('L_slow1:\ns_ff1_i32_b64 s40, s[38:39]\ns_bitset0_b64 s[38:39], s40\nv_readlane_b32 s41, v40, s40')
    a('v_lshlrev_b32 v11, 4, v1\nv_mov_b32 v18, 0\nv_mov_b32 v19, 0\nv_mov_b32 v42, s41\nv_mov_b32 v43, s41\ns_mov_b32 s42, 0')
    a('L_slow2:')
    for j, ptr in enumerate((sW1, sB1, sW2)): a(f'global_load_dwordx4 {V(G+4*j,4)}, v11, {ptr}')
    a('v_add_u32 v11, 0x400, v11\ns_waitcnt vmcnt(0)')
    for j in range(3):
        for i in range(4): a(f'v_lshlrev_b32 v{160+8*j+2*i}, 16, v{G+4*j+i}\nv_and_b32 v{161+8*j+2*i}, 0xffff0000, v{G+4*j+i}')
    gelu_units([(lambda u, i=i: f'v_pk_fma_f32 {u}, v[42:43], {V(160+2*i,2)}, {V(168+2*i,2)}',
                 lambda u, i=i: f'v_pk_fma_f32 v[18:19], {u}, {V(176+2*i,2)}, v[18:19]') for i in range(4)], 48, 64, 4)
    a('s_add_u32 s42, s42, 1\ns_cmp_lt_u32 s42, 7\ns_cbranch_scc1 L_slow2')
    a('v_add_f32 v18, v18, v19')
    allred('v_add_f32', 'v18', 'v19')
    rnd('v18'); a('v_add_f32 v18, v18, v159'); rnd('v18')
    a('v_readfirstlane_b32 s41, v18\ns_mov_b32 m0, s40\nv_writelane_b32 v41, s41, m0')
    a('s_cmp_lg_u64 s[38:39], 0\ns_cbranch_scc1 L_slow1\ns_branch L_out')
    a('L_code_end:')
    body = a.finish()
    out = HEADER + f'; @launch grid=(256,1,1) block=(512,1,1) lds={LDS_BYTES}\n' + DOC
    out += f'.amdgcn_target "amdgcn-amd-amdhsa--gfx950"\n.text\n.globl {NAME}_kernel\n.p2align 8\n.type {NAME}_kernel,@function\n'
    out += body
    out += f'''.section .rodata,"a"
.p2align 6
.amdhsa_kernel {NAME}_kernel
  .amdhsa_next_free_vgpr 256
  .amdhsa_next_free_sgpr 102
  .amdhsa_accum_offset 256
  .amdhsa_group_segment_fixed_size 0
  .amdhsa_kernarg_size 120
  .amdhsa_user_sgpr_count 2
  .amdhsa_user_sgpr_kernarg_segment_ptr 1
  .amdhsa_system_sgpr_workgroup_id_x 1
  .amdhsa_float_denorm_mode_32 3
.end_amdhsa_kernel
'''
    return out

if __name__ == '__main__':
    kw = {}
    for arg in sys.argv[2:]:
        k, v = arg.split('=')
        kw[k] = eval(v)
    open(sys.argv[1], 'w').write(gen(**kw))
```

```python
import sys, struct
from asmfw import Asm

NAME = 'adaLN_cond__gqa_block_cached__mixer_token_mlp__decode'

def f2u(x): return struct.unpack('<I', struct.pack('<f', x))[0]
LOG2E = 1.4426950408889634
SCALE = 128 ** -0.5

P1 = 0x10000; P2 = 0x20000; P3 = 0x30000; ML = 0x40000; ST0 = 0x50000; ST = 0x52000; STB = 0x1000
RK = 0x60000; TAB = 0x68000; P4 = 0x80000; OB = 0x100000; DBG = 0x200000
RS = 6; RINGW = RS * 4096
WB = 4 * RINGW; WA = WB + 32768; MISC = WA + 16384
SC = 0; QL = 2048; HV = 4352; OV = 4864; MLW = 5376; CNT = 5760; WL = 5888; YT = 6144; SM = 6656
LDS_BYTES = 163840
C_W1, C_WQ, C_H, C_Q, C_M2, C_ML, C_RED, C_WO, C_WOF, C_TICK, C_T1, C_T2, C_PUB, C_VI, C_WL, C_RANK, C_YT, C_TAB, C_OV, C_MD, C_SM, C_RANK2, C_RANK3, C_AD, C_R1, C_WQF, C_GB = range(27)

HEADER = open('cdna_kernels/' + NAME + '.s.ref').read().split('; Override launch')[0]

DOC = r'''; ---------------------------------------------------------------------------------------------------------------
; One persistent launch, 256 workgroups (one per CU) of 8 waves.  b = workgroup id, kv group g = b>>6.
; ---------------------------------------------------------------------------------------------------------------
'''

def gen(F=6, NQ=60, k7=True, nt=' nt', wnt=' nt', stamps=False, warm=3, spf='', xbar=1, spin=1 << 19, psleep=16, xprio=3, aprio=1,
        T1=30, T2=56, exp='', enc=None, encd=False, eep=False, xs=0, xlate=False, TS=0, UC2=6, gb2=2, tight=0, lazy=True, fastpro=False, trim=False, obt=0, obf=' sc1', p12f=' sc1', h1late=0, otouch=False, osc='', UC=3, UM=None, EX=0, pd1=None, ps1=1, h1sleep=6, h1thr=48, fsleep=0, Fs=((0, 6), (120, 7)), TK=16, XTRA=0, h1m=1, NZ=16, AF=7, MLP_AT=7, dual=True, pretouch=1, RX=0, p3sleep=2, pd2=1, ps2=2, TR=14, T2AT=0, CF=8, ept=2, Fhi=None, Flo=None, rth=33, a1w=True, SPL=0, smp4=0, smp3=0, su=False, tlb=0, E0=101, TH=64, gbl=True):
    a = Asm()
    lite = stamps == 'lite'
    if lite: stamps = False
    SRD_K, SRD_V, SRD_WS, SRD_WQ, SRD_WO, SRD_WM = 's[4:7]', 's[8:11]', 's[12:15]', 's[16:19]', 's[20:23]', 's[24:27]'
    sX, sW1, sB1, sW2, sB2, sC, sOUT, sWS = 's[36:37]', 's[48:49]', 's[50:51]', 's[52:53]', 's[54:55]', 's[56:57]', 's[60:61]', 's[64:65]'
    sE, sI, sBase, sSpin = 's66', 's67', 's68', 's69'
    sT, sT2, sT4, sSelA, sSelB, sPi = 's86', 's87', 's88', 's89', 's90', 's91'
    MASK = lambda i: f's[{70+2*i}:{71+2*i}]'
    SOFF = lambda i: f's{92+i}'
    vM, vOne, vHi = 'v2', 'v3', 'v247'
    V = lambda i, n=1: f'v{i}' if n == 1 else f'v[{i}:{i+n-1}]'

    def stamp(i):
        if stamps:
            a(f's_memrealtime s[34:35]\ns_waitcnt lgkmcnt(0)\nv_writelane_b32 v255, s34, {i}')
    def mark(k):
        if enc == k: a('s_memrealtime s[62:63]')
    def setexec(mask):
        if mask == -1: a('s_mov_b64 exec, -1')
        elif mask < 64: a(f's_mov_b64 exec, {mask}')
        else: a(f's_mov_b32 exec_lo, {mask & 0xffffffff:#x}\ns_mov_b32 exec_hi, {mask >> 32:#x}')
    def arrive(c):
        a(f's_mov_b64 exec, 1\nds_add_u32 {vM}, {vOne} offset:{CNT + 4*c}\ns_mov_b64 exec, -1')
    def await_(c, n, tmp, sleep=1):
        L = a.lab('W'); D = a.lab('WD')
        a(f's_mov_b32 {sSpin}, {spin}')
        a(f'{L}:\nds_read_b32 {tmp}, {vM} offset:{CNT + 4*c}\ns_waitcnt lgkmcnt(0)\nv_readfirstlane_b32 s30, {tmp}')
        a(f's_cmp_ge_u32 s30, {n}\ns_cbranch_scc1 {D}')
        if sleep: a(f's_sleep {sleep}')
        a(f's_sub_u32 {sSpin}, {sSpin}, 1\ns_cbranch_scc0 {L}\n{D}:')
    def late_await(c, n, tmp, reads, work):
        D = a.lab('LA')
        a(f'ds_read_b32 {tmp}, {vM} offset:{CNT + 4*c}')
        reads()
        work()
        a(f's_waitcnt lgkmcnt(0)\nv_readfirstlane_b32 s30, {tmp}\ns_cmp_ge_u32 s30, {n}\ns_cbranch_scc1 {D}')
        await_(c, n, tmp, sleep=0)
        reads()
        a(f's_waitcnt lgkmcnt(0)\n{D}:')
    def rnd(r): a(f'v_cvt_pk_bf16_f32 {r}, 0, {r}')
    def tag(r): a(f'v_and_or_b32 {r}, {r}, {vHi}, {sT}')
    def untag(regs, fine=False):
        for r in regs: a(f'v_and_b32 v{r}, {"-4" if fine else vHi}, v{r}')
    DPP = {1: 'quad_perm:[1,0,3,2]', 2: 'quad_perm:[2,3,0,1]', 'hm': 'row_half_mirror', 'm': 'row_mirror', 'r4': 'row_ror:4', 'r8': 'row_ror:8'}
    def allred(op, r, t, steps=(1, 2, 'hm', 'm', 16, 32)):
        for s in steps:
            if s in DPP: a(f'{op}_dpp {r}, {r}, {r} {DPP[s]} row_mask:0xf bank_mask:0xf')
            else: a(f'v_mov_b32 {t}, {r}\nv_permlane{s}_swap_b32 {r}, {t}\n{op} {r}, {r}, {t}')
    def scat4(b):
        a(f'v_permlane32_swap_b32 v{b}, v{b+2}\nv_permlane32_swap_b32 v{b+1}, v{b+3}\nv_pk_add_f32 {V(b,2)}, {V(b,2)}, {V(b+2,2)}')
        a(f'v_permlane16_swap_b32 v{b}, v{b+1}\nv_add_f32 v{b}, v{b}, v{b+1}')
    def setup_tags():
        a(f's_add_u32 {sE}, {sE}, 1\ns_and_b32 {sT}, {sE}, 0xff\ns_mul_i32 {sT2}, {sT}, 0x101\ns_mul_i32 {sT4}, {sT}, 0x1010101')
        a(f's_mov_b32 {sSelA}, 0x0c0c0400\ns_mov_b32 {sSelB}, 0x04000c0c\nv_mov_b32 {vHi}, 0xffffff00')
        a(f's_and_b32 {sPi}, s2, 0xf8')
    def gather(loads, tmp, sleep=0, full=False, thr=None, alt=None):
        L = a.lab('G'); D = a.lab('GD')
        his = []
        for d, w, vo, off in loads:
            if off & ~0xfff not in his: his.append(off & ~0xfff)
        for i, h in enumerate(his): a(f's_mov_b32 {SOFF(i)}, {h:#x}')
        if alt: a(f's_mov_b32 {SOFF(1)}, {his[0] + alt:#x}')
        def ld(d, w, vo, off):
            sfx = {1: 'dword', 2: 'dwordx2', 4: 'dwordx4'}[w]
            a(f'buffer_load_{sfx} {V(d, w)}, {vo}, {SRD_WS}, {SOFF(his.index(off & ~0xfff))} offen offset:{off & 0xfff} sc1')
        for x in loads: ld(*x)
        a(f's_mov_b32 {sSpin}, {spin}')
        a(f'{L}:')
        n = len(loads)
        for i, (d, w, vo, off) in enumerate(loads):
            a(f's_waitcnt vmcnt({n-1-i})')
            if w == 1: a(f'v_and_b32 {tmp}, 0xff, {V(d)}\nv_cmp_ne_u32 {MASK(i)}, {sT}, {tmp}')
            elif full:
                t2 = f'v{int(tmp[1:]) + 1}'
                a(f'v_perm_b32 {tmp}, {V(d+1)}, {V(d)}, {sSelA}\nv_perm_b32 {t2}, {V(d+3)}, {V(d+2)}, {sSelB}\nv_or_b32 {tmp}, {tmp}, {t2}')
                if full == 2: a(f'v_xor_b32 {tmp}, {sT4}, {tmp}\nv_and_b32 {tmp}, 0x03030303, {tmp}\nv_cmp_ne_u32 {MASK(i)}, 0, {tmp}')
                else: a(f'v_cmp_ne_u32 {MASK(i)}, {sT4}, {tmp}')
            else: a(f'v_perm_b32 {tmp}, {V(d+w-1)}, {V(d)}, {sSelA}\nv_cmp_ne_u32 {MASK(i)}, {sT2}, {tmp}')
        a(f's_or_b64 s[28:29], {MASK(0)}, {MASK(1 if n > 1 else 0)}')
        for i in range(2, n): a(f's_or_b64 s[28:29], s[28:29], {MASK(i)}')
        a(f's_cbranch_scc0 {D}')
        R, X = a.lab('GT'), a.lab('GX')
        a(f'{R}:\ns_sub_u32 {sSpin}, {sSpin}, 1\ns_cbranch_scc1 {X}')
        if sleep and thr is not None:
            S = a.lab('GN')
            a(f's_bcnt1_i32_b64 s30, {MASK(0)}')
            for i in range(1, n): a(f's_bcnt1_i32_b64 s31, {MASK(i)}\ns_add_u32 s30, s30, s31')
            a(f's_cmp_le_u32 s30, {thr}\ns_cbranch_scc1 {S}\ns_sleep {sleep}\n{S}:')
        elif sleep: a(f's_sleep {sleep}')
        if alt:
            a(f's_and_b32 s30, {sSpin}, 15\ns_cselect_b32 {SOFF(0)}, {his[0]:#x}, {SOFF(1)}')
            if lazy:
                Lz = a.lab('LZ')
                a(f's_cmp_lg_u32 s30, 2\ns_cbranch_scc1 {Lz}')
                setexec(0x0101010101010101)
                a(f'buffer_store_dword v20, v31, {SRD_WS}, {SOFF(1)} offen sc1\n{Lz}:')
        for i, x in enumerate(loads):
            S = a.lab('GS')
            a(f's_wqm_b64 exec, {MASK(i)}\ns_cbranch_execz {S}')
            ld(*x)
            a(f'{S}:')
        a(f's_mov_b64 exec, -1\ns_waitcnt vmcnt(0)\ns_branch {L}\n{D}:')
        if alt:
            a(f'v_cmp_ne_u32 vcc, v151, v{loads[0][0] + 3}\ns_cbranch_vccz {X}')
            setexec(0x0101010101010101)
            a(f'buffer_store_dword v20, v31, {SRD_WS}, {SOFF(1)} offen sc1\ns_mov_b64 exec, -1')
            a(f'v_xor_b32 {tmp}, v151, v{loads[0][0] + 3}\nv_lshrrev_b32 {tmp}, 12, {tmp}\nv_cmp_ne_u32 {MASK(0)}, 0, {tmp}\ns_cmp_lg_u64 {MASK(0)}, 0\ns_cbranch_scc1 {R}')
        a(f'{X}:')
    def gather_p(loads, tmp, depth=3, sleep=1, full=False, thr=None, bsleep=0):
        L = a.lab('G'); D = a.lab('GD')
        his = []
        for d, w, vo, off in loads:
            if off & ~0xfff not in his: his.append(off & ~0xfff)
        for i, h in enumerate(his): a(f's_mov_b32 {SOFF(i)}, {h:#x}')
        n = len(loads)
        def ld(d, w, vo, off):
            a(f'buffer_load_dwordx4 {V(d, w)}, {vo}, {SRD_WS}, {SOFF(his.index(off & ~0xfff))} offen offset:{off & 0xfff} sc1')
        for x in loads: ld(*x)
        a(f's_mov_b32 {sSpin}, {spin}\ns_waitcnt vmcnt(0)')
        a(f'{L}:')
        for i, (d, w, vo, off) in enumerate(loads):
            if full:
                t2 = f'v{int(tmp[1:]) + 1}'
                a(f'v_perm_b32 {tmp}, {V(d+1)}, {V(d)}, {sSelA}\nv_perm_b32 {t2}, {V(d+3)}, {V(d+2)}, {sSelB}\nv_or_b32 {tmp}, {tmp}, {t2}')
                a(f'v_cmp_ne_u32 {MASK(i)}, {sT4}, {tmp}')
            else: a(f'v_perm_b32 {tmp}, {V(d+w-1)}, {V(d)}, {sSelA}\nv_cmp_ne_u32 {MASK(i)}, {sT2}, {tmp}')
        a(f's_or_b64 s[28:29], {MASK(0)}, {MASK(1 if n > 1 else 0)}')
        for i in range(2, n): a(f's_or_b64 s[28:29], s[28:29], {MASK(i)}')
        a(f's_cbranch_scc0 {D}')
        a(f's_sub_u32 {sSpin}, {sSpin}, 1\ns_cbranch_scc1 {D}')
        if thr is not None:
            S = a.lab('GN')
            a(f's_bcnt1_i32_b64 s30, {MASK(0)}')
            for i in range(1, n): a(f's_bcnt1_i32_b64 s31, {MASK(i)}\ns_add_u32 s30, s30, s31')
            a(f's_cmp_le_u32 s30, {thr}\ns_cbranch_scc1 {S}\ns_sleep {bsleep}\n{S}:')
        for i, x in enumerate(loads):
            a(f's_or_b32 s{70+2*i}, s{70+2*i}, 1\ns_wqm_b64 exec, {MASK(i)}')
            ld(*x)
        a('s_mov_b64 exec, -1')
        if sleep: a(f's_sleep {sleep}')
        a(f's_waitcnt vmcnt({n*depth})\ns_branch {L}\n{D}:\ns_waitcnt vmcnt(0)')
    def gather_t(loads, tmp, done, issue_first=True, thr=None, bsleep=0):
        L = a.lab('G'); D = a.lab('GD')
        his = []
        for d, w, vo, off in loads:
            if off & ~0xfff not in his: his.append(off & ~0xfff)
        def ld(d, w, vo, off):
            a(f'buffer_load_dwordx4 {V(d, w)}, {vo}, {SRD_WS}, {SOFF(his.index(off & ~0xfff))} offen offset:{off & 0xfff} sc1')
        if issue_first:
            for i, h in enumerate(his): a(f's_mov_b32 {SOFF(i)}, {h:#x}')
            for x in loads: ld(*x)
        n = len(loads)
        a(f's_mov_b32 {sSpin}, {spin}\ns_mov_b32 s29, {(1 << n) - 1}')
        a(f'{L}:\ns_mov_b32 s28, 0\ns_waitcnt vmcnt(0)')
        for i, (d, w, vo, off) in enumerate(loads):
            S, R = a.lab('GS'), a.lab('GR')
            a(f's_bitcmp0_b32 s29, {i}\ns_cbranch_scc1 {S}')
            a(f'v_perm_b32 {tmp}, {V(d+3)}, {V(d)}, {sSelA}\nv_cmp_ne_u32 vcc, {sT2}, {tmp}\ns_cbranch_vccnz {R}')
            done(i)
            a(f's_bitset0_b32 s29, {i}\ns_branch {S}\n{R}:')
            if thr is not None: a('s_bcnt1_i32_b64 s31, vcc\ns_add_u32 s28, s28, s31')
            a('s_wqm_b64 exec, vcc')
            ld(d, w, vo, off)
            a(f's_mov_b64 exec, -1\n{S}:')
        a(f's_cmp_eq_u32 s29, 0\ns_cbranch_scc1 {D}')
        if thr is not None:
            S = a.lab('GN')
            a(f's_cmp_le_u32 s28, {thr}\ns_cbranch_scc1 {S}\ns_sleep {bsleep}\n{S}:')
        a(f's_sub_u32 {sSpin}, {sSpin}, 1\ns_cbranch_scc0 {L}\ns_waitcnt vmcnt(0)\n{D}:')
    def w_voff(dst, stride, t):
        a(f'v_lshrrev_b32 {t}, 3, v1\nv_mul_u32_u24 {dst}, {stride}, {t}')
        a(f'v_lshrrev_b32 {t}, 4, v1\nv_lshlrev_b32 {t}, 1, {t}\nv_xor_b32 {t}, {t}, v1\nv_and_b32 {t}, 7, {t}\nv_lshl_add_u32 {dst}, {t}, 4, {dst}')
    def w_traddr(dst, base, t, t2):
        a(f'v_lshrrev_b32 {t}, 2, v1\nv_lshlrev_b32 {dst}, 7, {t}')
        a(f'v_and_b32 {t}, 6, {t}')
        a(f'v_lshrrev_b32 {t2}, 1, v1\nv_and_b32 {t2}, 1, {t2}\nv_lshl_add_u32 {t2}, {sI}, 1, {t2}')
        a(f'v_xor_b32 {t}, {t}, {t2}\nv_lshl_add_u32 {dst}, {t}, 4, {dst}')
        a(f'v_and_b32 {t}, 1, v1\nv_lshl_add_u32 {dst}, {t}, 3, {dst}\nv_add_u32 {dst}, {base}, {dst}')
    def w_read(areg, addr, nks):
        for ks in range(nks):
            a(f'ds_read_b64_tr_b16 {V(areg+4*ks, 2)}, {addr} offset:{ks*4096}')
            a(f'ds_read_b64_tr_b16 {V(areg+4*ks+2, 2)}, {addr} offset:{ks*4096+2048}')
    def b_read(breg, addr, nks):
        for ks in range(nks):
            a(f'ds_read2_b64 {V(breg+4*ks, 4)}, {addr} offset0:{8*ks} offset1:{8*ks+4}')
    def w_mfma(d, areg, breg, nks, staged=False):
        for ks in range(nks):
            if staged: a(f's_waitcnt lgkmcnt({nks-1-ks})')
            a(f'v_mfma_f32_16x16x32_bf16 {V(d,4)}, {V(areg+4*ks,4)}, {V(breg+4*ks,4)}, {"0" if ks == 0 else V(d,4)}')
    def ln_scale(mean, var):
        rnd(var); rnd(mean)
        a(f'v_add_f32 {var}, {f2u(1e-5):#x}, {var}'); rnd(var)
        a(f'v_sqrt_f32 {var}, {var}'); rnd(var)
        a(f'v_rcp_f32 {var}, {var}')
    c0 = -2 * LOG2E * 0.7978845608028654; c1 = c0 * 0.044715
    def gelu_units(units, U, Z, NB):
        for s0 in range(0, len(units), NB):
            blk = list(enumerate(units[s0:s0+NB]))
            R2 = lambda base, k: V(base + 2*k, 2)
            def both(fn):
                for k, _ in blk:
                    fn(2*k); fn(2*k+1)
            for k, (first, last) in blk: a(first(R2(U, k)))
            for k, _ in blk: a(f'v_pk_mul_f32 {R2(Z,k)}, {R2(U,k)}, {R2(U,k)}')
            for k, _ in blk: a(f'v_pk_fma_f32 {R2(Z,k)}, {R2(Z,k)}, v[44:45], v[44:45] op_sel:[0,0,1] op_sel_hi:[1,0,1]')
            for k, _ in blk: a(f'v_pk_mul_f32 {R2(Z,k)}, {R2(Z,k)}, {R2(U,k)}')
            both(lambda r: a(f'v_exp_f32 {V(Z+r)}, {V(Z+r)}'))
            for k, _ in blk: a(f'v_pk_add_f32 {R2(Z,k)}, {R2(Z,k)}, 1.0 op_sel_hi:[1,0]')
            both(lambda r: a(f'v_rcp_f32 {V(Z+r)}, {V(Z+r)}'))
            for k, _ in blk: a(f'v_pk_mul_f32 {R2(U,k)}, {R2(U,k)}, {R2(Z,k)}')
            for k, (first, last) in blk: a(last(R2(U, k)))

    def st_reduce(b):
        untag(range(b, b + 3))
        scat4(b)
        allred('v_add_f32', f'v{b}', None, (2, 'r4', 'r8'))
    def st_publish(base):
        scat4(20)
        allred('v_add_f32', 'v20', None, (1, 2, 'hm'))
        a(f'v_and_or_b32 v20, v20, {vHi}, v158')
        setexec(0x0101010101010101)
        if dual: a(f'buffer_store_dword v20, v31, {SRD_WS}, {base} offen')
        if not lazy: a(f's_add_u32 {base}, {base}, {STB}\nbuffer_store_dword v20, v31, {SRD_WS}, {base} offen sc1')
        setexec(-1)
    def red_setup():
        a(f'v_lshrrev_b32 v9, 4, v1\nv_and_b32 v13, 7, v1\nv_lshl_add_u32 v30, v13, 2, v9\nv_lshl_add_u32 v30, {sPi}, 2, v30\nv_lshlrev_b32 v29, 1, v30\nv_lshlrev_b32 v30, 2, v30')
        a(f'v_lshrrev_b32 v11, 3, v1\nv_and_b32 v11, 1, v11\nv_cmp_eq_u32 s[100:101], 1, v11\nv_lshl_add_u32 v28, v11, 15, v30')
        a(f'v_lshlrev_b32 v31, 4, v11\nv_lshl_add_u32 v31, v9, 2, v31\nv_lshl_add_u32 v31, {sPi}, 2, v31\nv_lshlrev_b32 v5, 4, v1')
        a(f'v_lshl_add_u32 v6, v1, 4, {vM}')
        a(f's_getreg_b32 s30, hwreg(HW_REG_XCC_ID)\ns_and_b32 s30, s30, 15\ns_lshl_b32 s30, s30, 8\ns_lshr_b32 s31, {sE}, 8\ns_lshl_b32 s31, s31, 12')
        a(f's_or_b32 s30, s30, s31\ns_or_b32 s30, s30, {sT}\nv_mov_b32 v151, s30\nv_mov_b32 v158, {sT}\nv_cmp_eq_u32 vcc, 3, v9\nv_cndmask_b32 v158, v158, v151, vcc')

    def wo_setup(j):
        a('v_lshrrev_b32 v11, 2, v1\nv_lshlrev_b32 v68, 9, v11\nv_and_b32 v74, 7, v11\nv_lshlrev_b32 v74, 1, v74')
        a(f'v_lshrrev_b32 v75, 1, v1\nv_and_b32 v75, 1, v75\nv_lshl_add_u32 v75, {sI}, 3, v75\nv_xor_b32 v74, v74, v75\nv_lshl_add_u32 v68, v74, 4, v68')
        a(f'v_and_b32 v74, 1, v1\nv_lshl_add_u32 v68, v74, 3, v68\nv_add_u32 v68, {WB if j == 0 else 16384}, v68')
        for i in range(1, 4): a(f'v_xor_b32 v{68+i}, {i << 5:#x}, v68')
        if j == 1:
            for i in range(4): a(f'v_mov_b32 v{84+i}, v{68+i}\nv_add_u32 v{88+i}, {2*RINGW}, v{68+i}')
        for r in range(202, 234): a(f'v_mov_b32 v{r}, 0')
        a(f'v_lshrrev_b32 v75, 4, v1\nv_lshl_add_u32 v72, v75, 3, {vM}\nv_add_u32 v72, {OV}, v72\nv_lshlrev_b32 v73, 4, v75\nv_lshl_add_u32 v73, v74, 6, v73')
        a('v_and_b32 v74, 2, v1\nv_lshl_add_u32 v73, v74, 12, v73')
        a('s_lshr_b32 s45, s33, 1\ns_lshr_b32 s30, s2, 6\ns_lshl_b32 s30, s30, 4\ns_add_u32 s45, s45, s30\ns_lshl_b32 s45, s45, 7')
        a(f's_and_b32 s30, s33, 1\ns_lshl_b32 s30, s30, 17\ns_add_u32 s45, s45, s30\ns_lshl_b32 s30, {sI}, 14\ns_add_u32 s45, s45, s30\ns_add_u32 s45, s45, {P4 + 0x10000*j}')
    def wo_finish():
        a('s_waitcnt lgkmcnt(0)\ns_barrier')
        for ct in range(4):
            setexec(0x0001000100010001 << ct)
            b_read(202 + 8*ct, 'v72', 2)
        setexec(-1)
        w_mfma(24, 120, 202, 8, staged=True)
        setexec(0x000f000f000f000f)
        for e in (0, 3): tag(V(24+e))
        a(f'buffer_store_dwordx4 v[24:27], v73, {SRD_WS}, s45 offen sc1')
        setexec(-1)

    a(f'{NAME}_kernel:')
    def sus(k):
        if su: a(f's_memrealtime s[{70+2*k}:{71+2*k}]')
    def warm_code():
        a('s_getpc_b64 s[32:33]\nL_pc:')
        a(f'v_lshlrev_b32 v4, 7, v0\nv_cmp_gt_u32 vcc, L_code_end-L_pc-4, v4\ns_and_saveexec_b64 s[28:29], vcc\ns_cbranch_execz L_nowarm')
        a('global_load_dword v254, v4, s[32:33]\nL_nowarm:\ns_mov_b64 exec, -1')
    if fastpro:
        a('s_lshr_b32 s30, s2, 8\ns_cbranch_scc1 L_end\ns_load_dwordx2 s[24:25], s[0:1], 88')
        a('v_readfirstlane_b32 s3, v0\nv_lshrrev_b32 v26, 3, v0\ns_and_b32 s30, s2, 7\nv_and_b32 v27, 6, v26\nv_lshl_add_u32 v26, s30, 7, v26')
        a('v_xor_b32 v27, v27, v0\ns_andn2_b32 s31, s2, 7\nv_and_b32 v27, 7, v27\nv_mul_u32_u24 v26, 12288, v26\nv_or_b32 v27, s31, v27')
        a(f's_lshl_b32 s31, s3, 4\nv_lshl_add_u32 v26, v27, 4, v26\ns_add_u32 m0, s31, {WA}\nv_add_u32 v27, {64*12288}, v26')
        a(f's_waitcnt lgkmcnt(0)\nglobal_load_lds_dwordx4 v26, s[24:25]{wnt}\ns_add_u32 m0, s31, {WA + 8192}\nglobal_load_lds_dwordx4 v27, s[24:25]{wnt}')
        if lite: a('s_memrealtime s[34:35]')
        a('s_load_dwordx2 s[16:17], s[0:1], 24\ns_load_dwordx16 s[36:51], s[0:1], 0')
        a('s_load_dwordx8 s[52:59], s[0:1], 64\ns_load_dwordx4 s[60:63], s[0:1], 96\ns_load_dwordx2 s[64:65], s[0:1], 112')
        if warm is True: warm_code()
        a('s_lshr_b32 s3, s3, 6\nv_and_b32 v1, 63, v0\ns_mov_b32 s26, 0xc00000\ns_mov_b32 s27, 0x20000')
        w_voff('v236', 12288, 'v26')
        a('s_waitcnt lgkmcnt(0)')
    else:
        a('s_cmp_ge_u32 s2, 256\ns_cbranch_scc1 L_end')
        if lite or enc: a('s_memrealtime s[34:35]')
        def sus(k):
            if su: a(f's_memrealtime s[{70+2*k}:{71+2*k}]')
        sus(0)
        a('s_load_dwordx2 s[24:25], s[0:1], 88\ns_load_dwordx2 s[16:17], s[0:1], 24\ns_load_dwordx16 s[36:51], s[0:1], 0')
        a('s_load_dwordx8 s[52:59], s[0:1], 64\ns_load_dwordx4 s[60:63], s[0:1], 96\ns_load_dwordx2 s[64:65], s[0:1], 112')
        if warm is True:
            a('s_getpc_b64 s[32:33]\nL_pc:')
            if warm == 2: a('v_xor_b32 v4, 0x100, v0\nv_lshlrev_b32 v4, 7, v4')
            else: a('v_lshlrev_b32 v4, 7, v0')
            a(f'v_cmp_gt_u32 vcc, L_code_end-L_pc-4, v4\ns_and_saveexec_b64 s[28:29], vcc\ns_cbranch_execz L_nowarm')
            a('global_load_dword v254, v4, s[32:33]\nL_nowarm:\ns_mov_b64 exec, -1')
        a('v_lshrrev_b32 v1, 6, v0\nv_readfirstlane_b32 s3, v1\nv_and_b32 v1, 63, v0')
        w_voff('v236', 12288, 'v26')
        a(f's_and_b32 s30, s2, 7\ns_lshl_b32 s30, s30, 3\ns_add_u32 s30, s30, s3\ns_mul_i32 s32, s30, {16*12288}\ns_lshr_b32 s30, s2, 3\ns_lshl_b32 s30, s30, 7\ns_add_u32 s32, s32, s30')
        a(f's_lshl_b32 s31, s3, 11\ns_add_u32 m0, s31, {WA}\ns_mov_b32 s26, 0xc00000\ns_mov_b32 s27, 0x20000\ns_add_u32 s33, s32, {8*12288 - 1024}')
        sus(1)
        a('s_waitcnt lgkmcnt(0)')
        sus(2)
        a(f'buffer_load_dwordx4 v236, {SRD_WM}, s32 offen{wnt} lds\nbuffer_load_dwordx4 v236, {SRD_WM}, s33 offen offset:1024{wnt} lds')
        sus(3)
    a(f's_mov_b64 s[20:21], s[44:45]\ns_and_b32 {sI}, s3, 3\ns_mov_b32 s18, 0x800000\ns_mov_b32 s19, 0x20000')
    def common2(x):
        a(f'v_mov_b32 {vM}, {MISC}\nv_mov_b32 {vOne}, 1')
        if stamps: a('v_mov_b32 v255, 0')
        a('s_mov_b32 s6, 0x4000000\ns_mov_b32 s7, 0x20000\ns_mov_b32 s10, 0x4000000\ns_mov_b32 s11, 0x20000')
        a('s_mov_b32 s14, 0x10000000\ns_mov_b32 s15, 0x20000\ns_mov_b32 s22, 0x800000\ns_mov_b32 s23, 0x20000')
        for srd, p in ((4, 38), (8, 40), (12, 64)):
            a(f's_mov_b64 s[{srd}:{srd+1}], s[{p}:{p+1}]')
    if xbar == 1: a('s_cmp_lt_u32 s3, 4\ns_cbranch_scc1 L_A\ns_barrier\ns_branch L_X\nL_A:')
    elif xbar == 2:
        a('s_cmp_lt_u32 s3, 4\ns_cbranch_scc1 L_A')
        a(f'v_lshlrev_b32 v27, 2, v1\nv_add_u32 v27, {MISC}, v27\nv_mov_b32 v28, 0')
        setexec(0xffffffff); a(f'ds_write_b32 v27, v28 offset:{CNT}'); setexec(-1)
        a('s_waitcnt lgkmcnt(0)\ns_barrier\ns_branch L_X\nL_A:')
    else: a('s_cmp_ge_u32 s3, 4\ns_cbranch_scc1 L_X')

    VOFF, KA, VA, Q, S, H = 4, 8, 16, 32, 64, 96
    PP, D1, D2, VS = 32, 96, 128, 160
    vMax, vSum = 'v224', 'v225'
    a('; ==== A waves')
    if aprio: a(f's_setprio {aprio}')
    seq = [('w1', i) for i in range(2)] + [('wq', i) for i in range(8)]
    seq += [('kv', i) for i in range(128)] + [('fill', k) for k in range(8)]
    if k7:
        pair_slot = [0, 2, 4, 0, 2, 4, 0, 6] + [2, 0, 4, 0, 2, 4, 0, 2]
        slot_of = lambda gi: pair_slot[gi >> 1] + (gi & 1)
    else:
        slot_of = lambda gi: gi % RS if gi < 28 else gi - 28
    pos = {e: n for n, e in enumerate(seq)}
    NS = len(seq)
    Fbase = (lambda n: [f for (n0, f) in Fs if n0 <= n][-1]) if Fs else (lambda n: F)
    NV = pos[('kv', 127)]
    CTL = NV - TR + F + 4 if Fhi else NS + 1
    Fn = lambda n: Fhi if CTL <= n <= NV else Fbase(n)
    FI = Fn(0)
    def landed_at(k):
        n = k + 1
        while n < FI or n - Fn(n) < k: n += 1
        return n
    a(f's_lshl_b32 s59, {sI}, 13')
    vorder = []
    for u in range(4): vorder += [4*u, 4*u+2, 4*u+1, 4*u+3]
    def issue(n):
        kind, i = seq[n]
        if kind == 'kv':
            gi, j = i // 4, i % 4
            if j == 0 or seq[n-1][0] != 'kv':
                grp = gi if gi < 16 else vorder[gi - 16]
                a(f's_add_u32 s39, {sBase}, {grp*16384}')
                a(f's_add_u32 m0, s38, {slot_of(gi)*4096}' if slot_of(gi) < RS else f's_add_u32 m0, s59, {WB + (slot_of(gi) - RS)*4096}')
            a(f'buffer_load_dwordx4 v{VOFF+j}, {SRD_K if gi < 16 else SRD_V}, s39 offen offset:{j*1024}{nt} lds')
        else:
            srd, vo, so, stride, lb, sl = {'wq': (SRD_WQ, 'v237', 's47', 8192, WB, 's59')}[kind]
            a(f's_add_u32 s32, {so}, {8*i*stride}\ns_add_u32 m0, {sl}, {lb + i*1024}')
            a(f'buffer_load_dwordx4 {vo}, {srd}, s32 offen{wnt} lds')
    w_voff('v237', 8192, 'v26')
    a(f's_and_b32 s30, s2, 3\ns_lshl_b32 s30, s30, 2\ns_add_u32 s30, s30, {sI}\ns_lshl_b32 s47, s30, 19')
    a('s_lshr_b32 s30, s2, 2\ns_lshl_b32 s30, s30, 7\ns_add_u32 s47, s47, s30')
    sus(4)
    for n in range(2, FI): issue(n)
    sus(5)
    if xbar == 2:
        a('s_barrier')
        common2(False)
        a(f's_load_dword {sE}, {sWS}, 12')
    else:
        common2(False)
        a('s_cmp_lg_u32 s3, 3\ns_cbranch_scc1 L_noinit')
        a(f'v_lshl_add_u32 v27, v1, 2, {vM}\nv_mov_b32 v28, 0')
        setexec(0xffffffff); a(f'ds_write_b32 v27, v28 offset:{CNT}'); setexec(-1)
        a('s_waitcnt lgkmcnt(0)\nL_noinit:')
        sus(6)
        a(f's_barrier\ns_load_dword {sE}, {sWS}, 12')
    sus(7)
    stamp(0)
    stamp(16)
    a('v_lshrrev_b32 v24, 4, v1\nv_and_b32 v25, 15, v1')
    a('v_lshlrev_b32 v26, 1, v24\nv_xor_b32 v26, v26, v25\nv_lshlrev_b32 v26, 4, v26\nv_lshl_add_u32 v4, v24, 8, v26')
    for i in range(1, 4): a(f'v_xor_b32 v{VOFF+i}, {(8*(i&1) + (i>>1)) << 4:#x}, v4')
    a(f's_lshl_b32 {sBase}, s2, 18\ns_lshl_b32 s30, s3, 12\ns_add_u32 {sBase}, {sBase}, s30')
    a(f's_mul_i32 s38, s3, {RINGW}')
    def t_setup():
        a('; LDS read addresses of K fragments (v8-15) and transposed V fragments (v16-23)')
        a('v_and_b32 v26, 7, v25\nv_lshlrev_b32 v26, 1, v26\nv_lshrrev_b32 v27, 3, v25\nv_or_b32 v26, v26, v27')
        a('v_lshrrev_b32 v27, 1, v24\nv_xor_b32 v26, v26, v27\nv_lshlrev_b32 v26, 4, v26\nv_lshl_add_u32 v26, v25, 8, v26')
        a(f'v_and_b32 v27, 1, v24\nv_lshl_add_u32 v26, v27, 12, v26\nv_add_u32 v{KA}, s38, v26')
        for j in range(1, 8): a(f'v_xor_b32 v{KA+j}, {j << 5:#x}, v{KA}')
        a('v_lshrrev_b32 v27, 2, v1')
        a('v_and_b32 v26, 7, v27\nv_lshlrev_b32 v26, 1, v26\nv_lshrrev_b32 v28, 3, v27\nv_or_b32 v26, v26, v28')
        a('v_lshrrev_b32 v28, 1, v1\nv_and_b32 v28, 1, v28\nv_xor_b32 v26, v26, v28\nv_lshlrev_b32 v26, 4, v26\nv_lshl_add_u32 v26, v27, 8, v26')
        a(f'v_and_b32 v28, 1, v1\nv_lshl_add_u32 v26, v28, 3, v26\nv_add_u32 v{VA}, s38, v26')
        for t in range(1, 8): a(f'v_xor_b32 v{VA+t}, {t << 5:#x}, v{VA}')
    def t_setup2():
        if su:
            a('s_memrealtime s[92:93]\ns_waitcnt lgkmcnt(0)\nv_mov_b32 v40, 0')
            for k in range(8): a(f'v_writelane_b32 v40, s{70+2*k}, {k}')
            a(f'v_writelane_b32 v40, s92, 8\ns_lshl_b32 s30, s2, 10\ns_add_u32 s30, s30, {DBG + 0x10000}\nv_lshlrev_b32 v41, 2, v0')
            a(f'buffer_store_dword v40, v41, {SRD_WS}, s30 offen')
        for r in range(Q, Q + 32): a(f'v_mov_b32 v{r}, 0')
        a(f'v_mov_b32 {vMax}, 0xff800000\nv_mov_b32 {vSum}, 0')
        a(f's_mov_b32 s40, {f2u(SCALE):#x}\ns_mov_b32 s41, {f2u(LOG2E):#x}')
    def t_setup3():
        w_traddr('v28', 0, 'v26', 'v27')
        a('s_lshr_b32 s42, s2, 6')
        a('v_lshrrev_b32 v26, 5, v1\nv_lshlrev_b32 v27, 1, v26\nv_xor_b32 v27, v27, v1\nv_and_b32 v27, 31, v27\nv_lshlrev_b32 v27, 4, v27\nv_lshl_add_u32 v238, v26, 11, v27')
        for i in range(1, 4): a(f'v_xor_b32 v{238+i}, {i << 6:#x}, v238')
        a(f'v_add_u32 v29, {2*RINGW}, v28\nv_lshl_add_u32 v30, v24, 3, {vM}\nv_lshl_add_u32 v30, s42, 9, v30\nv_lshlrev_b32 v242, 4, v24')
        a('v_and_b32 v26, 7, v1\nv_mul_u32_u24 v26, 528, v26\nv_lshl_add_u32 v26, v24, 4, v26\nv_add_u32 v31, s38, v26')
        a('s_waitcnt lgkmcnt(0)')
        setup_tags()
    def t_readK(t, h):
        def f():
            a('; K tile -> registers')
            if slot_of(2*t) >= RS:
                a(f's_sub_u32 s30, s59, s38\ns_add_u32 s30, s30, {WB}')
                for j in range(8): a(f'v_add_u32 v{KA+j}, s30, v{KA+j}')
            for j in range(8): a(f'ds_read_b128 {V(H+32*h+4*j,4)}, v{KA+j} offset:{(slot_of(2*t) % RS)*4096}')
            a('s_waitcnt lgkmcnt(0)')
        return f
    def t_waitq():
        a('; wait for q, block-diagonal Q operands')
        stamp(1)
        await_(C_Q, 4, 'v26')
        stamp(2)
        a(f'v_and_b32 v26, 7, v1\nv_mul_u32_u24 v26, 272, v26\nv_lshrrev_b32 v27, 5, v1\nv_lshl_add_u32 v26, v27, 4, v26\nv_add_u32 v26, {MISC+QL}, v26')
        setexec(0xff0000ffff0000ff)
        for j in range(8): a(f'ds_read_b128 {V(Q+4*j,4)}, v26 offset:{32*j}')
        setexec(-1)
        a('s_waitcnt lgkmcnt(0)')
    def t_qk(t, h):
        def f():
            a('; scores of 32 keys x 8 heads')
            for j in range(8):
                a(f'v_mfma_f32_16x16x32_bf16 {V(S+4*t,4)}, {V(H+32*h+4*j,4)}, {V(Q+4*j,4)}, {"0" if j == 0 else V(S+4*t,4)}')
        return f
    def t_round(t):
        def f():
            a('; bf16 rounding, scale, bf16 rounding, running maximum')
            for r in range(4): rnd(V(S+4*t+r))
            for r in range(4): a(f'v_mul_f32 {V(S+4*t+r)}, s40, {V(S+4*t+r)}')
            for r in range(4): rnd(V(S+4*t+r))
            a(f'v_max3_f32 {vMax}, {vMax}, {V(S+4*t)}, {V(S+4*t+1)}\nv_max3_f32 {vMax}, {vMax}, {V(S+4*t+2)}, {V(S+4*t+3)}')
        return f
    def t_max():
        allred('v_max_f32', vMax, 'v26', ('r8', 16, 32))
        a(f'v_mul_f32 {vMax}, s41, {vMax}')
    def t_exp(t):
        def f():
            a('; exp, packed probabilities, running sum')
            for r in range(4): a(f'v_fma_f32 {V(S+4*t+r)}, {V(S+4*t+r)}, s41, -{vMax}')
            for r in range(4): a(f'v_exp_f32 {V(S+4*t+r)}, {V(S+4*t+r)}')
            a(f'v_cvt_pk_bf16_f32 {V(PP+2*t)}, {V(S+4*t)}, {V(S+4*t+1)}\nv_cvt_pk_bf16_f32 {V(PP+2*t+1)}, {V(S+4*t+2)}, {V(S+4*t+3)}')
            a(f'v_add_f32 v26, {V(S+4*t)}, {V(S+4*t+1)}\nv_add_f32 v27, {V(S+4*t+2)}, {V(S+4*t+3)}\nv_add_f32 v26, v26, v27\nv_add_f32 {vSum}, {vSum}, v26')
        return f
    def t_ml():
        allred('v_add_f32', vSum, 'v26', ('r8', 16, 32))
        a(f'v_lshl_add_u32 v26, v1, 2, {vM}\nv_lshl_add_u32 v26, s3, 6, v26')
        setexec(0xff)
        a(f'ds_write_b32 v26, {vMax} offset:{MLW}\nds_write_b32 v26, {vSum} offset:{MLW+32}')
        arrive(C_ML)
        stamp(3)
    def readV(p, half):
        slot = slot_of(16 + 2*p + half)
        for t in range(8):
            a(f'ds_read_b64_tr_b16 {V(VS+4*t+2*half,2)}, v{VA+t} offset:{slot*4096}')
    def pv(p, staged):
        u, which = p >> 1, p & 1
        Dd = D2 if which else D1
        for t in range(8):
            if staged: a(f's_waitcnt lgkmcnt({7-t})')
            a(f'v_mfma_f32_16x16x32_bf16 {V(Dd+4*t,4)}, {V(VS+4*t,4)}, {V(PP+4*u,4)}, {"0" if u == 0 else V(Dd+4*t,4)}')
    def t_pv(p):
        def f():
            a('; PV of two 16-key groups')
            readV(p, 0); readV(p, 1); pv(p, True)
        return f
    def writeD(which):
        setexec(0xff00ff00ff00ff00 if which else 0x00ff00ff00ff00ff)
        for t in range(8):
            a(f'ds_write_b128 v31, {V((D2 if which else D1)+4*t,4)} offset:{which*4352 + 64*t}')
        setexec(-1)
    def wg_stats(head, mreg, lreg):
        a(f'v_lshl_add_u32 v27, {head}, 2, {vM}')
        for w in range(4): a(f'ds_read_b32 v{mreg+w}, v27 offset:{MLW + 64*w}')
        if lreg:
            for w in range(4): a(f'ds_read_b32 v{lreg+w}, v27 offset:{MLW + 64*w + 32}')
        a('s_waitcnt lgkmcnt(0)')
        a(f'v_max3_f32 v26, v{mreg}, v{mreg+1}, v{mreg+2}\nv_max_f32 v26, v26, v{mreg+3}'); untag([26])
        for w in range(4): a(f'v_sub_f32 v{mreg+w}, v{mreg+w}, v26')
        for w in range(4): a(f'v_exp_f32 v{mreg+w}, v{mreg+w}')
    def t_mlpub():
        a('; workgroup maximum / sum record (wave 0)')
        await_(C_ML, 4, 'v26')
        Ls = a.lab('MP')
        a(f's_cmp_lg_u32 s3, 0\ns_cbranch_scc1 {Ls}')
        a('v_and_b32 v72, 7, v1')
        wg_stats('v72', 64, 68)
        a(f'v_or_b32 v76, {sT}, v26\nv_mul_f32 v77, v64, v68\nv_fmac_f32 v77, v65, v69\nv_fmac_f32 v77, v66, v70\nv_fmac_f32 v77, v67, v71')
        tag('v77')
        a(f'v_mov_b32 v78, {sT}\nv_mov_b32 v79, {sT}\nv_lshlrev_b32 v72, 4, v72\ns_lshl_b32 s30, s2, 7\ns_add_u32 s30, s30, {ML}')
        setexec(0xff)
        a(f'buffer_store_dwordx4 v[76:79], v72, {SRD_WS}, s30 offen sc1')
        setexec(-1)
        a(f'{Ls}:')
    def t_fread():
        a('; rescale factors of the four waves, addresses of the final reduction')
        a('v_lshrrev_b32 v232, 5, v0')
        wg_stats('v232', 228, None)
        a('v_mul_u32_u24 v26, 528, v232\nv_and_b32 v27, 31, v0\nv_lshl_add_u32 v232, v27, 4, v26')
        a(f'v_add_u32 v233, {2*RINGW}, v232\nv_and_b32 v234, 15, v0\nv_lshlrev_b32 v234, 4, v234\nv_lshrrev_b32 v26, 4, v0\nv_lshl_add_u32 v234, v26, 14, v234')
        a(f's_lshr_b32 s45, s2, 6\ns_lshl_b32 s45, s45, 18\ns_and_b32 s30, s2, 63\ns_lshl_b32 s30, s30, 8\ns_add_u32 s45, s45, s30\ns_add_u32 s45, s45, {OB}')

    sched = {}
    def at(n, f): sched.setdefault(n, []).append(f)
    land = lambda t: landed_at(pos[('kv', 8*t + 7)])
    def reuse(t):
        later = [g for g in range(2*t + 2, 32) if slot_of(g) == slot_of(2*t)]
        return pos[('kv', 4*later[0])] if later else NS + 100
    at(landed_at(pos[('w1', 1)]), lambda: (a('s_waitcnt lgkmcnt(0)') if eep else None, arrive(C_W1)))
    at(landed_at(pos[('w1', 1)]) + 1, t_setup)
    at(landed_at(pos[('w1', 1)]) + 3, t_setup2)
    at(landed_at(pos[('wq', 7)]), lambda: arrive(C_WQ))
    at(landed_at(pos[('wq', 7)]) + 1, t_setup3)
    if T1: at(T1, lambda: arrive(C_T1))
    if T2: at(T2, lambda: arrive(C_T2))
    for t in range(4): at(land(t), t_readK(t, t))
    nq = pos[('kv', NQ)]
    assert nq >= land(3)
    at(nq, t_waitq)
    n = nq + 1
    free_h = {}
    step = 1 if k7 else 2
    if k7: at(pos[('kv', 56)] - 1, lambda: await_(C_WQF, 4, 'v26'))
    for t in range(4):
        at(n, t_qk(t, t)); free_h[t] = n + 1
        at(n + 1, t_round(t))
        n += step
    rd = {}
    for t in range(4, 8):
        rd[t] = max(free_h[t-4], land(t), rd.get(t-1, 0))
        assert rd[t] < reuse(t), (t, rd[t])
        at(rd[t], t_readK(t, t - 4))
    for t in range(4, 8):
        n = max(n, rd[t] + 1)
        at(n, t_qk(t, t - 4)); at(n + 1, t_round(t)); n += step
    n += 2 - step
    at(n, t_max); n += 1
    for t in range(8):
        at(n, t_exp(t))
        if t & 1: n += 1
    at(n, t_ml); at(n + MLP_AT, t_mlpub); at(n + MLP_AT + 4, t_fread); n += 1
    NV = pos[('kv', 127)]
    late = []
    t_d1 = lambda: (writeD(0), arrive(C_R1))
    for p in range(7):
        m = max(n, land(8 + p))
        assert m < reuse(8 + p), (p, m)
        if m <= NV: at(m, t_pv(p))
        else: late.append((pos[('kv', 64 + 8*p + 7)], t_pv(p)))
        n = m + 1
    if n <= NV: at(n, t_d1)
    else: late.append((pos[('kv', 119)], t_d1))
    ACC = 208
    def red_half(hf, base):
        for w in range(4):
            a(f'ds_read_b128 {V(base+4*w,4)}, v{232 + (w >> 1)} offset:{(w & 1)*RINGW + hf*4352}')
        for w in range(4):
            a(f's_waitcnt lgkmcnt({3-w})')
            sel = w & 1; fp = V(228 + (w & 2), 2)
            for h2 in range(2):
                if w == 0 and hf == 0: a(f'v_pk_mul_f32 {V(ACC+2*h2,2)}, {V(base+2*h2,2)}, {fp} op_sel:[0,{sel}] op_sel_hi:[1,{sel}]')
                else: a(f'v_pk_fma_f32 {V(ACC+2*h2,2)}, {V(base+4*w+2*h2,2)}, {fp}, {V(ACC+2*h2,2)} op_sel:[0,{sel},0] op_sel_hi:[1,{sel},1]')
    def t_pre():
        a('v_and_b32 v27, 8, v1\nv_xor_b32 v27, 8, v27\nv_mul_u32_u24 v27, 544, v27\nv_add_u32 v31, v31, v27')
        await_(C_R1, 4, 'v26', sleep=0)
        red_half(0, 192)
    def t_final():
        a('; last PV step, reduction over the waves, publish the partial output')
        stamp(4)
        readV(7, 1)
        def wr(t): a(f'ds_write_b128 v31, {V(D2+4*t,4)} offset:{4352 + 64*t}')
        for t in range(8):
            a(f's_waitcnt lgkmcnt({7 - t + max(0, t - 4)})')
            a(f'v_mfma_f32_16x16x32_bf16 {V(D2+4*t,4)}, {V(VS+4*t,4)}, {V(PP+12,4)}, {V(D2+4*t,4)}')
            if t >= 4: wr(t - 4)
        for t in range(4, 8): wr(t)
        arrive(C_RED)
        await_(C_RED, 4, 'v26', sleep=0)
        red_half(1, 192)
        for e in (0, 3): tag(V(ACC+e))
        if 'halfob' in exp: setexec(0x00ff00ff00ff00ff)
        a(f'buffer_store_dwordx4 {V(ACC,4)}, v234, {SRD_WS}, s45 offen{obf}')
        arrive(C_PUB)
        stamp(5)
    def draw():
        Ls = a.lab('RK')
        a(f's_cmp_lg_u32 s3, 0\ns_cbranch_scc1 {Ls}')
        a(f's_lshl_b32 s30, s42, 12\ns_add_u32 s30, s30, {RK}\nv_mov_b32 v72, 1\nv_mov_b32 v73, 0')
        setexec(1)
        a(f'buffer_atomic_add v72, v73, {SRD_WS}, s30 offen sc0 sc1')
        setexec(-1)
        a(f'{Ls}:')
    def post(c):
        Ls = a.lab('RK')
        a(f's_cmp_lg_u32 s3, 0\ns_cbranch_scc1 {Ls}')
        setexec(1)
        a(f'v_add_u32 v72, 1, v72\nds_write_b32 {vM}, v72 offset:{CNT + 4*c}')
        setexec(-1)
        a(f'{Ls}:')
    at(NV - TR - 1, draw)
    assert TR >= 0
    at(landed_at(NV - TR), lambda: post(C_RANK))
    assert max(sched) <= NV
    def t_mode():
        a(f'ds_read_b32 v26, {vM} offset:{CNT + 4*C_RANK}\ns_waitcnt lgkmcnt(0)\nv_readfirstlane_b32 s47, v26')
    if Fhi:
        at(CTL - 1, t_mode); at(CTL + 3, t_mode)
    for n in range(FI, NV + 1):
        a(f's_waitcnt vmcnt({Fn(n)-1})')
        if n >= CTL:
            Lg = a.lab('GO')
            a(f's_cmp_ge_u32 s47, {rth}\ns_cbranch_scc1 {Lg}\ns_waitcnt vmcnt({Flo-1})\n{Lg}:')
        issue(n)
        if n % 16 == 0: stamp(18 + n // 16)
        for f in sched.get(n, []): f()
    UC = UC or F; UM = UM or F
    st0 = 1 if UM == 8 else 0
    LM, LN, LE0, LE1, LTD = a.lab('M'), a.lab('N'), a.lab('E0'), a.lab('E1'), a.lab('TD')
    PUBS = ['s44', 's47', 's58']
    def unit0(ld, Fu, extra={}):
        ev = [(k, 1, i, f) for i, (k, f) in enumerate(late + [(NV - 4, lambda: readV(7, 0)), (NV - 1, t_pre), (NV, t_final)])]
        if ld: ev += [(NV + 1 + j - Fu, 0, j, None) for j in range(8)]
        issued = NV + 1; done = -1
        for k, kind, j, f in sorted(ev, key=lambda e: e[:3]):
            if k > done:
                a(f's_waitcnt vmcnt({issued - 1 - k})'); done = k
            if kind: f()
            else:
                for g in extra.get(j, []): g()
                ld(j); issued += 1
    def wo_ld(j):
        def f(i):
            a(f's_add_u32 s32, s44, {i*4096 + 512*j}')
            a(f's_add_u32 m0, s59, {WB + i*1024}' if j == 0 else f's_add_u32 m0, s38, {16384 + i*1024}')
            a(f'buffer_load_dwordx4 v{238 + i % 4}, {SRD_WO}, s32 offen{wnt} lds')
        return f
    def m2_ld(k):
        def f(i):
            if 'lin2' in exp:
                a(f's_lshl_b32 s32, s42, 6\ns_add_u32 s32, s32, s43\ns_lshl_b32 s32, s32, 2\ns_add_u32 s32, s32, {sI}\ns_mul_i32 s32, s32, 12288\ns_add_u32 s32, s32, {4096 + i*1024}')
                a(f's_add_u32 m0, s38, {16384 - 8192*k + i*1024}\nv_lshlrev_b32 v237, 4, v1\nbuffer_load_dwordx4 v237, {SRD_WM}, s32 offen{wnt} lds')
                return
            if 'seg512' in exp:
                a(f's_lshr_b32 s32, s43, 4\ns_lshl_b32 s30, s42, 2\ns_add_u32 s32, s32, s30\ns_lshl_b32 s32, s32, 2\ns_add_u32 s32, s32, {sI}\ns_mul_i32 s32, s32, {16*12288}')
                a(f's_and_b32 s30, s43, 15\ns_lshl_b32 s30, s30, 9\ns_add_u32 s32, s32, s30\ns_add_u32 s32, s32, {4096 + 2*i*12288}')
                a(f's_add_u32 m0, s38, {16384 - 8192*k + i*1024}\nv_lshrrev_b32 v237, 5, v1\nv_mul_u32_u24 v237, {12288 - 512}, v237\nv_lshl_add_u32 v237, v1, 4, v237\nbuffer_load_dwordx4 v237, {SRD_WM}, s32 offen{wnt} lds')
                return
            a(f's_add_u32 s32, s46, {8*i*12288}\ns_add_u32 m0, s38, {16384 - 8192*k + i*1024}')
            a(f'buffer_load_dwordx4 v236, {SRD_WM}, s32 offen{wnt} lds')
        return f
    def m2_addr(k, none):
        if none: a(f's_sub_u32 s43, s30, {33 - EX}\ns_cmp_ge_u32 s43, 64\ns_cbranch_scc1 {none}')
        a(f's_lshl_b32 s30, s42, 2\ns_add_u32 s30, s30, {sI}\ns_mul_i32 s46, s30, {64*12288}\ns_lshl_b32 s30, s43, 7\ns_add_u32 s46, s46, s30\ns_add_u32 s46, s46, 4096')
        d = PUBS[k]
        a(f's_lshl_b32 {d}, s42, 14\ns_lshl_b32 s30, s43, 8\ns_add_u32 {d}, {d}, s30\ns_lshl_b32 s30, {sI}, 6\ns_add_u32 {d}, {d}, s30\ns_add_u32 {d}, {d}, {P3}')
    def m2_issue(k):
        for i in range(8):
            a(f's_waitcnt vmcnt({AF-1})')
            if k == 1 and i == T2AT + AF - 1: post(C_RANK3)
            if k == 1 and i == T2AT: draw()
            m2_ld(k)(i)
        assert T2AT + AF - 1 <= 7
    def m2_compute(k, cnt=None):
        arrive(C_M2)
        await_(C_M2, cnt or 4*(k+1), 'v6', sleep=0)
        for ks in range(8):
            for hf in range(2):
                a(f'ds_read_b64_tr_b16 {V(96+4*ks+2*hf,2)}, {"v28" if ks < 4 else "v29"} offset:{((ks >> 1) & 1)*RINGW + (ks & 1)*4096 + hf*2048 + 8192*(2-k)}')
        a('s_waitcnt lgkmcnt(0)')
        w_mfma(8 + 4*k, 96, 128, 8)
        for e in range(4): tag(V(8+4*k+e))
        setexec(0x0001000100010001)
        a(f'buffer_store_dwordx4 {V(8+4*k,4)}, v242, {SRD_WS}, {PUBS[k]} offen sc1')
        setexec(-1)
    assert 2 <= AF <= 8
    await_(C_RANK, 1, 'v26', sleep=0)
    a(f's_sub_u32 s33, s30, 1\ns_cmp_ge_u32 s33, 32\ns_cbranch_scc1 {LM}')
    a(f's_lshr_b32 s44, s33, 1\ns_lshl_b32 s30, s42, 4\ns_add_u32 s44, s44, s30\ns_lshl_b32 s44, s44, 17\ns_lshl_b32 s30, {sI}, 15\ns_add_u32 s44, s44, s30')
    a('s_and_b32 s30, s33, 1\ns_lshl_b32 s30, s30, 10\ns_add_u32 s44, s44, s30')
    if TS:
        L2, L3 = a.lab('C2'), a.lab('C3')
        a(f's_cmp_ge_u32 s33, {TS}\ns_cbranch_scc1 {L2}')
        unit0(wo_ld(0), UC)
        a(f's_branch {L3}\n{L2}:')
        unit0(wo_ld(0), UC2)
        a(f'{L3}:')
    else: unit0(wo_ld(0), UC)
    for i in range(8):
        a(f's_waitcnt vmcnt({CF-1})')
        wo_ld(1)(i)
    if EX:
        LX0, LX1 = a.lab('CX'), a.lab('CY')
        a(f's_cmp_ge_u32 s33, {EX}\ns_cbranch_scc1 {LX0}\ns_mov_b32 s43, s33')
        m2_addr(1, None)
        b_read(128, 'v30', 8)
        await_(C_PUB, 4, 'v6', sleep=0)
        for i in range(8):
            a(f's_waitcnt vmcnt({min(CF, 8)-1})')
            m2_ld(1)(i)
        arrive(C_MD)
        arrive(C_WO)
        a('s_waitcnt vmcnt(0)')
        m2_compute(1, 4)
        wo_setup(1)
        a(f's_branch {LX1}\n{LX0}:')
    arrive(C_MD)
    wo_setup(1)
    a('s_waitcnt vmcnt(0)')
    arrive(C_WO)
    if EX: a(f'{LX1}:')
    await_(C_WO, 4, 'v4', sleep=0)
    for ct in range(4):
        for ks in range(2):
            for hf in range(2):
                a(f'ds_read_b64_tr_b16 {V(120+8*ct+4*ks+2*hf,2)}, v{84+4*ks+ct} offset:{hf*RINGW}')
    wo_finish()
    a(f's_branch {LTD}')
    a(f'{LM}:')
    m2_addr(0, LN)
    unit0(m2_ld(0), UM, {0: [draw], UM - 1: [lambda: post(C_RANK2)]})
    b_read(128, 'v30', 8)
    await_(C_PUB, 4, 'v6', sleep=0)
    await_(C_RANK2, 1, 'v4', sleep=0)
    m2_addr(1, LE0)
    m2_issue(1)
    m2_compute(0)
    await_(C_RANK3, 1, 'v4', sleep=0)
    m2_addr(2, LE1)
    m2_issue(2)
    m2_compute(1)
    a('s_waitcnt vmcnt(1)')
    m2_compute(2)
    a(f's_branch {LTD}\n{LE1}:\ns_waitcnt vmcnt(1)')
    m2_compute(1)
    a(f's_branch {LTD}\n{LE0}:\ns_waitcnt vmcnt({st0})')
    m2_compute(0)
    a(f's_branch {LTD}')
    a(f'{LN}:')
    unit0(None, 0)
    a(f'{LTD}:')
    arrive(C_AD)
    stamp(8)
    a(f's_and_b32 s30, s2, 7\ns_cmp_lg_u32 s30, {RX}\ns_cbranch_scc1 L_fin2')
    G = 100
    def gb_part():
        gather([(G + 8 + k, 1, 'v28', P3 + k*16384 + 3*4096) for k in range(2)], 'v26', sleep=p3sleep)
        untag([G + 8, G + 9])
        a(f'v_add_f32 v155, v{G+8}, v{G+9}')
        allred('v_add_f32', 'v155', None, ('r8',))
        rnd('v155')
        a(f'ds_write_b32 v6, v155 offset:{SM + 1152}')
        arrive(C_GB)
        stamp(12)
    if gb2 == 2:
        Lg = a.lab('GB')
        a(f's_cmp_lg_u32 s3, 2\ns_cbranch_scc1 {Lg}')
        red_setup()
        gb_part()
        a(f's_branch L_fin2\n{Lg}:')
    a('s_cmp_lg_u32 s3, 1\ns_cbranch_scc1 L_fin2')
    red_setup()
    a(f's_mov_b32 s40, {ST0}\ns_mov_b32 s41, {ST}\ns_lshl_b32 s42, {sPi}, 7\ns_add_u32 s42, s42, {TAB}')
    a(f'buffer_load_dword v120, v5, {SRD_WS}, s40 offen sc1\nbuffer_load_dword v121, v5, {SRD_WS}, s41 offen sc1\nbuffer_load_dword v122, v5, {SRD_WS}, s42 offen sc1')
    if pretouch == 2:
        a(f's_mov_b32 s42, {P4}\nv_lshlrev_b32 v12, 7, v1\nv_lshl_add_u32 v12, {sPi}, 10, v12\nbuffer_load_dword v123, v12, {SRD_WS}, s42 offen sc1')
    l3 = [(G + k, 1, 'v28', P3 + (k % 2)*16384 + (k // 2)*4096) for k in range(8)]
    n3 = 3 if gbl else 4
    gather(l3[:2*n3], 'v26', sleep=p3sleep)
    untag(range(G, G + 2*n3))
    for j in range(n3): a(f'v_add_f32 v{152+j}, v{G+2*j}, v{G+2*j+1}')
    for j in range(n3): allred('v_add_f32', f'v{152+j}', None, ('r8',))
    for j in range(n3): rnd(f'v{152+j}')
    a('v_add_f32 v154, 1.0, v154'); rnd('v154')
    a(f'ds_write_b128 v6, v[152:155] offset:{SM}')
    arrive(C_SM)
    a('v_cndmask_b32 v157, v154, v153, s[100:101]')
    a('v_cndmask_b32 v16, 1.0, v153, s[100:101]\nv_mul_f32 v20, v157, v16\nv_mul_f32 v21, v157, v154\nv_cndmask_b32 v22, v153, 0, s[100:101]\nv_mov_b32 v23, 0')
    a(f's_mov_b32 s41, {ST0}')
    st_publish('s41')
    stamp(10)
    if not gb2: gb_part()
    gather([(G + 4, 4, 'v5', ST0 + (0 if dual else STB))], 'v26', full=True, sleep=2, alt=STB if dual else None)
    st_reduce(G + 4)
    a(f'v_and_b32 v13, 1, v1\nv_lshlrev_b32 v13, 4, v13\nv_lshl_add_u32 v13, v9, 2, v13\nv_add_u32 v13, {vM}, v13')
    setexec(0x0003000300030003)
    a(f'ds_write_b32 v13, v{G+4} offset:{SM + 1024}')
    arrive(C_TAB)
    stamp(11)
    if gb2 == 1: gb_part()
    a('s_branch L_fin2')

    a('L_X:')
    a('; ==== X waves')
    if xprio: a(f's_setprio {xprio}')
    XA, XB, XD, G = 32, 64, 96, 100
    a('v_and_b32 v10, 255, v0')
    def s_touch(base, off_code, offs):
        lo, hi = base[2:-1].split(':')
        a(off_code)
        a(f's_add_u32 s32, s{lo}, s30\ns_addc_u32 s33, s{hi}, 0')
        for i, o in enumerate(offs): a(f's_load_dword s{70 + i % 16}, s[32:33], {o:#x}')
    if 'x' in spf:
        s_touch(sC, f's_lshl_b32 s30, {sI}, 9', [128*i for i in range(4)])
        s_touch(sX, f's_lshl_b32 s30, {sI}, 9', [128*i for i in range(4)])
        a('s_waitcnt lgkmcnt(0)')
    a(f'v_lshlrev_b32 v11, 3, v10\nglobal_load_dwordx2 v[12:13], v11, {sC}')
    xld = lambda: a(f'v_lshlrev_b32 v11, 5, v1\nglobal_load_dwordx4 v[16:19], v11, {sX}\nglobal_load_dwordx4 v[20:23], v11, {sX} offset:16')
    if not xlate: xld()
    a('s_and_b32 s42, s2, 3\ns_lshr_b32 s43, s2, 2\ns_and_b32 s44, s2, 7\ns_lshr_b32 s45, s2, 3')
    a('v_lshrrev_b32 v9, 4, v1\nv_and_b32 v15, 15, v1')
    a(f'v_lshl_add_u32 v28, v15, 2, v9\nv_lshl_add_u32 v28, {sI}, 6, v28')
    a('v_lshl_add_u32 v11, s42, 8, v28\nv_lshlrev_b32 v11, 1, v11\nv_mov_b32 v14, 0')
    a(f'global_load_short_d16_hi v14, v11, {sX}')
    a(f's_load_dword {sE}, {sWS}, 12')
    if warm == 3:
        a(f's_getpc_b64 s[32:33]\nL_pc:\ns_sub_u32 s32, s32, L_pc-{NAME}_kernel\ns_subb_u32 s33, s33, 0')
        a(f's_bfe_u32 s30, s2, 0x30003\ns_lshl_b32 s30, s30, 2\ns_add_u32 s30, s30, {sI}\ns_lshl_b32 s30, s30, 10\ns_min_u32 s30, s30, L_code_end-{NAME}_kernel-1024')
        a('s_add_u32 s32, s32, s30\ns_addc_u32 s33, s33, 0')
        for i in range(8): a(f's_load_dword s{70+i}, s[32:33], {128*i}')
    common2(True)
    if not xbar: a('s_barrier')
    stamp(0)
    if tlb:
        Lt = a.lab('TL')
        a(f's_cmp_lg_u32 {sI}, 1\ns_cbranch_scc1 {Lt}')
        a('s_lshl_b32 s30, s2, 18\nv_mov_b32 v11, 0\ns_lshr_b32 s31, s2, 6\ns_lshl_b32 s32, s31, 21\ns_mul_i32 s31, s31, 0x300000\nv_lshlrev_b32 v24, 20, v1')
        setexec(1)
        a(f'buffer_load_dword v250, v11, {SRD_K}, s30 offen nt\nbuffer_load_dword v251, v11, {SRD_V}, s30 offen nt\nbuffer_load_dword v252, v11, {SRD_WO}, s32 offen nt')
        setexec(7)
        a(f'buffer_load_dword v253, v24, {SRD_WM}, s31 offen nt')
        setexec(-1)
        a(f'{Lt}:')
    Lz0 = a.lab('RZ')
    a(f's_and_b32 s30, s2, 63\ns_add_u32 s30, s30, {sI}\ns_cmp_lg_u32 s30, 0\ns_cbranch_scc1 {Lz0}')
    a(f's_lshl_b32 s30, s2, 6\ns_add_u32 s30, s30, {RK}\nv_lshlrev_b32 v11, 2, v1\nv_mov_b32 v24, 0')
    setexec(0xffffffff)
    a(f'buffer_store_dword v24, v11, {SRD_WS}, s30 offen sc1')
    setexec(-1)
    a(f's_waitcnt vmcnt(0)\n{Lz0}:')
    stamp(17)
    w_traddr('v6', WA, 'v11', 'v24')
    a(f'v_add_u32 v7, {(WB - WA) & 0xffffffff:#x}, v6')
    a(f'v_lshl_add_u32 v8, v9, 3, {vM}\nv_lshlrev_b32 v29, 4, v9')
    a(f's_waitcnt vmcnt({1 if xlate else 3}) lgkmcnt(0)')
    stamp(20)
    a(f's_mov_b32 s30, {f2u(-LOG2E):#x}')
    a('v_lshlrev_b32 v24, 16, v12\nv_and_b32 v25, 0xffff0000, v12\nv_lshlrev_b32 v26, 16, v13\nv_and_b32 v27, 0xffff0000, v13')
    for i in range(4): a(f'v_mul_f32 v{100+i}, s30, v{24+i}')
    for i in range(4): a(f'v_exp_f32 v{100+i}, v{100+i}')
    for i in range(4): a(f'v_add_f32 v{100+i}, 1.0, v{100+i}')
    for i in range(4): a(f'v_rcp_f32 v{100+i}, v{100+i}')
    for i in range(4): a(f'v_mul_f32 v{24+i}, v{24+i}, v{100+i}')
    a('v_cvt_pk_bf16_f32 v12, v24, v25\nv_cvt_pk_bf16_f32 v13, v26, v27')
    a(f'v_lshl_add_u32 v11, v10, 3, {vM}\nds_write_b64 v11, v[12:13] offset:{SC}')
    arrive(C_W1)
    setup_tags()
    a(f's_lshl_b32 s46, s44, 13\ns_lshl_b32 s30, s45, 8\ns_add_u32 s46, s46, s30\ns_lshl_b32 s30, {sI}, 6\ns_add_u32 s46, s46, s30\ns_add_u32 s46, s46, {P1}')
    stamp(1)
    await_(C_W1, 8, 'v11', sleep=1 if xs else 0)
    stamp(22)
    w_read(XA, 'v6', 4)
    a(f'v_lshl_add_u32 v11, s44, 8, v8')
    b_read(XB, 'v11', 4)
    def publish(s_off, fine=False):
        for e in range(4):
            if fine: a(f'v_bfi_b32 {V(XD+e)}, 3, {sT}, {V(XD+e)}')
            else: tag(V(XD+e))
        setexec(0x0001000100010001)
        if 'nop12' not in exp: a(f'buffer_store_dwordx4 {V(XD,4)}, v29, {SRD_WS}, {s_off} offen{p12f}')
        setexec(-1)
    w_mfma(XD, XA, XB, 4, staged=True)
    publish('s46', True)
    stamp(2)
    if xlate: xld()
    a(f's_waitcnt vmcnt({0 if xlate else 1})')
    for i in range(8):
        a(f'v_lshlrev_b32 v{100+2*i}, 16, v{16+i}\nv_and_b32 v{101+2*i}, 0xffff0000, v{16+i}')
    a('v_add_f32 v16, v100, v101')
    for i in range(2, 16): a(f'v_add_f32 v16, v16, v{100+i}')
    allred('v_add_f32', 'v16', 'v17')
    a(f'v_mul_f32 v16, {f2u(1/1024):#x}, v16\nv_mov_b32 v18, 0')
    for i in range(16): a(f'v_sub_f32 v17, v{100+i}, v16\nv_fmac_f32 v18, v17, v17')
    allred('v_add_f32', 'v18', 'v17')
    a(f'v_mul_f32 v18, {f2u(1/1024):#x}, v18')
    ln_scale('v16', 'v18')
    a('v_sub_f32 v14, v14, v16'); rnd('v14'); a('v_mul_f32 v14, v14, v18'); rnd('v14')
    stamp(23)
    await_(C_WQ, 4, 'v11', sleep=1 + xs)
    w_read(XA, 'v7', 8)
    a('s_waitcnt lgkmcnt(0)')
    arrive(C_WQF)
    stamp(3)
    a(f's_lshl_b32 s30, s42, 10\ns_lshl_b32 s31, {sI}, 8\ns_add_u32 s30, s30, s31\nv_lshl_add_u32 v12, v15, 4, s30\nv_lshl_add_u32 v12, v9, 13, v12')
    if T1: await_(C_T1, 2, 'v11', sleep=2 + xs)
    if 'h' in spf:
        s_touch(sWS, f's_lshl_b32 s30, s42, 10\ns_lshl_b32 s31, {sI}, 8\ns_add_u32 s30, s30, s31', [P1 + p*4096 + 128*l for p in range(16) for l in range(2)])
        a('s_waitcnt lgkmcnt(0)')
    stamp(19)
    if 'nog' not in exp: gather([(G + 4*i, 4, 'v12', P1 + (i & 1)*32768 + (i >> 1)*4096) for i in range(1 if 'smallg' in exp else 4)], 'v26', sleep=psleep, full=2)
    untag(range(G, G + 16), True)
    stamp(4)
    for hf in range(2):
        b = G + 8*hf
        a(f'v_pk_add_f32 {V(b,2)}, {V(b,2)}, {V(b+4,2)}\nv_pk_add_f32 {V(b+2,2)}, {V(b+2,2)}, {V(b+6,2)}')
        scat4(b); rnd(f'v{b}')
    a(f'v_add_f32 v{G+8}, 1.0, v{G+8}'); rnd(f'v{G+8}')
    a(f'v_mul_f32 v14, v14, v{G+8}'); rnd('v14')
    a(f'v_add_f32 v14, v14, v{G}'); rnd('v14')
    a(f'v_lshl_add_u32 v11, v28, 1, {vM}\nds_write_b16_d16_hi v11, v14 offset:{HV}')
    arrive(C_H)
    a(f's_lshl_b32 s47, s42, 14\ns_lshl_b32 s30, s43, 8\ns_add_u32 s47, s47, s30\ns_lshl_b32 s30, {sI}, 6\ns_add_u32 s47, s47, s30\ns_add_u32 s46, s47, {P2}')
    await_(C_H, 4, 'v11', sleep=1 if xs else 0)
    a(f'v_add_u32 v11, {HV}, v8')
    b_read(XB, 'v11', 8)
    w_mfma(XD, XA, XB, 8, staged=True)
    publish('s46', True)
    stamp(5)
    a('v_lshlrev_b32 v12, 4, v1')
    a(f's_lshr_b32 s30, s2, 6\ns_lshl_b32 s30, s30, 12\ns_lshl_b32 s32, {sI}, 10\ns_add_u32 s30, s30, s32\nv_add_u32 v12, s30, v12')
    if T2: await_(C_T2, 2, 'v11', sleep=2 + xs)
    if 'q' in spf:
        s_touch(sWS, f's_lshr_b32 s30, s2, 6\ns_lshl_b32 s30, s30, 12\ns_lshl_b32 s31, {sI}, 10\ns_add_u32 s30, s30, s31', [P2 + p*16384 + 128*l for p in range(4) for l in range(8)])
        a('s_waitcnt lgkmcnt(0)')
    stamp(8)
    if 'nog' not in exp: gather([(G + 4*i, 4, 'v12', P2 + i*16384) for i in range(1 if 'smallg' in exp else 4)], 'v26', sleep=psleep, full=2)
    untag(range(G, G + 16), True)
    for e in (0, 2):
        a(f'v_pk_add_f32 {V(G+e,2)}, {V(G+e,2)}, {V(G+4+e,2)}\nv_pk_add_f32 {V(G+8+e,2)}, {V(G+8+e,2)}, {V(G+12+e,2)}\nv_pk_add_f32 {V(G+e,2)}, {V(G+e,2)}, {V(G+8+e,2)}')
    a(f'v_cvt_pk_bf16_f32 v{G}, v{G}, v{G+1}\nv_cvt_pk_bf16_f32 v{G+1}, v{G+2}, v{G+3}')
    a(f's_mul_i32 s30, {sI}, 544\nv_lshrrev_b32 v11, 5, v1\nv_lshlrev_b32 v11, 4, v11\nv_lshl_add_u32 v11, v1, 3, v11\nv_add3_u32 v11, v11, {vM}, s30')
    a(f'ds_write_b64 v11, {V(G,2)} offset:{QL}')
    arrive(C_Q)
    if lite:
        Ll = a.lab('LI')
        a(f's_cmp_lg_u32 s3, 5\ns_cbranch_scc1 {Ll}\ns_lshl_b32 s30, s2, 7\ns_add_u32 s30, s30, {DBG}\nv_mov_b32 v11, 0\nv_mov_b32 v12, s34\ns_getreg_b32 s31, hwreg(HW_REG_XCC_ID)\nv_mov_b32 v24, s31')
        setexec(1)
        a(f'buffer_store_dword v12, v11, {SRD_WS}, s30 offen\nbuffer_store_dword v24, v11, {SRD_WS}, s30 offen offset:4')
        setexec(-1)
        a(f'{Ll}:')
    if eep:
        Lp = a.lab('EP')
        a(f'; advance the epoch word\ns_add_u32 s30, s2, {sI}\ns_cmp_lg_u32 s30, 0\ns_cbranch_scc1 {Lp}')
        await_(C_Q, 4, 'v11')
        a(f'v_mov_b32 v11, {sE}\nv_mov_b32 v12, 0')
        setexec(1)
        a(f'global_store_dword v12, v11, {sWS} offset:12 sc1')
        setexec(-1)
        a(f'{Lp}:')
    stamp(6)
    if xprio: a('s_setprio 0')
    CW, CB, C2 = 160, 174, 188
    a('v_lshlrev_b32 v11, 2, v10\nv_add_u32 v12, 0x1000, v11\nv_mov_b32 v17, 0\nv_mov_b32 v159, 0')
    for j, ptr in enumerate((sW1, sB1, sW2)):
        for i in range(0 if 'nocoef' in exp else 7): a(f'global_load_dword v{G+7*j+i}, {"v11" if i < 4 else "v12"}, {ptr} offset:{(i % 4)*1024}')
    a(f'global_load_short_d16_hi v159, v17, {sB2}')
    a(f'v_mov_b32 v44, {f2u(c1):#x}\nv_mov_b32 v45, {f2u(c0):#x}')
    a(f'v_lshl_add_u32 v13, v9, 2, {vM}\nv_lshl_add_u32 v13, {sI}, 7, v13')
    a(f's_lshl_b32 s39, s2, 5\ns_and_b32 s40, s39, 0xfff\ns_add_u32 s40, s40, {E0 << 7}\ns_lshr_b32 s30, s39, 12\ns_lshl_b32 s30, s30, 15\ns_or_b32 s40, s40, s30\ns_lshl_b32 s40, s40, 16')
    a('s_mov_b32 s41, 0\ns_waitcnt vmcnt(0)')
    for j, base in enumerate((CW, CB, C2)):
        for i in range(7): a(f'v_lshlrev_b32 v{base+2*i}, 16, v{G+7*j+i}\nv_and_b32 v{base+2*i+1}, 0xffff0000, v{G+7*j+i}')
    def weights():
        a('s_lshr_b32 s30, s38, 4\ns_lshl_b32 s30, s30, 13\ns_lshr_b32 s31, s38, 1\ns_and_b32 s31, s31, 7\ns_lshl_b32 s31, s31, 4\ns_add_u32 s30, s30, s31\nv_lshl_add_u32 v12, v1, 7, s30')
        gather([(G, 4, 'v12', ML)], 'v26', sleep=psleep, full=True)
        untag([G, G + 1])
        a(f'v_mov_b32 v16, v{G}')
        allred('v_max_f32', 'v16', 'v11')
        a(f'v_sub_f32 v16, v{G}, v16\nv_exp_f32 v16, v16\nv_mul_f32 v17, v16, v{G+1}')
        allred('v_add_f32', 'v17', 'v11')
        a(f'v_rcp_f32 v17, v17\nv_and_b32 v12, 15, v1\nv_lshlrev_b32 v12, 4, v12\nv_lshl_add_u32 v12, v9, 2, v12\nv_add_u32 v12, {vM}, v12\nv_mul_f32 v16, v16, v17')
        a(f'ds_write_b32 v12, v16 offset:{WL}')
        arrive(C_WL)
    def early_touch():
        Le = a.lab('ET')
        a(f's_cmp_lg_u32 {sI}, 2\ns_cbranch_scc1 {Le}\ns_and_b32 s30, s2, 7\ns_cmp_lg_u32 s30, {RX}\ns_cbranch_scc1 {Le}')
        a(f'v_lshlrev_b32 v11, 7, v1\nv_lshl_add_u32 v11, {sPi}, 10, v11\ns_mov_b32 s30, {P4}\nbuffer_load_dword v250, v11, {SRD_WS}, s30 offen sc1')
        a(f'v_and_b32 v11, 15, v1\nv_lshlrev_b32 v11, 12, v11\nv_lshl_add_u32 v11, {sPi}, 4, v11\ns_mov_b32 s30, {P3}\nbuffer_load_dword v251, v11, {SRD_WS}, s30 offen sc1')
        a(f'v_lshlrev_b32 v11, 4, v1\ns_mov_b32 s30, {ST0}\ns_mov_b32 s31, {ST}\nbuffer_load_dword v252, v11, {SRD_WS}, s30 offen sc1\nbuffer_load_dword v253, v11, {SRD_WS}, s31 offen sc1')
        a(f'{Le}:')
    if ept == 2: early_touch()
    if obt:
        Lo = a.lab('OT')
        a(f's_cmp_lg_u32 {sI}, 1\ns_cbranch_scc1 {Lo}')
        a('v_lshrrev_b32 v11, 1, v1\nv_lshlrev_b32 v11, 14, v11\nv_and_b32 v12, 1, v1\nv_lshl_add_u32 v11, v12, 7, v11')
        a(f's_lshr_b32 s30, s2, 6\ns_lshl_b32 s30, s30, 18\ns_and_b32 s31, s2, 63\ns_lshl_b32 s31, s31, 8\ns_add_u32 s30, s30, s31\ns_add_u32 s30, s30, {OB}')
        setexec(0xffffffff)
        a(f'buffer_load_dword v250, v11, {SRD_WS}, s30 offen sc1')
        setexec(-1)
        a(f'{Lo}:')
    a('L_tab:')
    for e in range(4): a(f'v_mov_b32 v{40+e}, s40\ns_add_u32 s40, s40, 0x10000\nv_mov_b32 v{16+e}, 0')
    Lz = a.lab('TZ')
    a(f's_add_u32 s39, s39, 4\ns_cmp_lg_u32 s39, 4096\ns_cbranch_scc1 {Lz}\nv_mov_b32 v43, 0\n{Lz}:')
    units = []
    for i in range(14):
        sel = i & 1; pr = i & ~1
        for dp in range(2):
            units.append((lambda u, sel=sel, pr=pr, dp=dp: f'v_pk_fma_f32 {u}, {V(40+2*dp,2)}, {V(CW+pr,2)}, {V(CB+pr,2)} op_sel:[0,{sel},{sel}] op_sel_hi:[1,{sel},{sel}]',
                          lambda u, sel=sel, pr=pr, dp=dp: f'v_pk_fma_f32 {V(16+2*dp,2)}, {u}, {V(C2+pr,2)}, {V(16+2*dp,2)} op_sel:[0,{sel},0] op_sel_hi:[1,{sel},1]'))
    gelu_units(units, 48, 64, 4)
    scat4(16)
    allred('v_add_f32', 'v16', None, (1, 2, 'hm', 'm'))
    setexec(0x0001000100010001)
    a(f'ds_write_b32 v13, v16 offset:{YT}')
    setexec(-1)
    a('v_add_u32 v13, 16, v13\ns_add_u32 s41, s41, 1\ns_cmp_lt_u32 s41, ' + ('1' if 'notab' in exp else '8') + '\ns_cbranch_scc1 L_tab')
    arrive(C_YT)
    if ept == 1: early_touch()
    stamp(7)
    LX3, LXD, LXM, LXR = a.lab('X3'), a.lab('XD'), a.lab('XM'), a.lab('XR')
    a(f's_cmp_lg_u32 {sI}, 0\ns_cbranch_scc1 {LX3}')
    await_(C_YT, 4, 'v11')
    a(f'v_and_b32 v12, 7, v1\nv_lshlrev_b32 v12, 4, v12\nv_add_u32 v11, {vM}, v12')
    for w in range(4): a(f'ds_read_b128 {V(48+4*w,4)}, v11 offset:{YT + 128*w}')
    a(f's_lshl_b32 s30, s2, 7\ns_add_u32 s30, s30, {TAB}\ns_waitcnt lgkmcnt(0)')
    for e in (0, 2): a(f'v_pk_add_f32 {V(48+e,2)}, {V(48+e,2)}, {V(52+e,2)}\nv_pk_add_f32 {V(56+e,2)}, {V(56+e,2)}, {V(60+e,2)}\nv_pk_add_f32 {V(48+e,2)}, {V(48+e,2)}, {V(56+e,2)}')
    for e in range(4): rnd(V(48+e))
    for e in range(4): a(f'v_add_f32 v{48+e}, v{48+e}, v159')
    for e in range(4): rnd(V(48+e))
    for e in range(4): a(f'v_or_b32 v{48+e}, {sT}, v{48+e}')
    setexec(0xff)
    a(f'buffer_store_dwordx4 v[48:51], v12, {SRD_WS}, s30 offen sc1')
    setexec(-1)
    a(f'{LX3}:')
    await_(C_RANK, 1, 'v11', sleep=2)
    a(f's_sub_u32 s33, s30, 1\ns_cmp_ge_u32 s33, 32\ns_cbranch_scc1 {LXM}')
    a('s_lshr_b32 s38, s33, 1\ns_lshr_b32 s30, s2, 6\ns_lshl_b32 s30, s30, 4\ns_add_u32 s38, s38, s30')
    a(f's_cmp_lg_u32 {sI}, 3\ns_cbranch_scc1 {LXD}')
    weights()
    a(f'{LXD}:')
    stamp(9)
    a(f's_lshl_b32 s30, s38, 14\ns_lshl_b32 s32, {sI}, 6')
    if 'halfob' in exp: a('s_and_b32 s32, s32, 64')
    if 'single' in exp: a('s_and_b32 s32, s32, 64\ns_and_b32 s31, s33, 1\ns_lshl_b32 s31, s31, 7\ns_add_u32 s32, s32, s31')
    a('s_add_u32 s30, s30, s32')
    a('v_and_b32 v13, 3, v1\nv_lshl_add_u32 v12, v13, 4, s30\nv_lshrrev_b32 v11, 2, v1\nv_lshl_add_u32 v12, v11, 8, v12')
    a(f'v_lshlrev_b32 v13, 3, v13\nv_lshl_add_u32 v13, v9, 1, v13\nv_lshl_add_u32 v13, {sI}, 5, v13\nv_add_u32 v13, {vM}, v13')
    W = 80
    a(f'v_lshl_add_u32 v14, v11, 4, {vM}')
    wo_setup(0)
    LH, LHD, LHS = a.lab('H'), a.lab('HD'), a.lab('HS')
    for i in range(4): a(f's_mov_b32 {SOFF(i)}, {OB + 4096*i:#x}')
    def h1ld(i): a(f'buffer_load_dwordx4 {V(G+4*i,4)}, v12, {SRD_WS}, {SOFF(i)} offen sc1')
    await_(C_WL, 1, 'v11', sleep=1)
    a(f'ds_read_b128 {V(W,4)}, v14 offset:{WL}')
    if pd1 is not None:
        await_(C_WO, 4, 'v11', sleep=1)
        for ct in range(4):
            for ks in range(2):
                for hf in range(2):
                    a(f'ds_read_b64_tr_b16 {V(120+8*ct+4*ks+2*hf,2)}, v{68+ct} offset:{ks*16384 + hf*8192}')
        stamp(10)
        gather_p([(G + 4*i, 4, 'v12', OB + 4096*i) for i in range(4)], 'v11', depth=pd1, sleep=ps1, thr=h1thr, bsleep=h1sleep)
    else:
        await_(C_MD, 4, 'v11', sleep=1)
        stamp(10)
        for i in range(4): h1ld(i)
        await_(C_WO, 4, 'v11', sleep=0)
        for ct in range(4):
            for ks in range(2):
                for hf in range(2):
                    a(f'ds_read_b64_tr_b16 {V(120+8*ct+4*ks+2*hf,2)}, v{68+ct} offset:{ks*16384 + hf*8192}')
        stamp(13)
        if tight & 1:
            def h1done(i):
                untag([G + 4*i, G + 4*i + 3])
                for e in (0, 2): a(f'v_pk_mul_f32 {V(G+4*i+e,2)}, {V(G+4*i+e,2)}, {V(W+(i&2),2)} op_sel:[0,{i&1}] op_sel_hi:[1,{i&1}]')
            gather_t([(G + 4*i, 4, 'v12', OB + 4096*i) for i in range(4)], 'v11', h1done, issue_first=False, thr=h1thr, bsleep=h1sleep)
        else:
            a(f's_mov_b32 {sSpin}, {spin}')
            a(f'{LH}:\ns_waitcnt vmcnt(0)')
            for i in range(4): a(f'v_perm_b32 v11, v{G+4*i+3}, v{G+4*i}, {sSelA}\nv_cmp_ne_u32 {MASK(i)}, {sT2}, v11')
            a(f's_bcnt1_i32_b64 s30, {MASK(0)}')
            for i in range(1, 4): a(f's_bcnt1_i32_b64 s31, {MASK(i)}\ns_add_u32 s30, s30, s31')
            a(f's_cmp_eq_u32 s30, 0\ns_cbranch_scc1 {LHD}')
            a(f's_sub_u32 {sSpin}, {sSpin}, 1\ns_cbranch_scc1 {LHD}')
            a(f's_cmp_le_u32 s30, {h1thr}\ns_cbranch_scc1 {LHS}\ns_sleep {h1sleep}\n{LHS}:')
            for i in range(4):
                Sk = a.lab('GS')
                a(f's_wqm_b64 exec, {MASK(i)}\ns_cbranch_execz {Sk}')
                h1ld(i)
                a(f'{Sk}:')
            a(f's_mov_b64 exec, -1\ns_branch {LH}\n{LHD}:')
    if tight & 1:
        for e in (0, 2): a(f'v_pk_add_f32 {V(G+e,2)}, {V(G+e,2)}, {V(G+4+e,2)}\nv_pk_add_f32 {V(G+8+e,2)}, {V(G+8+e,2)}, {V(G+12+e,2)}')
        for e in (0, 2): a(f'v_pk_add_f32 {V(G+e,2)}, {V(G+e,2)}, {V(G+8+e,2)}')
    else:
        untag([G + 4*i + e for i in range(4) for e in (0, 3)])
        for e in (0, 2): a(f'v_pk_mul_f32 {V(G+e,2)}, {V(G+e,2)}, {V(W,2)} op_sel:[0,0] op_sel_hi:[1,0]')
        for i in range(1, 4):
            for e in (0, 2): a(f'v_pk_fma_f32 {V(G+e,2)}, {V(G+4*i+e,2)}, {V(W+(i&2),2)}, {V(G+e,2)} op_sel:[0,{i&1},0] op_sel_hi:[1,{i&1},1]')
    scat4(G)
    allred('v_add_f32', V(G), None, ('r4', 'r8'))
    rnd(V(G))
    setexec(0x000f000f000f000f)
    a(f'ds_write_b16_d16_hi v13, v{G} offset:{OV}')
    stamp(11)
    wo_finish()
    stamp(26)
    a(f'{LXM}:')
    a(f's_cmp_lg_u32 {sI}, 2\ns_cbranch_scc1 L_fin2\ns_and_b32 s30, s2, 7\ns_cmp_lg_u32 s30, {RX}\ns_cbranch_scc1 L_fin2')
    red_setup()
    await_(C_AD, 4, 'v11', sleep=2)
    a(f'v_mov_b32 v152, 0\nglobal_load_short_d16_hi v152, v29, {sX}')
    if otouch: a(f'global_load_ushort v250, v29, {sOUT}')
    a(f'v_lshlrev_b32 v12, 4, v1\nv_lshl_add_u32 v12, {sPi}, 10, v12\nv_mov_b32 v46, {f2u(1/1024):#x}')
    a(f's_mov_b32 s40, {ST}\nv_mov_b32 v150, 4095\ns_mov_b32 s59, {TAB}')
    mark('ad')
    stamp(25)
    l4 = [(G + 4*i, 4, 'v12', P4 + i*1024) for i in range(8)]
    if smp4:
        gather(l4[:smp4], 'v11', sleep=1)
    if tight & 2: gather_t(l4, 'v11', lambda i: untag([G + 4*i, G + 4*i + 3]))
    elif pd2 is None: gather(l4[smp4:], 'v11')
    else: gather_p(l4[smp4:], 'v11', depth=pd2, sleep=ps2)
    mark('p4')
    stamp(24)
    def p4_sum():
        if not tight & 2: untag([G + 4*i + e for i in range(8) for e in (0, 3)])
        for st in (4, 8, 16):
            for i in range(0, 32, 2*st):
                for e in (0, 2): a(f'v_pk_add_f32 {V(G+i+e,2)}, {V(G+i+e,2)}, {V(G+i+st+e,2)}')
        scat4(G)
        allred('v_add_f32', V(G), None, ('r8',))
        rnd(V(G))
    late_await(C_SM, 1, 'v11', lambda: a(f'ds_read_b128 v[140:143], v6 offset:{SM}'), p4_sum)
    a(f'v_mul_f32 v16, v{G}, v140\nv_cndmask_b32 v157, v142, v141, s[100:101]\nv_mov_b32 v23, 0'); rnd('v16'); a('v_add_f32 v16, v16, v152'); rnd('v16')
    a('v_mul_f32 v17, v16, v142')
    a('v_cndmask_b32 v18, v16, v17, s[100:101]\nv_cndmask_b32 v20, 1.0, v17, s[100:101]\nv_cndmask_b32 v21, v16, v142, s[100:101]')
    a('v_mul_f32 v20, v18, v20\nv_mul_f32 v21, v18, v21\nv_mul_f32 v22, v18, v157')
    st_publish('s40')
    mark('sp')
    stamp(21)
    gather([(G, 4, 'v5', ST + (0 if dual else STB))], 'v26', full=True, sleep=fsleep, alt=STB if dual else None)
    mark('st')
    stamp(12)
    def ln1():
        st_reduce(G)
        for k, ln in enumerate((0, 16, 32, 1, 17, 33)): a(f'v_readlane_b32 s{38+k}, v{G}, {ln}')
        a('v_mul_f32 v24, s38, v46\nv_mul_f32 v25, s39, v46\nv_fma_f32 v25, -v24, v24, v25\nv_max_f32 v25, 0, v25')
        if trim: a(f'v_add_f32 v25, {f2u(1e-5):#x}, v25\nv_rsq_f32 v25, v25')
        else: ln_scale('v24', 'v25')
    late_await(C_TAB, 1, 'v11', lambda: a(f'ds_read_b128 v[144:147], {vM} offset:{SM + 1024}\nds_read_b64 v[148:149], {vM} offset:{SM + 1040}'), ln1)
    a('v_fma_f32 v26, -v24, v144, s40\nv_fma_f32 v28, -v24, v149, s43')
    a('v_mul_f32 v27, v24, v145\nv_fma_f32 v27, -2.0, s42, v27\nv_fma_f32 v27, v27, v24, s41')
    if trim:
        a('v_sub_f32 v40, v16, v24\nv_fma_f32 v26, v26, v25, v146\nv_add_f32 v28, v28, v28\nv_mul_f32 v40, v40, v142\nv_fma_f32 v27, v27, v25, v28')
        a('v_mul_f32 v26, v26, v46\nv_fma_f32 v27, v27, v25, v148\nv_fma_f32 v40, v40, v25, v141\nv_mul_f32 v27, v27, v46\nv_fma_f32 v27, -v26, v26, v27')
        a(f'v_max_f32 v27, 0, v27\nv_sub_f32 v40, v40, v26\nv_add_f32 v27, {f2u(1e-5):#x}, v27\nv_rsq_f32 v27, v27\nv_mul_f32 v40, v40, v27'); rnd('v40')
    else:
        a('v_sub_f32 v40, v16, v24')
        a('v_fma_f32 v26, v26, v25, v146\nv_add_f32 v28, v28, v28\nv_fma_f32 v27, v27, v25, v28\nv_fma_f32 v27, v27, v25, v148')
        rnd('v40')
        a('v_mul_f32 v26, v26, v46\nv_mul_f32 v27, v27, v46\nv_mul_f32 v40, v40, v25\nv_fma_f32 v27, -v26, v26, v27')
        rnd('v40')
        a('v_max_f32 v27, 0, v27\nv_mul_f32 v40, v40, v142')
        rnd('v27'); rnd('v40'); rnd('v26')
        a(f'v_add_f32 v27, {f2u(1e-5):#x}, v27\nv_add_f32 v40, v40, v141'); rnd('v27'); rnd('v40')
        a('v_sqrt_f32 v27, v27\nv_sub_f32 v40, v40, v26'); rnd('v27'); rnd('v40')
        a('v_rcp_f32 v27, v27\nv_mul_f32 v40, v40, v27'); rnd('v40')
    a(f'v_bfe_u32 v41, v40, 16, 15\nv_lshrrev_b32 v43, 31, v40\nv_subrev_u32 v42, {E0 << 7}, v41\nv_cmp_eq_u32 vcc, 0, v41')
    a(f'v_cmp_lt_u32 s[38:39], v42, v47\nv_lshl_add_u32 v42, v43, 12, v42\nv_cndmask_b32 v42, v42, v47, vcc'.replace('v47', 'v150'))
    a(f'v_and_b32 v42, 0x1fff, v42\nv_lshlrev_b32 v42, 2, v42\nbuffer_load_dword v41, v42, {SRD_WS}, s59 offen sc1')
    late_await(C_GB, 1, 'v11', lambda: a(f'ds_read_b32 v143, v6 offset:{SM + 1152}'), lambda: a('s_or_b64 s[38:39], s[38:39], vcc'))
    a('s_waitcnt vmcnt(0)')
    a(f'v_and_b32 v42, 0xffff, v41\nv_and_b32 v41, 0xffff0000, v41\nv_cmp_ne_u32 vcc, {sT}, v42\ns_orn2_b64 s[38:39], vcc, s[38:39]\ns_cbranch_scc1 L_slow1')
    a('L_out:')
    a('v_mul_f32 v41, v41, v143'); rnd('v41'); a('v_add_f32 v41, v41, v16'); rnd('v41')
    setexec(0x00ff00ff00ff00ff)
    a(f'global_store_short_d16_hi v29, v41, {sOUT}{osc}')
    setexec(-1)
    stamp(14)
    if lite:
        a(f's_memrealtime s[34:35]\ns_lshl_b32 s30, s2, 7\ns_add_u32 s30, s30, {DBG + 64}\nv_mov_b32 v11, 0\ns_waitcnt lgkmcnt(0)\nv_mov_b32 v12, s34')
        setexec(1)
        a(f'buffer_store_dword v12, v11, {SRD_WS}, s30 offen')
        setexec(-1)
    if enc:
        mark('end')
        if enc == 'ack': a('s_waitcnt vmcnt(0)'); mark('ack')
        if encd: a('s_memrealtime s[38:39]\ns_waitcnt lgkmcnt(0)\ns_sub_u32 s62, s62, s38\ns_add_u32 s62, s62, 300\ns_lshl_b32 s62, s62, 5')
        else: a('s_memrealtime s[38:39]\ns_waitcnt lgkmcnt(0)\ns_sub_u32 s62, s62, s34\ns_sub_u32 s62, s62, 2000\ns_lshl_b32 s62, s62, 4')
        a('L_enc:\ns_memrealtime s[40:41]\ns_waitcnt lgkmcnt(0)\ns_sub_u32 s40, s40, s38\ns_cmp_lt_i32 s40, s62\ns_cbranch_scc1 L_enc')
    a('L_fin:')
    if not eep:
        a('; advance the epoch word')
        a(f's_cmp_lg_u32 s2, {RX}\ns_cbranch_scc1 L_fin2')
        a(f'v_mov_b32 v7, {sE}\nv_mov_b32 v8, 0')
        setexec(1)
        a(f'global_store_dword v8, v7, {sWS} offset:12')
        setexec(-1)
    a('L_fin2:')
    if stamps:
        stamp(15)
        a('s_getreg_b32 s30, hwreg(HW_REG_XCC_ID)\nv_writelane_b32 v255, s30, 40')
        a(f's_lshl_b32 s30, s2, 11\ns_add_u32 s30, s30, {DBG}\nv_lshlrev_b32 v7, 2, v0')
        a(f'buffer_store_dword v255, v7, {SRD_WS}, s30 offen')
    a('L_end:\ns_endpgm')
    a('L_slow1:\ns_ff1_i32_b64 s40, s[38:39]\ns_bitset0_b64 s[38:39], s40\nv_readlane_b32 s41, v40, s40')
    a('v_lshlrev_b32 v11, 4, v1\nv_mov_b32 v18, 0\nv_mov_b32 v19, 0\nv_mov_b32 v42, s41\nv_mov_b32 v43, s41\ns_mov_b32 s42, 0')
    a('L_slow2:')
    for j, ptr in enumerate((sW1, sB1, sW2)): a(f'global_load_dwordx4 {V(G+4*j,4)}, v11, {ptr}')
    a('v_add_u32 v11, 0x400, v11\ns_waitcnt vmcnt(0)')
    for j in range(3):
        for i in range(4): a(f'v_lshlrev_b32 v{160+8*j+2*i}, 16, v{G+4*j+i}\nv_and_b32 v{161+8*j+2*i}, 0xffff0000, v{G+4*j+i}')
    gelu_units([(lambda u, i=i: f'v_pk_fma_f32 {u}, v[42:43], {V(160+2*i,2)}, {V(168+2*i,2)}',
                 lambda u, i=i: f'v_pk_fma_f32 v[18:19], {u}, {V(176+2*i,2)}, v[18:19]') for i in range(4)], 48, 64, 4)
    a('s_add_u32 s42, s42, 1\ns_cmp_lt_u32 s42, 7\ns_cbranch_scc1 L_slow2')
    a('v_add_f32 v18, v18, v19')
    allred('v_add_f32', 'v18', 'v19')
    rnd('v18'); a('v_add_f32 v18, v18, v159'); rnd('v18')
    a('v_readfirstlane_b32 s41, v18\ns_mov_b32 m0, s40\nv_writelane_b32 v41, s41, m0')
    a('s_cmp_lg_u64 s[38:39], 0\ns_cbranch_scc1 L_slow1\ns_branch L_out')
    a('L_code_end:')
    body = a.finish()
    out = HEADER + f'; @launch grid=(256,1,1) block=(512,1,1) lds={LDS_BYTES}\n' + DOC
    out += f'.amdgcn_target "amdgcn-amd-amdhsa--gfx950"\n.text\n.globl {NAME}_kernel\n.p2align 8\n.type {NAME}_kernel,@function\n'
    out += body
    out += f'''.section .rodata,"a"
.p2align 6
.amdhsa_kernel {NAME}_kernel
  .amdhsa_next_free_vgpr 256
  .amdhsa_next_free_sgpr 102
  .amdhsa_accum_offset 256
  .amdhsa_group_segment_fixed_size 0
  .amdhsa_kernarg_size 120
  .amdhsa_user_sgpr_count 2
  .amdhsa_user_sgpr_kernarg_segment_ptr 1
  .amdhsa_system_sgpr_workgroup_id_x 1
  .amdhsa_float_denorm_mode_32 3
.end_amdhsa_kernel
'''
    return out

if __name__ == '__main__':
    kw = {}
    for arg in sys.argv[2:]:
        k, v = arg.split('=')
        kw[k] = eval(v)
    open(sys.argv[1], 'w').write(gen(**kw))
```

```python
import sys, struct
from asmfw import Asm

NAME = 'adaLN_cond__gqa_block_cached__mixer_token_mlp__decode'

def f2u(x): return struct.unpack('<I', struct.pack('<f', x))[0]
LOG2E = 1.4426950408889634
SCALE = 128 ** -0.5

P1 = 0x10000; P2 = 0x20000; P3 = 0x30000; ML = 0x40000; ST0 = 0x50000; ST = 0x52000; STB = 0x1000; DI = 0x54000
RK = 0x60000; TAB = 0x68000; P4 = 0x80000; OB = 0x100000; DBG = 0x200000
RS = 6; RINGW = RS * 4096
WB = 4 * RINGW; WA = WB + 32768; MISC = WA + 16384
SC = 0; QL = 2048; HV = 4352; OV = 4864; MLW = 5376; CNT = 5760; WL = 5888; YT = 6144; SM = 6656
LDS_BYTES = 163840
C_W1, C_WQ, C_H, C_Q, C_M2, C_ML, C_RED, C_WO, C_WOF, C_TICK, C_T1, C_T2, C_PUB, C_VI, C_WL, C_RANK, C_YT, C_TAB, C_OV, C_MD, C_SM, C_RANK2, C_RANK3, C_AD, C_R1, C_WQF, C_GB, C_DIE = range(28)

HEADER = open('cdna_kernels/' + NAME + '.s.ref').read().split('; Override launch')[0]

DOC = r'''; ---------------------------------------------------------------------------------------------------------------
; One persistent launch, 256 workgroups (one per CU) of 8 waves.  b = workgroup id, kv group g = b>>6.
; ---------------------------------------------------------------------------------------------------------------
'''

def gen(F=6, NQ=60, k7=True, nt=' nt', wnt=' nt', stamps=False, warm=3, spf='', xbar=1, spin=1 << 19, psleep=16, xprio=3, aprio=1,
        T1=30, T2=56, exp='', enc=None, encd=False, eep=False, xs=0, xlate=False, TS=0, UC2=6, gb2=2, tight=0, lazy=True, fastpro=False, trim=False, obt=0, obf=' sc1', p12f=' sc1', h1late=0, otouch=False, osc='', UC=3, UM=None, EX=0, pd1=None, ps1=1, h1sleep=6, h1thr=48, fsleep=0, Fs=((0, 6), (120, 7)), TK=16, XTRA=0, h1m=1, NZ=16, AF=7, MLP_AT=7, dual=True, pretouch=1, RX=0, p3sleep=2, pd2=1, ps2=2, TR=14, T2AT=0, CF=8, ept=2, Fhi=None, Flo=None, rth=33, a1w=True, SPL=0, smp4=0, smp3=0, su=False, tlb=0, E0=101, TH=64, gbl=True):
    a = Asm()
    lite = stamps == 'lite'
    if lite: stamps = False
    SRD_K, SRD_V, SRD_WS, SRD_WQ, SRD_WO, SRD_WM = 's[4:7]', 's[8:11]', 's[12:15]', 's[16:19]', 's[20:23]', 's[24:27]'
    sX, sW1, sB1, sW2, sB2, sC, sOUT, sWS = 's[36:37]', 's[48:49]', 's[50:51]', 's[52:53]', 's[54:55]', 's[56:57]', 's[60:61]', 's[64:65]'
    sE, sI, sBase, sSpin = 's66', 's67', 's68', 's69'
    sT, sT2, sT4, sSelA, sSelB, sPi = 's86', 's87', 's88', 's89', 's90', 's91'
    MASK = lambda i: f's[{70+2*i}:{71+2*i}]'
    SOFF = lambda i: f's{92+i}'
    vM, vOne, vHi = 'v2', 'v3', 'v247'
    V = lambda i, n=1: f'v{i}' if n == 1 else f'v[{i}:{i+n-1}]'

    def stamp(i):
        if stamps:
            a(f's_memrealtime s[34:35]\ns_waitcnt lgkmcnt(0)\nv_writelane_b32 v255, s34, {i}')
    def mark(k):
        if enc == k: a('s_memrealtime s[62:63]')
    def setexec(mask):
        if mask == -1: a('s_mov_b64 exec, -1')
        elif mask < 64: a(f's_mov_b64 exec, {mask}')
        else: a(f's_mov_b32 exec_lo, {mask & 0xffffffff:#x}\ns_mov_b32 exec_hi, {mask >> 32:#x}')
    def arrive(c):
        a(f's_mov_b64 exec, 1\nds_add_u32 {vM}, {vOne} offset:{CNT + 4*c}\ns_mov_b64 exec, -1')
    def await_(c, n, tmp, sleep=1):
        L = a.lab('W'); D = a.lab('WD')
        a(f's_mov_b32 {sSpin}, {spin}')
        a(f'{L}:\nds_read_b32 {tmp}, {vM} offset:{CNT + 4*c}\ns_waitcnt lgkmcnt(0)\nv_readfirstlane_b32 s30, {tmp}')
        a(f's_cmp_ge_u32 s30, {n}\ns_cbranch_scc1 {D}')
        if sleep: a(f's_sleep {sleep}')
        a(f's_sub_u32 {sSpin}, {sSpin}, 1\ns_cbranch_scc0 {L}\n{D}:')
    def late_await(c, n, tmp, reads, work):
        D = a.lab('LA')
        a(f'ds_read_b32 {tmp}, {vM} offset:{CNT + 4*c}')
        reads()
        work()
        a(f's_waitcnt lgkmcnt(0)\nv_readfirstlane_b32 s30, {tmp}\ns_cmp_ge_u32 s30, {n}\ns_cbranch_scc1 {D}')
        await_(c, n, tmp, sleep=0)
        reads()
        a(f's_waitcnt lgkmcnt(0)\n{D}:')
    def rnd(r): a(f'v_cvt_pk_bf16_f32 {r}, 0, {r}')
    def tag(r): a(f'v_and_or_b32 {r}, {r}, {vHi}, {sT}')
    def untag(regs, fine=False):
        for r in regs: a(f'v_and_b32 v{r}, {"-4" if fine else vHi}, v{r}')
    DPP = {1: 'quad_perm:[1,0,3,2]', 2: 'quad_perm:[2,3,0,1]', 'hm': 'row_half_mirror', 'm': 'row_mirror', 'r4': 'row_ror:4', 'r8': 'row_ror:8'}
    def allred(op, r, t, steps=(1, 2, 'hm', 'm', 16, 32)):
        for s in steps:
            if s in DPP: a(f'{op}_dpp {r}, {r}, {r} {DPP[s]} row_mask:0xf bank_mask:0xf')
            else: a(f'v_mov_b32 {t}, {r}\nv_permlane{s}_swap_b32 {r}, {t}\n{op} {r}, {r}, {t}')
    def scat4(b):
        a(f'v_permlane32_swap_b32 v{b}, v{b+2}\nv_permlane32_swap_b32 v{b+1}, v{b+3}\nv_pk_add_f32 {V(b,2)}, {V(b,2)}, {V(b+2,2)}')
        a(f'v_permlane16_swap_b32 v{b}, v{b+1}\nv_add_f32 v{b}, v{b}, v{b+1}')
    def setup_tags():
        a(f's_add_u32 {sE}, {sE}, 1\ns_and_b32 {sT}, {sE}, 0xff\ns_mul_i32 {sT2}, {sT}, 0x101\ns_mul_i32 {sT4}, {sT}, 0x1010101')
        a(f's_mov_b32 {sSelA}, 0x0c0c0400\ns_mov_b32 {sSelB}, 0x04000c0c\nv_mov_b32 {vHi}, 0xffffff00')
        a(f's_and_b32 {sPi}, s2, 0xf8')
    def gather(loads, tmp, sleep=0, full=False, thr=None, alt=None):
        L = a.lab('G'); D = a.lab('GD')
        his = []
        for d, w, vo, off in loads:
            if off & ~0xfff not in his: his.append(off & ~0xfff)
        for i, h in enumerate(his): a(f's_mov_b32 {SOFF(i)}, {h:#x}')
        if alt: a(f's_add_u32 {SOFF(0)}, {SOFF(0)}, s44')
        def ld(d, w, vo, off):
            sfx = {1: 'dword', 2: 'dwordx2', 4: 'dwordx4'}[w]
            a(f'buffer_load_{sfx} {V(d, w)}, {vo}, {SRD_WS}, {SOFF(his.index(off & ~0xfff))} offen offset:{off & 0xfff} sc1')
        for x in loads: ld(*x)
        a(f's_mov_b32 {sSpin}, {spin}')
        a(f'{L}:')
        n = len(loads)
        for i, (d, w, vo, off) in enumerate(loads):
            a(f's_waitcnt vmcnt({n-1-i})')
            if w == 1: a(f'v_and_b32 {tmp}, 0xff, {V(d)}\nv_cmp_ne_u32 {MASK(i)}, {sT}, {tmp}')
            elif full:
                t2 = f'v{int(tmp[1:]) + 1}'
                a(f'v_perm_b32 {tmp}, {V(d+1)}, {V(d)}, {sSelA}\nv_perm_b32 {t2}, {V(d+3)}, {V(d+2)}, {sSelB}\nv_or_b32 {tmp}, {tmp}, {t2}')
                if full == 2: a(f'v_xor_b32 {tmp}, {sT4}, {tmp}\nv_and_b32 {tmp}, 0x03030303, {tmp}\nv_cmp_ne_u32 {MASK(i)}, 0, {tmp}')
                else: a(f'v_cmp_ne_u32 {MASK(i)}, {sT4}, {tmp}')
            else: a(f'v_perm_b32 {tmp}, {V(d+w-1)}, {V(d)}, {sSelA}\nv_cmp_ne_u32 {MASK(i)}, {sT2}, {tmp}')
        a(f's_or_b64 s[28:29], {MASK(0)}, {MASK(1 if n > 1 else 0)}')
        for i in range(2, n): a(f's_or_b64 s[28:29], s[28:29], {MASK(i)}')
        a(f's_cbranch_scc0 {D}')
        R, X = a.lab('GT'), a.lab('GX')
        a(f'{R}:\ns_sub_u32 {sSpin}, {sSpin}, 1\ns_cbranch_scc1 {X}')
        if sleep and thr is not None:
            S = a.lab('GN')
            a(f's_bcnt1_i32_b64 s30, {MASK(0)}')
            for i in range(1, n): a(f's_bcnt1_i32_b64 s31, {MASK(i)}\ns_add_u32 s30, s30, s31')
            a(f's_cmp_le_u32 s30, {thr}\ns_cbranch_scc1 {S}\ns_sleep {sleep}\n{S}:')
        elif sleep: a(f's_sleep {sleep}')
        for i, x in enumerate(loads):
            S = a.lab('GS')
            a(f's_wqm_b64 exec, {MASK(i)}\ns_cbranch_execz {S}')
            ld(*x)
            a(f'{S}:')
        a(f's_mov_b64 exec, -1\ns_waitcnt vmcnt(0)\ns_branch {L}\n{D}:')
        if alt:
            a(f'v_cmp_ne_u32 {MASK(0)}, {sE}, v{loads[0][0] + 3}\ns_cmp_lg_u64 {MASK(0)}, 0\ns_cbranch_scc1 {R}')
        a(f'{X}:')
    def gather_p(loads, tmp, depth=3, sleep=1, full=False, thr=None, bsleep=0):
        L = a.lab('G'); D = a.lab('GD')
        his = []
        for d, w, vo, off in loads:
            if off & ~0xfff not in his: his.append(off & ~0xfff)
        for i, h in enumerate(his): a(f's_mov_b32 {SOFF(i)}, {h:#x}')
        n = len(loads)
        def ld(d, w, vo, off):
            a(f'buffer_load_dwordx4 {V(d, w)}, {vo}, {SRD_WS}, {SOFF(his.index(off & ~0xfff))} offen offset:{off & 0xfff} sc1')
        for x in loads: ld(*x)
        a(f's_mov_b32 {sSpin}, {spin}\ns_waitcnt vmcnt(0)')
        a(f'{L}:')
        for i, (d, w, vo, off) in enumerate(loads):
            if full:
                t2 = f'v{int(tmp[1:]) + 1}'
                a(f'v_perm_b32 {tmp}, {V(d+1)}, {V(d)}, {sSelA}\nv_perm_b32 {t2}, {V(d+3)}, {V(d+2)}, {sSelB}\nv_or_b32 {tmp}, {tmp}, {t2}')
                a(f'v_cmp_ne_u32 {MASK(i)}, {sT4}, {tmp}')
            else: a(f'v_perm_b32 {tmp}, {V(d+w-1)}, {V(d)}, {sSelA}\nv_cmp_ne_u32 {MASK(i)}, {sT2}, {tmp}')
        a(f's_or_b64 s[28:29], {MASK(0)}, {MASK(1 if n > 1 else 0)}')
        for i in range(2, n): a(f's_or_b64 s[28:29], s[28:29], {MASK(i)}')
        a(f's_cbranch_scc0 {D}')
        a(f's_sub_u32 {sSpin}, {sSpin}, 1\ns_cbranch_scc1 {D}')
        if thr is not None:
            S = a.lab('GN')
            a(f's_bcnt1_i32_b64 s30, {MASK(0)}')
            for i in range(1, n): a(f's_bcnt1_i32_b64 s31, {MASK(i)}\ns_add_u32 s30, s30, s31')
            a(f's_cmp_le_u32 s30, {thr}\ns_cbranch_scc1 {S}\ns_sleep {bsleep}\n{S}:')
        for i, x in enumerate(loads):
            a(f's_or_b32 s{70+2*i}, s{70+2*i}, 1\ns_wqm_b64 exec, {MASK(i)}')
            ld(*x)
        a('s_mov_b64 exec, -1')
        if sleep: a(f's_sleep {sleep}')
        a(f's_waitcnt vmcnt({n*depth})\ns_branch {L}\n{D}:\ns_waitcnt vmcnt(0)')
    def gather_t(loads, tmp, done, issue_first=True, thr=None, bsleep=0):
        L = a.lab('G'); D = a.lab('GD')
        his = []
        for d, w, vo, off in loads:
            if off & ~0xfff not in his: his.append(off & ~0xfff)
        def ld(d, w, vo, off):
            a(f'buffer_load_dwordx4 {V(d, w)}, {vo}, {SRD_WS}, {SOFF(his.index(off & ~0xfff))} offen offset:{off & 0xfff} sc1')
        if issue_first:
            for i, h in enumerate(his): a(f's_mov_b32 {SOFF(i)}, {h:#x}')
            for x in loads: ld(*x)
        n = len(loads)
        a(f's_mov_b32 {sSpin}, {spin}\ns_mov_b32 s29, {(1 << n) - 1}')
        a(f'{L}:\ns_mov_b32 s28, 0\ns_waitcnt vmcnt(0)')
        for i, (d, w, vo, off) in enumerate(loads):
            S, R = a.lab('GS'), a.lab('GR')
            a(f's_bitcmp0_b32 s29, {i}\ns_cbranch_scc1 {S}')
            a(f'v_perm_b32 {tmp}, {V(d+3)}, {V(d)}, {sSelA}\nv_cmp_ne_u32 vcc, {sT2}, {tmp}\ns_cbranch_vccnz {R}')
            done(i)
            a(f's_bitset0_b32 s29, {i}\ns_branch {S}\n{R}:')
            if thr is not None: a('s_bcnt1_i32_b64 s31, vcc\ns_add_u32 s28, s28, s31')
            a('s_wqm_b64 exec, vcc')
            ld(d, w, vo, off)
            a(f's_mov_b64 exec, -1\n{S}:')
        a(f's_cmp_eq_u32 s29, 0\ns_cbranch_scc1 {D}')
        if thr is not None:
            S = a.lab('GN')
            a(f's_cmp_le_u32 s28, {thr}\ns_cbranch_scc1 {S}\ns_sleep {bsleep}\n{S}:')
        a(f's_sub_u32 {sSpin}, {sSpin}, 1\ns_cbranch_scc0 {L}\ns_waitcnt vmcnt(0)\n{D}:')
    def w_voff(dst, stride, t):
        a(f'v_lshrrev_b32 {t}, 3, v1\nv_mul_u32_u24 {dst}, {stride}, {t}')
        a(f'v_lshrrev_b32 {t}, 4, v1\nv_lshlrev_b32 {t}, 1, {t}\nv_xor_b32 {t}, {t}, v1\nv_and_b32 {t}, 7, {t}\nv_lshl_add_u32 {dst}, {t}, 4, {dst}')
    def w_traddr(dst, base, t, t2):
        a(f'v_lshrrev_b32 {t}, 2, v1\nv_lshlrev_b32 {dst}, 7, {t}')
        a(f'v_and_b32 {t}, 6, {t}')
        a(f'v_lshrrev_b32 {t2}, 1, v1\nv_and_b32 {t2}, 1, {t2}\nv_lshl_add_u32 {t2}, {sI}, 1, {t2}')
        a(f'v_xor_b32 {t}, {t}, {t2}\nv_lshl_add_u32 {dst}, {t}, 4, {dst}')
        a(f'v_and_b32 {t}, 1, v1\nv_lshl_add_u32 {dst}, {t}, 3, {dst}\nv_add_u32 {dst}, {base}, {dst}')
    def w_read(areg, addr, nks):
        for ks in range(nks):
            a(f'ds_read_b64_tr_b16 {V(areg+4*ks, 2)}, {addr} offset:{ks*4096}')
            a(f'ds_read_b64_tr_b16 {V(areg+4*ks+2, 2)}, {addr} offset:{ks*4096+2048}')
    def b_read(breg, addr, nks):
        for ks in range(nks):
            a(f'ds_read2_b64 {V(breg+4*ks, 4)}, {addr} offset0:{8*ks} offset1:{8*ks+4}')
    def w_mfma(d, areg, breg, nks, staged=False):
        for ks in range(nks):
            if staged: a(f's_waitcnt lgkmcnt({nks-1-ks})')
            a(f'v_mfma_f32_16x16x32_bf16 {V(d,4)}, {V(areg+4*ks,4)}, {V(breg+4*ks,4)}, {"0" if ks == 0 else V(d,4)}')
    def ln_scale(mean, var):
        rnd(var); rnd(mean)
        a(f'v_add_f32 {var}, {f2u(1e-5):#x}, {var}'); rnd(var)
        a(f'v_sqrt_f32 {var}, {var}'); rnd(var)
        a(f'v_rcp_f32 {var}, {var}')
    c0 = -2 * LOG2E * 0.7978845608028654; c1 = c0 * 0.044715
    def gelu_units(units, U, Z, NB):
        for s0 in range(0, len(units), NB):
            blk = list(enumerate(units[s0:s0+NB]))
            R2 = lambda base, k: V(base + 2*k, 2)
            def both(fn):
                for k, _ in blk:
                    fn(2*k); fn(2*k+1)
            for k, (first, last) in blk: a(first(R2(U, k)))
            for k, _ in blk: a(f'v_pk_mul_f32 {R2(Z,k)}, {R2(U,k)}, {R2(U,k)}')
            for k, _ in blk: a(f'v_pk_fma_f32 {R2(Z,k)}, {R2(Z,k)}, v[44:45], v[44:45] op_sel:[0,0,1] op_sel_hi:[1,0,1]')
            for k, _ in blk: a(f'v_pk_mul_f32 {R2(Z,k)}, {R2(Z,k)}, {R2(U,k)}')
            both(lambda r: a(f'v_exp_f32 {V(Z+r)}, {V(Z+r)}'))
            for k, _ in blk: a(f'v_pk_add_f32 {R2(Z,k)}, {R2(Z,k)}, 1.0 op_sel_hi:[1,0]')
            both(lambda r: a(f'v_rcp_f32 {V(Z+r)}, {V(Z+r)}'))
            for k, _ in blk: a(f'v_pk_mul_f32 {R2(U,k)}, {R2(U,k)}, {R2(Z,k)}')
            for k, (first, last) in blk: a(last(R2(U, k)))

    tails = []
    def st_reduce(b):
        untag(range(b, b + 3))
        scat4(b)
        allred('v_add_f32', f'v{b}', None, (2, 'r4', 'r8'))
    def st_publish(base):
        scat4(20)
        allred('v_add_f32', 'v20', None, (1, 2, 'hm'))
        a(f'v_and_or_b32 v20, v20, {vHi}, v158')
        setexec(0x0101010101010101)
        Lb, Le = a.lab('SB'), a.lab('SE')
        a(f's_cmp_lg_u32 s44, 0\ns_cbranch_scc1 {Lb}\nbuffer_store_dword v20, v31, {SRD_WS}, {base} offen')
        a(f'{Le}:\ns_mov_b64 exec, -1')
        tails.append(f'{Lb}:\ns_add_u32 {base}, {base}, s44\nbuffer_store_dword v20, v31, {SRD_WS}, {base} offen sc1\ns_branch {Le}')
    def red_setup():
        a(f'v_lshrrev_b32 v9, 4, v1\nv_and_b32 v13, 7, v1\nv_lshl_add_u32 v30, v13, 2, v9\nv_lshl_add_u32 v30, {sPi}, 2, v30\nv_lshlrev_b32 v29, 1, v30\nv_lshlrev_b32 v30, 2, v30')
        a(f'v_lshrrev_b32 v11, 3, v1\nv_and_b32 v11, 1, v11\nv_cmp_eq_u32 s[100:101], 1, v11\nv_lshl_add_u32 v28, v11, 15, v30')
        a(f'v_lshlrev_b32 v31, 4, v11\nv_lshl_add_u32 v31, v9, 2, v31\nv_lshl_add_u32 v31, {sPi}, 2, v31\nv_lshlrev_b32 v5, 4, v1')
        a(f'v_lshl_add_u32 v6, v1, 4, {vM}')
        a(f'v_mov_b32 v151, {sE}\nv_mov_b32 v158, {sT}\nv_cmp_eq_u32 vcc, 3, v9\nv_cndmask_b32 v158, v158, v151, vcc')
    def die_mode():
        await_(C_DIE, 1, 'v12', sleep=1)
        a(f's_cmp_eq_u32 s30, 1\ns_cselect_b32 s44, 0, {STB}')

    def wo_setup(j):
        a('v_lshrrev_b32 v11, 2, v1\nv_lshlrev_b32 v68, 9, v11\nv_and_b32 v74, 7, v11\nv_lshlrev_b32 v74, 1, v74')
        a(f'v_lshrrev_b32 v75, 1, v1\nv_and_b32 v75, 1, v75\nv_lshl_add_u32 v75, {sI}, 3, v75\nv_xor_b32 v74, v74, v75\nv_lshl_add_u32 v68, v74, 4, v68')
        a(f'v_and_b32 v74, 1, v1\nv_lshl_add_u32 v68, v74, 3, v68\nv_add_u32 v68, {WB if j == 0 else 16384}, v68')
        for i in range(1, 4): a(f'v_xor_b32 v{68+i}, {i << 5:#x}, v68')
        if j == 1:
            for i in range(4): a(f'v_mov_b32 v{84+i}, v{68+i}\nv_add_u32 v{88+i}, {2*RINGW}, v{68+i}')
        for r in range(202, 234): a(f'v_mov_b32 v{r}, 0')
        a(f'v_lshrrev_b32 v75, 4, v1\nv_lshl_add_u32 v72, v75, 3, {vM}\nv_add_u32 v72, {OV}, v72\nv_lshlrev_b32 v73, 4, v75\nv_lshl_add_u32 v73, v74, 6, v73')
        a('v_and_b32 v74, 2, v1\nv_lshl_add_u32 v73, v74, 12, v73')
        a('s_lshr_b32 s45, s33, 1\ns_lshr_b32 s30, s2, 6\ns_lshl_b32 s30, s30, 4\ns_add_u32 s45, s45, s30\ns_lshl_b32 s45, s45, 7')
        a(f's_and_b32 s30, s33, 1\ns_lshl_b32 s30, s30, 17\ns_add_u32 s45, s45, s30\ns_lshl_b32 s30, {sI}, 14\ns_add_u32 s45, s45, s30\ns_add_u32 s45, s45, {P4 + 0x10000*j}')
    def wo_finish():
        a('s_waitcnt lgkmcnt(0)\ns_barrier')
        for ct in range(4):
            setexec(0x0001000100010001 << ct)
            b_read(202 + 8*ct, 'v72', 2)
        setexec(-1)
        w_mfma(24, 120, 202, 8, staged=True)
        setexec(0x000f000f000f000f)
        for e in (0, 3): tag(V(24+e))
        a(f'buffer_store_dwordx4 v[24:27], v73, {SRD_WS}, s45 offen sc1')
        setexec(-1)

    a(f'{NAME}_kernel:')
    def sus(k):
        if su: a(f's_memrealtime s[{70+2*k}:{71+2*k}]')
    def warm_code():
        a('s_getpc_b64 s[32:33]\nL_pc:')
        a(f'v_lshlrev_b32 v4, 7, v0\nv_cmp_gt_u32 vcc, L_code_end-L_pc-4, v4\ns_and_saveexec_b64 s[28:29], vcc\ns_cbranch_execz L_nowarm')
        a('global_load_dword v254, v4, s[32:33]\nL_nowarm:\ns_mov_b64 exec, -1')
    if fastpro:
        a('s_lshr_b32 s30, s2, 8\ns_cbranch_scc1 L_end\ns_load_dwordx2 s[24:25], s[0:1], 88')
        a('v_readfirstlane_b32 s3, v0\nv_lshrrev_b32 v26, 3, v0\ns_and_b32 s30, s2, 7\nv_and_b32 v27, 6, v26\nv_lshl_add_u32 v26, s30, 7, v26')
        a('v_xor_b32 v27, v27, v0\ns_andn2_b32 s31, s2, 7\nv_and_b32 v27, 7, v27\nv_mul_u32_u24 v26, 12288, v26\nv_or_b32 v27, s31, v27')
        a(f's_lshl_b32 s31, s3, 4\nv_lshl_add_u32 v26, v27, 4, v26\ns_add_u32 m0, s31, {WA}\nv_add_u32 v27, {64*12288}, v26')
        a(f's_waitcnt lgkmcnt(0)\nglobal_load_lds_dwordx4 v26, s[24:25]{wnt}\ns_add_u32 m0, s31, {WA + 8192}\nglobal_load_lds_dwordx4 v27, s[24:25]{wnt}')
        if lite: a('s_memrealtime s[34:35]')
        a('s_load_dwordx2 s[16:17], s[0:1], 24\ns_load_dwordx16 s[36:51], s[0:1], 0')
        a('s_load_dwordx8 s[52:59], s[0:1], 64\ns_load_dwordx4 s[60:63], s[0:1], 96\ns_load_dwordx2 s[64:65], s[0:1], 112')
        if warm is True: warm_code()
        a('s_lshr_b32 s3, s3, 6\nv_and_b32 v1, 63, v0\ns_mov_b32 s26, 0xc00000\ns_mov_b32 s27, 0x20000')
        w_voff('v236', 12288, 'v26')
        a('s_waitcnt lgkmcnt(0)')
    else:
        a('s_cmp_ge_u32 s2, 256\ns_cbranch_scc1 L_end')
        if lite or enc: a('s_memrealtime s[34:35]')
        def sus(k):
            if su: a(f's_memrealtime s[{70+2*k}:{71+2*k}]')
        sus(0)
        a('s_load_dwordx2 s[24:25], s[0:1], 88\ns_load_dwordx2 s[16:17], s[0:1], 24\ns_load_dwordx16 s[36:51], s[0:1], 0')
        a('s_load_dwordx8 s[52:59], s[0:1], 64\ns_load_dwordx4 s[60:63], s[0:1], 96\ns_load_dwordx2 s[64:65], s[0:1], 112')
        if warm is True:
            a('s_getpc_b64 s[32:33]\nL_pc:')
            if warm == 2: a('v_xor_b32 v4, 0x100, v0\nv_lshlrev_b32 v4, 7, v4')
            else: a('v_lshlrev_b32 v4, 7, v0')
            a(f'v_cmp_gt_u32 vcc, L_code_end-L_pc-4, v4\ns_and_saveexec_b64 s[28:29], vcc\ns_cbranch_execz L_nowarm')
            a('global_load_dword v254, v4, s[32:33]\nL_nowarm:\ns_mov_b64 exec, -1')
        a('v_lshrrev_b32 v1, 6, v0\nv_readfirstlane_b32 s3, v1\nv_and_b32 v1, 63, v0')
        w_voff('v236', 12288, 'v26')
        a(f's_and_b32 s30, s2, 7\ns_lshl_b32 s30, s30, 3\ns_add_u32 s30, s30, s3\ns_mul_i32 s32, s30, {16*12288}\ns_lshr_b32 s30, s2, 3\ns_lshl_b32 s30, s30, 7\ns_add_u32 s32, s32, s30')
        a(f's_lshl_b32 s31, s3, 11\ns_add_u32 m0, s31, {WA}\ns_mov_b32 s26, 0xc00000\ns_mov_b32 s27, 0x20000\ns_add_u32 s33, s32, {8*12288 - 1024}')
        sus(1)
        a('s_waitcnt lgkmcnt(0)')
        sus(2)
        a(f'buffer_load_dwordx4 v236, {SRD_WM}, s32 offen{wnt} lds\nbuffer_load_dwordx4 v236, {SRD_WM}, s33 offen offset:1024{wnt} lds')
        sus(3)
    a(f's_mov_b64 s[20:21], s[44:45]\ns_and_b32 {sI}, s3, 3\ns_mov_b32 s18, 0x800000\ns_mov_b32 s19, 0x20000')
    def common2(x):
        a(f'v_mov_b32 {vM}, {MISC}\nv_mov_b32 {vOne}, 1')
        if stamps: a('v_mov_b32 v255, 0')
        a('s_mov_b32 s6, 0x4000000\ns_mov_b32 s7, 0x20000\ns_mov_b32 s10, 0x4000000\ns_mov_b32 s11, 0x20000')
        a('s_mov_b32 s14, 0x10000000\ns_mov_b32 s15, 0x20000\ns_mov_b32 s22, 0x800000\ns_mov_b32 s23, 0x20000')
        for srd, p in ((4, 38), (8, 40), (12, 64)):
            a(f's_mov_b64 s[{srd}:{srd+1}], s[{p}:{p+1}]')
    if xbar == 1: a('s_cmp_lt_u32 s3, 4\ns_cbranch_scc1 L_A\ns_barrier\ns_branch L_X\nL_A:')
    elif xbar == 2:
        a('s_cmp_lt_u32 s3, 4\ns_cbranch_scc1 L_A')
        a(f'v_lshlrev_b32 v27, 2, v1\nv_add_u32 v27, {MISC}, v27\nv_mov_b32 v28, 0')
        setexec(0xffffffff); a(f'ds_write_b32 v27, v28 offset:{CNT}'); setexec(-1)
        a('s_waitcnt lgkmcnt(0)\ns_barrier\ns_branch L_X\nL_A:')
    else: a('s_cmp_ge_u32 s3, 4\ns_cbranch_scc1 L_X')

    VOFF, KA, VA, Q, S, H = 4, 8, 16, 32, 64, 96
    PP, D1, D2, VS = 32, 96, 128, 160
    vMax, vSum = 'v224', 'v225'
    a('; ==== A waves')
    if aprio: a(f's_setprio {aprio}')
    seq = [('w1', i) for i in range(2)] + [('wq', i) for i in range(8)]
    seq += [('kv', i) for i in range(128)] + [('fill', k) for k in range(8)]
    if k7:
        pair_slot = [0, 2, 4, 0, 2, 4, 0, 6] + [2, 0, 4, 0, 2, 4, 0, 2]
        slot_of = lambda gi: pair_slot[gi >> 1] + (gi & 1)
    else:
        slot_of = lambda gi: gi % RS if gi < 28 else gi - 28
    pos = {e: n for n, e in enumerate(seq)}
    NS = len(seq)
    Fbase = (lambda n: [f for (n0, f) in Fs if n0 <= n][-1]) if Fs else (lambda n: F)
    NV = pos[('kv', 127)]
    CTL = NV - TR + F + 4 if Fhi else NS + 1
    Fn = lambda n: Fhi if CTL <= n <= NV else Fbase(n)
    FI = Fn(0)
    def landed_at(k):
        n = k + 1
        while n < FI or n - Fn(n) < k: n += 1
        return n
    a(f's_lshl_b32 s59, {sI}, 13')
    vorder = []
    for u in range(4): vorder += [4*u, 4*u+2, 4*u+1, 4*u+3]
    def issue(n):
        kind, i = seq[n]
        if kind == 'kv':
            gi, j = i // 4, i % 4
            if j == 0 or seq[n-1][0] != 'kv':
                grp = gi if gi < 16 else vorder[gi - 16]
                a(f's_add_u32 s39, {sBase}, {grp*16384}')
                a(f's_add_u32 m0, s38, {slot_of(gi)*4096}' if slot_of(gi) < RS else f's_add_u32 m0, s59, {WB + (slot_of(gi) - RS)*4096}')
            a(f'buffer_load_dwordx4 v{VOFF+j}, {SRD_K if gi < 16 else SRD_V}, s39 offen offset:{j*1024}{nt} lds')
        else:
            srd, vo, so, stride, lb, sl = {'wq': (SRD_WQ, 'v237', 's47', 8192, WB, 's59')}[kind]
            a(f's_add_u32 s32, {so}, {8*i*stride}\ns_add_u32 m0, {sl}, {lb + i*1024}')
            a(f'buffer_load_dwordx4 {vo}, {srd}, s32 offen{wnt} lds')
    w_voff('v237', 8192, 'v26')
    a(f's_and_b32 s30, s2, 3\ns_lshl_b32 s30, s30, 2\ns_add_u32 s30, s30, {sI}\ns_lshl_b32 s47, s30, 19')
    a('s_lshr_b32 s30, s2, 2\ns_lshl_b32 s30, s30, 7\ns_add_u32 s47, s47, s30')
    sus(4)
    for n in range(2, FI): issue(n)
    sus(5)
    if xbar == 2:
        a('s_barrier')
        common2(False)
        a(f's_load_dword {sE}, {sWS}, 12')
    else:
        common2(False)
        a('s_cmp_lg_u32 s3, 3\ns_cbranch_scc1 L_noinit')
        a(f'v_lshl_add_u32 v27, v1, 2, {vM}\nv_mov_b32 v28, 0')
        setexec(0xffffffff); a(f'ds_write_b32 v27, v28 offset:{CNT}'); setexec(-1)
        a('s_waitcnt lgkmcnt(0)\nL_noinit:')
        sus(6)
        a(f's_barrier\ns_load_dword {sE}, {sWS}, 12')
    sus(7)
    stamp(0)
    stamp(16)
    a('v_lshrrev_b32 v24, 4, v1\nv_and_b32 v25, 15, v1')
    a('v_lshlrev_b32 v26, 1, v24\nv_xor_b32 v26, v26, v25\nv_lshlrev_b32 v26, 4, v26\nv_lshl_add_u32 v4, v24, 8, v26')
    for i in range(1, 4): a(f'v_xor_b32 v{VOFF+i}, {(8*(i&1) + (i>>1)) << 4:#x}, v4')
    a(f's_lshl_b32 {sBase}, s2, 18\ns_lshl_b32 s30, s3, 12\ns_add_u32 {sBase}, {sBase}, s30')
    a(f's_mul_i32 s38, s3, {RINGW}')
    def t_setup():
        a('; LDS read addresses of K fragments (v8-15) and transposed V fragments (v16-23)')
        a('v_and_b32 v26, 7, v25\nv_lshlrev_b32 v26, 1, v26\nv_lshrrev_b32 v27, 3, v25\nv_or_b32 v26, v26, v27')
        a('v_lshrrev_b32 v27, 1, v24\nv_xor_b32 v26, v26, v27\nv_lshlrev_b32 v26, 4, v26\nv_lshl_add_u32 v26, v25, 8, v26')
        a(f'v_and_b32 v27, 1, v24\nv_lshl_add_u32 v26, v27, 12, v26\nv_add_u32 v{KA}, s38, v26')
        for j in range(1, 8): a(f'v_xor_b32 v{KA+j}, {j << 5:#x}, v{KA}')
        a('v_lshrrev_b32 v27, 2, v1')
        a('v_and_b32 v26, 7, v27\nv_lshlrev_b32 v26, 1, v26\nv_lshrrev_b32 v28, 3, v27\nv_or_b32 v26, v26, v28')
        a('v_lshrrev_b32 v28, 1, v1\nv_and_b32 v28, 1, v28\nv_xor_b32 v26, v26, v28\nv_lshlrev_b32 v26, 4, v26\nv_lshl_add_u32 v26, v27, 8, v26')
        a(f'v_and_b32 v28, 1, v1\nv_lshl_add_u32 v26, v28, 3, v26\nv_add_u32 v{VA}, s38, v26')
        for t in range(1, 8): a(f'v_xor_b32 v{VA+t}, {t << 5:#x}, v{VA}')
    def t_setup2():
        if su:
            a('s_memrealtime s[92:93]\ns_waitcnt lgkmcnt(0)\nv_mov_b32 v40, 0')
            for k in range(8): a(f'v_writelane_b32 v40, s{70+2*k}, {k}')
            a(f'v_writelane_b32 v40, s92, 8\ns_lshl_b32 s30, s2, 10\ns_add_u32 s30, s30, {DBG + 0x10000}\nv_lshlrev_b32 v41, 2, v0')
            a(f'buffer_store_dword v40, v41, {SRD_WS}, s30 offen')
        for r in range(Q, Q + 32): a(f'v_mov_b32 v{r}, 0')
        a(f'v_mov_b32 {vMax}, 0xff800000\nv_mov_b32 {vSum}, 0')
        a(f's_mov_b32 s40, {f2u(SCALE):#x}\ns_mov_b32 s41, {f2u(LOG2E):#x}')
    def t_setup3():
        w_traddr('v28', 0, 'v26', 'v27')
        a('s_lshr_b32 s42, s2, 6')
        a('v_lshrrev_b32 v26, 5, v1\nv_lshlrev_b32 v27, 1, v26\nv_xor_b32 v27, v27, v1\nv_and_b32 v27, 31, v27\nv_lshlrev_b32 v27, 4, v27\nv_lshl_add_u32 v238, v26, 11, v27')
        for i in range(1, 4): a(f'v_xor_b32 v{238+i}, {i << 6:#x}, v238')
        a(f'v_add_u32 v29, {2*RINGW}, v28\nv_lshl_add_u32 v30, v24, 3, {vM}\nv_lshl_add_u32 v30, s42, 9, v30\nv_lshlrev_b32 v242, 4, v24')
        a('v_and_b32 v26, 7, v1\nv_mul_u32_u24 v26, 528, v26\nv_lshl_add_u32 v26, v24, 4, v26\nv_add_u32 v31, s38, v26')
        a('s_waitcnt lgkmcnt(0)')
        setup_tags()
    def t_readK(t, h):
        def f():
            a('; K tile -> registers')
            if slot_of(2*t) >= RS:
                a(f's_sub_u32 s30, s59, s38\ns_add_u32 s30, s30, {WB}')
                for j in range(8): a(f'v_add_u32 v{KA+j}, s30, v{KA+j}')
            for j in range(8): a(f'ds_read_b128 {V(H+32*h+4*j,4)}, v{KA+j} offset:{(slot_of(2*t) % RS)*4096}')
            a('s_waitcnt lgkmcnt(0)')
        return f
    def t_waitq():
        a('; wait for q, block-diagonal Q operands')
        stamp(1)
        await_(C_Q, 4, 'v26')
        stamp(2)
        a(f'v_and_b32 v26, 7, v1\nv_mul_u32_u24 v26, 272, v26\nv_lshrrev_b32 v27, 5, v1\nv_lshl_add_u32 v26, v27, 4, v26\nv_add_u32 v26, {MISC+QL}, v26')
        setexec(0xff0000ffff0000ff)
        for j in range(8): a(f'ds_read_b128 {V(Q+4*j,4)}, v26 offset:{32*j}')
        setexec(-1)
        a('s_waitcnt lgkmcnt(0)')
    def t_qk(t, h):
        def f():
            a('; scores of 32 keys x 8 heads')
            for j in range(8):
                a(f'v_mfma_f32_16x16x32_bf16 {V(S+4*t,4)}, {V(H+32*h+4*j,4)}, {V(Q+4*j,4)}, {"0" if j == 0 else V(S+4*t,4)}')
        return f
    def t_round(t):
        def f():
            a('; bf16 rounding, scale, bf16 rounding, running maximum')
            for r in range(4): rnd(V(S+4*t+r))
            for r in range(4): a(f'v_mul_f32 {V(S+4*t+r)}, s40, {V(S+4*t+r)}')
            for r in range(4): rnd(V(S+4*t+r))
            a(f'v_max3_f32 {vMax}, {vMax}, {V(S+4*t)}, {V(S+4*t+1)}\nv_max3_f32 {vMax}, {vMax}, {V(S+4*t+2)}, {V(S+4*t+3)}')
        return f
    def t_max():
        allred('v_max_f32', vMax, 'v26', ('r8', 16, 32))
        a(f'v_mul_f32 {vMax}, s41, {vMax}')
    def t_exp(t):
        def f():
            a('; exp, packed probabilities, running sum')
            for r in range(4): a(f'v_fma_f32 {V(S+4*t+r)}, {V(S+4*t+r)}, s41, -{vMax}')
            for r in range(4): a(f'v_exp_f32 {V(S+4*t+r)}, {V(S+4*t+r)}')
            a(f'v_cvt_pk_bf16_f32 {V(PP+2*t)}, {V(S+4*t)}, {V(S+4*t+1)}\nv_cvt_pk_bf16_f32 {V(PP+2*t+1)}, {V(S+4*t+2)}, {V(S+4*t+3)}')
            a(f'v_add_f32 v26, {V(S+4*t)}, {V(S+4*t+1)}\nv_add_f32 v27, {V(S+4*t+2)}, {V(S+4*t+3)}\nv_add_f32 v26, v26, v27\nv_add_f32 {vSum}, {vSum}, v26')
        return f
    def t_ml():
        allred('v_add_f32', vSum, 'v26', ('r8', 16, 32))
        a(f'v_lshl_add_u32 v26, v1, 2, {vM}\nv_lshl_add_u32 v26, s3, 6, v26')
        setexec(0xff)
        a(f'ds_write_b32 v26, {vMax} offset:{MLW}\nds_write_b32 v26, {vSum} offset:{MLW+32}')
        arrive(C_ML)
        stamp(3)
    def readV(p, half):
        slot = slot_of(16 + 2*p + half)
        for t in range(8):
            a(f'ds_read_b64_tr_b16 {V(VS+4*t+2*half,2)}, v{VA+t} offset:{slot*4096}')
    def pv(p, staged):
        u, which = p >> 1, p & 1
        Dd = D2 if which else D1
        for t in range(8):
            if staged: a(f's_waitcnt lgkmcnt({7-t})')
            a(f'v_mfma_f32_16x16x32_bf16 {V(Dd+4*t,4)}, {V(VS+4*t,4)}, {V(PP+4*u,4)}, {"0" if u == 0 else V(Dd+4*t,4)}')
    def t_pv(p):
        def f():
            a('; PV of two 16-key groups')
            readV(p, 0); readV(p, 1); pv(p, True)
        return f
    def writeD(which):
        setexec(0xff00ff00ff00ff00 if which else 0x00ff00ff00ff00ff)
        for t in range(8):
            a(f'ds_write_b128 v31, {V((D2 if which else D1)+4*t,4)} offset:{which*4352 + 64*t}')
        setexec(-1)
    def wg_stats(head, mreg, lreg):
        a(f'v_lshl_add_u32 v27, {head}, 2, {vM}')
        for w in range(4): a(f'ds_read_b32 v{mreg+w}, v27 offset:{MLW + 64*w}')
        if lreg:
            for w in range(4): a(f'ds_read_b32 v{lreg+w}, v27 offset:{MLW + 64*w + 32}')
        a('s_waitcnt lgkmcnt(0)')
        a(f'v_max3_f32 v26, v{mreg}, v{mreg+1}, v{mreg+2}\nv_max_f32 v26, v26, v{mreg+3}'); untag([26])
        for w in range(4): a(f'v_sub_f32 v{mreg+w}, v{mreg+w}, v26')
        for w in range(4): a(f'v_exp_f32 v{mreg+w}, v{mreg+w}')
    def t_mlpub():
        a('; workgroup maximum / sum record (wave 0)')
        await_(C_ML, 4, 'v26')
        Ls = a.lab('MP')
        a(f's_cmp_lg_u32 s3, 0\ns_cbranch_scc1 {Ls}')
        a('v_and_b32 v72, 7, v1')
        wg_stats('v72', 64, 68)
        a(f'v_or_b32 v76, {sT}, v26\nv_mul_f32 v77, v64, v68\nv_fmac_f32 v77, v65, v69\nv_fmac_f32 v77, v66, v70\nv_fmac_f32 v77, v67, v71')
        tag('v77')
        a(f'v_mov_b32 v78, {sT}\nv_mov_b32 v79, {sT}\nv_lshlrev_b32 v72, 4, v72\ns_lshl_b32 s30, s2, 7\ns_add_u32 s30, s30, {ML}')
        setexec(0xff)
        a(f'buffer_store_dwordx4 v[76:79], v72, {SRD_WS}, s30 offen sc1')
        setexec(-1)
        a(f'{Ls}:')
    def t_fread():
        a('; rescale factors of the four waves, addresses of the final reduction')
        a('v_lshrrev_b32 v232, 5, v0')
        wg_stats('v232', 228, None)
        a('v_mul_u32_u24 v26, 528, v232\nv_and_b32 v27, 31, v0\nv_lshl_add_u32 v232, v27, 4, v26')
        a(f'v_add_u32 v233, {2*RINGW}, v232\nv_and_b32 v234, 15, v0\nv_lshlrev_b32 v234, 4, v234\nv_lshrrev_b32 v26, 4, v0\nv_lshl_add_u32 v234, v26, 14, v234')
        a(f's_lshr_b32 s45, s2, 6\ns_lshl_b32 s45, s45, 18\ns_and_b32 s30, s2, 63\ns_lshl_b32 s30, s30, 8\ns_add_u32 s45, s45, s30\ns_add_u32 s45, s45, {OB}')

    sched = {}
    def at(n, f): sched.setdefault(n, []).append(f)
    land = lambda t: landed_at(pos[('kv', 8*t + 7)])
    def reuse(t):
        later = [g for g in range(2*t + 2, 32) if slot_of(g) == slot_of(2*t)]
        return pos[('kv', 4*later[0])] if later else NS + 100
    at(landed_at(pos[('w1', 1)]), lambda: (a('s_waitcnt lgkmcnt(0)') if eep else None, arrive(C_W1)))
    at(landed_at(pos[('w1', 1)]) + 1, t_setup)
    at(landed_at(pos[('w1', 1)]) + 3, t_setup2)
    at(landed_at(pos[('wq', 7)]), lambda: arrive(C_WQ))
    at(landed_at(pos[('wq', 7)]) + 1, t_setup3)
    if T1: at(T1, lambda: arrive(C_T1))
    if T2: at(T2, lambda: arrive(C_T2))
    for t in range(4): at(land(t), t_readK(t, t))
    nq = pos[('kv', NQ)]
    assert nq >= land(3)
    at(nq, t_waitq)
    n = nq + 1
    free_h = {}
    step = 1 if k7 else 2
    if k7: at(pos[('kv', 56)] - 1, lambda: await_(C_WQF, 4, 'v26'))
    for t in range(4):
        at(n, t_qk(t, t)); free_h[t] = n + 1
        at(n + 1, t_round(t))
        n += step
    rd = {}
    for t in range(4, 8):
        rd[t] = max(free_h[t-4], land(t), rd.get(t-1, 0))
        assert rd[t] < reuse(t), (t, rd[t])
        at(rd[t], t_readK(t, t - 4))
    for t in range(4, 8):
        n = max(n, rd[t] + 1)
        at(n, t_qk(t, t - 4)); at(n + 1, t_round(t)); n += step
    n += 2 - step
    at(n, t_max); n += 1
    for t in range(8):
        at(n, t_exp(t))
        if t & 1: n += 1
    at(n, t_ml); at(n + MLP_AT, t_mlpub); at(n + MLP_AT + 4, t_fread); n += 1
    NV = pos[('kv', 127)]
    late = []
    t_d1 = lambda: (writeD(0), arrive(C_R1))
    for p in range(7):
        m = max(n, land(8 + p))
        assert m < reuse(8 + p), (p, m)
        if m <= NV: at(m, t_pv(p))
        else: late.append((pos[('kv', 64 + 8*p + 7)], t_pv(p)))
        n = m + 1
    if n <= NV: at(n, t_d1)
    else: late.append((pos[('kv', 119)], t_d1))
    ACC = 208
    def red_half(hf, base):
        for w in range(4):
            a(f'ds_read_b128 {V(base+4*w,4)}, v{232 + (w >> 1)} offset:{(w & 1)*RINGW + hf*4352}')
        for w in range(4):
            a(f's_waitcnt lgkmcnt({3-w})')
            sel = w & 1; fp = V(228 + (w & 2), 2)
            for h2 in range(2):
                if w == 0 and hf == 0: a(f'v_pk_mul_f32 {V(ACC+2*h2,2)}, {V(base+2*h2,2)}, {fp} op_sel:[0,{sel}] op_sel_hi:[1,{sel}]')
                else: a(f'v_pk_fma_f32 {V(ACC+2*h2,2)}, {V(base+4*w+2*h2,2)}, {fp}, {V(ACC+2*h2,2)} op_sel:[0,{sel},0] op_sel_hi:[1,{sel},1]')
    def t_pre():
        a('v_and_b32 v27, 8, v1\nv_xor_b32 v27, 8, v27\nv_mul_u32_u24 v27, 544, v27\nv_add_u32 v31, v31, v27')
        await_(C_R1, 4, 'v26', sleep=0)
        red_half(0, 192)
    def t_final():
        a('; last PV step, reduction over the waves, publish the partial output')
        stamp(4)
        readV(7, 1)
        def wr(t): a(f'ds_write_b128 v31, {V(D2+4*t,4)} offset:{4352 + 64*t}')
        for t in range(8):
            a(f's_waitcnt lgkmcnt({7 - t + max(0, t - 4)})')
            a(f'v_mfma_f32_16x16x32_bf16 {V(D2+4*t,4)}, {V(VS+4*t,4)}, {V(PP+12,4)}, {V(D2+4*t,4)}')
            if t >= 4: wr(t - 4)
        for t in range(4, 8): wr(t)
        arrive(C_RED)
        await_(C_RED, 4, 'v26', sleep=0)
        red_half(1, 192)
        for e in (0, 3): tag(V(ACC+e))
        if 'halfob' in exp: setexec(0x00ff00ff00ff00ff)
        a(f'buffer_store_dwordx4 {V(ACC,4)}, v234, {SRD_WS}, s45 offen{obf}')
        arrive(C_PUB)
        stamp(5)
    def draw():
        Ls = a.lab('RK')
        a(f's_cmp_lg_u32 s3, 0\ns_cbranch_scc1 {Ls}')
        a(f's_lshl_b32 s30, s42, 12\ns_add_u32 s30, s30, {RK}\nv_mov_b32 v72, 1\nv_mov_b32 v73, 0')
        setexec(1)
        a(f'buffer_atomic_add v72, v73, {SRD_WS}, s30 offen sc0 sc1')
        setexec(-1)
        a(f'{Ls}:')
    def post(c):
        Ls = a.lab('RK')
        a(f's_cmp_lg_u32 s3, 0\ns_cbranch_scc1 {Ls}')
        setexec(1)
        a(f'v_add_u32 v72, 1, v72\nds_write_b32 {vM}, v72 offset:{CNT + 4*c}')
        setexec(-1)
        a(f'{Ls}:')
    at(NV - TR - 1, draw)
    assert TR >= 0
    at(landed_at(NV - TR), lambda: post(C_RANK))
    assert max(sched) <= NV
    def t_mode():
        a(f'ds_read_b32 v26, {vM} offset:{CNT + 4*C_RANK}\ns_waitcnt lgkmcnt(0)\nv_readfirstlane_b32 s47, v26')
    if Fhi:
        at(CTL - 1, t_mode); at(CTL + 3, t_mode)
    for n in range(FI, NV + 1):
        a(f's_waitcnt vmcnt({Fn(n)-1})')
        if n >= CTL:
            Lg = a.lab('GO')
            a(f's_cmp_ge_u32 s47, {rth}\ns_cbranch_scc1 {Lg}\ns_waitcnt vmcnt({Flo-1})\n{Lg}:')
        issue(n)
        if n % 16 == 0: stamp(18 + n // 16)
        for f in sched.get(n, []): f()
    UC = UC or F; UM = UM or F
    st0 = 1 if UM == 8 else 0
    LM, LN, LE0, LE1, LTD = a.lab('M'), a.lab('N'), a.lab('E0'), a.lab('E1'), a.lab('TD')
    PUBS = ['s44', 's47', 's58']
    def unit0(ld, Fu, extra={}):
        ev = [(k, 1, i, f) for i, (k, f) in enumerate(late + [(NV - 4, lambda: readV(7, 0)), (NV - 1, t_pre), (NV, t_final)])]
        if ld: ev += [(NV + 1 + j - Fu, 0, j, None) for j in range(8)]
        issued = NV + 1; done = -1
        for k, kind, j, f in sorted(ev, key=lambda e: e[:3]):
            if k > done:
                a(f's_waitcnt vmcnt({issued - 1 - k})'); done = k
            if kind: f()
            else:
                for g in extra.get(j, []): g()
                ld(j); issued += 1
    def wo_ld(j):
        def f(i):
            a(f's_add_u32 s32, s44, {i*4096 + 512*j}')
            a(f's_add_u32 m0, s59, {WB + i*1024}' if j == 0 else f's_add_u32 m0, s38, {16384 + i*1024}')
            a(f'buffer_load_dwordx4 v{238 + i % 4}, {SRD_WO}, s32 offen{wnt} lds')
        return f
    def m2_ld(k):
        def f(i):
            if 'lin2' in exp:
                a(f's_lshl_b32 s32, s42, 6\ns_add_u32 s32, s32, s43\ns_lshl_b32 s32, s32, 2\ns_add_u32 s32, s32, {sI}\ns_mul_i32 s32, s32, 12288\ns_add_u32 s32, s32, {4096 + i*1024}')
                a(f's_add_u32 m0, s38, {16384 - 8192*k + i*1024}\nv_lshlrev_b32 v237, 4, v1\nbuffer_load_dwordx4 v237, {SRD_WM}, s32 offen{wnt} lds')
                return
            if 'seg512' in exp:
                a(f's_lshr_b32 s32, s43, 4\ns_lshl_b32 s30, s42, 2\ns_add_u32 s32, s32, s30\ns_lshl_b32 s32, s32, 2\ns_add_u32 s32, s32, {sI}\ns_mul_i32 s32, s32, {16*12288}')
                a(f's_and_b32 s30, s43, 15\ns_lshl_b32 s30, s30, 9\ns_add_u32 s32, s32, s30\ns_add_u32 s32, s32, {4096 + 2*i*12288}')
                a(f's_add_u32 m0, s38, {16384 - 8192*k + i*1024}\nv_lshrrev_b32 v237, 5, v1\nv_mul_u32_u24 v237, {12288 - 512}, v237\nv_lshl_add_u32 v237, v1, 4, v237\nbuffer_load_dwordx4 v237, {SRD_WM}, s32 offen{wnt} lds')
                return
            a(f's_add_u32 s32, s46, {8*i*12288}\ns_add_u32 m0, s38, {16384 - 8192*k + i*1024}')
            a(f'buffer_load_dwordx4 v236, {SRD_WM}, s32 offen{wnt} lds')
        return f
    def m2_addr(k, none):
        if none: a(f's_sub_u32 s43, s30, {33 - EX}\ns_cmp_ge_u32 s43, 64\ns_cbranch_scc1 {none}')
        a(f's_lshl_b32 s30, s42, 2\ns_add_u32 s30, s30, {sI}\ns_mul_i32 s46, s30, {64*12288}\ns_lshl_b32 s30, s43, 7\ns_add_u32 s46, s46, s30\ns_add_u32 s46, s46, 4096')
        d = PUBS[k]
        a(f's_lshl_b32 {d}, s42, 14\ns_lshl_b32 s30, s43, 8\ns_add_u32 {d}, {d}, s30\ns_lshl_b32 s30, {sI}, 6\ns_add_u32 {d}, {d}, s30\ns_add_u32 {d}, {d}, {P3}')
    def m2_issue(k):
        for i in range(8):
            a(f's_waitcnt vmcnt({AF-1})')
            if k == 1 and i == T2AT + AF - 1: post(C_RANK3)
            if k == 1 and i == T2AT: draw()
            m2_ld(k)(i)
        assert T2AT + AF - 1 <= 7
    def m2_compute(k, cnt=None):
        arrive(C_M2)
        await_(C_M2, cnt or 4*(k+1), 'v6', sleep=0)
        for ks in range(8):
            for hf in range(2):
                a(f'ds_read_b64_tr_b16 {V(96+4*ks+2*hf,2)}, {"v28" if ks < 4 else "v29"} offset:{((ks >> 1) & 1)*RINGW + (ks & 1)*4096 + hf*2048 + 8192*(2-k)}')
        a('s_waitcnt lgkmcnt(0)')
        w_mfma(8 + 4*k, 96, 128, 8)
        for e in range(4): tag(V(8+4*k+e))
        setexec(0x0001000100010001)
        a(f'buffer_store_dwordx4 {V(8+4*k,4)}, v242, {SRD_WS}, {PUBS[k]} offen sc1')
        setexec(-1)
    assert 2 <= AF <= 8
    await_(C_RANK, 1, 'v26', sleep=0)
    a(f's_sub_u32 s33, s30, 1\ns_cmp_ge_u32 s33, 32\ns_cbranch_scc1 {LM}')
    a(f's_lshr_b32 s44, s33, 1\ns_lshl_b32 s30, s42, 4\ns_add_u32 s44, s44, s30\ns_lshl_b32 s44, s44, 17\ns_lshl_b32 s30, {sI}, 15\ns_add_u32 s44, s44, s30')
    a('s_and_b32 s30, s33, 1\ns_lshl_b32 s30, s30, 10\ns_add_u32 s44, s44, s30')
    if TS:
        L2, L3 = a.lab('C2'), a.lab('C3')
        a(f's_cmp_ge_u32 s33, {TS}\ns_cbranch_scc1 {L2}')
        unit0(wo_ld(0), UC)
        a(f's_branch {L3}\n{L2}:')
        unit0(wo_ld(0), UC2)
        a(f'{L3}:')
    else: unit0(wo_ld(0), UC)
    for i in range(8):
        a(f's_waitcnt vmcnt({CF-1})')
        wo_ld(1)(i)
    if EX:
        LX0, LX1 = a.lab('CX'), a.lab('CY')
        a(f's_cmp_ge_u32 s33, {EX}\ns_cbranch_scc1 {LX0}\ns_mov_b32 s43, s33')
        m2_addr(1, None)
        b_read(128, 'v30', 8)
        await_(C_PUB, 4, 'v6', sleep=0)
        for i in range(8):
            a(f's_waitcnt vmcnt({min(CF, 8)-1})')
            m2_ld(1)(i)
        arrive(C_MD)
        arrive(C_WO)
        a('s_waitcnt vmcnt(0)')
        m2_compute(1, 4)
        wo_setup(1)
        a(f's_branch {LX1}\n{LX0}:')
    arrive(C_MD)
    wo_setup(1)
    a('s_waitcnt vmcnt(0)')
    arrive(C_WO)
    if EX: a(f'{LX1}:')
    await_(C_WO, 4, 'v4', sleep=0)
    for ct in range(4):
        for ks in range(2):
            for hf in range(2):
                a(f'ds_read_b64_tr_b16 {V(120+8*ct+4*ks+2*hf,2)}, v{84+4*ks+ct} offset:{hf*RINGW}')
    wo_finish()
    a(f's_branch {LTD}')
    a(f'{LM}:')
    m2_addr(0, LN)
    unit0(m2_ld(0), UM, {0: [draw], UM - 1: [lambda: post(C_RANK2)]})
    b_read(128, 'v30', 8)
    await_(C_PUB, 4, 'v6', sleep=0)
    await_(C_RANK2, 1, 'v4', sleep=0)
    m2_addr(1, LE0)
    m2_issue(1)
    m2_compute(0)
    await_(C_RANK3, 1, 'v4', sleep=0)
    m2_addr(2, LE1)
    m2_issue(2)
    m2_compute(1)
    a('s_waitcnt vmcnt(1)')
    m2_compute(2)
    a(f's_branch {LTD}\n{LE1}:\ns_waitcnt vmcnt(1)')
    m2_compute(1)
    a(f's_branch {LTD}\n{LE0}:\ns_waitcnt vmcnt({st0})')
    m2_compute(0)
    a(f's_branch {LTD}')
    a(f'{LN}:')
    unit0(None, 0)
    a(f'{LTD}:')
    arrive(C_AD)
    stamp(8)
    a(f's_and_b32 s30, s2, 7\ns_cmp_lg_u32 s30, {RX}\ns_cbranch_scc1 L_fin2')
    G = 100
    def gb_part():
        gather([(G + 8 + k, 1, 'v28', P3 + k*16384 + 3*4096) for k in range(2)], 'v26', sleep=p3sleep)
        untag([G + 8, G + 9])
        a(f'v_add_f32 v155, v{G+8}, v{G+9}')
        allred('v_add_f32', 'v155', None, ('r8',))
        rnd('v155')
        a(f'ds_write_b32 v6, v155 offset:{SM + 1152}')
        arrive(C_GB)
        stamp(12)
    if gb2 == 2:
        Lg = a.lab('GB')
        a(f's_cmp_lg_u32 s3, 2\ns_cbranch_scc1 {Lg}')
        red_setup()
        gb_part()
        a(f's_branch L_fin2\n{Lg}:')
    a('s_cmp_lg_u32 s3, 1\ns_cbranch_scc1 L_fin2')
    red_setup()
    die_mode()
    a(f's_mov_b32 s40, {ST0}\ns_mov_b32 s41, {ST}\ns_lshl_b32 s42, {sPi}, 7\ns_add_u32 s42, s42, {TAB}')
    a(f'buffer_load_dword v120, v5, {SRD_WS}, s40 offen sc1\nbuffer_load_dword v121, v5, {SRD_WS}, s41 offen sc1\nbuffer_load_dword v122, v5, {SRD_WS}, s42 offen sc1')
    if pretouch == 2:
        a(f's_mov_b32 s42, {P4}\nv_lshlrev_b32 v12, 7, v1\nv_lshl_add_u32 v12, {sPi}, 10, v12\nbuffer_load_dword v123, v12, {SRD_WS}, s42 offen sc1')
    l3 = [(G + k, 1, 'v28', P3 + (k % 2)*16384 + (k // 2)*4096) for k in range(8)]
    n3 = 3 if gbl else 4
    gather(l3[:2*n3], 'v26', sleep=p3sleep)
    untag(range(G, G + 2*n3))
    for j in range(n3): a(f'v_add_f32 v{152+j}, v{G+2*j}, v{G+2*j+1}')
    for j in range(n3): allred('v_add_f32', f'v{152+j}', None, ('r8',))
    for j in range(n3): rnd(f'v{152+j}')
    a('v_add_f32 v154, 1.0, v154'); rnd('v154')
    a(f'ds_write_b128 v6, v[152:155] offset:{SM}')
    arrive(C_SM)
    a('v_cndmask_b32 v157, v154, v153, s[100:101]')
    a('v_cndmask_b32 v16, 1.0, v153, s[100:101]\nv_mul_f32 v20, v157, v16\nv_mul_f32 v21, v157, v154\nv_cndmask_b32 v22, v153, 0, s[100:101]\nv_mov_b32 v23, 0')
    a(f's_mov_b32 s41, {ST0}')
    st_publish('s41')
    stamp(10)
    if not gb2: gb_part()
    gather([(G + 4, 4, 'v5', ST0)], 'v26', full=True, sleep=1, alt=True)
    st_reduce(G + 4)
    a(f'v_and_b32 v13, 1, v1\nv_lshlrev_b32 v13, 4, v13\nv_lshl_add_u32 v13, v9, 2, v13\nv_add_u32 v13, {vM}, v13')
    setexec(0x0003000300030003)
    a(f'ds_write_b32 v13, v{G+4} offset:{SM + 1024}')
    arrive(C_TAB)
    stamp(11)
    if gb2 == 1: gb_part()
    a('s_branch L_fin2')

    a('L_X:')
    a('; ==== X waves')
    if xprio: a(f's_setprio {xprio}')
    XA, XB, XD, G = 32, 64, 96, 100
    a('v_and_b32 v10, 255, v0')
    def s_touch(base, off_code, offs):
        lo, hi = base[2:-1].split(':')
        a(off_code)
        a(f's_add_u32 s32, s{lo}, s30\ns_addc_u32 s33, s{hi}, 0')
        for i, o in enumerate(offs): a(f's_load_dword s{70 + i % 16}, s[32:33], {o:#x}')
    if 'x' in spf:
        s_touch(sC, f's_lshl_b32 s30, {sI}, 9', [128*i for i in range(4)])
        s_touch(sX, f's_lshl_b32 s30, {sI}, 9', [128*i for i in range(4)])
        a('s_waitcnt lgkmcnt(0)')
    a(f'v_lshlrev_b32 v11, 3, v10\nglobal_load_dwordx2 v[12:13], v11, {sC}')
    xld = lambda: a(f'v_lshlrev_b32 v11, 5, v1\nglobal_load_dwordx4 v[16:19], v11, {sX}\nglobal_load_dwordx4 v[20:23], v11, {sX} offset:16')
    if not xlate: xld()
    a('s_and_b32 s42, s2, 3\ns_lshr_b32 s43, s2, 2\ns_and_b32 s44, s2, 7\ns_lshr_b32 s45, s2, 3')
    a('v_lshrrev_b32 v9, 4, v1\nv_and_b32 v15, 15, v1')
    a(f'v_lshl_add_u32 v28, v15, 2, v9\nv_lshl_add_u32 v28, {sI}, 6, v28')
    a('v_lshl_add_u32 v11, s42, 8, v28\nv_lshlrev_b32 v11, 1, v11\nv_mov_b32 v14, 0')
    a(f'global_load_short_d16_hi v14, v11, {sX}')
    a(f's_load_dword {sE}, {sWS}, 12')
    if warm == 3:
        a(f's_getpc_b64 s[32:33]\nL_pc:\ns_sub_u32 s32, s32, L_pc-{NAME}_kernel\ns_subb_u32 s33, s33, 0')
        a(f's_bfe_u32 s30, s2, 0x30003\ns_lshl_b32 s30, s30, 2\ns_add_u32 s30, s30, {sI}\ns_lshl_b32 s30, s30, 10\ns_min_u32 s30, s30, L_code_end-{NAME}_kernel-1024')
        a('s_add_u32 s32, s32, s30\ns_addc_u32 s33, s33, 0')
        for i in range(8): a(f's_load_dword s{70+i}, s[32:33], {128*i}')
    common2(True)
    if not xbar: a('s_barrier')
    stamp(0)
    if tlb:
        Lt = a.lab('TL')
        a(f's_cmp_lg_u32 {sI}, 1\ns_cbranch_scc1 {Lt}')
        a('s_lshl_b32 s30, s2, 18\nv_mov_b32 v11, 0\ns_lshr_b32 s31, s2, 6\ns_lshl_b32 s32, s31, 21\ns_mul_i32 s31, s31, 0x300000\nv_lshlrev_b32 v24, 20, v1')
        setexec(1)
        a(f'buffer_load_dword v250, v11, {SRD_K}, s30 offen nt\nbuffer_load_dword v251, v11, {SRD_V}, s30 offen nt\nbuffer_load_dword v252, v11, {SRD_WO}, s32 offen nt')
        setexec(7)
        a(f'buffer_load_dword v253, v24, {SRD_WM}, s31 offen nt')
        setexec(-1)
        a(f'{Lt}:')
    Lz0 = a.lab('RZ')
    a(f's_and_b32 s30, s2, 63\ns_add_u32 s30, s30, {sI}\ns_cmp_lg_u32 s30, 0\ns_cbranch_scc1 {Lz0}')
    a(f's_lshl_b32 s30, s2, 6\ns_add_u32 s30, s30, {RK}\nv_lshlrev_b32 v11, 2, v1\nv_mov_b32 v24, 0')
    setexec(0xffffffff)
    a(f'buffer_store_dword v24, v11, {SRD_WS}, s30 offen sc1')
    setexec(-1)
    a(f's_waitcnt vmcnt(0)\n{Lz0}:')
    stamp(17)
    w_traddr('v6', WA, 'v11', 'v24')
    a(f'v_add_u32 v7, {(WB - WA) & 0xffffffff:#x}, v6')
    a(f'v_lshl_add_u32 v8, v9, 3, {vM}\nv_lshlrev_b32 v29, 4, v9')
    a(f's_waitcnt vmcnt({1 if xlate else 3}) lgkmcnt(0)')
    stamp(20)
    a(f's_mov_b32 s30, {f2u(-LOG2E):#x}')
    a('v_lshlrev_b32 v24, 16, v12\nv_and_b32 v25, 0xffff0000, v12\nv_lshlrev_b32 v26, 16, v13\nv_and_b32 v27, 0xffff0000, v13')
    for i in range(4): a(f'v_mul_f32 v{100+i}, s30, v{24+i}')
    for i in range(4): a(f'v_exp_f32 v{100+i}, v{100+i}')
    for i in range(4): a(f'v_add_f32 v{100+i}, 1.0, v{100+i}')
    for i in range(4): a(f'v_rcp_f32 v{100+i}, v{100+i}')
    for i in range(4): a(f'v_mul_f32 v{24+i}, v{24+i}, v{100+i}')
    a('v_cvt_pk_bf16_f32 v12, v24, v25\nv_cvt_pk_bf16_f32 v13, v26, v27')
    a(f'v_lshl_add_u32 v11, v10, 3, {vM}\nds_write_b64 v11, v[12:13] offset:{SC}')
    arrive(C_W1)
    setup_tags()
    a(f's_lshl_b32 s46, s44, 13\ns_lshl_b32 s30, s45, 8\ns_add_u32 s46, s46, s30\ns_lshl_b32 s30, {sI}, 6\ns_add_u32 s46, s46, s30\ns_add_u32 s46, s46, {P1}')
    stamp(1)
    await_(C_W1, 8, 'v11', sleep=1 if xs else 0)
    stamp(22)
    w_read(XA, 'v6', 4)
    a(f'v_lshl_add_u32 v11, s44, 8, v8')
    b_read(XB, 'v11', 4)
    def publish(s_off, fine=False):
        for e in range(4):
            if fine: a(f'v_bfi_b32 {V(XD+e)}, 3, {sT}, {V(XD+e)}')
            else: tag(V(XD+e))
        setexec(0x0001000100010001)
        if 'nop12' not in exp: a(f'buffer_store_dwordx4 {V(XD,4)}, v29, {SRD_WS}, {s_off} offen{p12f}')
        setexec(-1)
    w_mfma(XD, XA, XB, 4, staged=True)
    publish('s46', True)
    stamp(2)
    if xlate: xld()
    a(f's_waitcnt vmcnt({0 if xlate else 1})')
    for i in range(8):
        a(f'v_lshlrev_b32 v{100+2*i}, 16, v{16+i}\nv_and_b32 v{101+2*i}, 0xffff0000, v{16+i}')
    a('v_add_f32 v16, v100, v101')
    for i in range(2, 16): a(f'v_add_f32 v16, v16, v{100+i}')
    allred('v_add_f32', 'v16', 'v17')
    a(f'v_mul_f32 v16, {f2u(1/1024):#x}, v16\nv_mov_b32 v18, 0')
    for i in range(16): a(f'v_sub_f32 v17, v{100+i}, v16\nv_fmac_f32 v18, v17, v17')
    allred('v_add_f32', 'v18', 'v17')
    a(f'v_mul_f32 v18, {f2u(1/1024):#x}, v18')
    ln_scale('v16', 'v18')
    a('v_sub_f32 v14, v14, v16'); rnd('v14'); a('v_mul_f32 v14, v14, v18'); rnd('v14')
    stamp(23)
    await_(C_WQ, 4, 'v11', sleep=1 + xs)
    w_read(XA, 'v7', 8)
    a('s_waitcnt lgkmcnt(0)')
    arrive(C_WQF)
    stamp(3)
    a(f's_lshl_b32 s30, s42, 10\ns_lshl_b32 s31, {sI}, 8\ns_add_u32 s30, s30, s31\nv_lshl_add_u32 v12, v15, 4, s30\nv_lshl_add_u32 v12, v9, 13, v12')
    if T1: await_(C_T1, 2, 'v11', sleep=2 + xs)
    if 'h' in spf:
        s_touch(sWS, f's_lshl_b32 s30, s42, 10\ns_lshl_b32 s31, {sI}, 8\ns_add_u32 s30, s30, s31', [P1 + p*4096 + 128*l for p in range(16) for l in range(2)])
        a('s_waitcnt lgkmcnt(0)')
    stamp(19)
    if 'nog' not in exp: gather([(G + 4*i, 4, 'v12', P1 + (i & 1)*32768 + (i >> 1)*4096) for i in range(1 if 'smallg' in exp else 4)], 'v26', sleep=psleep, full=2)
    untag(range(G, G + 16), True)
    stamp(4)
    for hf in range(2):
        b = G + 8*hf
        a(f'v_pk_add_f32 {V(b,2)}, {V(b,2)}, {V(b+4,2)}\nv_pk_add_f32 {V(b+2,2)}, {V(b+2,2)}, {V(b+6,2)}')
        scat4(b); rnd(f'v{b}')
    a(f'v_add_f32 v{G+8}, 1.0, v{G+8}'); rnd(f'v{G+8}')
    a(f'v_mul_f32 v14, v14, v{G+8}'); rnd('v14')
    a(f'v_add_f32 v14, v14, v{G}'); rnd('v14')
    a(f'v_lshl_add_u32 v11, v28, 1, {vM}\nds_write_b16_d16_hi v11, v14 offset:{HV}')
    arrive(C_H)
    a(f's_lshl_b32 s47, s42, 14\ns_lshl_b32 s30, s43, 8\ns_add_u32 s47, s47, s30\ns_lshl_b32 s30, {sI}, 6\ns_add_u32 s47, s47, s30\ns_add_u32 s46, s47, {P2}')
    await_(C_H, 4, 'v11', sleep=1 if xs else 0)
    a(f'v_add_u32 v11, {HV}, v8')
    b_read(XB, 'v11', 8)
    w_mfma(XD, XA, XB, 8, staged=True)
    publish('s46', True)
    stamp(5)
    a('v_lshlrev_b32 v12, 4, v1')
    a(f's_lshr_b32 s30, s2, 6\ns_lshl_b32 s30, s30, 12\ns_lshl_b32 s32, {sI}, 10\ns_add_u32 s30, s30, s32\nv_add_u32 v12, s30, v12')
    if T2: await_(C_T2, 2, 'v11', sleep=2 + xs)
    if 'q' in spf:
        s_touch(sWS, f's_lshr_b32 s30, s2, 6\ns_lshl_b32 s30, s30, 12\ns_lshl_b32 s31, {sI}, 10\ns_add_u32 s30, s30, s31', [P2 + p*16384 + 128*l for p in range(4) for l in range(8)])
        a('s_waitcnt lgkmcnt(0)')
    stamp(8)
    if 'nog' not in exp: gather([(G + 4*i, 4, 'v12', P2 + i*16384) for i in range(1 if 'smallg' in exp else 4)], 'v26', sleep=psleep, full=2)
    untag(range(G, G + 16), True)
    for e in (0, 2):
        a(f'v_pk_add_f32 {V(G+e,2)}, {V(G+e,2)}, {V(G+4+e,2)}\nv_pk_add_f32 {V(G+8+e,2)}, {V(G+8+e,2)}, {V(G+12+e,2)}\nv_pk_add_f32 {V(G+e,2)}, {V(G+e,2)}, {V(G+8+e,2)}')
    a(f'v_cvt_pk_bf16_f32 v{G}, v{G}, v{G+1}\nv_cvt_pk_bf16_f32 v{G+1}, v{G+2}, v{G+3}')
    a(f's_mul_i32 s30, {sI}, 544\nv_lshrrev_b32 v11, 5, v1\nv_lshlrev_b32 v11, 4, v11\nv_lshl_add_u32 v11, v1, 3, v11\nv_add3_u32 v11, v11, {vM}, s30')
    a(f'ds_write_b64 v11, {V(G,2)} offset:{QL}')
    arrive(C_Q)
    if lite:
        Ll = a.lab('LI')
        a(f's_cmp_lg_u32 s3, 5\ns_cbranch_scc1 {Ll}\ns_lshl_b32 s30, s2, 7\ns_add_u32 s30, s30, {DBG}\nv_mov_b32 v11, 0\nv_mov_b32 v12, s34\ns_getreg_b32 s31, hwreg(HW_REG_XCC_ID)\nv_mov_b32 v24, s31')
        setexec(1)
        a(f'buffer_store_dword v12, v11, {SRD_WS}, s30 offen\nbuffer_store_dword v24, v11, {SRD_WS}, s30 offen offset:4')
        setexec(-1)
        a(f'{Ll}:')
    if eep:
        Lp = a.lab('EP')
        a(f'; advance the epoch word\ns_add_u32 s30, s2, {sI}\ns_cmp_lg_u32 s30, 0\ns_cbranch_scc1 {Lp}')
        await_(C_Q, 4, 'v11')
        a(f'v_mov_b32 v11, {sE}\nv_mov_b32 v12, 0')
        setexec(1)
        a(f'global_store_dword v12, v11, {sWS} offset:12 sc1')
        setexec(-1)
        a(f'{Lp}:')
    stamp(6)
    if xprio: a('s_setprio 0')
    CW, CB, C2 = 160, 174, 188
    a('v_lshlrev_b32 v11, 2, v10\nv_add_u32 v12, 0x1000, v11\nv_mov_b32 v17, 0\nv_mov_b32 v159, 0')
    for j, ptr in enumerate((sW1, sB1, sW2)):
        for i in range(0 if 'nocoef' in exp else 7): a(f'global_load_dword v{G+7*j+i}, {"v11" if i < 4 else "v12"}, {ptr} offset:{(i % 4)*1024}')
    a(f'global_load_short_d16_hi v159, v17, {sB2}')
    a(f'v_mov_b32 v44, {f2u(c1):#x}\nv_mov_b32 v45, {f2u(c0):#x}')
    a(f'v_lshl_add_u32 v13, v9, 2, {vM}\nv_lshl_add_u32 v13, {sI}, 7, v13')
    a(f's_lshl_b32 s39, s2, 5\ns_and_b32 s40, s39, 0xfff\ns_add_u32 s40, s40, {E0 << 7}\ns_lshr_b32 s30, s39, 12\ns_lshl_b32 s30, s30, 15\ns_or_b32 s40, s40, s30\ns_lshl_b32 s40, s40, 16')
    a('s_mov_b32 s41, 0\ns_waitcnt vmcnt(0)')
    for j, base in enumerate((CW, CB, C2)):
        for i in range(7): a(f'v_lshlrev_b32 v{base+2*i}, 16, v{G+7*j+i}\nv_and_b32 v{base+2*i+1}, 0xffff0000, v{G+7*j+i}')
    def weights():
        a('s_lshr_b32 s30, s38, 4\ns_lshl_b32 s30, s30, 13\ns_lshr_b32 s31, s38, 1\ns_and_b32 s31, s31, 7\ns_lshl_b32 s31, s31, 4\ns_add_u32 s30, s30, s31\nv_lshl_add_u32 v12, v1, 7, s30')
        gather([(G, 4, 'v12', ML)], 'v26', sleep=psleep, full=True)
        untag([G, G + 1])
        a(f'v_mov_b32 v16, v{G}')
        allred('v_max_f32', 'v16', 'v11')
        a(f'v_sub_f32 v16, v{G}, v16\nv_exp_f32 v16, v16\nv_mul_f32 v17, v16, v{G+1}')
        allred('v_add_f32', 'v17', 'v11')
        a(f'v_rcp_f32 v17, v17\nv_and_b32 v12, 15, v1\nv_lshlrev_b32 v12, 4, v12\nv_lshl_add_u32 v12, v9, 2, v12\nv_add_u32 v12, {vM}, v12\nv_mul_f32 v16, v16, v17')
        a(f'ds_write_b32 v12, v16 offset:{WL}')
        arrive(C_WL)
    def early_touch():
        Le = a.lab('ET')
        a(f's_cmp_lg_u32 {sI}, 2\ns_cbranch_scc1 {Le}\ns_and_b32 s30, s2, 7\ns_cmp_lg_u32 s30, {RX}\ns_cbranch_scc1 {Le}')
        a(f'v_lshlrev_b32 v11, 7, v1\nv_lshl_add_u32 v11, {sPi}, 10, v11\ns_mov_b32 s30, {P4}\nbuffer_load_dword v250, v11, {SRD_WS}, s30 offen sc1')
        a(f'v_and_b32 v11, 15, v1\nv_lshlrev_b32 v11, 12, v11\nv_lshl_add_u32 v11, {sPi}, 4, v11\ns_mov_b32 s30, {P3}\nbuffer_load_dword v251, v11, {SRD_WS}, s30 offen sc1')
        a(f'v_lshlrev_b32 v11, 4, v1\ns_mov_b32 s30, {ST0}\ns_mov_b32 s31, {ST}\nbuffer_load_dword v252, v11, {SRD_WS}, s30 offen sc1\nbuffer_load_dword v253, v11, {SRD_WS}, s31 offen sc1')
        a(f'{Le}:')
    if ept == 2: early_touch()
    Ld = a.lab('DP')
    a(f'; reducer workgroups tell each other their die\ns_cmp_lg_u32 {sI}, 1\ns_cbranch_scc1 {Ld}\ns_and_b32 s30, s2, 7\ns_cmp_lg_u32 s30, {RX}\ns_cbranch_scc1 {Ld}')
    a(f's_getreg_b32 s30, hwreg(HW_REG_XCC_ID)\ns_and_b32 s30, s30, 15\nv_mov_b32 v248, {sE}\nv_mov_b32 v249, s30\nv_mov_b32 v11, {sPi}\ns_mov_b32 s30, {DI}')
    setexec(1)
    a(f'buffer_store_dwordx2 v[248:249], v11, {SRD_WS}, s30 offen sc1')
    setexec(-1)
    a(f'{Ld}:')
    if obt:
        Lo = a.lab('OT')
        a(f's_cmp_lg_u32 {sI}, 1\ns_cbranch_scc1 {Lo}')
        a('v_lshrrev_b32 v11, 1, v1\nv_lshlrev_b32 v11, 14, v11\nv_and_b32 v12, 1, v1\nv_lshl_add_u32 v11, v12, 7, v11')
        a(f's_lshr_b32 s30, s2, 6\ns_lshl_b32 s30, s30, 18\ns_and_b32 s31, s2, 63\ns_lshl_b32 s31, s31, 8\ns_add_u32 s30, s30, s31\ns_add_u32 s30, s30, {OB}')
        setexec(0xffffffff)
        a(f'buffer_load_dword v250, v11, {SRD_WS}, s30 offen sc1')
        setexec(-1)
        a(f'{Lo}:')
    a('L_tab:')
    for e in range(4): a(f'v_mov_b32 v{40+e}, s40\ns_add_u32 s40, s40, 0x10000\nv_mov_b32 v{16+e}, 0')
    Lz = a.lab('TZ')
    a(f's_add_u32 s39, s39, 4\ns_cmp_lg_u32 s39, 4096\ns_cbranch_scc1 {Lz}\nv_mov_b32 v43, 0\n{Lz}:')
    units = []
    for i in range(14):
        sel = i & 1; pr = i & ~1
        for dp in range(2):
            units.append((lambda u, sel=sel, pr=pr, dp=dp: f'v_pk_fma_f32 {u}, {V(40+2*dp,2)}, {V(CW+pr,2)}, {V(CB+pr,2)} op_sel:[0,{sel},{sel}] op_sel_hi:[1,{sel},{sel}]',
                          lambda u, sel=sel, pr=pr, dp=dp: f'v_pk_fma_f32 {V(16+2*dp,2)}, {u}, {V(C2+pr,2)}, {V(16+2*dp,2)} op_sel:[0,{sel},0] op_sel_hi:[1,{sel},1]'))
    gelu_units(units, 48, 64, 4)
    scat4(16)
    allred('v_add_f32', 'v16', None, (1, 2, 'hm', 'm'))
    setexec(0x0001000100010001)
    a(f'ds_write_b32 v13, v16 offset:{YT}')
    setexec(-1)
    a('v_add_u32 v13, 16, v13\ns_add_u32 s41, s41, 1\ns_cmp_lt_u32 s41, ' + ('1' if 'notab' in exp else '8') + '\ns_cbranch_scc1 L_tab')
    arrive(C_YT)
    if ept == 1: early_touch()
    stamp(7)
    LX3, LXD, LXM, LXR = a.lab('X3'), a.lab('XD'), a.lab('XM'), a.lab('XR')
    a(f's_cmp_lg_u32 {sI}, 0\ns_cbranch_scc1 {LX3}')
    await_(C_YT, 4, 'v11')
    a(f'v_and_b32 v12, 7, v1\nv_lshlrev_b32 v12, 4, v12\nv_add_u32 v11, {vM}, v12')
    for w in range(4): a(f'ds_read_b128 {V(48+4*w,4)}, v11 offset:{YT + 128*w}')
    a(f's_lshl_b32 s30, s2, 7\ns_add_u32 s30, s30, {TAB}\ns_waitcnt lgkmcnt(0)')
    for e in (0, 2): a(f'v_pk_add_f32 {V(48+e,2)}, {V(48+e,2)}, {V(52+e,2)}\nv_pk_add_f32 {V(56+e,2)}, {V(56+e,2)}, {V(60+e,2)}\nv_pk_add_f32 {V(48+e,2)}, {V(48+e,2)}, {V(56+e,2)}')
    for e in range(4): rnd(V(48+e))
    for e in range(4): a(f'v_add_f32 v{48+e}, v{48+e}, v159')
    for e in range(4): rnd(V(48+e))
    for e in range(4): a(f'v_or_b32 v{48+e}, {sT}, v{48+e}')
    setexec(0xff)
    a(f'buffer_store_dwordx4 v[48:51], v12, {SRD_WS}, s30 offen sc1')
    setexec(-1)
    a(f'{LX3}:')
    Ld, Ll, Lo = a.lab('DG'), a.lab('DL'), a.lab('DO')
    a(f's_cmp_lg_u32 {sI}, 1\ns_cbranch_scc1 {Ld}\ns_and_b32 s30, s2, 7\ns_cmp_lg_u32 s30, {RX}\ns_cbranch_scc1 {Ld}')
    a(f'v_and_b32 v11, 31, v1\nv_lshlrev_b32 v11, 3, v11\ns_mov_b32 s31, {DI}\ns_mov_b32 {sSpin}, {spin}')
    a(f'{Ll}:\nbuffer_load_dwordx2 v[16:17], v11, {SRD_WS}, s31 offen sc1\ns_waitcnt vmcnt(0)\nv_cmp_ne_u32 vcc, {sE}, v16\ns_cbranch_vccz {Lo}')
    a(f's_sleep 8\ns_sub_u32 {sSpin}, {sSpin}, 1\ns_cbranch_scc0 {Ll}\n{Lo}:')
    a(f'v_cmp_ne_u32 vcc, v249, v17\ns_cmp_eq_u64 vcc, 0\ns_cselect_b32 s30, 1, 2\nv_mov_b32 v16, s30\nds_write_b32 {vM}, v16 offset:{CNT + 4*C_DIE}')
    a(f'{Ld}:')
    await_(C_RANK, 1, 'v11', sleep=2)
    a(f's_sub_u32 s33, s30, 1\ns_cmp_ge_u32 s33, 32\ns_cbranch_scc1 {LXM}')
    a('s_lshr_b32 s38, s33, 1\ns_lshr_b32 s30, s2, 6\ns_lshl_b32 s30, s30, 4\ns_add_u32 s38, s38, s30')
    a(f's_cmp_lg_u32 {sI}, 3\ns_cbranch_scc1 {LXD}')
    weights()
    a(f'{LXD}:')
    stamp(9)
    a(f's_lshl_b32 s30, s38, 14\ns_lshl_b32 s32, {sI}, 6')
    if 'halfob' in exp: a('s_and_b32 s32, s32, 64')
    if 'single' in exp: a('s_and_b32 s32, s32, 64\ns_and_b32 s31, s33, 1\ns_lshl_b32 s31, s31, 7\ns_add_u32 s32, s32, s31')
    a('s_add_u32 s30, s30, s32')
    a('v_and_b32 v13, 3, v1\nv_lshl_add_u32 v12, v13, 4, s30\nv_lshrrev_b32 v11, 2, v1\nv_lshl_add_u32 v12, v11, 8, v12')
    a(f'v_lshlrev_b32 v13, 3, v13\nv_lshl_add_u32 v13, v9, 1, v13\nv_lshl_add_u32 v13, {sI}, 5, v13\nv_add_u32 v13, {vM}, v13')
    W = 80
    a(f'v_lshl_add_u32 v14, v11, 4, {vM}')
    wo_setup(0)
    LH, LHD, LHS = a.lab('H'), a.lab('HD'), a.lab('HS')
    for i in range(4): a(f's_mov_b32 {SOFF(i)}, {OB + 4096*i:#x}')
    def h1ld(i): a(f'buffer_load_dwordx4 {V(G+4*i,4)}, v12, {SRD_WS}, {SOFF(i)} offen sc1')
    await_(C_WL, 1, 'v11', sleep=1)
    a(f'ds_read_b128 {V(W,4)}, v14 offset:{WL}')
    if pd1 is not None:
        await_(C_WO, 4, 'v11', sleep=1)
        for ct in range(4):
            for ks in range(2):
                for hf in range(2):
                    a(f'ds_read_b64_tr_b16 {V(120+8*ct+4*ks+2*hf,2)}, v{68+ct} offset:{ks*16384 + hf*8192}')
        stamp(10)
        gather_p([(G + 4*i, 4, 'v12', OB + 4096*i) for i in range(4)], 'v11', depth=pd1, sleep=ps1, thr=h1thr, bsleep=h1sleep)
    else:
        await_(C_MD, 4, 'v11', sleep=1)
        stamp(10)
        for i in range(4): h1ld(i)
        await_(C_WO, 4, 'v11', sleep=0)
        for ct in range(4):
            for ks in range(2):
                for hf in range(2):
                    a(f'ds_read_b64_tr_b16 {V(120+8*ct+4*ks+2*hf,2)}, v{68+ct} offset:{ks*16384 + hf*8192}')
        stamp(13)
        if tight & 1:
            def h1done(i):
                untag([G + 4*i, G + 4*i + 3])
                for e in (0, 2): a(f'v_pk_mul_f32 {V(G+4*i+e,2)}, {V(G+4*i+e,2)}, {V(W+(i&2),2)} op_sel:[0,{i&1}] op_sel_hi:[1,{i&1}]')
            gather_t([(G + 4*i, 4, 'v12', OB + 4096*i) for i in range(4)], 'v11', h1done, issue_first=False, thr=h1thr, bsleep=h1sleep)
        else:
            a(f's_mov_b32 {sSpin}, {spin}')
            a(f'{LH}:\ns_waitcnt vmcnt(0)')
            for i in range(4): a(f'v_perm_b32 v11, v{G+4*i+3}, v{G+4*i}, {sSelA}\nv_cmp_ne_u32 {MASK(i)}, {sT2}, v11')
            a(f's_bcnt1_i32_b64 s30, {MASK(0)}')
            for i in range(1, 4): a(f's_bcnt1_i32_b64 s31, {MASK(i)}\ns_add_u32 s30, s30, s31')
            a(f's_cmp_eq_u32 s30, 0\ns_cbranch_scc1 {LHD}')
            a(f's_sub_u32 {sSpin}, {sSpin}, 1\ns_cbranch_scc1 {LHD}')
            a(f's_cmp_le_u32 s30, {h1thr}\ns_cbranch_scc1 {LHS}\ns_sleep {h1sleep}\n{LHS}:')
            for i in range(4):
                Sk = a.lab('GS')
                a(f's_wqm_b64 exec, {MASK(i)}\ns_cbranch_execz {Sk}')
                h1ld(i)
                a(f'{Sk}:')
            a(f's_mov_b64 exec, -1\ns_branch {LH}\n{LHD}:')
    if tight & 1:
        for e in (0, 2): a(f'v_pk_add_f32 {V(G+e,2)}, {V(G+e,2)}, {V(G+4+e,2)}\nv_pk_add_f32 {V(G+8+e,2)}, {V(G+8+e,2)}, {V(G+12+e,2)}')
        for e in (0, 2): a(f'v_pk_add_f32 {V(G+e,2)}, {V(G+e,2)}, {V(G+8+e,2)}')
    else:
        untag([G + 4*i + e for i in range(4) for e in (0, 3)])
        for e in (0, 2): a(f'v_pk_mul_f32 {V(G+e,2)}, {V(G+e,2)}, {V(W,2)} op_sel:[0,0] op_sel_hi:[1,0]')
        for i in range(1, 4):
            for e in (0, 2): a(f'v_pk_fma_f32 {V(G+e,2)}, {V(G+4*i+e,2)}, {V(W+(i&2),2)}, {V(G+e,2)} op_sel:[0,{i&1},0] op_sel_hi:[1,{i&1},1]')
    scat4(G)
    allred('v_add_f32', V(G), None, ('r4', 'r8'))
    rnd(V(G))
    setexec(0x000f000f000f000f)
    a(f'ds_write_b16_d16_hi v13, v{G} offset:{OV}')
    stamp(11)
    wo_finish()
    stamp(26)
    a(f'{LXM}:')
    a(f's_cmp_lg_u32 {sI}, 2\ns_cbranch_scc1 L_fin2\ns_and_b32 s30, s2, 7\ns_cmp_lg_u32 s30, {RX}\ns_cbranch_scc1 L_fin2')
    red_setup()
    die_mode()
    await_(C_AD, 4, 'v11', sleep=2)
    a(f'v_mov_b32 v152, 0\nglobal_load_short_d16_hi v152, v29, {sX}')
    if otouch: a(f'global_load_ushort v250, v29, {sOUT}')
    a(f'v_lshlrev_b32 v12, 4, v1\nv_lshl_add_u32 v12, {sPi}, 10, v12\nv_mov_b32 v46, {f2u(1/1024):#x}')
    a(f's_mov_b32 s40, {ST}\nv_mov_b32 v150, 4095\ns_mov_b32 s59, {TAB}')
    mark('ad')
    stamp(25)
    l4 = [(G + 4*i, 4, 'v12', P4 + i*1024) for i in range(8)]
    if smp4:
        gather(l4[:smp4], 'v11', sleep=1)
    if tight & 2: gather_t(l4, 'v11', lambda i: untag([G + 4*i, G + 4*i + 3]))
    elif pd2 is None: gather(l4[smp4:], 'v11')
    else: gather_p(l4[smp4:], 'v11', depth=pd2, sleep=ps2)
    mark('p4')
    stamp(24)
    def p4_sum():
        if not tight & 2: untag([G + 4*i + e for i in range(8) for e in (0, 3)])
        for st in (4, 8, 16):
            for i in range(0, 32, 2*st):
                for e in (0, 2): a(f'v_pk_add_f32 {V(G+i+e,2)}, {V(G+i+e,2)}, {V(G+i+st+e,2)}')
        scat4(G)
        allred('v_add_f32', V(G), None, ('r8',))
        rnd(V(G))
    late_await(C_SM, 1, 'v11', lambda: a(f'ds_read_b128 v[140:143], v6 offset:{SM}'), p4_sum)
    a(f'v_mul_f32 v16, v{G}, v140\nv_cndmask_b32 v157, v142, v141, s[100:101]\nv_mov_b32 v23, 0'); rnd('v16'); a('v_add_f32 v16, v16, v152'); rnd('v16')
    a('v_mul_f32 v17, v16, v142')
    a('v_cndmask_b32 v18, v16, v17, s[100:101]\nv_cndmask_b32 v20, 1.0, v17, s[100:101]\nv_cndmask_b32 v21, v16, v142, s[100:101]')
    a('v_mul_f32 v20, v18, v20\nv_mul_f32 v21, v18, v21\nv_mul_f32 v22, v18, v157')
    st_publish('s40')
    mark('sp')
    stamp(21)
    gather([(G, 4, 'v5', ST)], 'v26', full=True, sleep=fsleep, alt=True)
    mark('st')
    stamp(12)
    def ln1():
        st_reduce(G)
        for k, ln in enumerate((0, 16, 32, 1, 17, 33)): a(f'v_readlane_b32 s{38+k}, v{G}, {ln}')
        a('v_mul_f32 v24, s38, v46\nv_mul_f32 v25, s39, v46\nv_fma_f32 v25, -v24, v24, v25\nv_max_f32 v25, 0, v25')
        if trim: a(f'v_add_f32 v25, {f2u(1e-5):#x}, v25\nv_rsq_f32 v25, v25')
        else: ln_scale('v24', 'v25')
    late_await(C_TAB, 1, 'v11', lambda: a(f'ds_read_b128 v[144:147], {vM} offset:{SM + 1024}\nds_read_b64 v[148:149], {vM} offset:{SM + 1040}'), ln1)
    a('v_fma_f32 v26, -v24, v144, s40\nv_fma_f32 v28, -v24, v149, s43')
    a('v_mul_f32 v27, v24, v145\nv_fma_f32 v27, -2.0, s42, v27\nv_fma_f32 v27, v27, v24, s41')
    if trim:
        a('v_sub_f32 v40, v16, v24\nv_fma_f32 v26, v26, v25, v146\nv_add_f32 v28, v28, v28\nv_mul_f32 v40, v40, v142\nv_fma_f32 v27, v27, v25, v28')
        a('v_mul_f32 v26, v26, v46\nv_fma_f32 v27, v27, v25, v148\nv_fma_f32 v40, v40, v25, v141\nv_mul_f32 v27, v27, v46\nv_fma_f32 v27, -v26, v26, v27')
        a(f'v_max_f32 v27, 0, v27\nv_sub_f32 v40, v40, v26\nv_add_f32 v27, {f2u(1e-5):#x}, v27\nv_rsq_f32 v27, v27\nv_mul_f32 v40, v40, v27'); rnd('v40')
    else:
        a('v_sub_f32 v40, v16, v24')
        a('v_fma_f32 v26, v26, v25, v146\nv_add_f32 v28, v28, v28\nv_fma_f32 v27, v27, v25, v28\nv_fma_f32 v27, v27, v25, v148')
        rnd('v40')
        a('v_mul_f32 v26, v26, v46\nv_mul_f32 v27, v27, v46\nv_mul_f32 v40, v40, v25\nv_fma_f32 v27, -v26, v26, v27')
        rnd('v40')
        a('v_max_f32 v27, 0, v27\nv_mul_f32 v40, v40, v142')
        rnd('v27'); rnd('v40'); rnd('v26')
        a(f'v_add_f32 v27, {f2u(1e-5):#x}, v27\nv_add_f32 v40, v40, v141'); rnd('v27'); rnd('v40')
        a('v_sqrt_f32 v27, v27\nv_sub_f32 v40, v40, v26'); rnd('v27'); rnd('v40')
        a('v_rcp_f32 v27, v27\nv_mul_f32 v40, v40, v27'); rnd('v40')
    a(f'v_bfe_u32 v41, v40, 16, 15\nv_lshrrev_b32 v43, 31, v40\nv_subrev_u32 v42, {E0 << 7}, v41\nv_cmp_eq_u32 vcc, 0, v41')
    a(f'v_cmp_lt_u32 s[38:39], v42, v47\nv_lshl_add_u32 v42, v43, 12, v42\nv_cndmask_b32 v42, v42, v47, vcc'.replace('v47', 'v150'))
    a(f'v_and_b32 v42, 0x1fff, v42\nv_lshlrev_b32 v42, 2, v42\nbuffer_load_dword v41, v42, {SRD_WS}, s59 offen sc1')
    late_await(C_GB, 1, 'v11', lambda: a(f'ds_read_b32 v143, v6 offset:{SM + 1152}'), lambda: a('s_or_b64 s[38:39], s[38:39], vcc'))
    a('s_waitcnt vmcnt(0)')
    a(f'v_and_b32 v42, 0xffff, v41\nv_and_b32 v41, 0xffff0000, v41\nv_cmp_ne_u32 vcc, {sT}, v42\ns_orn2_b64 s[38:39], vcc, s[38:39]\ns_cbranch_scc1 L_slow1')
    a('L_out:')
    a('v_mul_f32 v41, v41, v143'); rnd('v41'); a('v_add_f32 v41, v41, v16'); rnd('v41')
    setexec(0x00ff00ff00ff00ff)
    a(f'global_store_short_d16_hi v29, v41, {sOUT}{osc}')
    setexec(-1)
    stamp(14)
    if lite:
        a(f's_memrealtime s[34:35]\ns_lshl_b32 s30, s2, 7\ns_add_u32 s30, s30, {DBG + 64}\nv_mov_b32 v11, 0\ns_waitcnt lgkmcnt(0)\nv_mov_b32 v12, s34')
        setexec(1)
        a(f'buffer_store_dword v12, v11, {SRD_WS}, s30 offen')
        setexec(-1)
    if enc:
        mark('end')
        if enc == 'ack': a('s_waitcnt vmcnt(0)'); mark('ack')
        if encd: a('s_memrealtime s[38:39]\ns_waitcnt lgkmcnt(0)\ns_sub_u32 s62, s62, s38\ns_add_u32 s62, s62, 300\ns_lshl_b32 s62, s62, 5')
        else: a('s_memrealtime s[38:39]\ns_waitcnt lgkmcnt(0)\ns_sub_u32 s62, s62, s34\ns_sub_u32 s62, s62, 2000\ns_lshl_b32 s62, s62, 4')
        a('L_enc:\ns_memrealtime s[40:41]\ns_waitcnt lgkmcnt(0)\ns_sub_u32 s40, s40, s38\ns_cmp_lt_i32 s40, s62\ns_cbranch_scc1 L_enc')
    a('L_fin:')
    if not eep:
        a('; advance the epoch word')
        a(f's_cmp_lg_u32 s2, {RX}\ns_cbranch_scc1 L_fin2')
        a(f'v_mov_b32 v7, {sE}\nv_mov_b32 v8, 0')
        setexec(1)
        a(f'global_store_dword v8, v7, {sWS} offset:12')
        setexec(-1)
    a('L_fin2:')
    if stamps:
        stamp(15)
        a('s_getreg_b32 s30, hwreg(HW_REG_XCC_ID)\nv_writelane_b32 v255, s30, 40')
        a(f's_lshl_b32 s30, s2, 11\ns_add_u32 s30, s30, {DBG}\nv_lshlrev_b32 v7, 2, v0')
        a(f'buffer_store_dword v255, v7, {SRD_WS}, s30 offen')
    a('L_end:\ns_endpgm')
    a('L_slow1:\ns_ff1_i32_b64 s40, s[38:39]\ns_bitset0_b64 s[38:39], s40\nv_readlane_b32 s41, v40, s40')
    a('v_lshlrev_b32 v11, 4, v1\nv_mov_b32 v18, 0\nv_mov_b32 v19, 0\nv_mov_b32 v42, s41\nv_mov_b32 v43, s41\ns_mov_b32 s42, 0')
    a('L_slow2:')
    for j, ptr in enumerate((sW1, sB1, sW2)): a(f'global_load_dwordx4 {V(G+4*j,4)}, v11, {ptr}')
    a('v_add_u32 v11, 0x400, v11\ns_waitcnt vmcnt(0)')
    for j in range(3):
        for i in range(4): a(f'v_lshlrev_b32 v{160+8*j+2*i}, 16, v{G+4*j+i}\nv_and_b32 v{161+8*j+2*i}, 0xffff0000, v{G+4*j+i}')
    gelu_units([(lambda u, i=i: f'v_pk_fma_f32 {u}, v[42:43], {V(160+2*i,2)}, {V(168+2*i,2)}',
                 lambda u, i=i: f'v_pk_fma_f32 v[18:19], {u}, {V(176+2*i,2)}, v[18:19]') for i in range(4)], 48, 64, 4)
    a('s_add_u32 s42, s42, 1\ns_cmp_lt_u32 s42, 7\ns_cbranch_scc1 L_slow2')
    a('v_add_f32 v18, v18, v19')
    allred('v_add_f32', 'v18', 'v19')
    rnd('v18'); a('v_add_f32 v18, v18, v159'); rnd('v18')
    a('v_readfirstlane_b32 s41, v18\ns_mov_b32 m0, s40\nv_writelane_b32 v41, s41, m0')
    a('s_cmp_lg_u64 s[38:39], 0\ns_cbranch_scc1 L_slow1\ns_branch L_out')
    for t in tails: a(t)
    a('L_code_end:')
    body = a.finish()
    out = HEADER + f'; @launch grid=(256,1,1) block=(512,1,1) lds={LDS_BYTES}\n' + DOC
    out += f'.amdgcn_target "amdgcn-amd-amdhsa--gfx950"\n.text\n.globl {NAME}_kernel\n.p2align 8\n.type {NAME}_kernel,@function\n'
    out += body
    out += f'''.section .rodata,"a"
.p2align 6
.amdhsa_kernel {NAME}_kernel
  .amdhsa_next_free_vgpr 256
  .amdhsa_next_free_sgpr 102
  .amdhsa_accum_offset 256
  .amdhsa_group_segment_fixed_size 0
  .amdhsa_kernarg_size 120
  .amdhsa_user_sgpr_count 2
  .amdhsa_user_sgpr_kernarg_segment_ptr 1
  .amdhsa_system_sgpr_workgroup_id_x 1
  .amdhsa_float_denorm_mode_32 3
.end_amdhsa_kernel
'''
    return out

if __name__ == '__main__':
    kw = {}
    for arg in sys.argv[2:]:
        k, v = arg.split('=')
        kw[k] = eval(v)
    open(sys.argv[1], 'w').write(gen(**kw))
```

```python
import sys, struct
from asmfw import Asm

NAME = 'adaLN_cond__gqa_block_cached__mixer_token_mlp__decode'

def f2u(x): return struct.unpack('<I', struct.pack('<f', x))[0]
LOG2E = 1.4426950408889634
SCALE = 128 ** -0.5

P1 = 0x10000; P2 = 0x20000; P3 = 0x30000; ML = 0x40000; ST0 = 0x50000; ST = 0x52000; STB = 0x1000; DI = 0x54000
RK = 0x60000; TAB = 0x68000; P4 = 0x80000; OB = 0x100000; DBG = 0x200000
RS = 6; RINGW = RS * 4096
WB = 4 * RINGW; WA = WB + 32768; MISC = WA + 16384
SC = 0; QL = 2048; HV = 4352; OV = 4864; MLW = 5376; CNT = 5760; WL = 5888; YT = 6144; SM = 6656
LDS_BYTES = 163840
C_W1, C_WQ, C_H, C_Q, C_M2, C_ML, C_RED, C_WO, C_WOF, C_TICK, C_T1, C_T2, C_PUB, C_VI, C_WL, C_RANK, C_YT, C_TAB, C_OV, C_MD, C_SM, C_RANK2, C_RANK3, C_AD, C_R1, C_WQF, C_GB, C_DIE = range(28)

HEADER = open('cdna_kernels/' + NAME + '.s.ref').read().split('; Override launch')[0]

DOC = r'''; ---------------------------------------------------------------------------------------------------------------
; One persistent launch, 256 workgroups (one per CU) of 8 waves.  b = workgroup id, kv group g = b>>6.
; ---------------------------------------------------------------------------------------------------------------
'''

def gen(F=6, NQ=60, k7=True, nt=' nt', wnt=' nt', stamps=False, warm=3, spf='', xbar=1, spin=1 << 19, psleep=16, xprio=3, aprio=1,
        T1=30, T2=56, exp='', comp=False, TM=64, enc=None, encd=False, eep=False, xs=0, xlate=False, TS=0, UC2=6, gb2=2, tight=0, lazy=True, fastpro=False, trim=False, obt=0, obf=' sc1', p12f=' sc1', h1late=0, otouch=False, osc='', UC=3, UM=None, EX=0, pd1=None, ps1=1, h1sleep=6, h1thr=48, fsleep=0, Fs=((0, 6), (120, 7)), TK=16, XTRA=0, h1m=1, NZ=16, AF=7, MLP_AT=7, dual=True, pretouch=1, RX=0, p3sleep=2, pd2=1, ps2=2, TR=14, T2AT=0, CF=8, ept=2, Fhi=None, Flo=None, rth=33, a1w=True, SPL=0, smp4=0, smp3=0, su=False, tlb=0, E0=101, TH=64, gbl=True):
    a = Asm()
    lite = stamps == 'lite'
    if lite: stamps = False
    SRD_K, SRD_V, SRD_WS, SRD_WQ, SRD_WO, SRD_WM = 's[4:7]', 's[8:11]', 's[12:15]', 's[16:19]', 's[20:23]', 's[24:27]'
    sX, sW1, sB1, sW2, sB2, sC, sOUT, sWS = 's[36:37]', 's[48:49]', 's[50:51]', 's[52:53]', 's[54:55]', 's[56:57]', 's[60:61]', 's[64:65]'
    sE, sI, sBase, sSpin = 's66', 's67', 's68', 's69'
    sT, sT2, sT4, sSelA, sSelB, sPi = 's86', 's87', 's88', 's89', 's90', 's91'
    sTa, sT4f = 's62', 's63'
    MASK = lambda i: f's[{70+2*i}:{71+2*i}]'
    SOFF = lambda i: f's{92+i}'
    vM, vOne, vHi = 'v2', 'v3', 'v247'
    V = lambda i, n=1: f'v{i}' if n == 1 else f'v[{i}:{i+n-1}]'

    def stamp(i):
        if stamps:
            a(f's_memrealtime s[34:35]\ns_waitcnt lgkmcnt(0)\nv_writelane_b32 v255, s34, {i}')
    def mark(k):
        if enc == k: a('s_memrealtime s[62:63]')
    def setexec(mask):
        if mask == -1: a('s_mov_b64 exec, -1')
        elif mask < 64: a(f's_mov_b64 exec, {mask}')
        else: a(f's_mov_b32 exec_lo, {mask & 0xffffffff:#x}\ns_mov_b32 exec_hi, {mask >> 32:#x}')
    def arrive(c):
        a(f's_mov_b64 exec, 1\nds_add_u32 {vM}, {vOne} offset:{CNT + 4*c}\ns_mov_b64 exec, -1')
    def await_(c, n, tmp, sleep=1):
        L = a.lab('W'); D = a.lab('WD')
        a(f's_mov_b32 {sSpin}, {spin}')
        a(f'{L}:\nds_read_b32 {tmp}, {vM} offset:{CNT + 4*c}\ns_waitcnt lgkmcnt(0)\nv_readfirstlane_b32 s30, {tmp}')
        a(f's_cmp_ge_u32 s30, {n}\ns_cbranch_scc1 {D}')
        if sleep: a(f's_sleep {sleep}')
        a(f's_sub_u32 {sSpin}, {sSpin}, 1\ns_cbranch_scc0 {L}\n{D}:')
    def late_await(c, n, tmp, reads, work):
        D = a.lab('LA')
        a(f'ds_read_b32 {tmp}, {vM} offset:{CNT + 4*c}')
        reads()
        work()
        a(f's_waitcnt lgkmcnt(0)\nv_readfirstlane_b32 s30, {tmp}\ns_cmp_ge_u32 s30, {n}\ns_cbranch_scc1 {D}')
        await_(c, n, tmp, sleep=0)
        reads()
        a(f's_waitcnt lgkmcnt(0)\n{D}:')
    def rnd(r): a(f'v_cvt_pk_bf16_f32 {r}, 0, {r}')
    def tag(r, t=None): a(f'v_and_or_b32 {r}, {r}, {vHi}, {t or sT}')
    def untag(regs, fine=False):
        for r in regs: a(f'v_and_b32 v{r}, {"-4" if fine else vHi}, v{r}')
    DPP = {1: 'quad_perm:[1,0,3,2]', 2: 'quad_perm:[2,3,0,1]', 'hm': 'row_half_mirror', 'm': 'row_mirror', 'r4': 'row_ror:4', 'r8': 'row_ror:8'}
    def allred(op, r, t, steps=(1, 2, 'hm', 'm', 16, 32)):
        for s in steps:
            if s in DPP: a(f'{op}_dpp {r}, {r}, {r} {DPP[s]} row_mask:0xf bank_mask:0xf')
            else: a(f'v_mov_b32 {t}, {r}\nv_permlane{s}_swap_b32 {r}, {t}\n{op} {r}, {r}, {t}')
    def scat4(b):
        a(f'v_permlane32_swap_b32 v{b}, v{b+2}\nv_permlane32_swap_b32 v{b+1}, v{b+3}\nv_pk_add_f32 {V(b,2)}, {V(b,2)}, {V(b+2,2)}')
        a(f'v_permlane16_swap_b32 v{b}, v{b+1}\nv_add_f32 v{b}, v{b}, v{b+1}')
    def setup_tags():
        a(f's_add_u32 {sE}, {sE}, 1\ns_and_b32 {sT}, {sE}, 0xff\ns_xor_b32 {sTa}, {sT}, 0x5a\ns_lshl_b32 {sT2}, {sT}, 8\ns_or_b32 {sT2}, {sT2}, {sTa}')
        a(f's_mul_i32 {sT4}, {sT}, 0x1010101\ns_and_b32 {sT4f}, {sT4}, 0x3030303\ns_add_u32 {sT4f}, {sT4f}, 0x30201\ns_xor_b32 {sT4}, {sT4}, 0x5a0000')
        a(f's_mov_b32 {sSelA}, 0x0c0c0400\ns_mov_b32 {sSelB}, 0x04000c0c\nv_mov_b32 {vHi}, 0xffffff00')
        a(f's_and_b32 {sPi}, s2, 0xf8')
    def gather(loads, tmp, sleep=0, full=False, thr=None, alt=None):
        L = a.lab('G'); D = a.lab('GD')
        his = []
        for d, w, vo, off in loads:
            if off & ~0xfff not in his: his.append(off & ~0xfff)
        for i, h in enumerate(his): a(f's_mov_b32 {SOFF(i)}, {h:#x}')
        if alt: a(f's_add_u32 {SOFF(0)}, {SOFF(0)}, s44')
        def ld(d, w, vo, off):
            sfx = {1: 'dword', 2: 'dwordx2', 4: 'dwordx4'}[w]
            a(f'buffer_load_{sfx} {V(d, w)}, {vo}, {SRD_WS}, {SOFF(his.index(off & ~0xfff))} offen offset:{off & 0xfff} sc1')
        for x in loads: ld(*x)
        a(f's_mov_b32 {sSpin}, {spin}')
        a(f'{L}:')
        n = len(loads)
        for i, (d, w, vo, off) in enumerate(loads):
            a(f's_waitcnt vmcnt({n-1-i})')
            if w == 1: a(f'v_and_b32 {tmp}, 0xff, {V(d)}\nv_cmp_ne_u32 {MASK(i)}, v150, {tmp}')
            elif full:
                t2 = f'v{int(tmp[1:]) + 1}'
                a(f'v_perm_b32 {tmp}, {V(d+1)}, {V(d)}, {sSelA}\nv_perm_b32 {t2}, {V(d+3)}, {V(d+2)}, {sSelB}\nv_or_b32 {tmp}, {tmp}, {t2}')
                if full == 2: a(f'v_xor_b32 {tmp}, {sT4f}, {tmp}\nv_and_b32 {tmp}, 0x03030303, {tmp}\nv_cmp_ne_u32 {MASK(i)}, 0, {tmp}')
                else: a(f'v_cmp_ne_u32 {MASK(i)}, {sT4}, {tmp}')
            else: a(f'v_perm_b32 {tmp}, {V(d+w-1)}, {V(d)}, {sSelA}\nv_cmp_ne_u32 {MASK(i)}, {sT2}, {tmp}')
        a(f's_or_b64 s[28:29], {MASK(0)}, {MASK(1 if n > 1 else 0)}')
        for i in range(2, n): a(f's_or_b64 s[28:29], s[28:29], {MASK(i)}')
        a(f's_cbranch_scc0 {D}')
        R, X = a.lab('GT'), a.lab('GX')
        a(f'{R}:\ns_sub_u32 {sSpin}, {sSpin}, 1\ns_cbranch_scc1 {X}')
        if sleep and thr is not None:
            S = a.lab('GN')
            a(f's_bcnt1_i32_b64 s30, {MASK(0)}')
            for i in range(1, n): a(f's_bcnt1_i32_b64 s31, {MASK(i)}\ns_add_u32 s30, s30, s31')
            a(f's_cmp_le_u32 s30, {thr}\ns_cbranch_scc1 {S}\ns_sleep {sleep}\n{S}:')
        elif sleep: a(f's_sleep {sleep}')
        for i, x in enumerate(loads):
            S = a.lab('GS')
            a(f's_wqm_b64 exec, {MASK(i)}\ns_cbranch_execz {S}')
            ld(*x)
            a(f'{S}:')
        a(f's_mov_b64 exec, -1\ns_waitcnt vmcnt(0)\ns_branch {L}\n{D}:')
        if alt:
            a(f'v_cmp_ne_u32 {MASK(0)}, {sE}, v{loads[0][0] + 3}\ns_cmp_lg_u64 {MASK(0)}, 0\ns_cbranch_scc1 {R}')
        a(f'{X}:')
    def gather_st(d, base, sleep=0):
        L = a.lab('G'); D = a.lab('GD')
        ld = f'buffer_load_dwordx4 {V(d,4)}, v5, {SRD_WS}, {SOFF(0)} offen sc1'
        a(f's_add_u32 {SOFF(0)}, s44, {base:#x}\n{ld}\ns_mov_b32 {sSpin}, {spin}')
        a(f'{L}:\ns_waitcnt vmcnt(0)')
        a(f'v_bitop3_b32 v26, v{d}, v{d+1}, v{d+3} bitop3:0x7e\nv_xor_b32 v27, v{d+2}, v{d+3}\nv_xor_b32 v25, {sE}, v{d+3}\nv_or_b32 v26, v26, v27')
        a(f'v_and_or_b32 v26, v26, 3, v25\nv_cmp_ne_u32 vcc, 0, v26\ns_cbranch_vccz {D}')
        if sleep: a(f's_sleep {sleep}')
        a(f's_mov_b64 exec, vcc\n{ld}\ns_mov_b64 exec, -1\ns_sub_u32 {sSpin}, {sSpin}, 1\ns_cbranch_scc0 {L}\ns_waitcnt vmcnt(0)\n{D}:')
    def gather_p(loads, tmp, depth=3, sleep=1, full=False, thr=None, bsleep=0):
        L = a.lab('G'); D = a.lab('GD')
        his = []
        for d, w, vo, off in loads:
            if off & ~0xfff not in his: his.append(off & ~0xfff)
        for i, h in enumerate(his): a(f's_mov_b32 {SOFF(i)}, {h:#x}')
        n = len(loads)
        def ld(d, w, vo, off):
            a(f'buffer_load_dwordx4 {V(d, w)}, {vo}, {SRD_WS}, {SOFF(his.index(off & ~0xfff))} offen offset:{off & 0xfff} sc1')
        for x in loads: ld(*x)
        a(f's_mov_b32 {sSpin}, {spin}\ns_waitcnt vmcnt(0)')
        a(f'{L}:')
        for i, (d, w, vo, off) in enumerate(loads):
            if full:
                t2 = f'v{int(tmp[1:]) + 1}'
                a(f'v_perm_b32 {tmp}, {V(d+1)}, {V(d)}, {sSelA}\nv_perm_b32 {t2}, {V(d+3)}, {V(d+2)}, {sSelB}\nv_or_b32 {tmp}, {tmp}, {t2}')
                a(f'v_cmp_ne_u32 {MASK(i)}, {sT4}, {tmp}')
            else: a(f'v_perm_b32 {tmp}, {V(d+w-1)}, {V(d)}, {sSelA}\nv_cmp_ne_u32 {MASK(i)}, {sT2}, {tmp}')
        a(f's_or_b64 s[28:29], {MASK(0)}, {MASK(1 if n > 1 else 0)}')
        for i in range(2, n): a(f's_or_b64 s[28:29], s[28:29], {MASK(i)}')
        a(f's_cbranch_scc0 {D}')
        a(f's_sub_u32 {sSpin}, {sSpin}, 1\ns_cbranch_scc1 {D}')
        if thr is not None:
            S = a.lab('GN')
            a(f's_bcnt1_i32_b64 s30, {MASK(0)}')
            for i in range(1, n): a(f's_bcnt1_i32_b64 s31, {MASK(i)}\ns_add_u32 s30, s30, s31')
            a(f's_cmp_le_u32 s30, {thr}\ns_cbranch_scc1 {S}\ns_sleep {bsleep}\n{S}:')
        for i, x in enumerate(loads):
            a(f's_or_b32 s{70+2*i}, s{70+2*i}, 1\ns_wqm_b64 exec, {MASK(i)}')
            ld(*x)
        a('s_mov_b64 exec, -1')
        if sleep: a(f's_sleep {sleep}')
        a(f's_waitcnt vmcnt({n*depth})\ns_branch {L}\n{D}:\ns_waitcnt vmcnt(0)')
    def gather_t(loads, tmp, done, issue_first=True, thr=None, bsleep=0):
        L = a.lab('G'); D = a.lab('GD')
        his = []
        for d, w, vo, off in loads:
            if off & ~0xfff not in his: his.append(off & ~0xfff)
        def ld(d, w, vo, off):
            a(f'buffer_load_dwordx4 {V(d, w)}, {vo}, {SRD_WS}, {SOFF(his.index(off & ~0xfff))} offen offset:{off & 0xfff} sc1')
        if issue_first:
            for i, h in enumerate(his): a(f's_mov_b32 {SOFF(i)}, {h:#x}')
            for x in loads: ld(*x)
        n = len(loads)
        a(f's_mov_b32 {sSpin}, {spin}\ns_mov_b32 s29, {(1 << n) - 1}')
        a(f'{L}:\ns_mov_b32 s28, 0\ns_waitcnt vmcnt(0)')
        for i, (d, w, vo, off) in enumerate(loads):
            S, R = a.lab('GS'), a.lab('GR')
            a(f's_bitcmp0_b32 s29, {i}\ns_cbranch_scc1 {S}')
            a(f'v_perm_b32 {tmp}, {V(d+3)}, {V(d)}, {sSelA}\nv_cmp_ne_u32 vcc, {sT2}, {tmp}\ns_cbranch_vccnz {R}')
            done(i)
            a(f's_bitset0_b32 s29, {i}\ns_branch {S}\n{R}:')
            if thr is not None: a('s_bcnt1_i32_b64 s31, vcc\ns_add_u32 s28, s28, s31')
            a('s_wqm_b64 exec, vcc')
            ld(d, w, vo, off)
            a(f's_mov_b64 exec, -1\n{S}:')
        a(f's_cmp_eq_u32 s29, 0\ns_cbranch_scc1 {D}')
        if thr is not None:
            S = a.lab('GN')
            a(f's_cmp_le_u32 s28, {thr}\ns_cbranch_scc1 {S}\ns_sleep {bsleep}\n{S}:')
        a(f's_sub_u32 {sSpin}, {sSpin}, 1\ns_cbranch_scc0 {L}\ns_waitcnt vmcnt(0)\n{D}:')
    def w_voff(dst, stride, t):
        a(f'v_lshrrev_b32 {t}, 3, v1\nv_mul_u32_u24 {dst}, {stride}, {t}')
        a(f'v_lshrrev_b32 {t}, 4, v1\nv_lshlrev_b32 {t}, 1, {t}\nv_xor_b32 {t}, {t}, v1\nv_and_b32 {t}, 7, {t}\nv_lshl_add_u32 {dst}, {t}, 4, {dst}')
    def w_traddr(dst, base, t, t2):
        a(f'v_lshrrev_b32 {t}, 2, v1\nv_lshlrev_b32 {dst}, 7, {t}')
        a(f'v_and_b32 {t}, 6, {t}')
        a(f'v_lshrrev_b32 {t2}, 1, v1\nv_and_b32 {t2}, 1, {t2}\nv_lshl_add_u32 {t2}, {sI}, 1, {t2}')
        a(f'v_xor_b32 {t}, {t}, {t2}\nv_lshl_add_u32 {dst}, {t}, 4, {dst}')
        a(f'v_and_b32 {t}, 1, v1\nv_lshl_add_u32 {dst}, {t}, 3, {dst}\nv_add_u32 {dst}, {base}, {dst}')
    def w_read(areg, addr, nks):
        for ks in range(nks):
            a(f'ds_read_b64_tr_b16 {V(areg+4*ks, 2)}, {addr} offset:{ks*4096}')
            a(f'ds_read_b64_tr_b16 {V(areg+4*ks+2, 2)}, {addr} offset:{ks*4096+2048}')
    def b_read(breg, addr, nks):
        for ks in range(nks):
            a(f'ds_read2_b64 {V(breg+4*ks, 4)}, {addr} offset0:{8*ks} offset1:{8*ks+4}')
    def w_mfma(d, areg, breg, nks, staged=False):
        for ks in range(nks):
            if staged: a(f's_waitcnt lgkmcnt({nks-1-ks})')
            a(f'v_mfma_f32_16x16x32_bf16 {V(d,4)}, {V(areg+4*ks,4)}, {V(breg+4*ks,4)}, {"0" if ks == 0 else V(d,4)}')
    def ln_scale(mean, var):
        rnd(var); rnd(mean)
        a(f'v_add_f32 {var}, {f2u(1e-5):#x}, {var}'); rnd(var)
        a(f'v_sqrt_f32 {var}, {var}'); rnd(var)
        a(f'v_rcp_f32 {var}, {var}')
    c0 = -2 * LOG2E * 0.7978845608028654; c1 = c0 * 0.044715
    def gelu_units(units, U, Z, NB):
        for s0 in range(0, len(units), NB):
            blk = list(enumerate(units[s0:s0+NB]))
            R2 = lambda base, k: V(base + 2*k, 2)
            def both(fn):
                for k, _ in blk:
                    fn(2*k); fn(2*k+1)
            for k, (first, last) in blk: a(first(R2(U, k)))
            for k, _ in blk: a(f'v_pk_mul_f32 {R2(Z,k)}, {R2(U,k)}, {R2(U,k)}')
            for k, _ in blk: a(f'v_pk_fma_f32 {R2(Z,k)}, {R2(Z,k)}, v[44:45], v[44:45] op_sel:[0,0,1] op_sel_hi:[1,0,1]')
            for k, _ in blk: a(f'v_pk_mul_f32 {R2(Z,k)}, {R2(Z,k)}, {R2(U,k)}')
            both(lambda r: a(f'v_exp_f32 {V(Z+r)}, {V(Z+r)}'))
            for k, _ in blk: a(f'v_pk_add_f32 {R2(Z,k)}, {R2(Z,k)}, 1.0 op_sel_hi:[1,0]')
            both(lambda r: a(f'v_rcp_f32 {V(Z+r)}, {V(Z+r)}'))
            for k, _ in blk: a(f'v_pk_mul_f32 {R2(U,k)}, {R2(U,k)}, {R2(Z,k)}')
            for k, (first, last) in blk: a(last(R2(U, k)))

    tails = []
    def st_reduce(b):
        untag(range(b, b + 3), True)
        scat4(b)
        allred('v_add_f32', f'v{b}', None, (2, 'r4', 'r8'))
    def st_publish(base):
        scat4(20)
        allred('v_add_f32', 'v20', None, (1, 2, 'hm'))
        a('v_and_or_b32 v20, v20, -4, v158')
        setexec(0x0101010101010101)
        Lb, Le = a.lab('SB'), a.lab('SE')
        a(f's_cmp_lg_u32 s44, 0\ns_cbranch_scc1 {Lb}\nbuffer_store_dword v20, v31, {SRD_WS}, {base} offen')
        a(f'{Le}:\ns_mov_b64 exec, -1')
        tails.append(f'{Lb}:\ns_add_u32 {base}, {base}, s44\nbuffer_store_dword v20, v31, {SRD_WS}, {base} offen sc1\ns_branch {Le}')
    def red_setup():
        a(f'v_lshrrev_b32 v9, 4, v1\nv_and_b32 v13, 7, v1\nv_lshl_add_u32 v30, v13, 2, v9\nv_lshl_add_u32 v30, {sPi}, 2, v30\nv_lshlrev_b32 v29, 1, v30\nv_lshlrev_b32 v30, 2, v30')
        a(f'v_lshrrev_b32 v11, 3, v1\nv_and_b32 v11, 1, v11\nv_cmp_eq_u32 s[100:101], 1, v11\nv_lshl_add_u32 v28, v11, 15, v30')
        a(f'v_lshlrev_b32 v31, 4, v11\nv_lshl_add_u32 v31, v9, 2, v31\nv_lshl_add_u32 v31, {sPi}, 2, v31\nv_lshlrev_b32 v5, 4, v1')
        a(f'v_lshl_add_u32 v6, v1, 4, {vM}\nv_add_u32 v150, 1, v1\nv_and_b32 v150, 3, v150\nv_xor_b32 v150, {sT}, v150')
        a(f'v_mov_b32 v151, {sE}\nv_and_b32 v158, 3, v151\nv_cmp_eq_u32 vcc, 3, v9\nv_cndmask_b32 v158, v158, v151, vcc')
    def die_mode():
        await_(C_DIE, 1, 'v12', sleep=1)
        a(f's_cmp_eq_u32 s30, 1\ns_cselect_b32 s44, 0, {STB}')

    def wo_setup(j):
        a('v_lshrrev_b32 v11, 2, v1\nv_lshlrev_b32 v68, 9, v11\nv_and_b32 v74, 7, v11\nv_lshlrev_b32 v74, 1, v74')
        a(f'v_lshrrev_b32 v75, 1, v1\nv_and_b32 v75, 1, v75\nv_lshl_add_u32 v75, {sI}, 3, v75\nv_xor_b32 v74, v74, v75\nv_lshl_add_u32 v68, v74, 4, v68')
        a(f'v_and_b32 v74, 1, v1\nv_lshl_add_u32 v68, v74, 3, v68\nv_add_u32 v68, {WB if j == 0 else 16384}, v68')
        for i in range(1, 4): a(f'v_xor_b32 v{68+i}, {i << 5:#x}, v68')
        if j == 1:
            for i in range(4): a(f'v_mov_b32 v{84+i}, v{68+i}\nv_add_u32 v{88+i}, {2*RINGW}, v{68+i}')
        for r in range(202, 234): a(f'v_mov_b32 v{r}, 0')
        a(f'v_lshrrev_b32 v75, 4, v1\nv_lshl_add_u32 v72, v75, 3, {vM}\nv_add_u32 v72, {OV}, v72\nv_lshlrev_b32 v73, 4, v75\nv_lshl_add_u32 v73, v74, 6, v73')
        a('v_and_b32 v74, 2, v1\nv_lshl_add_u32 v73, v74, 12, v73')
        a('s_lshr_b32 s45, s33, 1\ns_lshr_b32 s30, s2, 6\ns_lshl_b32 s30, s30, 4\ns_add_u32 s45, s45, s30\ns_lshl_b32 s45, s45, 7')
        a(f's_and_b32 s30, s33, 1\ns_lshl_b32 s30, s30, 17\ns_add_u32 s45, s45, s30\ns_lshl_b32 s30, {sI}, 14\ns_add_u32 s45, s45, s30\ns_add_u32 s45, s45, {P4 + 0x10000*j}')
    def wo_finish():
        a('s_waitcnt lgkmcnt(0)\ns_barrier')
        for ct in range(4):
            setexec(0x0001000100010001 << ct)
            b_read(202 + 8*ct, 'v72', 2)
        setexec(-1)
        w_mfma(24, 120, 202, 8, staged=True)
        setexec(0x000f000f000f000f)
        tag('v24', sTa); tag('v27')
        a(f'buffer_store_dwordx4 v[24:27], v73, {SRD_WS}, s45 offen sc1')
        setexec(-1)

    a(f'{NAME}_kernel:')
    def sus(k):
        if su: a(f's_memrealtime s[{70+2*k}:{71+2*k}]')
    def warm_code():
        a('s_getpc_b64 s[32:33]\nL_pc:')
        a(f'v_lshlrev_b32 v4, 7, v0\nv_cmp_gt_u32 vcc, L_code_end-L_pc-4, v4\ns_and_saveexec_b64 s[28:29], vcc\ns_cbranch_execz L_nowarm')
        a('global_load_dword v254, v4, s[32:33]\nL_nowarm:\ns_mov_b64 exec, -1')
    if fastpro:
        a('s_lshr_b32 s30, s2, 8\ns_cbranch_scc1 L_end\ns_load_dwordx2 s[24:25], s[0:1], 88')
        a('v_readfirstlane_b32 s3, v0\nv_lshrrev_b32 v26, 3, v0\ns_and_b32 s30, s2, 7\nv_and_b32 v27, 6, v26\nv_lshl_add_u32 v26, s30, 7, v26')
        a('v_xor_b32 v27, v27, v0\ns_andn2_b32 s31, s2, 7\nv_and_b32 v27, 7, v27\nv_mul_u32_u24 v26, 12288, v26\nv_or_b32 v27, s31, v27')
        a(f's_lshl_b32 s31, s3, 4\nv_lshl_add_u32 v26, v27, 4, v26\ns_add_u32 m0, s31, {WA}\nv_add_u32 v27, {64*12288}, v26')
        a(f's_waitcnt lgkmcnt(0)\nglobal_load_lds_dwordx4 v26, s[24:25]{wnt}\ns_add_u32 m0, s31, {WA + 8192}\nglobal_load_lds_dwordx4 v27, s[24:25]{wnt}')
        if lite: a('s_memrealtime s[34:35]')
        a('s_load_dwordx2 s[16:17], s[0:1], 24\ns_load_dwordx16 s[36:51], s[0:1], 0')
        a('s_load_dwordx8 s[52:59], s[0:1], 64\ns_load_dwordx4 s[60:63], s[0:1], 96\ns_load_dwordx2 s[64:65], s[0:1], 112')
        if warm is True: warm_code()
        a('s_lshr_b32 s3, s3, 6\nv_and_b32 v1, 63, v0\ns_mov_b32 s26, 0xc00000\ns_mov_b32 s27, 0x20000')
        w_voff('v236', 12288, 'v26')
        a('s_waitcnt lgkmcnt(0)')
    else:
        a('s_cmp_ge_u32 s2, 256\ns_cbranch_scc1 L_end')
        if lite or enc: a('s_memrealtime s[34:35]')
        def sus(k):
            if su: a(f's_memrealtime s[{70+2*k}:{71+2*k}]')
        sus(0)
        a('s_load_dwordx2 s[24:25], s[0:1], 88\ns_load_dwordx2 s[16:17], s[0:1], 24\ns_load_dwordx16 s[36:51], s[0:1], 0')
        a('s_load_dwordx8 s[52:59], s[0:1], 64\ns_load_dwordx4 s[60:63], s[0:1], 96\ns_load_dwordx2 s[64:65], s[0:1], 112')
        if warm is True:
            a('s_getpc_b64 s[32:33]\nL_pc:')
            if warm == 2: a('v_xor_b32 v4, 0x100, v0\nv_lshlrev_b32 v4, 7, v4')
            else: a('v_lshlrev_b32 v4, 7, v0')
            a(f'v_cmp_gt_u32 vcc, L_code_end-L_pc-4, v4\ns_and_saveexec_b64 s[28:29], vcc\ns_cbranch_execz L_nowarm')
            a('global_load_dword v254, v4, s[32:33]\nL_nowarm:\ns_mov_b64 exec, -1')
        a('v_lshrrev_b32 v1, 6, v0\nv_readfirstlane_b32 s3, v1\nv_and_b32 v1, 63, v0')
        w_voff('v236', 12288, 'v26')
        a(f's_and_b32 s30, s2, 7\ns_lshl_b32 s30, s30, 3\ns_add_u32 s30, s30, s3\ns_mul_i32 s32, s30, {16*12288}\ns_lshr_b32 s30, s2, 3\ns_lshl_b32 s30, s30, 7\ns_add_u32 s32, s32, s30')
        a(f's_lshl_b32 s31, s3, 11\ns_add_u32 m0, s31, {WA}\ns_mov_b32 s26, 0xc00000\ns_mov_b32 s27, 0x20000\ns_add_u32 s33, s32, {8*12288 - 1024}')
        sus(1)
        a('s_waitcnt lgkmcnt(0)')
        sus(2)
        a(f'buffer_load_dwordx4 v236, {SRD_WM}, s32 offen{wnt} lds\nbuffer_load_dwordx4 v236, {SRD_WM}, s33 offen offset:1024{wnt} lds')
        sus(3)
    a(f's_mov_b64 s[20:21], s[44:45]\ns_and_b32 {sI}, s3, 3\ns_mov_b32 s18, 0x800000\ns_mov_b32 s19, 0x20000')
    def common2(x):
        a(f'v_mov_b32 {vM}, {MISC}\nv_mov_b32 {vOne}, 1')
        if stamps: a('v_mov_b32 v255, 0')
        a('s_mov_b32 s6, 0x4000000\ns_mov_b32 s7, 0x20000\ns_mov_b32 s10, 0x4000000\ns_mov_b32 s11, 0x20000')
        a('s_mov_b32 s14, 0x10000000\ns_mov_b32 s15, 0x20000\ns_mov_b32 s22, 0x800000\ns_mov_b32 s23, 0x20000')
        for srd, p in ((4, 38), (8, 40), (12, 64)):
            a(f's_mov_b64 s[{srd}:{srd+1}], s[{p}:{p+1}]')
    if xbar == 1: a('s_cmp_lt_u32 s3, 4\ns_cbranch_scc1 L_A\ns_barrier\ns_branch L_X\nL_A:')
    elif xbar == 2:
        a('s_cmp_lt_u32 s3, 4\ns_cbranch_scc1 L_A')
        a(f'v_lshlrev_b32 v27, 2, v1\nv_add_u32 v27, {MISC}, v27\nv_mov_b32 v28, 0')
        setexec(0xffffffff); a(f'ds_write_b32 v27, v28 offset:{CNT}'); setexec(-1)
        a('s_waitcnt lgkmcnt(0)\ns_barrier\ns_branch L_X\nL_A:')
    else: a('s_cmp_ge_u32 s3, 4\ns_cbranch_scc1 L_X')

    VOFF, KA, VA, Q, S, H = 4, 8, 16, 32, 64, 96
    PP, D1, D2, VS = 32, 96, 128, 160
    vMax, vSum = 'v224', 'v225'
    a('; ==== A waves')
    if aprio: a(f's_setprio {aprio}')
    seq = [('w1', i) for i in range(2)] + [('wq', i) for i in range(8)]
    seq += [('kv', i) for i in range(128)] + [('fill', k) for k in range(8)]
    if k7:
        pair_slot = [0, 2, 4, 0, 2, 4, 0, 6] + [2, 0, 4, 0, 2, 4, 0, 2]
        slot_of = lambda gi: pair_slot[gi >> 1] + (gi & 1)
    else:
        slot_of = lambda gi: gi % RS if gi < 28 else gi - 28
    pos = {e: n for n, e in enumerate(seq)}
    NS = len(seq)
    Fbase = (lambda n: [f for (n0, f) in Fs if n0 <= n][-1]) if Fs else (lambda n: F)
    NV = pos[('kv', 127)]
    CTL = NV - TR + F + 4 if Fhi else NS + 1
    Fn = lambda n: Fhi if CTL <= n <= NV else Fbase(n)
    FI = Fn(0)
    def landed_at(k):
        n = k + 1
        while n < FI or n - Fn(n) < k: n += 1
        return n
    a(f's_lshl_b32 s59, {sI}, 13')
    vorder = []
    for u in range(4): vorder += [4*u, 4*u+2, 4*u+1, 4*u+3]
    def issue(n):
        kind, i = seq[n]
        if kind == 'kv':
            gi, j = i // 4, i % 4
            if j == 0 or seq[n-1][0] != 'kv':
                grp = gi if gi < 16 else vorder[gi - 16]
                a(f's_add_u32 s39, {sBase}, {grp*16384}')
                a(f's_add_u32 m0, s38, {slot_of(gi)*4096}' if slot_of(gi) < RS else f's_add_u32 m0, s59, {WB + (slot_of(gi) - RS)*4096}')
            a(f'buffer_load_dwordx4 v{VOFF+j}, {SRD_K if gi < 16 else SRD_V}, s39 offen offset:{j*1024}{nt} lds')
        else:
            srd, vo, so, stride, lb, sl = {'wq': (SRD_WQ, 'v237', 's47', 8192, WB, 's59')}[kind]
            a(f's_add_u32 s32, {so}, {8*i*stride}\ns_add_u32 m0, {sl}, {lb + i*1024}')
            a(f'buffer_load_dwordx4 {vo}, {srd}, s32 offen{wnt} lds')
    w_voff('v237', 8192, 'v26')
    a(f's_and_b32 s30, s2, 3\ns_lshl_b32 s30, s30, 2\ns_add_u32 s30, s30, {sI}\ns_lshl_b32 s47, s30, 19')
    a('s_lshr_b32 s30, s2, 2\ns_lshl_b32 s30, s30, 7\ns_add_u32 s47, s47, s30')
    sus(4)
    for n in range(2, FI): issue(n)
    sus(5)
    if xbar == 2:
        a('s_barrier')
        common2(False)
        a(f's_load_dword {sE}, {sWS}, 12')
    else:
        common2(False)
        a('s_cmp_lg_u32 s3, 3\ns_cbranch_scc1 L_noinit')
        a(f'v_lshl_add_u32 v27, v1, 2, {vM}\nv_mov_b32 v28, 0')
        setexec(0xffffffff); a(f'ds_write_b32 v27, v28 offset:{CNT}'); setexec(-1)
        a('s_waitcnt lgkmcnt(0)\nL_noinit:')
        sus(6)
        a(f's_barrier\ns_load_dword {sE}, {sWS}, 12')
    sus(7)
    stamp(0)
    stamp(16)
    a('v_lshrrev_b32 v24, 4, v1\nv_and_b32 v25, 15, v1')
    a('v_lshlrev_b32 v26, 1, v24\nv_xor_b32 v26, v26, v25\nv_lshlrev_b32 v26, 4, v26\nv_lshl_add_u32 v4, v24, 8, v26')
    for i in range(1, 4): a(f'v_xor_b32 v{VOFF+i}, {(8*(i&1) + (i>>1)) << 4:#x}, v4')
    a(f's_lshl_b32 {sBase}, s2, 18\ns_lshl_b32 s30, s3, 12\ns_add_u32 {sBase}, {sBase}, s30')
    a(f's_mul_i32 s38, s3, {RINGW}')
    def t_setup():
        a('; LDS read addresses of K fragments (v8-15) and transposed V fragments (v16-23)')
        a('v_and_b32 v26, 7, v25\nv_lshlrev_b32 v26, 1, v26\nv_lshrrev_b32 v27, 3, v25\nv_or_b32 v26, v26, v27')
        a('v_lshrrev_b32 v27, 1, v24\nv_xor_b32 v26, v26, v27\nv_lshlrev_b32 v26, 4, v26\nv_lshl_add_u32 v26, v25, 8, v26')
        a(f'v_and_b32 v27, 1, v24\nv_lshl_add_u32 v26, v27, 12, v26\nv_add_u32 v{KA}, s38, v26')
        for j in range(1, 8): a(f'v_xor_b32 v{KA+j}, {j << 5:#x}, v{KA}')
        a('v_lshrrev_b32 v27, 2, v1')
        a('v_and_b32 v26, 7, v27\nv_lshlrev_b32 v26, 1, v26\nv_lshrrev_b32 v28, 3, v27\nv_or_b32 v26, v26, v28')
        a('v_lshrrev_b32 v28, 1, v1\nv_and_b32 v28, 1, v28\nv_xor_b32 v26, v26, v28\nv_lshlrev_b32 v26, 4, v26\nv_lshl_add_u32 v26, v27, 8, v26')
        a(f'v_and_b32 v28, 1, v1\nv_lshl_add_u32 v26, v28, 3, v26\nv_add_u32 v{VA}, s38, v26')
        for t in range(1, 8): a(f'v_xor_b32 v{VA+t}, {t << 5:#x}, v{VA}')
    def t_setup2():
        if su:
            a('s_memrealtime s[92:93]\ns_waitcnt lgkmcnt(0)\nv_mov_b32 v40, 0')
            for k in range(8): a(f'v_writelane_b32 v40, s{70+2*k}, {k}')
            a(f'v_writelane_b32 v40, s92, 8\ns_lshl_b32 s30, s2, 10\ns_add_u32 s30, s30, {DBG + 0x10000}\nv_lshlrev_b32 v41, 2, v0')
            a(f'buffer_store_dword v40, v41, {SRD_WS}, s30 offen')
        for r in range(Q, Q + 32): a(f'v_mov_b32 v{r}, 0')
        a(f'v_mov_b32 {vMax}, 0xff800000\nv_mov_b32 {vSum}, 0')
        a(f's_mov_b32 s40, {f2u(SCALE):#x}\ns_mov_b32 s41, {f2u(LOG2E):#x}')
    def t_setup3():
        w_traddr('v28', 0, 'v26', 'v27')
        a('s_lshr_b32 s42, s2, 6')
        a('v_lshrrev_b32 v26, 5, v1\nv_lshlrev_b32 v27, 1, v26\nv_xor_b32 v27, v27, v1\nv_and_b32 v27, 31, v27\nv_lshlrev_b32 v27, 4, v27\nv_lshl_add_u32 v238, v26, 11, v27')
        for i in range(1, 4): a(f'v_xor_b32 v{238+i}, {i << 6:#x}, v238')
        a(f'v_add_u32 v29, {2*RINGW}, v28\nv_lshl_add_u32 v30, v24, 3, {vM}\nv_lshl_add_u32 v30, s42, 9, v30\nv_lshlrev_b32 v242, 4, v24')
        a('v_and_b32 v26, 7, v1\nv_mul_u32_u24 v26, 528, v26\nv_lshl_add_u32 v26, v24, 4, v26\nv_add_u32 v31, s38, v26')
        a('s_waitcnt lgkmcnt(0)')
        setup_tags()
        a(f'v_add_u32 v243, 1, v24\nv_and_b32 v243, 3, v243\nv_xor_b32 v243, {sT}, v243')
    def t_readK(t, h):
        def f():
            a('; K tile -> registers')
            if slot_of(2*t) >= RS:
                a(f's_sub_u32 s30, s59, s38\ns_add_u32 s30, s30, {WB}')
                for j in range(8): a(f'v_add_u32 v{KA+j}, s30, v{KA+j}')
            for j in range(8): a(f'ds_read_b128 {V(H+32*h+4*j,4)}, v{KA+j} offset:{(slot_of(2*t) % RS)*4096}')
            a('s_waitcnt lgkmcnt(0)')
        return f
    def t_waitq():
        a('; wait for q, block-diagonal Q operands')
        stamp(1)
        await_(C_Q, 4, 'v26')
        stamp(2)
        a(f'v_and_b32 v26, 7, v1\nv_mul_u32_u24 v26, 272, v26\nv_lshrrev_b32 v27, 5, v1\nv_lshl_add_u32 v26, v27, 4, v26\nv_add_u32 v26, {MISC+QL}, v26')
        setexec(0xff0000ffff0000ff)
        for j in range(8): a(f'ds_read_b128 {V(Q+4*j,4)}, v26 offset:{32*j}')
        setexec(-1)
        a('s_waitcnt lgkmcnt(0)')
    def t_qk(t, h):
        def f():
            a('; scores of 32 keys x 8 heads')
            for j in range(8):
                a(f'v_mfma_f32_16x16x32_bf16 {V(S+4*t,4)}, {V(H+32*h+4*j,4)}, {V(Q+4*j,4)}, {"0" if j == 0 else V(S+4*t,4)}')
        return f
    def t_round(t):
        def f():
            a('; bf16 rounding, scale, bf16 rounding, running maximum')
            for r in range(4): rnd(V(S+4*t+r))
            for r in range(4): a(f'v_mul_f32 {V(S+4*t+r)}, s40, {V(S+4*t+r)}')
            for r in range(4): rnd(V(S+4*t+r))
            a(f'v_max3_f32 {vMax}, {vMax}, {V(S+4*t)}, {V(S+4*t+1)}\nv_max3_f32 {vMax}, {vMax}, {V(S+4*t+2)}, {V(S+4*t+3)}')
        return f
    def t_max():
        allred('v_max_f32', vMax, 'v26', ('r8', 16, 32))
        a(f'v_mul_f32 {vMax}, s41, {vMax}')
    def t_exp(t):
        def f():
            a('; exp, packed probabilities, running sum')
            for r in range(4): a(f'v_fma_f32 {V(S+4*t+r)}, {V(S+4*t+r)}, s41, -{vMax}')
            for r in range(4): a(f'v_exp_f32 {V(S+4*t+r)}, {V(S+4*t+r)}')
            a(f'v_cvt_pk_bf16_f32 {V(PP+2*t)}, {V(S+4*t)}, {V(S+4*t+1)}\nv_cvt_pk_bf16_f32 {V(PP+2*t+1)}, {V(S+4*t+2)}, {V(S+4*t+3)}')
            a(f'v_add_f32 v26, {V(S+4*t)}, {V(S+4*t+1)}\nv_add_f32 v27, {V(S+4*t+2)}, {V(S+4*t+3)}\nv_add_f32 v26, v26, v27\nv_add_f32 {vSum}, {vSum}, v26')
        return f
    def t_ml():
        allred('v_add_f32', vSum, 'v26', ('r8', 16, 32))
        a(f'v_lshl_add_u32 v26, v1, 2, {vM}\nv_lshl_add_u32 v26, s3, 6, v26')
        setexec(0xff)
        a(f'ds_write_b32 v26, {vMax} offset:{MLW}\nds_write_b32 v26, {vSum} offset:{MLW+32}')
        arrive(C_ML)
        stamp(3)
    def readV(p, half):
        slot = slot_of(16 + 2*p + half)
        for t in range(8):
            a(f'ds_read_b64_tr_b16 {V(VS+4*t+2*half,2)}, v{VA+t} offset:{slot*4096}')
    def pv(p, staged):
        u, which = p >> 1, p & 1
        Dd = D2 if which else D1
        for t in range(8):
            if staged: a(f's_waitcnt lgkmcnt({7-t})')
            a(f'v_mfma_f32_16x16x32_bf16 {V(Dd+4*t,4)}, {V(VS+4*t,4)}, {V(PP+4*u,4)}, {"0" if u == 0 else V(Dd+4*t,4)}')
    def t_pv(p):
        def f():
            a('; PV of two 16-key groups')
            readV(p, 0); readV(p, 1); pv(p, True)
        return f
    def writeD(which):
        setexec(0xff00ff00ff00ff00 if which else 0x00ff00ff00ff00ff)
        for t in range(8):
            a(f'ds_write_b128 v31, {V((D2 if which else D1)+4*t,4)} offset:{which*4352 + 64*t}')
        setexec(-1)
    def wg_stats(head, mreg, lreg):
        a(f'v_lshl_add_u32 v27, {head}, 2, {vM}')
        for w in range(4): a(f'ds_read_b32 v{mreg+w}, v27 offset:{MLW + 64*w}')
        if lreg:
            for w in range(4): a(f'ds_read_b32 v{lreg+w}, v27 offset:{MLW + 64*w + 32}')
        a('s_waitcnt lgkmcnt(0)')
        a(f'v_max3_f32 v26, v{mreg}, v{mreg+1}, v{mreg+2}\nv_max_f32 v26, v26, v{mreg+3}'); untag([26])
        for w in range(4): a(f'v_sub_f32 v{mreg+w}, v{mreg+w}, v26')
        for w in range(4): a(f'v_exp_f32 v{mreg+w}, v{mreg+w}')
    def t_mlpub():
        a('; workgroup maximum / sum record (wave 0)')
        await_(C_ML, 4, 'v26')
        Ls = a.lab('MP')
        a(f's_cmp_lg_u32 s3, 0\ns_cbranch_scc1 {Ls}')
        a('v_and_b32 v72, 7, v1')
        wg_stats('v72', 64, 68)
        a(f'v_or_b32 v76, {sT}, v26\nv_mul_f32 v77, v64, v68\nv_fmac_f32 v77, v65, v69\nv_fmac_f32 v77, v66, v70\nv_fmac_f32 v77, v67, v71')
        tag('v77')
        a(f'v_mov_b32 v78, {sTa}\nv_mov_b32 v79, {sT}\nv_lshlrev_b32 v72, 4, v72\ns_lshl_b32 s30, s2, 7\ns_add_u32 s30, s30, {ML}')
        setexec(0xff)
        a(f'buffer_store_dwordx4 v[76:79], v72, {SRD_WS}, s30 offen sc1')
        setexec(-1)
        a(f'{Ls}:')
    def t_fread():
        a('; rescale factors of the four waves, addresses of the final reduction')
        a('v_lshrrev_b32 v232, 5, v0')
        wg_stats('v232', 228, None)
        a('v_mul_u32_u24 v26, 528, v232\nv_and_b32 v27, 31, v0\nv_lshl_add_u32 v232, v27, 4, v26')
        a(f'v_add_u32 v233, {2*RINGW}, v232\nv_and_b32 v234, 15, v0\nv_lshlrev_b32 v234, 4, v234\nv_lshrrev_b32 v26, 4, v0\nv_lshl_add_u32 v234, v26, 14, v234')
        a(f's_lshr_b32 s45, s2, 6\ns_lshl_b32 s45, s45, 18\ns_and_b32 s30, s2, 63\ns_lshl_b32 s30, s30, 8\ns_add_u32 s45, s45, s30\ns_add_u32 s45, s45, {OB}')

    def wait_vm(cnt, extra):
        if extra and comp:
            Ls = a.lab('CW')
            a(f's_waitcnt vmcnt({cnt + 1})\ns_cmp_eq_u32 s3, 0\ns_cbranch_scc1 {Ls}\ns_waitcnt vmcnt({cnt})\n{Ls}:')
        else: a(f's_waitcnt vmcnt({cnt})')
    extra_at = []
    sched = {}
    def at(n, f): sched.setdefault(n, []).append(f)
    land = lambda t: landed_at(pos[('kv', 8*t + 7)])
    def reuse(t):
        later = [g for g in range(2*t + 2, 32) if slot_of(g) == slot_of(2*t)]
        return pos[('kv', 4*later[0])] if later else NS + 100
    at(landed_at(pos[('w1', 1)]), lambda: (a('s_waitcnt lgkmcnt(0)') if eep else None, arrive(C_W1)))
    at(landed_at(pos[('w1', 1)]) + 1, t_setup)
    at(landed_at(pos[('w1', 1)]) + 3, t_setup2)
    at(landed_at(pos[('wq', 7)]), lambda: arrive(C_WQ))
    at(landed_at(pos[('wq', 7)]) + 1, t_setup3)
    if T1: at(T1, lambda: arrive(C_T1))
    if T2: at(T2, lambda: arrive(C_T2))
    for t in range(4): at(land(t), t_readK(t, t))
    nq = pos[('kv', NQ)]
    assert nq >= land(3)
    at(nq, t_waitq)
    n = nq + 1
    free_h = {}
    step = 1 if k7 else 2
    if k7: at(pos[('kv', 56)] - 1, lambda: await_(C_WQF, 4, 'v26'))
    for t in range(4):
        at(n, t_qk(t, t)); free_h[t] = n + 1
        at(n + 1, t_round(t))
        n += step
    rd = {}
    for t in range(4, 8):
        rd[t] = max(free_h[t-4], land(t), rd.get(t-1, 0))
        assert rd[t] < reuse(t), (t, rd[t])
        at(rd[t], t_readK(t, t - 4))
    for t in range(4, 8):
        n = max(n, rd[t] + 1)
        at(n, t_qk(t, t - 4)); at(n + 1, t_round(t)); n += step
    n += 2 - step
    at(n, t_max); n += 1
    for t in range(8):
        at(n, t_exp(t))
        if t & 1: n += 1
    at(n, t_ml); at(n + MLP_AT, t_mlpub); extra_at.append(n + MLP_AT); at(n + MLP_AT + 4, t_fread); n += 1
    NV = pos[('kv', 127)]
    late = []
    t_d1 = lambda: (writeD(0), arrive(C_R1))
    for p in range(7):
        m = max(n, land(8 + p))
        assert m < reuse(8 + p), (p, m)
        if m <= NV: at(m, t_pv(p))
        else: late.append((pos[('kv', 64 + 8*p + 7)], t_pv(p)))
        n = m + 1
    if n <= NV: at(n, t_d1)
    else: late.append((pos[('kv', 119)], t_d1))
    ACC = 208
    def red_half(hf, base):
        for w in range(4):
            a(f'ds_read_b128 {V(base+4*w,4)}, v{232 + (w >> 1)} offset:{(w & 1)*RINGW + hf*4352}')
        for w in range(4):
            a(f's_waitcnt lgkmcnt({3-w})')
            sel = w & 1; fp = V(228 + (w & 2), 2)
            for h2 in range(2):
                if w == 0 and hf == 0: a(f'v_pk_mul_f32 {V(ACC+2*h2,2)}, {V(base+2*h2,2)}, {fp} op_sel:[0,{sel}] op_sel_hi:[1,{sel}]')
                else: a(f'v_pk_fma_f32 {V(ACC+2*h2,2)}, {V(base+4*w+2*h2,2)}, {fp}, {V(ACC+2*h2,2)} op_sel:[0,{sel},0] op_sel_hi:[1,{sel},1]')
    def t_pre():
        a('v_and_b32 v27, 8, v1\nv_xor_b32 v27, 8, v27\nv_mul_u32_u24 v27, 544, v27\nv_add_u32 v31, v31, v27')
        await_(C_R1, 4, 'v26', sleep=0)
        red_half(0, 192)
    def t_final():
        a('; last PV step, reduction over the waves, publish the partial output')
        stamp(4)
        readV(7, 1)
        def wr(t): a(f'ds_write_b128 v31, {V(D2+4*t,4)} offset:{4352 + 64*t}')
        for t in range(8):
            a(f's_waitcnt lgkmcnt({7 - t + max(0, t - 4)})')
            a(f'v_mfma_f32_16x16x32_bf16 {V(D2+4*t,4)}, {V(VS+4*t,4)}, {V(PP+12,4)}, {V(D2+4*t,4)}')
            if t >= 4: wr(t - 4)
        for t in range(4, 8): wr(t)
        arrive(C_RED)
        await_(C_RED, 4, 'v26', sleep=0)
        red_half(1, 192)
        tag(V(ACC), sTa); tag(V(ACC+3))
        if 'halfob' in exp: setexec(0x00ff00ff00ff00ff)
        a(f'buffer_store_dwordx4 {V(ACC,4)}, v234, {SRD_WS}, s45 offen{obf}')
        arrive(C_PUB)
        stamp(5)
    def draw():
        Ls = a.lab('RK')
        a(f's_cmp_lg_u32 s3, 0\ns_cbranch_scc1 {Ls}')
        a(f's_lshl_b32 s30, s42, 12\ns_add_u32 s30, s30, {RK}\nv_mov_b32 v72, 1\nv_mov_b32 v73, 0')
        setexec(1)
        a(f'buffer_atomic_add v72, v73, {SRD_WS}, s30 offen sc0 sc1')
        setexec(-1)
        a(f'{Ls}:')
    def post(c):
        Ls = a.lab('RK')
        a(f's_cmp_lg_u32 s3, 0\ns_cbranch_scc1 {Ls}')
        setexec(1)
        a(f'v_add_u32 v72, 1, v72\nds_write_b32 {vM}, v72 offset:{CNT + 4*c}')
        setexec(-1)
        a(f'{Ls}:')
    at(NV - TR - 1, draw); extra_at.append(NV - TR - 1)
    assert TR >= 0
    at(landed_at(NV - TR), lambda: post(C_RANK))
    assert max(sched) <= NV
    def t_mode():
        a(f'ds_read_b32 v26, {vM} offset:{CNT + 4*C_RANK}\ns_waitcnt lgkmcnt(0)\nv_readfirstlane_b32 s47, v26')
    if Fhi:
        at(CTL - 1, t_mode); at(CTL + 3, t_mode)
    assert extra_at[1] - extra_at[0] > 9
    for n in range(FI, NV + 1):
        wait_vm(Fn(n) - 1, any(n0 < n <= n0 + Fn(n) for n0 in extra_at))
        if n >= CTL:
            Lg = a.lab('GO')
            a(f's_cmp_ge_u32 s47, {rth}\ns_cbranch_scc1 {Lg}\ns_waitcnt vmcnt({Flo-1})\n{Lg}:')
        issue(n)
        if n % 16 == 0: stamp(18 + n // 16)
        for f in sched.get(n, []): f()
    UC = UC or F; UM = UM or F
    st0 = 1 if UM == 8 else 0
    LM, LN, LE0, LE1, LTD = a.lab('M'), a.lab('N'), a.lab('E0'), a.lab('E1'), a.lab('TD')
    PUBS = ['s44', 's47', 's58']
    def unit0(ld, Fu, extra={}):
        ev = [(k, 1, i, f) for i, (k, f) in enumerate(late + [(NV - 4, lambda: readV(7, 0)), (NV - 1, t_pre), (NV, t_final)])]
        if ld: ev += [(NV + 1 + j - Fu, 0, j, None) for j in range(8)]
        issued = NV + 1; done = -1; drawn = False
        for k, kind, j, f in sorted(ev, key=lambda e: e[:3]):
            if k > done:
                wait_vm(issued - 1 - k, drawn and k <= NV); done = k
            if kind: f()
            else:
                for g in extra.get(j, []):
                    g(); drawn = drawn or g is draw
                ld(j); issued += 1
    def wo_ld(j):
        def f(i):
            a(f's_add_u32 s32, s44, {i*4096 + 512*j}')
            a(f's_add_u32 m0, s59, {WB + i*1024}' if j == 0 else f's_add_u32 m0, s38, {16384 + i*1024}')
            a(f'buffer_load_dwordx4 v{238 + i % 4}, {SRD_WO}, s32 offen{wnt} lds')
        return f
    def m2_ld(k):
        def f(i):
            if 'lin2' in exp:
                a(f's_lshl_b32 s32, s42, 6\ns_add_u32 s32, s32, s43\ns_lshl_b32 s32, s32, 2\ns_add_u32 s32, s32, {sI}\ns_mul_i32 s32, s32, 12288\ns_add_u32 s32, s32, {4096 + i*1024}')
                a(f's_add_u32 m0, s38, {16384 - 8192*k + i*1024}\nv_lshlrev_b32 v237, 4, v1\nbuffer_load_dwordx4 v237, {SRD_WM}, s32 offen{wnt} lds')
                return
            if 'seg512' in exp:
                a(f's_lshr_b32 s32, s43, 4\ns_lshl_b32 s30, s42, 2\ns_add_u32 s32, s32, s30\ns_lshl_b32 s32, s32, 2\ns_add_u32 s32, s32, {sI}\ns_mul_i32 s32, s32, {16*12288}')
                a(f's_and_b32 s30, s43, 15\ns_lshl_b32 s30, s30, 9\ns_add_u32 s32, s32, s30\ns_add_u32 s32, s32, {4096 + 2*i*12288}')
                a(f's_add_u32 m0, s38, {16384 - 8192*k + i*1024}\nv_lshrrev_b32 v237, 5, v1\nv_mul_u32_u24 v237, {12288 - 512}, v237\nv_lshl_add_u32 v237, v1, 4, v237\nbuffer_load_dwordx4 v237, {SRD_WM}, s32 offen{wnt} lds')
                return
            a(f's_add_u32 s32, s46, {8*i*12288}\ns_add_u32 m0, s38, {16384 - 8192*k + i*1024}')
            a(f'buffer_load_dwordx4 v236, {SRD_WM}, s32 offen{wnt} lds')
        return f
    def m2_addr(k, none):
        if none: a(f's_sub_u32 s43, s30, {33 - EX}\ns_cmp_ge_u32 s43, 64\ns_cbranch_scc1 {none}')
        a(f's_lshl_b32 s30, s42, 2\ns_add_u32 s30, s30, {sI}\ns_mul_i32 s46, s30, {64*12288}\ns_lshl_b32 s30, s43, 7\ns_add_u32 s46, s46, s30\ns_add_u32 s46, s46, 4096')
        d = PUBS[k]
        a(f's_lshl_b32 {d}, s42, 14\ns_lshl_b32 s30, s43, 8\ns_add_u32 {d}, {d}, s30\ns_lshl_b32 s30, {sI}, 6\ns_add_u32 {d}, {d}, s30\ns_add_u32 {d}, {d}, {P3}')
    def m2_issue(k):
        for i in range(8):
            a(f's_waitcnt vmcnt({AF-1})')
            if k == 1 and i == T2AT + AF - 1: post(C_RANK3)
            if k == 1 and i == T2AT: draw()
            m2_ld(k)(i)
        assert T2AT + AF - 1 <= 7
    def m2_compute(k, cnt=None):
        arrive(C_M2)
        await_(C_M2, cnt or 4*(k+1), 'v6', sleep=0)
        for ks in range(8):
            for hf in range(2):
                a(f'ds_read_b64_tr_b16 {V(96+4*ks+2*hf,2)}, {"v28" if ks < 4 else "v29"} offset:{((ks >> 1) & 1)*RINGW + (ks & 1)*4096 + hf*2048 + 8192*(2-k)}')
        a('s_waitcnt lgkmcnt(0)')
        w_mfma(8 + 4*k, 96, 128, 8)
        for e in range(4): tag(V(8+4*k+e), 'v243')
        setexec(0x0001000100010001)
        a(f'buffer_store_dwordx4 {V(8+4*k,4)}, v242, {SRD_WS}, {PUBS[k]} offen sc1')
        setexec(-1)
    assert 2 <= AF <= 8
    await_(C_RANK, 1, 'v26', sleep=0)
    a(f's_sub_u32 s33, s30, 1\ns_cmp_ge_u32 s33, 32\ns_cbranch_scc1 {LM}')
    a(f's_lshr_b32 s44, s33, 1\ns_lshl_b32 s30, s42, 4\ns_add_u32 s44, s44, s30\ns_lshl_b32 s44, s44, 17\ns_lshl_b32 s30, {sI}, 15\ns_add_u32 s44, s44, s30')
    a('s_and_b32 s30, s33, 1\ns_lshl_b32 s30, s30, 10\ns_add_u32 s44, s44, s30')
    if TS:
        L2, L3 = a.lab('C2'), a.lab('C3')
        a(f's_cmp_ge_u32 s33, {TS}\ns_cbranch_scc1 {L2}')
        unit0(wo_ld(0), UC)
        a(f's_branch {L3}\n{L2}:')
        unit0(wo_ld(0), UC2)
        a(f'{L3}:')
    else: unit0(wo_ld(0), UC)
    for i in range(8):
        a(f's_waitcnt vmcnt({CF-1})')
        wo_ld(1)(i)
    if EX:
        LX0, LX1 = a.lab('CX'), a.lab('CY')
        a(f's_cmp_ge_u32 s33, {EX}\ns_cbranch_scc1 {LX0}\ns_mov_b32 s43, s33')
        m2_addr(1, None)
        b_read(128, 'v30', 8)
        await_(C_PUB, 4, 'v6', sleep=0)
        for i in range(8):
            a(f's_waitcnt vmcnt({min(CF, 8)-1})')
            m2_ld(1)(i)
        arrive(C_MD)
        arrive(C_WO)
        a('s_waitcnt vmcnt(0)')
        m2_compute(1, 4)
        wo_setup(1)
        a(f's_branch {LX1}\n{LX0}:')
    arrive(C_MD)
    wo_setup(1)
    a('s_waitcnt vmcnt(0)')
    arrive(C_WO)
    if EX: a(f'{LX1}:')
    await_(C_WO, 4, 'v4', sleep=0)
    for ct in range(4):
        for ks in range(2):
            for hf in range(2):
                a(f'ds_read_b64_tr_b16 {V(120+8*ct+4*ks+2*hf,2)}, v{84+4*ks+ct} offset:{hf*RINGW}')
    wo_finish()
    a(f's_branch {LTD}')
    a(f'{LM}:')
    m2_addr(0, LN)
    if TM < 64:
        LL, LJ = a.lab('ML'), a.lab('MJ')
        a(f's_cmp_lt_u32 s43, {TM}\ns_cbranch_scc1 {LL}')
        draw()
        unit0(None, 0)
        post(C_RANK2)
        for i in range(8): m2_ld(0)(i)
        a(f's_branch {LJ}\n{LL}:')
        assert st0 == 0
    unit0(m2_ld(0), UM, {0: [draw], UM - (0 if comp else 1): [lambda: post(C_RANK2)]})
    assert UM < 8
    if TM < 64: a(f'{LJ}:')
    b_read(128, 'v30', 8)
    await_(C_PUB, 4, 'v6', sleep=0)
    await_(C_RANK2, 1, 'v4', sleep=0)
    m2_addr(1, LE0)
    m2_issue(1)
    m2_compute(0)
    await_(C_RANK3, 1, 'v4', sleep=0)
    m2_addr(2, LE1)
    m2_issue(2)
    m2_compute(1)
    a('s_waitcnt vmcnt(1)')
    m2_compute(2)
    a(f's_branch {LTD}\n{LE1}:\ns_waitcnt vmcnt(1)')
    m2_compute(1)
    a(f's_branch {LTD}\n{LE0}:\ns_waitcnt vmcnt({st0})')
    m2_compute(0)
    a(f's_branch {LTD}')
    a(f'{LN}:')
    unit0(None, 0)
    a(f'{LTD}:')
    arrive(C_AD)
    stamp(8)
    a(f's_and_b32 s30, s2, 7\ns_cmp_lg_u32 s30, {RX}\ns_cbranch_scc1 L_fin2')
    G = 100
    def gb_part():
        gather([(G + 8 + k, 1, 'v28', P3 + k*16384 + 3*4096) for k in range(2)], 'v26', sleep=p3sleep)
        untag([G + 8, G + 9])
        a(f'v_add_f32 v155, v{G+8}, v{G+9}')
        allred('v_add_f32', 'v155', None, ('r8',))
        rnd('v155')
        a(f'ds_write_b32 v6, v155 offset:{SM + 1152}')
        arrive(C_GB)
        stamp(12)
    if gb2 == 2:
        Lg = a.lab('GB')
        a(f's_cmp_lg_u32 s3, 2\ns_cbranch_scc1 {Lg}')
        red_setup()
        gb_part()
        a(f's_branch L_fin2\n{Lg}:')
    a('s_cmp_lg_u32 s3, 1\ns_cbranch_scc1 L_fin2')
    red_setup()
    die_mode()
    a(f's_mov_b32 s40, {ST0}\ns_mov_b32 s41, {ST}\ns_lshl_b32 s42, {sPi}, 7\ns_add_u32 s42, s42, {TAB}')
    a(f'buffer_load_dword v120, v5, {SRD_WS}, s40 offen sc1\nbuffer_load_dword v121, v5, {SRD_WS}, s41 offen sc1\nbuffer_load_dword v122, v5, {SRD_WS}, s42 offen sc1')
    if pretouch == 2:
        a(f's_mov_b32 s42, {P4}\nv_lshlrev_b32 v12, 7, v1\nv_lshl_add_u32 v12, {sPi}, 10, v12\nbuffer_load_dword v123, v12, {SRD_WS}, s42 offen sc1')
    l3 = [(G + k, 1, 'v28', P3 + (k % 2)*16384 + (k // 2)*4096) for k in range(8)]
    n3 = 3 if gbl else 4
    gather(l3[:2*n3], 'v26', sleep=p3sleep)
    untag(range(G, G + 2*n3))
    for j in range(n3): a(f'v_add_f32 v{152+j}, v{G+2*j}, v{G+2*j+1}')
    for j in range(n3): allred('v_add_f32', f'v{152+j}', None, ('r8',))
    for j in range(n3): rnd(f'v{152+j}')
    a('v_add_f32 v154, 1.0, v154'); rnd('v154')
    a(f'ds_write_b128 v6, v[152:155] offset:{SM}')
    arrive(C_SM)
    a('v_cndmask_b32 v157, v154, v153, s[100:101]')
    a('v_cndmask_b32 v16, 1.0, v153, s[100:101]\nv_mul_f32 v20, v157, v16\nv_mul_f32 v21, v157, v154\nv_cndmask_b32 v22, v153, 0, s[100:101]\nv_mov_b32 v23, 0')
    a(f's_mov_b32 s41, {ST0}')
    st_publish('s41')
    stamp(10)
    if not gb2: gb_part()
    gather_st(G + 4, ST0, 1)
    st_reduce(G + 4)
    a(f'v_and_b32 v13, 1, v1\nv_lshlrev_b32 v13, 4, v13\nv_lshl_add_u32 v13, v9, 2, v13\nv_add_u32 v13, {vM}, v13')
    setexec(0x0003000300030003)
    a(f'ds_write_b32 v13, v{G+4} offset:{SM + 1024}')
    arrive(C_TAB)
    stamp(11)
    if gb2 == 1: gb_part()
    a('s_branch L_fin2')

    a('L_X:')
    a('; ==== X waves')
    if xprio: a(f's_setprio {xprio}')
    XA, XB, XD, G = 32, 64, 96, 100
    a('v_and_b32 v10, 255, v0')
    def s_touch(base, off_code, offs):
        lo, hi = base[2:-1].split(':')
        a(off_code)
        a(f's_add_u32 s32, s{lo}, s30\ns_addc_u32 s33, s{hi}, 0')
        for i, o in enumerate(offs): a(f's_load_dword s{70 + i % 16}, s[32:33], {o:#x}')
    if 'x' in spf:
        s_touch(sC, f's_lshl_b32 s30, {sI}, 9', [128*i for i in range(4)])
        s_touch(sX, f's_lshl_b32 s30, {sI}, 9', [128*i for i in range(4)])
        a('s_waitcnt lgkmcnt(0)')
    a(f'v_lshlrev_b32 v11, 3, v10\nglobal_load_dwordx2 v[12:13], v11, {sC}')
    xld = lambda: a(f'v_lshlrev_b32 v11, 5, v1\nglobal_load_dwordx4 v[16:19], v11, {sX}\nglobal_load_dwordx4 v[20:23], v11, {sX} offset:16')
    if not xlate: xld()
    a('s_and_b32 s42, s2, 3\ns_lshr_b32 s43, s2, 2\ns_and_b32 s44, s2, 7\ns_lshr_b32 s45, s2, 3')
    a('v_lshrrev_b32 v9, 4, v1\nv_and_b32 v15, 15, v1')
    a(f'v_lshl_add_u32 v28, v15, 2, v9\nv_lshl_add_u32 v28, {sI}, 6, v28')
    a('v_lshl_add_u32 v11, s42, 8, v28\nv_lshlrev_b32 v11, 1, v11\nv_mov_b32 v14, 0')
    a(f'global_load_short_d16_hi v14, v11, {sX}')
    a(f's_load_dword {sE}, {sWS}, 12')
    if warm == 3:
        a(f's_getpc_b64 s[32:33]\nL_pc:\ns_sub_u32 s32, s32, L_pc-{NAME}_kernel\ns_subb_u32 s33, s33, 0')
        a(f's_bfe_u32 s30, s2, 0x30003\ns_lshl_b32 s30, s30, 2\ns_add_u32 s30, s30, {sI}\ns_lshl_b32 s30, s30, 10\ns_min_u32 s30, s30, L_code_end-{NAME}_kernel-1024')
        a('s_add_u32 s32, s32, s30\ns_addc_u32 s33, s33, 0')
        for i in range(8): a(f's_load_dword s{70+i}, s[32:33], {128*i}')
    common2(True)
    if not xbar: a('s_barrier')
    stamp(0)
    if tlb:
        Lt = a.lab('TL')
        a(f's_cmp_lg_u32 {sI}, 1\ns_cbranch_scc1 {Lt}')
        a('s_lshl_b32 s30, s2, 18\nv_mov_b32 v11, 0\ns_lshr_b32 s31, s2, 6\ns_lshl_b32 s32, s31, 21\ns_mul_i32 s31, s31, 0x300000\nv_lshlrev_b32 v24, 20, v1')
        setexec(1)
        a(f'buffer_load_dword v250, v11, {SRD_K}, s30 offen nt\nbuffer_load_dword v251, v11, {SRD_V}, s30 offen nt\nbuffer_load_dword v252, v11, {SRD_WO}, s32 offen nt')
        setexec(7)
        a(f'buffer_load_dword v253, v24, {SRD_WM}, s31 offen nt')
        setexec(-1)
        a(f'{Lt}:')
    Lz0 = a.lab('RZ')
    a(f's_and_b32 s30, s2, 63\ns_add_u32 s30, s30, {sI}\ns_cmp_lg_u32 s30, 0\ns_cbranch_scc1 {Lz0}')
    a(f's_lshl_b32 s30, s2, 6\ns_add_u32 s30, s30, {RK}\nv_lshlrev_b32 v11, 2, v1\nv_mov_b32 v24, 0')
    setexec(0xffffffff)
    a(f'buffer_store_dword v24, v11, {SRD_WS}, s30 offen sc1')
    setexec(-1)
    a(f's_waitcnt vmcnt(0)\n{Lz0}:')
    stamp(17)
    w_traddr('v6', WA, 'v11', 'v24')
    a(f'v_add_u32 v7, {(WB - WA) & 0xffffffff:#x}, v6')
    a(f'v_lshl_add_u32 v8, v9, 3, {vM}\nv_lshlrev_b32 v29, 4, v9')
    a(f's_waitcnt vmcnt({1 if xlate else 3}) lgkmcnt(0)')
    stamp(20)
    a(f's_mov_b32 s30, {f2u(-LOG2E):#x}')
    a('v_lshlrev_b32 v24, 16, v12\nv_and_b32 v25, 0xffff0000, v12\nv_lshlrev_b32 v26, 16, v13\nv_and_b32 v27, 0xffff0000, v13')
    for i in range(4): a(f'v_mul_f32 v{100+i}, s30, v{24+i}')
    for i in range(4): a(f'v_exp_f32 v{100+i}, v{100+i}')
    for i in range(4): a(f'v_add_f32 v{100+i}, 1.0, v{100+i}')
    for i in range(4): a(f'v_rcp_f32 v{100+i}, v{100+i}')
    for i in range(4): a(f'v_mul_f32 v{24+i}, v{24+i}, v{100+i}')
    a('v_cvt_pk_bf16_f32 v12, v24, v25\nv_cvt_pk_bf16_f32 v13, v26, v27')
    a(f'v_lshl_add_u32 v11, v10, 3, {vM}\nds_write_b64 v11, v[12:13] offset:{SC}')
    arrive(C_W1)
    setup_tags()
    a(f's_lshl_b32 s46, s44, 13\ns_lshl_b32 s30, s45, 8\ns_add_u32 s46, s46, s30\ns_lshl_b32 s30, {sI}, 6\ns_add_u32 s46, s46, s30\ns_add_u32 s46, s46, {P1}')
    stamp(1)
    await_(C_W1, 8, 'v11', sleep=1 if xs else 0)
    stamp(22)
    w_read(XA, 'v6', 4)
    a(f'v_lshl_add_u32 v11, s44, 8, v8')
    b_read(XB, 'v11', 4)
    def publish(s_off, fine=False):
        for e in range(4):
            if fine: a(f's_add_u32 s30, {sT}, {e+1}\nv_bfi_b32 {V(XD+e)}, 3, s30, {V(XD+e)}')
            else: tag(V(XD+e))
        setexec(0x0001000100010001)
        if 'nop12' not in exp: a(f'buffer_store_dwordx4 {V(XD,4)}, v29, {SRD_WS}, {s_off} offen{p12f}')
        setexec(-1)
    w_mfma(XD, XA, XB, 4, staged=True)
    publish('s46', True)
    stamp(2)
    if xlate: xld()
    a(f's_waitcnt vmcnt({0 if xlate else 1})')
    for i in range(8):
        a(f'v_lshlrev_b32 v{100+2*i}, 16, v{16+i}\nv_and_b32 v{101+2*i}, 0xffff0000, v{16+i}')
    a('v_add_f32 v16, v100, v101')
    for i in range(2, 16): a(f'v_add_f32 v16, v16, v{100+i}')
    allred('v_add_f32', 'v16', 'v17')
    a(f'v_mul_f32 v16, {f2u(1/1024):#x}, v16\nv_mov_b32 v18, 0')
    for i in range(16): a(f'v_sub_f32 v17, v{100+i}, v16\nv_fmac_f32 v18, v17, v17')
    allred('v_add_f32', 'v18', 'v17')
    a(f'v_mul_f32 v18, {f2u(1/1024):#x}, v18')
    ln_scale('v16', 'v18')
    a('v_sub_f32 v14, v14, v16'); rnd('v14'); a('v_mul_f32 v14, v14, v18'); rnd('v14')
    stamp(23)
    await_(C_WQ, 4, 'v11', sleep=1 + xs)
    w_read(XA, 'v7', 8)
    a('s_waitcnt lgkmcnt(0)')
    arrive(C_WQF)
    stamp(3)
    a(f's_lshl_b32 s30, s42, 10\ns_lshl_b32 s31, {sI}, 8\ns_add_u32 s30, s30, s31\nv_lshl_add_u32 v12, v15, 4, s30\nv_lshl_add_u32 v12, v9, 13, v12')
    if T1: await_(C_T1, 2, 'v11', sleep=2 + xs)
    if 'h' in spf:
        s_touch(sWS, f's_lshl_b32 s30, s42, 10\ns_lshl_b32 s31, {sI}, 8\ns_add_u32 s30, s30, s31', [P1 + p*4096 + 128*l for p in range(16) for l in range(2)])
        a('s_waitcnt lgkmcnt(0)')
    stamp(19)
    if 'nog' not in exp: gather([(G + 4*i, 4, 'v12', P1 + (i & 1)*32768 + (i >> 1)*4096) for i in range(1 if 'smallg' in exp else 4)], 'v26', sleep=psleep, full=2)
    untag(range(G, G + 16), True)
    stamp(4)
    for hf in range(2):
        b = G + 8*hf
        a(f'v_pk_add_f32 {V(b,2)}, {V(b,2)}, {V(b+4,2)}\nv_pk_add_f32 {V(b+2,2)}, {V(b+2,2)}, {V(b+6,2)}')
        scat4(b); rnd(f'v{b}')
    a(f'v_add_f32 v{G+8}, 1.0, v{G+8}'); rnd(f'v{G+8}')
    a(f'v_mul_f32 v14, v14, v{G+8}'); rnd('v14')
    a(f'v_add_f32 v14, v14, v{G}'); rnd('v14')
    a(f'v_lshl_add_u32 v11, v28, 1, {vM}\nds_write_b16_d16_hi v11, v14 offset:{HV}')
    arrive(C_H)
    a(f's_lshl_b32 s47, s42, 14\ns_lshl_b32 s30, s43, 8\ns_add_u32 s47, s47, s30\ns_lshl_b32 s30, {sI}, 6\ns_add_u32 s47, s47, s30\ns_add_u32 s46, s47, {P2}')
    await_(C_H, 4, 'v11', sleep=1 if xs else 0)
    a(f'v_add_u32 v11, {HV}, v8')
    b_read(XB, 'v11', 8)
    w_mfma(XD, XA, XB, 8, staged=True)
    publish('s46', True)
    stamp(5)
    a('v_lshlrev_b32 v12, 4, v1')
    a(f's_lshr_b32 s30, s2, 6\ns_lshl_b32 s30, s30, 12\ns_lshl_b32 s32, {sI}, 10\ns_add_u32 s30, s30, s32\nv_add_u32 v12, s30, v12')
    if T2: await_(C_T2, 2, 'v11', sleep=2 + xs)
    if 'q' in spf:
        s_touch(sWS, f's_lshr_b32 s30, s2, 6\ns_lshl_b32 s30, s30, 12\ns_lshl_b32 s31, {sI}, 10\ns_add_u32 s30, s30, s31', [P2 + p*16384 + 128*l for p in range(4) for l in range(8)])
        a('s_waitcnt lgkmcnt(0)')
    stamp(8)
    if 'nog' not in exp: gather([(G + 4*i, 4, 'v12', P2 + i*16384) for i in range(1 if 'smallg' in exp else 4)], 'v26', sleep=psleep, full=2)
    untag(range(G, G + 16), True)
    for e in (0, 2):
        a(f'v_pk_add_f32 {V(G+e,2)}, {V(G+e,2)}, {V(G+4+e,2)}\nv_pk_add_f32 {V(G+8+e,2)}, {V(G+8+e,2)}, {V(G+12+e,2)}\nv_pk_add_f32 {V(G+e,2)}, {V(G+e,2)}, {V(G+8+e,2)}')
    a(f'v_cvt_pk_bf16_f32 v{G}, v{G}, v{G+1}\nv_cvt_pk_bf16_f32 v{G+1}, v{G+2}, v{G+3}')
    a(f's_mul_i32 s30, {sI}, 544\nv_lshrrev_b32 v11, 5, v1\nv_lshlrev_b32 v11, 4, v11\nv_lshl_add_u32 v11, v1, 3, v11\nv_add3_u32 v11, v11, {vM}, s30')
    a(f'ds_write_b64 v11, {V(G,2)} offset:{QL}')
    arrive(C_Q)
    if lite:
        Ll = a.lab('LI')
        a(f's_cmp_lg_u32 s3, 5\ns_cbranch_scc1 {Ll}\ns_lshl_b32 s30, s2, 7\ns_add_u32 s30, s30, {DBG}\nv_mov_b32 v11, 0\nv_mov_b32 v12, s34\ns_getreg_b32 s31, hwreg(HW_REG_XCC_ID)\nv_mov_b32 v24, s31')
        setexec(1)
        a(f'buffer_store_dword v12, v11, {SRD_WS}, s30 offen\nbuffer_store_dword v24, v11, {SRD_WS}, s30 offen offset:4')
        setexec(-1)
        a(f'{Ll}:')
    if eep:
        Lp = a.lab('EP')
        a(f'; advance the epoch word\ns_add_u32 s30, s2, {sI}\ns_cmp_lg_u32 s30, 0\ns_cbranch_scc1 {Lp}')
        await_(C_Q, 4, 'v11')
        a(f'v_mov_b32 v11, {sE}\nv_mov_b32 v12, 0')
        setexec(1)
        a(f'global_store_dword v12, v11, {sWS} offset:12 sc1')
        setexec(-1)
        a(f'{Lp}:')
    stamp(6)
    if xprio: a('s_setprio 0')
    CW, CB, C2 = 160, 174, 188
    a('v_lshlrev_b32 v11, 2, v10\nv_add_u32 v12, 0x1000, v11\nv_mov_b32 v17, 0\nv_mov_b32 v159, 0')
    for j, ptr in enumerate((sW1, sB1, sW2)):
        for i in range(0 if 'nocoef' in exp else 7): a(f'global_load_dword v{G+7*j+i}, {"v11" if i < 4 else "v12"}, {ptr} offset:{(i % 4)*1024}')
    a(f'global_load_short_d16_hi v159, v17, {sB2}')
    a(f'v_mov_b32 v44, {f2u(c1):#x}\nv_mov_b32 v45, {f2u(c0):#x}')
    a(f'v_lshl_add_u32 v13, v9, 2, {vM}\nv_lshl_add_u32 v13, {sI}, 7, v13')
    a(f's_lshl_b32 s39, s2, 5\ns_and_b32 s40, s39, 0xfff\ns_add_u32 s40, s40, {E0 << 7}\ns_lshr_b32 s30, s39, 12\ns_lshl_b32 s30, s30, 15\ns_or_b32 s40, s40, s30\ns_lshl_b32 s40, s40, 16')
    a('s_mov_b32 s41, 0\ns_waitcnt vmcnt(0)')
    for j, base in enumerate((CW, CB, C2)):
        for i in range(7): a(f'v_lshlrev_b32 v{base+2*i}, 16, v{G+7*j+i}\nv_and_b32 v{base+2*i+1}, 0xffff0000, v{G+7*j+i}')
    def weights():
        a('s_lshr_b32 s30, s38, 4\ns_lshl_b32 s30, s30, 13\ns_lshr_b32 s31, s38, 1\ns_and_b32 s31, s31, 7\ns_lshl_b32 s31, s31, 4\ns_add_u32 s30, s30, s31\nv_lshl_add_u32 v12, v1, 7, s30')
        gather([(G, 4, 'v12', ML)], 'v26', sleep=psleep, full=True)
        untag([G, G + 1])
        a(f'v_mov_b32 v16, v{G}')
        allred('v_max_f32', 'v16', 'v11')
        a(f'v_sub_f32 v16, v{G}, v16\nv_exp_f32 v16, v16\nv_mul_f32 v17, v16, v{G+1}')
        allred('v_add_f32', 'v17', 'v11')
        a(f'v_rcp_f32 v17, v17\nv_and_b32 v12, 15, v1\nv_lshlrev_b32 v12, 4, v12\nv_lshl_add_u32 v12, v9, 2, v12\nv_add_u32 v12, {vM}, v12\nv_mul_f32 v16, v16, v17')
        a(f'ds_write_b32 v12, v16 offset:{WL}')
        arrive(C_WL)
    def early_touch():
        Le = a.lab('ET')
        a(f's_cmp_lg_u32 {sI}, 2\ns_cbranch_scc1 {Le}\ns_and_b32 s30, s2, 7\ns_cmp_lg_u32 s30, {RX}\ns_cbranch_scc1 {Le}')
        a(f'v_lshlrev_b32 v11, 7, v1\nv_lshl_add_u32 v11, {sPi}, 10, v11\ns_mov_b32 s30, {P4}\nbuffer_load_dword v250, v11, {SRD_WS}, s30 offen sc1')
        a(f'v_and_b32 v11, 15, v1\nv_lshlrev_b32 v11, 12, v11\nv_lshl_add_u32 v11, {sPi}, 4, v11\ns_mov_b32 s30, {P3}\nbuffer_load_dword v251, v11, {SRD_WS}, s30 offen sc1')
        a(f'v_lshlrev_b32 v11, 4, v1\ns_mov_b32 s30, {ST0}\ns_mov_b32 s31, {ST}\nbuffer_load_dword v252, v11, {SRD_WS}, s30 offen sc1\nbuffer_load_dword v253, v11, {SRD_WS}, s31 offen sc1')
        a(f'{Le}:')
    if ept == 2: early_touch()
    Ld = a.lab('DP')
    a(f'; reducer workgroups tell each other their die\ns_cmp_lg_u32 {sI}, 1\ns_cbranch_scc1 {Ld}\ns_and_b32 s30, s2, 7\ns_cmp_lg_u32 s30, {RX}\ns_cbranch_scc1 {Ld}')
    a(f's_getreg_b32 s30, hwreg(HW_REG_XCC_ID)\ns_and_b32 s30, s30, 15\nv_mov_b32 v248, {sE}\nv_mov_b32 v249, s30\nv_mov_b32 v11, {sPi}\ns_mov_b32 s30, {DI}')
    setexec(1)
    a(f'buffer_store_dwordx2 v[248:249], v11, {SRD_WS}, s30 offen sc1')
    setexec(-1)
    a(f'{Ld}:')
    if obt:
        Lo = a.lab('OT')
        a(f's_cmp_lg_u32 {sI}, 1\ns_cbranch_scc1 {Lo}')
        a('v_lshrrev_b32 v11, 1, v1\nv_lshlrev_b32 v11, 14, v11\nv_and_b32 v12, 1, v1\nv_lshl_add_u32 v11, v12, 7, v11')
        a(f's_lshr_b32 s30, s2, 6\ns_lshl_b32 s30, s30, 18\ns_and_b32 s31, s2, 63\ns_lshl_b32 s31, s31, 8\ns_add_u32 s30, s30, s31\ns_add_u32 s30, s30, {OB}')
        setexec(0xffffffff)
        a(f'buffer_load_dword v250, v11, {SRD_WS}, s30 offen sc1')
        setexec(-1)
        a(f'{Lo}:')
    a('L_tab:')
    for e in range(4): a(f'v_mov_b32 v{40+e}, s40\ns_add_u32 s40, s40, 0x10000\nv_mov_b32 v{16+e}, 0')
    Lz = a.lab('TZ')
    a(f's_add_u32 s39, s39, 4\ns_cmp_lg_u32 s39, 4096\ns_cbranch_scc1 {Lz}\nv_mov_b32 v43, 0\n{Lz}:')
    units = []
    for i in range(14):
        sel = i & 1; pr = i & ~1
        for dp in range(2):
            units.append((lambda u, sel=sel, pr=pr, dp=dp: f'v_pk_fma_f32 {u}, {V(40+2*dp,2)}, {V(CW+pr,2)}, {V(CB+pr,2)} op_sel:[0,{sel},{sel}] op_sel_hi:[1,{sel},{sel}]',
                          lambda u, sel=sel, pr=pr, dp=dp: f'v_pk_fma_f32 {V(16+2*dp,2)}, {u}, {V(C2+pr,2)}, {V(16+2*dp,2)} op_sel:[0,{sel},0] op_sel_hi:[1,{sel},1]'))
    gelu_units(units, 48, 64, 4)
    scat4(16)
    allred('v_add_f32', 'v16', None, (1, 2, 'hm', 'm'))
    setexec(0x0001000100010001)
    a(f'ds_write_b32 v13, v16 offset:{YT}')
    setexec(-1)
    a('v_add_u32 v13, 16, v13\ns_add_u32 s41, s41, 1\ns_cmp_lt_u32 s41, ' + ('1' if 'notab' in exp else '8') + '\ns_cbranch_scc1 L_tab')
    arrive(C_YT)
    if ept == 1: early_touch()
    stamp(7)
    LX3, LXD, LXM, LXR = a.lab('X3'), a.lab('XD'), a.lab('XM'), a.lab('XR')
    a(f's_cmp_lg_u32 {sI}, 0\ns_cbranch_scc1 {LX3}')
    await_(C_YT, 4, 'v11')
    a(f'v_and_b32 v12, 7, v1\nv_lshlrev_b32 v12, 4, v12\nv_add_u32 v11, {vM}, v12')
    for w in range(4): a(f'ds_read_b128 {V(48+4*w,4)}, v11 offset:{YT + 128*w}')
    a(f's_lshl_b32 s30, s2, 7\ns_add_u32 s30, s30, {TAB}\ns_waitcnt lgkmcnt(0)')
    for e in (0, 2): a(f'v_pk_add_f32 {V(48+e,2)}, {V(48+e,2)}, {V(52+e,2)}\nv_pk_add_f32 {V(56+e,2)}, {V(56+e,2)}, {V(60+e,2)}\nv_pk_add_f32 {V(48+e,2)}, {V(48+e,2)}, {V(56+e,2)}')
    for e in range(4): rnd(V(48+e))
    for e in range(4): a(f'v_add_f32 v{48+e}, v{48+e}, v159')
    for e in range(4): rnd(V(48+e))
    for e in range(4): a(f'v_or_b32 v{48+e}, {sT}, v{48+e}')
    setexec(0xff)
    a(f'buffer_store_dwordx4 v[48:51], v12, {SRD_WS}, s30 offen sc1')
    setexec(-1)
    a(f'{LX3}:')
    Ld, Ll, Lo = a.lab('DG'), a.lab('DL'), a.lab('DO')
    a(f's_cmp_lg_u32 {sI}, 1\ns_cbranch_scc1 {Ld}\ns_and_b32 s30, s2, 7\ns_cmp_lg_u32 s30, {RX}\ns_cbranch_scc1 {Ld}')
    a(f'v_and_b32 v11, 31, v1\nv_lshlrev_b32 v11, 3, v11\ns_mov_b32 s31, {DI}\ns_mov_b32 {sSpin}, {spin}')
    a(f'{Ll}:\nbuffer_load_dwordx2 v[16:17], v11, {SRD_WS}, s31 offen sc1\ns_waitcnt vmcnt(0)\nv_cmp_ne_u32 vcc, {sE}, v16\ns_cbranch_vccz {Lo}')
    a(f's_sleep 8\ns_sub_u32 {sSpin}, {sSpin}, 1\ns_cbranch_scc0 {Ll}\n{Lo}:')
    a(f'v_cmp_ne_u32 vcc, v249, v17\ns_cmp_eq_u64 vcc, 0\ns_cselect_b32 s30, 1, 2\nv_mov_b32 v16, s30\nds_write_b32 {vM}, v16 offset:{CNT + 4*C_DIE}')
    a(f'{Ld}:')
    await_(C_RANK, 1, 'v11', sleep=2)
    a(f's_sub_u32 s33, s30, 1\ns_cmp_ge_u32 s33, 32\ns_cbranch_scc1 {LXM}')
    a('s_lshr_b32 s38, s33, 1\ns_lshr_b32 s30, s2, 6\ns_lshl_b32 s30, s30, 4\ns_add_u32 s38, s38, s30')
    a(f's_cmp_lg_u32 {sI}, 3\ns_cbranch_scc1 {LXD}')
    weights()
    a(f'{LXD}:')
    stamp(9)
    a(f's_lshl_b32 s30, s38, 14\ns_lshl_b32 s32, {sI}, 6')
    if 'halfob' in exp: a('s_and_b32 s32, s32, 64')
    if 'single' in exp: a('s_and_b32 s32, s32, 64\ns_and_b32 s31, s33, 1\ns_lshl_b32 s31, s31, 7\ns_add_u32 s32, s32, s31')
    a('s_add_u32 s30, s30, s32')
    a('v_and_b32 v13, 3, v1\nv_lshl_add_u32 v12, v13, 4, s30\nv_lshrrev_b32 v11, 2, v1\nv_lshl_add_u32 v12, v11, 8, v12')
    a(f'v_lshlrev_b32 v13, 3, v13\nv_lshl_add_u32 v13, v9, 1, v13\nv_lshl_add_u32 v13, {sI}, 5, v13\nv_add_u32 v13, {vM}, v13')
    W = 80
    a(f'v_lshl_add_u32 v14, v11, 4, {vM}')
    wo_setup(0)
    LH, LHD, LHS = a.lab('H'), a.lab('HD'), a.lab('HS')
    for i in range(4): a(f's_mov_b32 {SOFF(i)}, {OB + 4096*i:#x}')
    def h1ld(i): a(f'buffer_load_dwordx4 {V(G+4*i,4)}, v12, {SRD_WS}, {SOFF(i)} offen sc1')
    await_(C_WL, 1, 'v11', sleep=1)
    a(f'ds_read_b128 {V(W,4)}, v14 offset:{WL}')
    if pd1 is not None:
        await_(C_WO, 4, 'v11', sleep=1)
        for ct in range(4):
            for ks in range(2):
                for hf in range(2):
                    a(f'ds_read_b64_tr_b16 {V(120+8*ct+4*ks+2*hf,2)}, v{68+ct} offset:{ks*16384 + hf*8192}')
        stamp(10)
        gather_p([(G + 4*i, 4, 'v12', OB + 4096*i) for i in range(4)], 'v11', depth=pd1, sleep=ps1, thr=h1thr, bsleep=h1sleep)
    else:
        await_(C_MD, 4, 'v11', sleep=1)
        stamp(10)
        for i in range(4): h1ld(i)
        await_(C_WO, 4, 'v11', sleep=0)
        for ct in range(4):
            for ks in range(2):
                for hf in range(2):
                    a(f'ds_read_b64_tr_b16 {V(120+8*ct+4*ks+2*hf,2)}, v{68+ct} offset:{ks*16384 + hf*8192}')
        stamp(13)
        if tight & 1:
            def h1done(i):
                untag([G + 4*i, G + 4*i + 3])
                for e in (0, 2): a(f'v_pk_mul_f32 {V(G+4*i+e,2)}, {V(G+4*i+e,2)}, {V(W+(i&2),2)} op_sel:[0,{i&1}] op_sel_hi:[1,{i&1}]')
            gather_t([(G + 4*i, 4, 'v12', OB + 4096*i) for i in range(4)], 'v11', h1done, issue_first=False, thr=h1thr, bsleep=h1sleep)
        else:
            a(f's_mov_b32 {sSpin}, {spin}')
            a(f'{LH}:\ns_waitcnt vmcnt(0)')
            for i in range(4): a(f'v_perm_b32 v11, v{G+4*i+3}, v{G+4*i}, {sSelA}\nv_cmp_ne_u32 {MASK(i)}, {sT2}, v11')
            a(f's_bcnt1_i32_b64 s30, {MASK(0)}')
            for i in range(1, 4): a(f's_bcnt1_i32_b64 s31, {MASK(i)}\ns_add_u32 s30, s30, s31')
            a(f's_cmp_eq_u32 s30, 0\ns_cbranch_scc1 {LHD}')
            a(f's_sub_u32 {sSpin}, {sSpin}, 1\ns_cbranch_scc1 {LHD}')
            a(f's_cmp_le_u32 s30, {h1thr}\ns_cbranch_scc1 {LHS}\ns_sleep {h1sleep}\n{LHS}:')
            for i in range(4):
                Sk = a.lab('GS')
                a(f's_wqm_b64 exec, {MASK(i)}\ns_cbranch_execz {Sk}')
                h1ld(i)
                a(f'{Sk}:')
            a(f's_mov_b64 exec, -1\ns_branch {LH}\n{LHD}:')
    if tight & 1:
        for e in (0, 2): a(f'v_pk_add_f32 {V(G+e,2)}, {V(G+e,2)}, {V(G+4+e,2)}\nv_pk_add_f32 {V(G+8+e,2)}, {V(G+8+e,2)}, {V(G+12+e,2)}')
        for e in (0, 2): a(f'v_pk_add_f32 {V(G+e,2)}, {V(G+e,2)}, {V(G+8+e,2)}')
    else:
        untag([G + 4*i + e for i in range(4) for e in (0, 3)])
        for e in (0, 2): a(f'v_pk_mul_f32 {V(G+e,2)}, {V(G+e,2)}, {V(W,2)} op_sel:[0,0] op_sel_hi:[1,0]')
        for i in range(1, 4):
            for e in (0, 2): a(f'v_pk_fma_f32 {V(G+e,2)}, {V(G+4*i+e,2)}, {V(W+(i&2),2)}, {V(G+e,2)} op_sel:[0,{i&1},0] op_sel_hi:[1,{i&1},1]')
    scat4(G)
    allred('v_add_f32', V(G), None, ('r4', 'r8'))
    rnd(V(G))
    setexec(0x000f000f000f000f)
    a(f'ds_write_b16_d16_hi v13, v{G} offset:{OV}')
    stamp(11)
    wo_finish()
    stamp(26)
    a(f'{LXM}:')
    a(f's_cmp_lg_u32 {sI}, 2\ns_cbranch_scc1 L_fin2\ns_and_b32 s30, s2, 7\ns_cmp_lg_u32 s30, {RX}\ns_cbranch_scc1 L_fin2')
    red_setup()
    die_mode()
    await_(C_AD, 4, 'v11', sleep=2)
    a(f'v_mov_b32 v152, 0\nglobal_load_short_d16_hi v152, v29, {sX}')
    if otouch: a(f'global_load_ushort v250, v29, {sOUT}')
    a(f'v_lshlrev_b32 v12, 4, v1\nv_lshl_add_u32 v12, {sPi}, 10, v12\nv_mov_b32 v46, {f2u(1/1024):#x}')
    a(f's_mov_b32 s40, {ST}\nv_mov_b32 v150, 4095\ns_mov_b32 s59, {TAB}')
    mark('ad')
    stamp(25)
    l4 = [(G + 4*i, 4, 'v12', P4 + i*1024) for i in range(8)]
    if smp4:
        gather(l4[:smp4], 'v11', sleep=1)
    if tight & 2: gather_t(l4, 'v11', lambda i: untag([G + 4*i, G + 4*i + 3]))
    elif pd2 is None: gather(l4[smp4:], 'v11')
    else: gather_p(l4[smp4:], 'v11', depth=pd2, sleep=ps2)
    mark('p4')
    stamp(24)
    def p4_sum():
        if not tight & 2: untag([G + 4*i + e for i in range(8) for e in (0, 3)])
        for st in (4, 8, 16):
            for i in range(0, 32, 2*st):
                for e in (0, 2): a(f'v_pk_add_f32 {V(G+i+e,2)}, {V(G+i+e,2)}, {V(G+i+st+e,2)}')
        scat4(G)
        allred('v_add_f32', V(G), None, ('r8',))
        rnd(V(G))
    late_await(C_SM, 1, 'v11', lambda: a(f'ds_read_b128 v[140:143], v6 offset:{SM}'), p4_sum)
    a(f'v_mul_f32 v16, v{G}, v140\nv_cndmask_b32 v157, v142, v141, s[100:101]\nv_mov_b32 v23, 0'); rnd('v16'); a('v_add_f32 v16, v16, v152'); rnd('v16')
    a('v_mul_f32 v17, v16, v142')
    a('v_cndmask_b32 v18, v16, v17, s[100:101]\nv_cndmask_b32 v20, 1.0, v17, s[100:101]\nv_cndmask_b32 v21, v16, v142, s[100:101]')
    a('v_mul_f32 v20, v18, v20\nv_mul_f32 v21, v18, v21\nv_mul_f32 v22, v18, v157')
    st_publish('s40')
    mark('sp')
    stamp(21)
    gather_st(G, ST, fsleep)
    mark('st')
    stamp(12)
    def ln1():
        st_reduce(G)
        for k, ln in enumerate((0, 16, 32, 1, 17, 33)): a(f'v_readlane_b32 s{38+k}, v{G}, {ln}')
        a('v_mul_f32 v24, s38, v46\nv_mul_f32 v25, s39, v46\nv_fma_f32 v25, -v24, v24, v25\nv_max_f32 v25, 0, v25')
        if trim: a(f'v_add_f32 v25, {f2u(1e-5):#x}, v25\nv_rsq_f32 v25, v25')
        else: ln_scale('v24', 'v25')
    late_await(C_TAB, 1, 'v11', lambda: a(f'ds_read_b128 v[144:147], {vM} offset:{SM + 1024}\nds_read_b64 v[148:149], {vM} offset:{SM + 1040}'), ln1)
    a('v_fma_f32 v26, -v24, v144, s40\nv_fma_f32 v28, -v24, v149, s43')
    a('v_mul_f32 v27, v24, v145\nv_fma_f32 v27, -2.0, s42, v27\nv_fma_f32 v27, v27, v24, s41')
    if trim:
        a('v_sub_f32 v40, v16, v24\nv_fma_f32 v26, v26, v25, v146\nv_add_f32 v28, v28, v28\nv_mul_f32 v40, v40, v142\nv_fma_f32 v27, v27, v25, v28')
        a('v_mul_f32 v26, v26, v46\nv_fma_f32 v27, v27, v25, v148\nv_fma_f32 v40, v40, v25, v141\nv_mul_f32 v27, v27, v46\nv_fma_f32 v27, -v26, v26, v27')
        a(f'v_max_f32 v27, 0, v27\nv_sub_f32 v40, v40, v26\nv_add_f32 v27, {f2u(1e-5):#x}, v27\nv_rsq_f32 v27, v27\nv_mul_f32 v40, v40, v27'); rnd('v40')
    else:
        a('v_sub_f32 v40, v16, v24')
        a('v_fma_f32 v26, v26, v25, v146\nv_add_f32 v28, v28, v28\nv_fma_f32 v27, v27, v25, v28\nv_fma_f32 v27, v27, v25, v148')
        rnd('v40')
        a('v_mul_f32 v26, v26, v46\nv_mul_f32 v27, v27, v46\nv_mul_f32 v40, v40, v25\nv_fma_f32 v27, -v26, v26, v27')
        rnd('v40')
        a('v_max_f32 v27, 0, v27\nv_mul_f32 v40, v40, v142')
        rnd('v27'); rnd('v40'); rnd('v26')
        a(f'v_add_f32 v27, {f2u(1e-5):#x}, v27\nv_add_f32 v40, v40, v141'); rnd('v27'); rnd('v40')
        a('v_sqrt_f32 v27, v27\nv_sub_f32 v40, v40, v26'); rnd('v27'); rnd('v40')
        a('v_rcp_f32 v27, v27\nv_mul_f32 v40, v40, v27'); rnd('v40')
    a(f'v_bfe_u32 v41, v40, 16, 15\nv_lshrrev_b32 v43, 31, v40\nv_subrev_u32 v42, {E0 << 7}, v41\nv_cmp_eq_u32 vcc, 0, v41')
    a(f'v_cmp_lt_u32 s[38:39], v42, v47\nv_lshl_add_u32 v42, v43, 12, v42\nv_cndmask_b32 v42, v42, v47, vcc'.replace('v47', 'v150'))
    a(f'v_and_b32 v42, 0x1fff, v42\nv_lshlrev_b32 v42, 2, v42\nbuffer_load_dword v41, v42, {SRD_WS}, s59 offen sc1')
    late_await(C_GB, 1, 'v11', lambda: a(f'ds_read_b32 v143, v6 offset:{SM + 1152}'), lambda: a('s_or_b64 s[38:39], s[38:39], vcc'))
    a('s_waitcnt vmcnt(0)')
    a(f'v_and_b32 v42, 0xffff, v41\nv_and_b32 v41, 0xffff0000, v41\nv_cmp_ne_u32 vcc, {sT}, v42\ns_orn2_b64 s[38:39], vcc, s[38:39]\ns_cbranch_scc1 L_slow1')
    a('L_out:')
    a('v_mul_f32 v41, v41, v143'); rnd('v41'); a('v_add_f32 v41, v41, v16'); rnd('v41')
    setexec(0x00ff00ff00ff00ff)
    a(f'global_store_short_d16_hi v29, v41, {sOUT}{osc}')
    setexec(-1)
    stamp(14)
    if lite:
        a(f's_memrealtime s[34:35]\ns_lshl_b32 s30, s2, 7\ns_add_u32 s30, s30, {DBG + 64}\nv_mov_b32 v11, 0\ns_waitcnt lgkmcnt(0)\nv_mov_b32 v12, s34')
        setexec(1)
        a(f'buffer_store_dword v12, v11, {SRD_WS}, s30 offen')
        setexec(-1)
    if enc:
        mark('end')
        if enc == 'ack': a('s_waitcnt vmcnt(0)'); mark('ack')
        if encd: a('s_memrealtime s[38:39]\ns_waitcnt lgkmcnt(0)\ns_sub_u32 s62, s62, s38\ns_add_u32 s62, s62, 300\ns_lshl_b32 s62, s62, 5')
        else: a('s_memrealtime s[38:39]\ns_waitcnt lgkmcnt(0)\ns_sub_u32 s62, s62, s34\ns_sub_u32 s62, s62, 2000\ns_lshl_b32 s62, s62, 4')
        a('L_enc:\ns_memrealtime s[40:41]\ns_waitcnt lgkmcnt(0)\ns_sub_u32 s40, s40, s38\ns_cmp_lt_i32 s40, s62\ns_cbranch_scc1 L_enc')
    a('L_fin:')
    if not eep:
        a('; advance the epoch word')
        a(f's_cmp_lg_u32 s2, {RX}\ns_cbranch_scc1 L_fin2')
        a(f'v_mov_b32 v7, {sE}\nv_mov_b32 v8, 0')
        setexec(1)
        a(f'global_store_dword v8, v7, {sWS} offset:12')
        setexec(-1)
    a('L_fin2:')
    if stamps:
        stamp(15)
        a('s_getreg_b32 s30, hwreg(HW_REG_XCC_ID)\nv_writelane_b32 v255, s30, 40')
        a(f's_lshl_b32 s30, s2, 11\ns_add_u32 s30, s30, {DBG}\nv_lshlrev_b32 v7, 2, v0')
        a(f'buffer_store_dword v255, v7, {SRD_WS}, s30 offen')
    a('L_end:\ns_endpgm')
    a('L_slow1:\ns_ff1_i32_b64 s40, s[38:39]\ns_bitset0_b64 s[38:39], s40\nv_readlane_b32 s41, v40, s40')
    a('v_lshlrev_b32 v11, 4, v1\nv_mov_b32 v18, 0\nv_mov_b32 v19, 0\nv_mov_b32 v42, s41\nv_mov_b32 v43, s41\ns_mov_b32 s42, 0')
    a('L_slow2:')
    for j, ptr in enumerate((sW1, sB1, sW2)): a(f'global_load_dwordx4 {V(G+4*j,4)}, v11, {ptr}')
    a('v_add_u32 v11, 0x400, v11\ns_waitcnt vmcnt(0)')
    for j in range(3):
        for i in range(4): a(f'v_lshlrev_b32 v{160+8*j+2*i}, 16, v{G+4*j+i}\nv_and_b32 v{161+8*j+2*i}, 0xffff0000, v{G+4*j+i}')
    gelu_units([(lambda u, i=i: f'v_pk_fma_f32 {u}, v[42:43], {V(160+2*i,2)}, {V(168+2*i,2)}',
                 lambda u, i=i: f'v_pk_fma_f32 v[18:19], {u}, {V(176+2*i,2)}, v[18:19]') for i in range(4)], 48, 64, 4)
    a('s_add_u32 s42, s42, 1\ns_cmp_lt_u32 s42, 7\ns_cbranch_scc1 L_slow2')
    a('v_add_f32 v18, v18, v19')
    allred('v_add_f32', 'v18', 'v19')
    rnd('v18'); a('v_add_f32 v18, v18, v159'); rnd('v18')
    a('v_readfirstlane_b32 s41, v18\ns_mov_b32 m0, s40\nv_writelane_b32 v41, s41, m0')
    a('s_cmp_lg_u64 s[38:39], 0\ns_cbranch_scc1 L_slow1\ns_branch L_out')
    for t in tails: a(t)
    a('L_code_end:')
    body = a.finish()
    out = HEADER + f'; @launch grid=(256,1,1) block=(512,1,1) lds={LDS_BYTES}\n' + DOC
    out += f'.amdgcn_target "amdgcn-amd-amdhsa--gfx950"\n.text\n.globl {NAME}_kernel\n.p2align 8\n.type {NAME}_kernel,@function\n'
    out += body
    out += f'''.section .rodata,"a"
.p2align 6
.amdhsa_kernel {NAME}_kernel
  .amdhsa_next_free_vgpr 256
  .amdhsa_next_free_sgpr 102
  .amdhsa_accum_offset 256
  .amdhsa_group_segment_fixed_size 0
  .amdhsa_kernarg_size 120
  .amdhsa_user_sgpr_count 2
  .amdhsa_user_sgpr_kernarg_segment_ptr 1
  .amdhsa_system_sgpr_workgroup_id_x 1
  .amdhsa_float_denorm_mode_32 3
.end_amdhsa_kernel
'''
    return out

if __name__ == '__main__':
    kw = {}
    for arg in sys.argv[2:]:
        k, v = arg.split('=')
        kw[k] = eval(v)
    open(sys.argv[1], 'w').write(gen(**kw))
```
